```python
import torch

def _softmax(x, axis=-1):
    return torch.softmax(x, dim=axis)

def _gelu(x):
    return torch.nn.functional.gelu(x, approximate='tanh')

def _silu(x):
    return torch.nn.functional.silu(x)

def _sigmoid(x):
    return torch.sigmoid(x)

def _layernorm(x, axis=-1, eps=1e-05):
    m = x.mean(dim=axis, keepdim=True)
    v = x.var(dim=axis, keepdim=True, unbiased=False)
    return (x - m) / torch.sqrt(v + eps)

def _scatter_add(tgt, idx, src, axis=0):
    return tgt.clone().index_add_(axis, idx, src)

def _segment_sum(src, seg, n):
    out = torch.zeros((n,) + src.shape[1:], dtype=src.dtype)
    return out.index_add_(0, seg, src)

def _pad(x, pw):
    flat = tuple((v for pair in reversed(pw) for v in pair))
    return torch.nn.functional.pad(x, flat)
kernel_name = 'adaLN_cond__mha_block__glu_gated_glu__prompt'

def setup_inputs():

    _w = lambda a: (lambda t: t.to(torch.bfloat16) if t.is_floating_point() else t)(torch.as_tensor(a))

    def _A_setup():
        B, S, D, H = (1, 2048, 640, 32)
        return {'x': _w((lambda *s: torch.randn(*s, dtype=torch.bfloat16) * 0.05)(B, S, D)), 'wqkv': _w((lambda *s: torch.randn(*s, dtype=torch.bfloat16) * 0.05)(D, 3 * D)), 'wo': _w((lambda *s: torch.randn(*s, dtype=torch.bfloat16) * 0.05)(D, D))}
    _A_in = _A_setup()

    def _B_setup():
        B, S, D, F = (1, 2048, 640, 1536)
        return {'x': _w((lambda *s: torch.randn(*s, dtype=torch.bfloat16) * 0.05)(B, S, D)), 'w_gate': _w((lambda *s: torch.randn(*s, dtype=torch.bfloat16) * 0.05)(D, F)), 'w_up': _w((lambda *s: torch.randn(*s, dtype=torch.bfloat16) * 0.05)(D, F)), 'w_down': _w((lambda *s: torch.randn(*s, dtype=torch.bfloat16) * 0.05)(F, D))}
    _B_in = _B_setup()
    return {'A_x': _A_in['x'], 'A_wqkv': _A_in['wqkv'], 'A_wo': _A_in['wo'], 'B_x': _B_in['x'], 'B_w_gate': _B_in['w_gate'], 'B_w_up': _B_in['w_up'], 'B_w_down': _B_in['w_down'], 'c': _w((lambda *s: torch.randn(*s, dtype=torch.bfloat16) * 0.1)(1, 640) * 8.0), 'w_mod': _w((lambda *s: torch.randn(*s, dtype=torch.bfloat16) * 0.1)(640, 6 * 640) * 640 ** (-0.5) * 8.0)}

def reference(A_x, A_wqkv, A_wo, B_x, B_w_gate, B_w_up, B_w_down, c, w_mod):

    def _A_ref(x, wqkv, wo):
        B, S, D = x.shape
        H = 32
        Dh = D // H
        qkv = (lambda x, *d: x.permute(*d))((x @ wqkv).reshape(B, S, 3, H, Dh), 2, 0, 3, 1, 4)
        q, k, v = (qkv[0], qkv[1], qkv[2])
        scores = torch.einsum('bhqd,bhkd->bhqk', q, k) * Dh ** (-0.5)
        p = _softmax(scores, axis=-1)
        o = torch.einsum('bhqk,bhkd->bhqd', p, v)
        return (lambda x, *d: x.permute(*d))(o, 0, 2, 1, 3).reshape(B, S, D) @ wo

    def _B_ref(x, w_gate, w_up, w_down):
        g = torch.einsum('bsd,df->bsf', x, w_gate)
        u = torch.einsum('bsd,df->bsf', x, w_up)
        h = _sigmoid(g) * u
        return torch.einsum('bsf,fd->bsd', h, w_down)
    x = A_x
    mod = (_silu(c) @ w_mod).reshape(c.shape[0], 6, 1, -1)
    sa, ca, ga, sb, cb, gb = (mod[:, 0].clone(), mod[:, 1].clone(), mod[:, 2].clone(), mod[:, 3].clone(), mod[:, 4].clone(), mod[:, 5].clone())
    h = _layernorm(x, axis=-1) * (1 + ca) + sa
    x = x + ga * _A_ref(h, A_wqkv, A_wo)
    h = _layernorm(x, axis=-1) * (1 + cb) + sb
    x = x + gb * _B_ref(h, B_w_gate, B_w_up, B_w_down)
    return x
```

```python
import re

def v(i): return "v%d" % i
def s(i): return "s%d" % i
def a(i): return "a%d" % i
def vr(i, n): return "v%d" % i if n == 1 else "v[%d:%d]" % (i, i + n - 1)
def sr(i, n): return "s%d" % i if n == 1 else "s[%d:%d]" % (i, i + n - 1)
def ar(i, n): return "a%d" % i if n == 1 else "a[%d:%d]" % (i, i + n - 1)

_REG = re.compile(r"^(-|\|)?(abs\()?([vsa])(\d+)\)?\|?$")
_RNG = re.compile(r"^(-)?([vsa])\[(\d+):(\d+)\]$")

def regs_of(tok):
    tok = tok.strip()
    m = _RNG.match(tok)
    if m: return {(m.group(2), i) for i in range(int(m.group(3)), int(m.group(4)) + 1)}
    m = _REG.match(tok)
    if m: return {(m.group(3), int(m.group(4)))}
    if tok in ("vcc", "vcc_lo", "vcc_hi"): return {("x", "vcc")}
    if tok in ("exec", "exec_lo", "exec_hi"): return {("x", "exec")}
    if tok == "m0": return {("x", "m0")}
    return set()

TRANS = ("v_exp_f32", "v_log_f32", "v_rcp_f32", "v_rsq_f32", "v_sqrt_f32", "v_sin_f32", "v_cos_f32", "v_exp_f16", "v_rcp_f16")
RMW_DST = ("v_fmac_", "v_pk_fmac", "v_dot2c", "v_fma_mixhi", "v_fma_mixlo", "v_writelane")

class Ins:
    __slots__ = ("text", "mn", "ops", "kind", "wr", "rd", "passes", "srcA", "srcC", "dpp", "sdwa", "is_store", "store_data",
                 "wide_store", "lds_dma", "target", "uncond", "nop", "salu_wr", "lane_rd")
    def __init__(self, text):
        self.text = text
        t = text.split(";")[0].strip()
        self.mn = t.split()[0]
        rest = t[len(self.mn):].strip()
        raw = [x.strip() for x in rest.split(",")] if rest else []
        ops = []
        for i, x in enumerate(raw):
            ops.append(x.split()[0] if x else x)
        self.ops = ops
        self.wr, self.rd = set(), set()
        self.passes = 0; self.srcA = set(); self.srcC = set()
        self.dpp = ("row_" in t or "quad_perm" in t or "wave_" in t or "_dpp" in self.mn)
        self.sdwa = "_sdwa" in self.mn or ("op_sel" in t and self.mn.startswith("v_fma_mix") and not self.mn.startswith("v_fma_mix_f32"))
        self.is_store = False; self.store_data = set(); self.wide_store = False
        self.lds_dma = False; self.target = None; self.uncond = False; self.nop = 0; self.salu_wr = set(); self.lane_rd = set()
        mn = self.mn
        R = lambda i: regs_of(ops[i]) if i < len(ops) else set()
        if mn.startswith("v_mfma") or mn.startswith("v_smfmac"):
            self.kind = "mfma"
            self.passes = 4 if "16x16" in mn else 8
            if "4x4" in mn: self.passes = 2
            if "_2b" in mn or ("32x32x4" in mn): self.passes = 16
            if "16x16x4" in mn and "4b" in mn: self.passes = 8
            self.wr = R(0); self.srcA = R(1) | R(2); self.srcC = R(3); self.rd = self.srcA | self.srcC
        elif mn.startswith("v_"):
            self.kind = "valu"
            nd = 1
            if mn.startswith(("v_add_co", "v_sub_co", "v_addc_co", "v_subb_co", "v_subrev_co", "v_mad_u64_u32", "v_div_scale")): nd = 2
            if mn.startswith(("v_permlane32_swap", "v_permlane16_swap", "v_swap_b32")):
                self.wr = R(0) | R(1); self.rd = R(0) | R(1)
            else:
                for i in range(nd): self.wr |= R(i)
                for i in range(nd, len(ops)): self.rd |= R(i)
                if mn.startswith(RMW_DST) or "UNUSED_PRESERVE" in t: self.rd |= R(0)
                if mn.startswith("v_cndmask") and len(ops) == 3: self.rd.add(("x", "vcc"))
                if mn.startswith(("v_addc_co", "v_subb_co")): pass
            if mn.startswith("v_cmpx"): self.wr.add(("x", "exec"))
            if mn.startswith(("v_readlane", "v_readfirstlane")): self.lane_rd = R(1)
        elif mn.startswith("ds_"):
            self.kind = "ds"
            if mn.startswith(("ds_read", "ds_bpermute", "ds_permute", "ds_swizzle")):
                self.wr = R(0)
                for i in range(1, len(ops)): self.rd |= R(i)
            else:
                for i in range(len(ops)): self.rd |= R(i)
        elif mn.startswith(("buffer_", "global_", "flat_")):
            self.kind = "vmem"
            if mn in ("buffer_inv", "buffer_wbl2"):
                pass
            elif " lds" in (" " + t) and mn.startswith("buffer_load") or mn.startswith("global_load_lds"):
                self.lds_dma = True
                for i in range(len(ops)): self.rd |= R(i)
                self.rd.add(("x", "m0"))
            elif "_load" in mn:
                self.wr = R(0)
                for i in range(1, len(ops)): self.rd |= R(i)
            elif "atomic" in mn:
                for i in range(len(ops)): self.rd |= R(i)
                if " sc0" in t: self.wr = R(0)
            else:
                self.is_store = True
                self.store_data = R(0) if mn.startswith("buffer_") else R(1)
                self.wide_store = mn.endswith(("x3", "x4"))
                for i in range(len(ops)): self.rd |= R(i)
        elif mn.startswith("s_"):
            self.kind = "salu"
            if mn == "s_nop":
                self.nop = int(ops[0], 0) + 1
            elif mn.startswith("s_cbranch") or mn == "s_branch":
                self.kind = "branch"; self.target = ops[0]; self.uncond = (mn == "s_branch")
            elif mn == "s_endpgm":
                self.kind = "end"; self.uncond = True
            elif mn.startswith(("s_cmp", "s_waitcnt", "s_barrier", "s_setprio", "s_sleep", "s_bitcmp")):
                for i in range(len(ops)): self.rd |= R(i)
            else:
                self.wr = R(0)
                for i in range(1, len(ops)): self.rd |= R(i)
                if "saveexec" in mn: self.wr.add(("x", "exec"))
                self.salu_wr = set(self.wr)
        else:
            raise ValueError("unknown instruction class: " + text)

def _isv(r): return r[0] in ("v", "a")
def _iss(r): return r[0] == "s" or r == ("x", "vcc")

def need(p, c):
    n = 0
    if p.kind == "valu":
        vw = {r for r in p.wr if _isv(r)}
        sw = {r for r in p.wr if _iss(r)}
        if c.kind == "mfma" and vw & c.rd: n = max(n, 2)
        if c.kind == "valu":
            if c.lane_rd & vw: n = max(n, 1)
            if c.dpp and (vw & c.rd): n = max(n, 2)
            if c.mn.startswith("v_permlane") and (vw & c.rd): n = max(n, 2)
            if p.mn.startswith(TRANS) and (vw & c.rd): n = max(n, 1)
            if p.sdwa and (vw & (c.rd | c.wr)): n = max(n, 1)
            if sw & c.rd: n = max(n, 4 if c.mn.startswith(("v_readlane", "v_writelane")) else 2)
        if c.kind == "vmem" and (sw & c.rd): n = max(n, 5)
        if c.kind in ("salu", "branch") and (sw & c.rd): n = max(n, 4)
        if c.kind == "branch" and ("x", "vcc") in p.wr and "vcc" in c.mn: n = max(n, 5)
        if ("x", "exec") in p.wr:
            if c.kind == "mfma": n = max(n, 4)
            if c.kind == "valu": n = max(n, 5)
    elif p.kind == "mfma":
        ps = p.passes
        far = {2: 5, 4: 8, 8: 12, 16: 20}[ps]
        if c.kind == "mfma":
            if p.wr & c.srcA: n = max(n, far)
            if p.wr & c.srcC:
                if p.wr == c.srcC and ps == c.passes: n = max(n, 2 if ps == 2 else 0)
                else: n = max(n, {2: 4, 4: 6, 8: 10, 16: 18}[ps])
            elif p.wr & c.wr: n = max(n, far)
        elif c.kind in ("valu", "ds", "vmem"):
            if p.wr & (c.rd | c.wr): n = max(n, far)
            if c.kind == "valu" and (p.srcC & c.wr): n = max(n, {2: 1, 4: 3, 8: 7, 16: 15}[ps])
    elif p.kind == "vmem":
        if p.wide_store and (p.store_data & c.wr): n = max(n, 2 if c.kind == "valu" else 1)
    elif p.kind == "salu":
        if ("x", "m0") in p.wr and (c.lds_dma or c.mn.startswith("s_movrel") or "addtid" in c.mn): n = max(n, 1)
    return n

MAXD = 21

def hazard_pass(lines):
    items = []
    for ln in lines:
        t = ln.strip()
        if not t or t.startswith(";") or t.startswith("."):
            items.append(("x", ln))
        elif re.match(r"^[A-Za-z_][\w.$]*:$", t):
            items.append(("l", t[:-1]))
        else:
            items.append(("i", Ins(t)))
    total = 0
    while True:
        labels = {it[1]: k for k, it in enumerate(items) if it[0] == "l"}
        branches = {}
        for k, it in enumerate(items):
            if it[0] == "i" and it[1].target: branches.setdefault(it[1].target, []).append(k)
        inserted = []
        for k, it in enumerate(items):
            if it[0] != "i": continue
            c = it[1]
            if c.kind == "salu" and not c.rd: continue
            worst = 0
            stack = [(k - 1, 0)]
            seen = {}
            while stack:
                j, d = stack.pop()
                while j >= 0 and d < MAXD:
                    jt = items[j]
                    if jt[0] == "l":
                        for b in branches.get(jt[1], []):
                            key = (b, d)
                            if key not in seen:
                                seen[key] = 1
                                stack.append((b, d))
                        pj = j - 1
                        while pj >= 0 and items[pj][0] == "x": pj -= 1
                        if pj >= 0 and items[pj][0] == "i" and items[pj][1].uncond: break
                        j -= 1; continue
                    if jt[0] == "x":
                        j -= 1; continue
                    p = jt[1]
                    nd = need(p, c)
                    if nd > d: worst = max(worst, nd - d)
                    d += p.nop if p.nop else 1
                    j -= 1
            if worst: inserted.append((k, worst))
        if not inserted: break
        k, w = inserted[0]
        batch = [inserted[0]]
        last = k
        for kk, ww in inserted[1:]:
            if kk - last > MAXD + 4:
                batch.append((kk, ww)); last = kk
        for kk, ww in reversed(batch):
            nops = []
            while ww > 0:
                n = min(ww, 16); nops.append(("i", Ins("s_nop %d" % (n - 1)))); ww -= n
            items[kk:kk] = nops
            total += 1
    out = []
    for it in items:
        if it[0] == "x": out.append(it[1])
        elif it[0] == "l": out.append(it[1] + ":")
        else: out.append("  " + it[1].text)
    return out, total

import os
STAMPS = bool(os.environ.get("STAMPS"))
STAMP_BASE = 40 << 20

import subprocess, tempfile
def ins_sizes(lines):
    src = '.amdgcn_target "amdgcn-amd-amdhsa--gfx950"\n.text\n' + "\n".join(lines) + "\n"
    with tempfile.TemporaryDirectory() as d:
        open(d + "/a.s", "w").write(src)
        subprocess.run(["clang", "-x", "assembler", "-target", "amdgcn-amd-amdhsa", "-mcpu=gfx950", "-c", d + "/a.s", "-o", d + "/a.o"], check=True)
        out = subprocess.run(["llvm-objdump", "-d", "--mcpu=gfx950", d + "/a.o"], capture_output=True, text=True).stdout
    sz = []
    for ln in out.split("\n"):
        m = re.search(r"// [0-9A-F]{12}: ((?:[0-9A-F]{8} ?)+)", ln)
        if m: sz.append(4 * len(m.group(1).split()))
    res = []; j = 0
    for ln in lines:
        t = ln.strip()
        if not t or t.startswith((";", ".")) or t.endswith(":"): res.append(None)
        else: res.append(sz[j]); j += 1
    assert j == len(sz), (j, len(sz))
    return res

_PROMOTABLE = ("v_exp_f32", "v_rcp_f32", "v_add_f32", "v_mul_f32", "v_mov_b32", "v_max_f32", "v_sub_f32", "v_fmac_f32")
def align_pass(lines):
    if not any(l.strip() == ";@align" for l in lines): return lines
    sizes = ins_sizes(lines)
    out = []; on = False; phase = 0; cand = None
    for ln, sz in zip(lines, sizes):
        t = ln.strip()
        if t == ";@align":
            on = True; phase = 0; cand = None; out.append(".p2align 3"); continue
        if t == ";@endalign":
            on = False; continue
        if not on or sz is None:
            out.append(ln); continue
        if sz == 8 and phase == 4:
            if cand is not None:
                mn = out[cand].split()[0]
                out[cand] = out[cand].replace(mn, mn + "_e64", 1)
            else:
                out.append("  s_nop 0")
            phase = 0
        out.append(ln)
        if sz == 8: cand = None
        elif sz == 4:
            mn = t.split()[0]
            if mn in _PROMOTABLE and "0x" not in t: cand = len(out) - 1
        phase = (phase + sz) % 8
    return out

class K:
    count = 0
    def __init__(self, name, nvgpr, nsgpr=102, accum=None):
        self.name = name; self.lines = []; self.nvgpr = nvgpr; self.nsgpr = nsgpr; self.accum = accum or nvgpr
        self.uid = 0
        self.index = K.count; K.count += 1
    def stamp(self, i):
        if not STAMPS: return
        self(f"s_memtime s[{70+2*i}:{71+2*i}]")
        if i == 0: self("s_memrealtime s[96:97]")
        self("s_waitcnt lgkmcnt(0)")
    def stamp_flush(self, srd, swave, n):
        if not STAMPS: return
        self("s_memrealtime s[98:99]\ns_waitcnt lgkmcnt(0)")
        self(f"s_lshl_b32 s94, s2, 4\ns_add_u32 s94, s94, s{swave}\ns_lshl_b32 s94, s94, 6\ns_add_u32 s94, s94, {STAMP_BASE + self.index * (1 << 20)}")
        self("v_mov_b32 v250, 0")
        for i in range(n):
            self(f"v_mov_b32 v251, s{70+2*i}\nbuffer_store_dword v251, v250, s[{srd}:{srd+3}], s94 offen offset:{4*i}")
        self(f"v_mov_b32 v251, s96\nbuffer_store_dword v251, v250, s[{srd}:{srd+3}], s94 offen offset:56")
        self(f"v_mov_b32 v251, s98\nbuffer_store_dword v251, v250, s[{srd}:{srd+3}], s94 offen offset:60")
    def __call__(self, txt):
        for ln in txt.strip().split("\n"):
            ln = ln.strip()
            if ln: self.lines.append(ln)
    def label(self, l): self.lines.append(l + ":")
    def lab(self, base):
        self.uid += 1
        return "%s_%s%d" % (self.name.replace("_kernel", ""), base, self.uid)
    def c(self, txt): self.lines.append("; " + txt)
    def text(self):
        body, n = hazard_pass(self.lines)
        body = align_pass(body)
        head = [".globl %s" % self.name, ".p2align 8", ".type %s,@function" % self.name, "%s:" % self.name]
        return "\n".join(head + body) + "\n", n
    def desc(self):
        return f""".p2align 6
.amdhsa_kernel {self.name}
  .amdhsa_next_free_vgpr {self.nvgpr}
  .amdhsa_next_free_sgpr {self.nsgpr}
  .amdhsa_accum_offset {self.accum}
  .amdhsa_group_segment_fixed_size 0
  .amdhsa_kernarg_size 96
  .amdhsa_user_sgpr_count 2
  .amdhsa_user_sgpr_kernarg_segment_ptr 1
  .amdhsa_system_sgpr_workgroup_id_x 1
.end_amdhsa_kernel
"""
```

```python
import re

def v(i): return "v%d" % i
def s(i): return "s%d" % i
def a(i): return "a%d" % i
def vr(i, n): return "v%d" % i if n == 1 else "v[%d:%d]" % (i, i + n - 1)
def sr(i, n): return "s%d" % i if n == 1 else "s[%d:%d]" % (i, i + n - 1)
def ar(i, n): return "a%d" % i if n == 1 else "a[%d:%d]" % (i, i + n - 1)

_REG = re.compile(r"^(-|\|)?(abs\()?([vsa])(\d+)\)?\|?$")
_RNG = re.compile(r"^(-)?([vsa])\[(\d+):(\d+)\]$")

def regs_of(tok):
    tok = tok.strip()
    m = _RNG.match(tok)
    if m: return {(m.group(2), i) for i in range(int(m.group(3)), int(m.group(4)) + 1)}
    m = _REG.match(tok)
    if m: return {(m.group(3), int(m.group(4)))}
    if tok in ("vcc", "vcc_lo", "vcc_hi"): return {("x", "vcc")}
    if tok in ("exec", "exec_lo", "exec_hi"): return {("x", "exec")}
    if tok == "m0": return {("x", "m0")}
    return set()

TRANS = ("v_exp_f32", "v_log_f32", "v_rcp_f32", "v_rsq_f32", "v_sqrt_f32", "v_sin_f32", "v_cos_f32", "v_exp_f16", "v_rcp_f16")
RMW_DST = ("v_fmac_", "v_pk_fmac", "v_dot2c", "v_fma_mixhi", "v_fma_mixlo", "v_writelane")

class Ins:
    __slots__ = ("text", "mn", "ops", "kind", "wr", "rd", "passes", "srcA", "srcC", "dpp", "sdwa", "is_store", "store_data",
                 "wide_store", "lds_dma", "target", "uncond", "nop", "salu_wr", "lane_rd")
    def __init__(self, text):
        self.text = text
        t = text.split(";")[0].strip()
        self.mn = t.split()[0]
        rest = t[len(self.mn):].strip()
        raw = [x.strip() for x in rest.split(",")] if rest else []
        ops = []
        for i, x in enumerate(raw):
            ops.append(x.split()[0] if x else x)
        self.ops = ops
        self.wr, self.rd = set(), set()
        self.passes = 0; self.srcA = set(); self.srcC = set()
        self.dpp = ("row_" in t or "quad_perm" in t or "wave_" in t or "_dpp" in self.mn)
        self.sdwa = "_sdwa" in self.mn or ("op_sel" in t and self.mn.startswith("v_fma_mix") and not self.mn.startswith("v_fma_mix_f32"))
        self.is_store = False; self.store_data = set(); self.wide_store = False
        self.lds_dma = False; self.target = None; self.uncond = False; self.nop = 0; self.salu_wr = set(); self.lane_rd = set()
        mn = self.mn
        R = lambda i: regs_of(ops[i]) if i < len(ops) else set()
        if mn.startswith("v_mfma") or mn.startswith("v_smfmac"):
            self.kind = "mfma"
            self.passes = 4 if "16x16" in mn else 8
            if "4x4" in mn: self.passes = 2
            if "_2b" in mn or ("32x32x4" in mn): self.passes = 16
            if "16x16x4" in mn and "4b" in mn: self.passes = 8
            self.wr = R(0); self.srcA = R(1) | R(2); self.srcC = R(3); self.rd = self.srcA | self.srcC
        elif mn.startswith("v_"):
            self.kind = "valu"
            nd = 1
            if mn.startswith(("v_add_co", "v_sub_co", "v_addc_co", "v_subb_co", "v_subrev_co", "v_mad_u64_u32", "v_div_scale")): nd = 2
            if mn.startswith(("v_permlane32_swap", "v_permlane16_swap", "v_swap_b32")):
                self.wr = R(0) | R(1); self.rd = R(0) | R(1)
            else:
                for i in range(nd): self.wr |= R(i)
                for i in range(nd, len(ops)): self.rd |= R(i)
                if mn.startswith(RMW_DST) or "UNUSED_PRESERVE" in t: self.rd |= R(0)
                if mn.startswith("v_cndmask") and len(ops) == 3: self.rd.add(("x", "vcc"))
                if mn.startswith(("v_addc_co", "v_subb_co")): pass
            if mn.startswith("v_cmpx"): self.wr.add(("x", "exec"))
            if mn.startswith(("v_readlane", "v_readfirstlane")): self.lane_rd = R(1)
        elif mn.startswith("ds_"):
            self.kind = "ds"
            if mn.startswith(("ds_read", "ds_bpermute", "ds_permute", "ds_swizzle")):
                self.wr = R(0)
                for i in range(1, len(ops)): self.rd |= R(i)
            else:
                for i in range(len(ops)): self.rd |= R(i)
        elif mn.startswith(("buffer_", "global_", "flat_")):
            self.kind = "vmem"
            if mn in ("buffer_inv", "buffer_wbl2"):
                pass
            elif " lds" in (" " + t) and mn.startswith("buffer_load") or mn.startswith("global_load_lds"):
                self.lds_dma = True
                for i in range(len(ops)): self.rd |= R(i)
                self.rd.add(("x", "m0"))
            elif "_load" in mn:
                self.wr = R(0)
                for i in range(1, len(ops)): self.rd |= R(i)
            elif "atomic" in mn:
                for i in range(len(ops)): self.rd |= R(i)
                if " sc0" in t: self.wr = R(0)
            else:
                self.is_store = True
                self.store_data = R(0) if mn.startswith("buffer_") else R(1)
                self.wide_store = mn.endswith(("x3", "x4"))
                for i in range(len(ops)): self.rd |= R(i)
        elif mn.startswith("s_"):
            self.kind = "salu"
            if mn == "s_nop":
                self.nop = int(ops[0], 0) + 1
            elif mn.startswith("s_cbranch") or mn == "s_branch":
                self.kind = "branch"; self.target = ops[0]; self.uncond = (mn == "s_branch")
            elif mn == "s_endpgm":
                self.kind = "end"; self.uncond = True
            elif mn.startswith(("s_cmp", "s_waitcnt", "s_barrier", "s_setprio", "s_sleep", "s_bitcmp")):
                for i in range(len(ops)): self.rd |= R(i)
            else:
                self.wr = R(0)
                for i in range(1, len(ops)): self.rd |= R(i)
                if "saveexec" in mn: self.wr.add(("x", "exec"))
                self.salu_wr = set(self.wr)
        else:
            raise ValueError("unknown instruction class: " + text)

def _isv(r): return r[0] in ("v", "a")
def _iss(r): return r[0] == "s" or r == ("x", "vcc")

def need(p, c):
    n = 0
    if p.kind == "valu":
        vw = {r for r in p.wr if _isv(r)}
        sw = {r for r in p.wr if _iss(r)}
        if c.kind == "mfma" and vw & c.rd: n = max(n, 2)
        if c.kind == "valu":
            if c.lane_rd & vw: n = max(n, 1)
            if c.dpp and (vw & c.rd): n = max(n, 2)
            if c.mn.startswith("v_permlane") and (vw & c.rd): n = max(n, 2)
            if p.mn.startswith(TRANS) and (vw & c.rd): n = max(n, 1)
            if p.sdwa and (vw & (c.rd | c.wr)): n = max(n, 1)
            if sw & c.rd: n = max(n, 4 if c.mn.startswith(("v_readlane", "v_writelane")) else 2)
        if c.kind == "vmem" and (sw & c.rd): n = max(n, 5)
        if c.kind in ("salu", "branch") and (sw & c.rd): n = max(n, 4)
        if c.kind == "branch" and ("x", "vcc") in p.wr and "vcc" in c.mn: n = max(n, 5)
        if ("x", "exec") in p.wr:
            if c.kind == "mfma": n = max(n, 4)
            if c.kind == "valu": n = max(n, 5)
    elif p.kind == "mfma":
        ps = p.passes
        far = {2: 5, 4: 8, 8: 12, 16: 20}[ps]
        if c.kind == "mfma":
            if p.wr & c.srcA: n = max(n, far)
            if p.wr & c.srcC:
                if p.wr == c.srcC and ps == c.passes: n = max(n, 2 if ps == 2 else 0)
                else: n = max(n, {2: 4, 4: 6, 8: 10, 16: 18}[ps])
            elif p.wr & c.wr: n = max(n, far)
        elif c.kind in ("valu", "ds", "vmem"):
            if p.wr & (c.rd | c.wr): n = max(n, far)
            if c.kind == "valu" and (p.srcC & c.wr): n = max(n, {2: 1, 4: 3, 8: 7, 16: 15}[ps])
    elif p.kind == "vmem":
        if p.wide_store and (p.store_data & c.wr): n = max(n, 2 if c.kind == "valu" else 1)
    elif p.kind == "salu":
        if ("x", "m0") in p.wr and (c.lds_dma or c.mn.startswith("s_movrel") or "addtid" in c.mn): n = max(n, 1)
    return n

MAXD = 21

def hazard_pass(lines):
    items = []
    for ln in lines:
        t = ln.strip()
        if not t or t.startswith(";") or t.startswith("."):
            items.append(("x", ln))
        elif re.match(r"^[A-Za-z_][\w.$]*:$", t):
            items.append(("l", t[:-1]))
        else:
            items.append(("i", Ins(t)))
    total = 0
    while True:
        labels = {it[1]: k for k, it in enumerate(items) if it[0] == "l"}
        branches = {}
        for k, it in enumerate(items):
            if it[0] == "i" and it[1].target: branches.setdefault(it[1].target, []).append(k)
        inserted = []
        for k, it in enumerate(items):
            if it[0] != "i": continue
            c = it[1]
            if c.kind == "salu" and not c.rd: continue
            worst = 0
            stack = [(k - 1, 0)]
            seen = {}
            while stack:
                j, d = stack.pop()
                while j >= 0 and d < MAXD:
                    jt = items[j]
                    if jt[0] == "l":
                        for b in branches.get(jt[1], []):
                            key = (b, d)
                            if key not in seen:
                                seen[key] = 1
                                stack.append((b, d))
                        pj = j - 1
                        while pj >= 0 and items[pj][0] == "x": pj -= 1
                        if pj >= 0 and items[pj][0] == "i" and items[pj][1].uncond: break
                        j -= 1; continue
                    if jt[0] == "x":
                        j -= 1; continue
                    p = jt[1]
                    nd = need(p, c)
                    if nd > d: worst = max(worst, nd - d)
                    d += p.nop if p.nop else 1
                    j -= 1
            if worst: inserted.append((k, worst))
        if not inserted: break
        k, w = inserted[0]
        batch = [inserted[0]]
        last = k
        for kk, ww in inserted[1:]:
            if kk - last > MAXD + 4:
                batch.append((kk, ww)); last = kk
        for kk, ww in reversed(batch):
            nops = []
            while ww > 0:
                n = min(ww, 16); nops.append(("i", Ins("s_nop %d" % (n - 1)))); ww -= n
            items[kk:kk] = nops
            total += 1
    out = []
    for it in items:
        if it[0] == "x": out.append(it[1])
        elif it[0] == "l": out.append(it[1] + ":")
        else: out.append("  " + it[1].text)
    return out, total

import os
STAMPS = bool(os.environ.get("STAMPS"))
STAMP_BASE = 40 << 20

import subprocess, tempfile
def ins_sizes(lines):
    src = '.amdgcn_target "amdgcn-amd-amdhsa--gfx950"\n.text\n' + "\n".join(lines) + "\n"
    with tempfile.TemporaryDirectory() as d:
        open(d + "/a.s", "w").write(src)
        subprocess.run(["clang", "-x", "assembler", "-target", "amdgcn-amd-amdhsa", "-mcpu=gfx950", "-c", d + "/a.s", "-o", d + "/a.o"], check=True)
        out = subprocess.run(["llvm-objdump", "-d", "--mcpu=gfx950", d + "/a.o"], capture_output=True, text=True).stdout
    sz = []
    for ln in out.split("\n"):
        m = re.search(r"// [0-9A-F]{12}: ((?:[0-9A-F]{8} ?)+)", ln)
        if m: sz.append(4 * len(m.group(1).split()))
    res = []; j = 0
    for ln in lines:
        t = ln.strip()
        if not t or t.startswith((";", ".")) or t.endswith(":"): res.append(None)
        else: res.append(sz[j]); j += 1
    assert j == len(sz), (j, len(sz))
    return res

_PROMOTABLE = ("v_exp_f32", "v_rcp_f32", "v_add_f32", "v_mul_f32", "v_mov_b32", "v_max_f32", "v_sub_f32", "v_fmac_f32")
def align_pass(lines):
    if not any(l.strip() == ";@align" for l in lines): return lines
    sizes = ins_sizes(lines)
    out = []; on = False; phase = 0; cand = None
    for ln, sz in zip(lines, sizes):
        t = ln.strip()
        if t == ";@align":
            on = True; phase = 0; cand = None; out.append(".p2align 3"); continue
        if t == ";@endalign":
            on = False; continue
        if not on or sz is None:
            out.append(ln); continue
        if sz == 8 and phase == 4:
            if cand is not None:
                mn = out[cand].split()[0]
                out[cand] = out[cand].replace(mn, mn + "_e64", 1)
            else:
                out.append("  s_nop 0")
            phase = 0
        out.append(ln)
        if sz == 8: cand = None
        elif sz == 4:
            mn = t.split()[0]
            if mn in _PROMOTABLE and "0x" not in t: cand = len(out) - 1
        phase = (phase + sz) % 8
    return out

class K:
    count = 0
    def __init__(self, name, nvgpr, nsgpr=102, accum=None):
        self.name = name; self.lines = []; self.nvgpr = nvgpr; self.nsgpr = nsgpr; self.accum = accum or nvgpr
        self.uid = 0
        self.index = K.count; K.count += 1
    def stamp(self, i):
        if not STAMPS: return
        self("s_memtime s[94:95]")
        if i == 0: self("s_memrealtime s[96:97]")
        self(f"s_waitcnt lgkmcnt(0)\ns_mov_b32 s{70+i}, s94")
    def stamp_flush(self, srd, swave, n=24):
        if not STAMPS: return
        self("s_memrealtime s[98:99]\ns_waitcnt lgkmcnt(0)")
        self(f"s_lshl_b32 s94, s2, 3\ns_add_u32 s94, s94, s{swave}\ns_lshl_b32 s94, s94, 7\ns_add_u32 s94, s94, {STAMP_BASE}")
        self("v_mov_b32 v2, 0")
        for i in range(n):
            self(f"v_mov_b32 v3, s{70+i}\nbuffer_store_dword v3, v2, s[{srd}:{srd+3}], s94 offen offset:{4*i}")
        self(f"v_mov_b32 v3, s96\nbuffer_store_dword v3, v2, s[{srd}:{srd+3}], s94 offen offset:120")
        self(f"v_mov_b32 v3, s98\nbuffer_store_dword v3, v2, s[{srd}:{srd+3}], s94 offen offset:124")
    def __call__(self, txt):
        for ln in txt.strip().split("\n"):
            ln = ln.strip()
            if ln: self.lines.append(ln)
    def label(self, l): self.lines.append(l + ":")
    def lab(self, base):
        self.uid += 1
        return "%s_%s%d" % (self.name.replace("_kernel", ""), base, self.uid)
    def c(self, txt): self.lines.append("; " + txt)
    def text(self):
        body, n = hazard_pass(self.lines)
        body = align_pass(body)
        head = [".globl %s" % self.name, ".p2align 8", ".type %s,@function" % self.name, "%s:" % self.name]
        return "\n".join(head + body) + "\n", n
    def desc(self):
        return f""".p2align 6
.amdhsa_kernel {self.name}
  .amdhsa_next_free_vgpr {self.nvgpr}
  .amdhsa_next_free_sgpr {self.nsgpr}
  .amdhsa_accum_offset {self.accum}
  .amdhsa_group_segment_fixed_size 0
  .amdhsa_kernarg_size 96
  .amdhsa_user_sgpr_count 2
  .amdhsa_user_sgpr_kernarg_segment_ptr 1
  .amdhsa_system_sgpr_workgroup_id_x 1
.end_amdhsa_kernel
"""
```

```python
import os, struct
from asmlib import *
from asmlib import STAMPS
from mlayout import *

def f32bits(x): return struct.unpack("<I", struct.pack("<f", x))[0]
LOG2E = 1.4426950408889634

WSR = 8
sw = 12
P_X, P_WQKV, P_WO, P_BX, P_WG, P_WU, P_WD, P_C = 16, 18, 20, 22, 24, 26, 28, 30
P_WMOD, P_OUT, P_DBG, P_WS = 32, 34, 36, 38
RA, RB = 40, 44
sXCD, sIDX = 13, 14
SPIN_LIMIT = 200000
HO = "sc0 sc1"
HL = "sc1"

def srd(k, sd, sp, nbytes):
    k(f"s_mov_b32 {s(sd)}, {s(sp)}\ns_mov_b32 {s(sd+1)}, {s(sp+1)}\ns_mov_b32 {s(sd+2)}, {hex(nbytes)}\ns_mov_b32 {s(sd+3)}, {hex(SRD3)}")

def sdiv(k, sq, sx, d):
    m = ((1 << 20) + d - 1) // d
    for x in range(1 << 12): assert (x * m) >> 20 == x // d, (d, x)
    k(f"s_mul_i32 {s(sq)}, {s(sx)}, {m}\ns_lshr_b32 {s(sq)}, {s(sq)}, 20")

def arrive(k, scnt, vt=(2, 3)):
    a, b = vt
    k(f"s_lshl_b32 s48, {s(scnt)}, 8\ns_add_u32 s48, s48, {WS['CNT']}\nv_mov_b32 {v(a)}, 0\nv_mov_b32 {v(b)}, 1")
    k("s_mov_b64 exec, 1")
    k(f"buffer_atomic_add {v(b)}, {v(a)}, {sr(WSR,4)}, s48 offen sc1")
    k("s_mov_b64 exec, -1")

def poll(k, voff, target, vt=4):
    loop, done = k.lab("poll"), k.lab("polled")
    k(f"s_mov_b32 s49, {WS['CNT']}\ns_mov_b32 s50, 0")
    k.label(loop)
    k(f"buffer_load_dword {v(vt)}, {v(voff)}, {sr(WSR,4)}, s49 offen sc0 sc1")
    k("s_waitcnt vmcnt(0)")
    k(f"v_cmp_lt_u32 vcc, {v(vt)}, {v(target)}\ns_cmp_eq_u64 vcc, 0\ns_cbranch_scc1 {done}")
    k(f"s_add_u32 s50, s50, 1\ns_cmp_ge_u32 s50, {SPIN_LIMIT}\ns_cbranch_scc1 {done}\ns_sleep 1\ns_branch {loop}")
    k.label(done)

def poll_setup(k, specs, voff=5, vtg=6, lane=1):
    k(f"v_mov_b32 {v(voff)}, 0\nv_mov_b32 {v(vtg)}, 0")
    first = 0
    for base, n, target in specs:
        if isinstance(base, int): k(f"s_mov_b32 s51, {base - first}")
        else: k(f"s_sub_u32 s51, {base}, {first}" if first else f"s_mov_b32 s51, {base}")
        k(f"v_add_u32 v7, s51, {v(lane)}\nv_lshlrev_b32 v7, 8, v7")
        k(f"v_subrev_u32 v8, {first}, {v(lane)}\nv_cmp_gt_u32 vcc, {n}, v8")
        k(f"v_cndmask_b32 {v(voff)}, {v(voff)}, v7, vcc\nv_mov_b32 v7, {target}\nv_cndmask_b32 {v(vtg)}, {v(vtg)}, v7, vcc")
        first += n

def red8(k, r):
    k(f"v_add_f32_dpp {v(r)}, {v(r)}, {v(r)} quad_perm:[1,0,3,2] row_mask:0xf bank_mask:0xf")
    k(f"v_add_f32_dpp {v(r)}, {v(r)}, {v(r)} quad_perm:[2,3,0,1] row_mask:0xf bank_mask:0xf")
    k(f"v_add_f32_dpp {v(r)}, {v(r)}, {v(r)} row_half_mirror row_mask:0xf bank_mask:0xf")

def red_q(k, r, t0, t1):
    k(f"v_mov_b32 {v(t0)}, {v(r)}\nv_mov_b32 {v(t1)}, {v(r)}\nv_permlane16_swap_b32 {v(t0)}, {v(t1)}\nv_add_f32 {v(r)}, {v(t0)}, {v(t1)}")
    k(f"v_mov_b32 {v(t0)}, {v(r)}\nv_mov_b32 {v(t1)}, {v(r)}\nv_permlane32_swap_b32 {v(t0)}, {v(t1)}\nv_add_f32 {v(r)}, {v(t0)}, {v(t1)}")

class Q:
    def __init__(self, k, name): self.k, self.name, self.q = k, name, []
    def add(self, tag): self.q.append(tag)
    def after(self, tag): return len(self.q) - 1 - self.q.index(tag)
    def wait(self, tag):
        n = self.after(tag)
        lim = 63 if self.name == "vmcnt" else 15
        self.k(f"s_waitcnt {self.name}({min(n, lim)})")
```

```python
S, D, H, DH, F = 2048, 640, 32, 20, 1536

def _alloc():
    off = 0
    out = {}
    def put(name, n):
        nonlocal off
        out[name] = off
        off += (n + 4095) // 4096 * 4096
    put("ZERO", 65536)
    put("XN", S * D * 2)
    put("WGU", D * 2 * F * 2)
    put("WO", D * D * 2)
    put("WD", F * D * 2)
    put("Q", S * D * 2)
    put("KK", S * D * 2)
    put("V", S * D * 2)
    put("O", S * D * 2)
    put("Y", S * D * 2)
    put("STATS", 2048 * 8 * 8)
    put("HH", S * F * 2)
    out["END"] = off
    out["CNT"] = out["ZERO"]
    out["MOD"] = out["ZERO"] + 24576
    out["UB"] = out["ZERO"] + 39936
    return out
WS = _alloc()
CSTRIDE = 256
C_S01, C_S12, C_O, C_Y, C_U, C_H = 0, 16, 32, 40, 56, 72
assert (C_H + 16) * CSTRIDE <= 24576

A_X, A_WQKV, A_WO, A_BX, A_WG, A_WU, A_WD, A_C, A_WMOD, A_OUT, A_DBG, A_WS = [8 * i for i in range(12)]
SRD3 = 0x00020000

def wo_row_perm():
    p = []
    for kp in range(640):
        pair, r = divmod(kp, 40)
        if r < 16: k = 40 * pair + r
        elif r < 32: k = 40 * pair + 20 + (r - 16)
        elif r < 36: k = 40 * pair + 16 + (r - 32)
        else: k = 40 * pair + 36 + (r - 36)
        p.append(k)
    return p
```

```python
from mcommon import *

QSCALE = LOG2E * 20 ** -0.5
RING = 35
COEF = RING * 4096
STG = COEF + 2560
assert STG + 16384 <= 163840
srb, scb, scq = 15, 4, 5

def tile_ids(k):
    k(f"""s_and_b32 s48, {s(sIDX)}, 3
    s_lshr_b32 s49, {s(sXCD)}, 1
    s_lshl_b32 s49, s49, 2
    s_add_u32 {s(srb)}, s49, s48
    s_lshr_b32 s48, {s(sIDX)}, 2
    s_and_b32 s49, {s(sXCD)}, 1
    s_lshl_b32 s49, s49, 3
    s_add_u32 {s(scb)}, s49, s48""")
    sdiv(k, 48, scb, 5)
    k(f"s_mul_i32 s48, s48, 5\ns_sub_u32 {s(scq)}, {s(scb)}, s48")

def zero_init(k):
    skip = k.lab("noinit")
    k(f"s_cmp_lg_u32 s2, 255\ns_cbranch_scc1 {skip}")
    k("v_mov_b32 v4, 0\nv_mov_b32 v5, 0\nv_mov_b32 v6, 0\nv_mov_b32 v7, 0\nv_lshlrev_b32 v8, 4, v1")
    k(f"s_lshl_b32 s48, {s(sw)}, 13\ns_add_u32 s48, s48, {WS['ZERO']}")
    for i in range(8):
        k(f"buffer_store_dwordx4 v[4:7], v8, {sr(WSR,4)}, s48 offen {HO}\ns_add_u32 s48, s48, 1024")
    k("s_waitcnt vmcnt(0)\ns_barrier")
    k(f"s_cmp_lg_u32 {s(sw)}, 0\ns_cbranch_scc1 {skip}")
    srd(k, RB, P_DBG, 256)
    k("v_mov_b32 v4, 1\nv_mov_b32 v5, 0\ns_mov_b64 exec, 1")
    k(f"buffer_store_dword v4, v5, {sr(RB,4)}, 0 offen {HO}")
    k("s_mov_b64 exec, -1")
    k.label(skip)

def wait_ready(k):
    srd(k, RB, P_DBG, 256)
    loop, done = k.lab("rdy"), k.lab("rdyd")
    k("v_mov_b32 v60, 0\ns_mov_b32 s50, 0")
    k.label(loop)
    k(f"buffer_load_dword v61, v60, {sr(RB,4)}, 0 offen sc0 sc1\ns_waitcnt vmcnt(0)\nv_readfirstlane_b32 s51, v61")
    k(f"s_cmp_lg_u32 s51, 0\ns_cbranch_scc1 {done}\ns_add_u32 s50, s50, 1\ns_cmp_ge_u32 s50, {SPIN_LIMIT}\ns_cbranch_scc1 {done}\ns_sleep 1\ns_branch {loop}")
    k.label(done)

def mod_job(k):
    skip = k.lab("nomod")
    k(f"s_cmp_ge_u32 s2, 240\ns_cbranch_scc1 {skip}")
    srd(k, RA, P_WMOD, 640 * 7680); srd(k, RB, P_C, 1280)
    k("v_lshrrev_b32 v3, 3, v1\nv_and_b32 v4, 7, v1")
    sdiv(k, 52, 2, 60)
    k("s_mul_i32 s53, s52, 60\ns_sub_u32 s53, s2, s53")
    k(f"s_mul_i32 s54, s52, 160\ns_mul_i32 s55, {s(sw)}, 40\ns_add_u32 s54, s54, s55")
    k("v_add_u32 v5, s54, v3\ns_movk_i32 s55, 7680\nv_mul_u32_u24 v6, s55, v5\ns_lshl_b32 s56, s53, 7")
    k("v_lshlrev_b32 v7, 4, v4\nv_add3_u32 v6, v6, v7, s56\nv_lshlrev_b32 v8, 1, v5")
    for i in range(5):
        k(f"s_mov_b32 s57, {61440*i}\nbuffer_load_dwordx4 {vr(16+4*i,4)}, v6, {sr(RA,4)}, s57 offen")
    for i in range(5):
        k(f"buffer_load_ushort {v(10+i)}, v8, {sr(RB,4)}, 0 offen offset:{16*i}")
    for j in range(8): k(f"v_mov_b32 {v(40+j)}, 0")
    k("s_mov_b32 s57, 0xbfb8aa3b\ns_waitcnt vmcnt(0)")
    for i in range(5):
        c = 10 + i
        k(f"v_lshlrev_b32 {v(c)}, 16, {v(c)}\nv_mul_f32 {v(50+i)}, s57, {v(c)}\nv_exp_f32 {v(50+i)}, {v(50+i)}")
    for i in range(5): k(f"v_add_f32 {v(50+i)}, 1.0, {v(50+i)}")
    for i in range(5): k(f"v_rcp_f32 {v(50+i)}, {v(50+i)}")
    for i in range(5): k(f"v_mul_f32 {v(10+i)}, {v(10+i)}, {v(50+i)}")
    for i in range(5):
        for d in range(4):
            r = 16 + 4 * i + d
            k(f"v_lshlrev_b32 v56, 16, {v(r)}\nv_and_b32 v57, 0xffff0000, {v(r)}\nv_fmac_f32 {v(40+2*d)}, {v(10+i)}, v56\nv_fmac_f32 {v(41+2*d)}, {v(10+i)}, v57")
    k("v_and_b32 v9, 8, v1\nv_cmp_ne_u32 vcc, 0, v9")
    for j in range(4):
        k(f"v_cndmask_b32 {v(48+j)}, {v(44+j)}, {v(40+j)}, vcc\nv_cndmask_b32 {v(52+j)}, {v(40+j)}, {v(44+j)}, vcc")
    for j in range(4):
        k(f"v_add_f32_dpp {v(52+j)}, {v(48+j)}, {v(52+j)} row_ror:8 row_mask:0xf bank_mask:0xf")
    k("v_permlane16_swap_b32 v52, v54\nv_permlane16_swap_b32 v53, v55\nv_add_f32 v52, v52, v54\nv_add_f32 v53, v53, v55")
    k("v_permlane32_swap_b32 v52, v53\nv_add_f32 v52, v52, v53")
    k("""v_lshlrev_b32 v56, 3, v4
    v_bfe_u32 v57, v1, 3, 1
    v_lshl_add_u32 v56, v57, 2, v56
    v_bfe_u32 v57, v1, 4, 1
    v_lshl_add_u32 v56, v57, 1, v56
    v_lshrrev_b32 v57, 5, v1
    v_add_u32 v56, v56, v57
    v_lshlrev_b32 v56, 2, v56""")
    k(f"s_lshl_b32 s56, s53, 8\ns_add_u32 s56, s56, {WS['MOD']}")
    wait_ready(k)
    k(f"buffer_atomic_add_f32 v52, v56, {sr(WSR,4)}, s56 offen")
    k.label(skip)

def ln_job(k):
    L, Fq = 8, 48
    srd(k, RA, P_X, 2048 * 1280)
    k("v_lshrrev_b32 v3, 3, v1\nv_and_b32 v4, 7, v1")
    k("s_lshl_b32 s52, s2, 3\nv_add_u32 v6, s52, v3\ns_movk_i32 s53, 1280\nv_mul_u32_u24 v6, s53, v6\nv_lshl_add_u32 v6, v4, 4, v6")
    for i in range(10): k(f"buffer_load_dwordx4 {vr(L+4*i,4)}, v6, {sr(RA,4)}, 0 offen offset:{128*i}")
    k("v_mov_b32 v128, 0\nv_mov_b32 v129, 0\nv_mov_b32 v132, 0\nv_mov_b32 v133, 0")
    for i in range(10):
        k(f"s_waitcnt vmcnt({9-i})")
        for d in range(4):
            r = L + 4 * i + d; f = Fq + 8 * i + 2 * d
            k(f"v_lshlrev_b32 {v(f)}, 16, {v(r)}\nv_and_b32 {v(f+1)}, 0xffff0000, {v(r)}")
        for d in range(4):
            f = Fq + 8 * i + 2 * d
            k(f"v_pk_add_f32 v[128:129], v[128:129], {vr(f,2)}")
    k("v_add_f32 v128, v128, v129")
    red8(k, 128)
    k(f"v_mul_f32 v130, {hex(f32bits(-1.0/640))}, v128\nv_mov_b32 v131, v130")
    for j in range(0, 80, 2):
        k(f"v_pk_add_f32 {vr(Fq+j,2)}, {vr(Fq+j,2)}, v[130:131]")
    for j in range(0, 80, 2):
        k(f"v_pk_fma_f32 v[132:133], {vr(Fq+j,2)}, {vr(Fq+j,2)}, v[132:133]")
    k("v_add_f32 v132, v132, v133")
    red8(k, 132)
    k(f"v_mov_b32 v134, {hex(f32bits(1e-5))}\nv_mov_b32 v135, {hex(f32bits(1.0/640))}\nv_fmac_f32 v134, v132, v135\nv_rsq_f32 v134, v134\ns_nop 0\nv_mov_b32 v135, v134")
    k(f"s_lshr_b32 s52, s2, 2\ns_mul_i32 s52, s52, 40960\ns_and_b32 s53, s2, 3\ns_lshl_b32 s53, s53, 7\ns_add_u32 s52, s52, s53\ns_add_u32 s52, s52, {WS['XN']}")
    k("v_lshlrev_b32 v6, 9, v4\nv_lshl_add_u32 v6, v3, 4, v6")
    for i in range(10):
        for d in range(4):
            f = Fq + 8 * i + 2 * d
            k(f"v_pk_mul_f32 {vr(f,2)}, {vr(f,2)}, v[134:135]")
        for d in range(4):
            f = Fq + 8 * i + 2 * d
            k(f"v_cvt_pk_f16_f32 {v(L+4*i+d)}, {v(f)}, {v(f+1)}")
        k(f"buffer_store_dwordx4 {vr(L+4*i,4)}, v6, {sr(WSR,4)}, s52 offen {HO}\ns_add_u32 s52, s52, 4096")

def wtile_setup(k):
    srd(k, RA, P_WQKV, 640 * 3840)
    k("""v_lshrrev_b32 v141, 4, v1
    v_bfe_u32 v142, v1, 2, 2
    v_xor_b32 v142, v142, v141
    v_lshlrev_b32 v142, 6, v142
    v_and_b32 v143, 3, v1
    v_lshl_add_u32 v142, v143, 4, v142
    s_movk_i32 s52, 3840
    v_mad_u32_u24 v140, v141, s52, v142""")
    k(f"s_lshl_b32 s58, {s(scb)}, 8")

def wtile_issue(k, first, count, stride, wrap=False):
    loop = k.lab("wdma")
    k(f"s_mul_i32 s60, s59, 15360\ns_add_u32 s60, s60, s58\ns_lshl_b32 s61, s59, 10")
    if wrap: k(f"s_sub_u32 s61, s61, {RING*4096}")
    k(f"s_mov_b32 s62, {count}")
    k.label(loop)
    k(f"s_mov_b32 m0, s61\ns_add_u32 s61, s61, {stride*1024}\nbuffer_load_dwordx4 v140, {sr(RA,4)}, s60 offen lds")
    k(f"s_add_u32 s60, s60, {stride*15360}\ns_sub_u32 s62, s62, 1\ns_cmp_lg_u32 s62, 0\ns_cbranch_scc1 {loop}")

N_G, N_U, N_O, N_D = 480, 480, 200, 480
sJ = 63
def mini_issue(k, rnd):
    p = 52
    nojob, go = k.lab("mjno"), k.lab("mjgo")
    k(f"s_sub_u32 s52, {s(sw)}, 4\ns_lshl_b32 {s(sJ)}, s2, 2\ns_add_u32 {s(sJ)}, {s(sJ)}, s52\ns_add_u32 {s(sJ)}, {s(sJ)}, {1024*rnd}")
    k(f"s_lshl_b32 s53, s52, 12\ns_add_u32 s53, s53, {STG}")
    k(f"s_mov_b32 s69, 0\ns_cmp_ge_u32 {s(sJ)}, {N_G+N_U+N_O+N_D}\ns_cbranch_scc1 {nojob}")
    labs = [k.lab("mj") for _ in range(4)]
    lim = 0
    for n, lab in zip((N_G, N_U, N_O), labs):
        lim += n
        k(f"s_cmp_lt_u32 {s(sJ)}, {lim}\ns_cbranch_scc1 {lab}")
    k(f"s_branch {labs[3]}")
    types = [("g", P_WG, 640 * 3072, 3072, 12, 0, True, 3, 40, 6, 0, "WGU"), ("u", P_WU, 640 * 3072, 3072, 12, N_G, True, 3, 40, 6, 3, "WGU"),
             ("o", P_WO, 640 * 1280, 1280, 10, N_G + N_U, False, 5, 20, 5, 0, "WO"), ("d", P_WD, 1536 * 1280, 1280, 10, N_G + N_U + N_O, False, 5, 48, 5, 0, "WD")]
    for (name, ptr, nbytes, stride, ncb, start, wide, dv, NS, NT, tadd, base), lab in zip(types, labs):
        k.label(lab)
        srd(k, RB, ptr, nbytes)
        k(f"s_sub_u32 s54, {s(sJ)}, {start}")
        sdiv(k, 55, 54, ncb)
        k(f"s_mul_i32 s56, s55, {ncb}\ns_sub_u32 s54, s54, s56")
        for tt in range(4):
            k(f"s_lshl_b32 s56, s54, 2\ns_add_u32 s56, s56, {tt}")
            sdiv(k, 57, 56, dv)
            k(f"s_mul_i32 {s(64+tt)}, s57, {dv}\ns_sub_u32 s56, s56, {s(64+tt)}\ns_mul_i32 s57, s57, {NS}\ns_add_u32 s57, s57, s55")
            k(f"s_mul_i32 s57, s57, {NT}\ns_add_u32 s57, s57, s56\ns_lshl_b32 s57, s57, 10\ns_add_u32 {s(64+tt)}, s57, {WS[base] + tadd*1024}")
        if wide:
            k(f"""s_mov_b32 s69, 1
            s_lshl_b32 s55, s55, 4
            s_lshl_b32 s54, s54, 8
            v_lshrrev_b32 v8, 4, v1
            v_and_b32 v9, 15, v1
            v_lshl_add_u32 v9, v9, 4, s54""")
            for i in range(4): k(f"v_add_u32 {v(10+i)}, s55, v8\nv_add_u32 {v(10+i)}, {4*i}, {v(10+i)}")
        else:
            k(f"""s_mov_b32 s69, 2
            s_lshl_b32 s55, s55, 5
            s_lshl_b32 s54, s54, 7
            v_lshrrev_b32 v8, 3, v1
            v_and_b32 v9, 7, v1
            v_lshl_add_u32 v9, v9, 4, s54""")
            for i in range(4): k(f"v_add_u32 {v(10+i)}, s55, v8\nv_add_u32 {v(10+i)}, {8*i}, {v(10+i)}")
            if name == "o":
                k("s_movk_i32 s56, 1639")
                for i in range(4):
                    r = 10 + i
                    k(f"""v_mul_u32_u24 v14, s56, {v(r)}
                    v_lshrrev_b32 v14, 16, v14
                    v_mul_u32_u24 v14, 40, v14
                    v_sub_u32 v14, {v(r)}, v14
                    v_mov_b32 v15, 0
                    v_cmp_le_u32 vcc, 16, v14
                    v_cndmask_b32_e64 v15, v15, 4, vcc
                    v_cmp_le_u32 vcc, 32, v14
                    v_cndmask_b32_e64 v15, v15, -16, vcc
                    v_cmp_le_u32 vcc, 36, v14
                    v_cndmask_b32_e64 v15, v15, 0, vcc
                    v_add_u32 {v(r)}, {v(r)}, v15""")
        k(f"s_movk_i32 s56, {stride}")
        for i in range(4): k(f"v_mad_u32_u24 {v(10+i)}, {v(10+i)}, s56, v9")
        k(f"s_branch {go}")
    k.label(go)
    for i in range(4):
        k(f"s_add_u32 m0, s53, {1024*i}\ns_nop 0\nbuffer_load_dwordx4 {v(10+i)}, {sr(RB,4)}, 0 offen lds")
    k.label(nojob)

def mini_finish(k, later):
    done, narrow, rd = k.lab("mfd"), k.lab("mfn"), k.lab("mfr")
    k(f"s_cmp_eq_u32 s69, 0\ns_cbranch_scc1 {done}")
    k(f"s_waitcnt vmcnt({later})")
    k("v_and_b32 v8, 15, v1\nv_lshrrev_b32 v8, 2, v8\nv_and_b32 v9, 3, v1")
    k(f"s_cmp_eq_u32 s69, 2\ns_cbranch_scc1 {narrow}")
    k("""v_lshrrev_b32 v16, 5, v1
    v_lshl_add_u32 v16, v16, 3, v8
    v_lshlrev_b32 v16, 8, v16
    v_bfe_u32 v17, v1, 4, 1
    v_lshlrev_b32 v17, 5, v17
    v_lshl_add_u32 v17, v9, 3, v17
    v_add3_u32 v16, v16, v17, s53""")
    for tt in range(4):
        k(f"ds_read_b64_tr_b16 {vr(20+4*tt,2)}, v16 offset:{64*tt}\nds_read_b64_tr_b16 {vr(22+4*tt,2)}, v16 offset:{64*tt+1024}")
    k(f"s_branch {rd}")
    k.label(narrow)
    k("""v_lshrrev_b32 v16, 4, v1
    v_lshl_add_u32 v16, v16, 3, v8
    v_lshlrev_b32 v16, 7, v16
    v_lshl_add_u32 v16, v9, 3, v16
    v_add_u32 v16, s53, v16""")
    for tt in range(4):
        k(f"ds_read_b64_tr_b16 {vr(20+4*tt,2)}, v16 offset:{32*tt}\nds_read_b64_tr_b16 {vr(22+4*tt,2)}, v16 offset:{32*tt+512}")
    k.label(rd)
    k("v_lshlrev_b32 v17, 4, v1")
    for tt in range(4):
        k(f"s_waitcnt lgkmcnt({6-2*tt})\nbuffer_store_dwordx4 {vr(20+4*tt,4)}, v17, {sr(WSR,4)}, {s(64+tt)} offen {HO}")
    k.label(done)

def sync01_consumer(k):
    k("s_waitcnt vmcnt(0)\ns_barrier")
    nw = k.lab("s01w")
    k(f"s_cmp_lg_u32 {s(sw)}, 0\ns_cbranch_scc1 {nw}")
    wait_ready(k)
    k(f"s_and_b32 s52, s2, 15\ns_add_u32 s52, s52, {C_S01}")
    arrive(k, 52)
    poll_setup(k, [(C_S01, 16, 16)])
    poll(k, 5, 6)
    k.label(nw)
    k("s_barrier")

def coef_prep(k, lo_only):
    k("s_waitcnt vmcnt(%d)" % lo_only)
    k("v_cmp_le_u32 vcc, 160, v0\nv_mov_b32 v6, 0\nv_cndmask_b32_e64 v6, v6, 1.0, vcc")
    for j in range(4): k(f"v_add_f32 {v(224+j)}, {v(224+j)}, v6")
    k(f"v_cvt_pk_f16_f32 v228, v224, v225\nv_cvt_pk_f16_f32 v229, v226, v227\nv_lshlrev_b32 v7, 3, v0\nv_add_u32 v7, {COEF}, v7\nds_write_b64 v7, v[228:229]")
def coef_load(k):
    k(f"v_lshlrev_b32 v9, 4, v0\ns_mov_b32 s52, {WS['MOD']}\nbuffer_load_dwordx4 v[224:227], v9, {sr(WSR,4)}, s52 offen {HL}")

ACC, TR, WB, CB, HF, HB, AW, OFF = 16, 80, 144, 176, 192, 200, 208, 220
NR, PRE, DEPTH = 16, 4, 10

def qkv_consumer(k, isv):
    k("v_and_b32 v3, 31, v1\nv_lshrrev_b32 v4, 5, v1\nv_lshlrev_b32 v5, 4, v1")
    k(f"s_lshl_b32 s53, {s(srb)}, 2\ns_add_u32 s53, s53, {s(sw)}")
    k(f"s_mul_i32 s54, s53, 40960\ns_add_u32 s54, s54, {WS['XN']}")
    vq = Q(k, "vmcnt"); L = Q(k, "lgkmcnt")
    coef_load(k); vq.add("coef")
    def tload(st):
        k(f"s_add_u32 s55, s54, {st*1024}\nbuffer_load_dwordx4 {vr(TR+4*(st%NR),4)}, v5, {sr(WSR,4)}, s55 offen {HL}"); vq.add(("t", st))
    for st in range(PRE): tload(st)
    nxt = [PRE]
    for j in range(64): k(f"v_mov_b32 {v(ACC+j)}, 0")
    k("""v_and_b32 v8, 15, v1
    v_lshrrev_b32 v8, 2, v8
    v_lshl_add_u32 v9, v4, 3, v8
    v_lshlrev_b32 v9, 8, v9
    v_bfe_u32 v10, v1, 4, 1
    v_lshl_add_u32 v9, v10, 5, v9
    v_and_b32 v10, 3, v1
    v_lshl_add_u32 v9, v10, 3, v9""")
    for t in range(4):
        k(f"v_xor_b32 v10, {t}, v8\nv_lshl_add_u32 {v(AW+t)}, v10, 6, v9")
        k(f"v_add_u32 {v(AW+4+t)}, 0x10000, {v(AW+t)}\nv_add_u32 {v(AW+8+t)}, 0x20000, {v(AW+t)}")
    k(f"v_lshlrev_b32 v14, 4, v4\nv_add_u32 v14, {COEF}, v14")
    if isv:
        k(f"s_lshl_b32 s56, {s(scq)}, 7\nv_add_u32 v6, s56, v3\ns_movk_i32 s56, 3277\ns_mov_b32 s57, 81920\nv_mul_u32_u24 v7, 0x140, v4")
        for t in range(4):
            k(f"""v_add_u32 v9, {32*t}, v6
            v_mul_u32_u24 v10, s56, v9
            v_lshrrev_b32 v10, 16, v10
            v_mad_i32_i24 v9, v10, -16, v9
            v_mad_i32_i24 v9, v10, -4, v9
            v_lshl_add_u32 v9, v9, 4, v7
            v_mad_u32_u24 {v(OFF+t)}, v10, s57, v9""")
        k(f"s_lshl_b32 s58, s53, 1\ns_mul_i32 s58, s58, 640\ns_add_u32 s58, s58, {WS['V']}")
    else:
        k(f"s_mul_i32 s58, s53, 40960\ns_lshl_b32 s56, {s(scq)}, 13\ns_add_u32 s58, s58, s56\ns_mov_b32 s56, {WS['Q']}\ns_mov_b32 s60, {hex(f32bits(QSCALE))}")
        k(f"s_cmp_lt_u32 {s(scb)}, 5\ns_cselect_b32 s56, s56, {WS['KK']}\ns_cselect_b32 s60, s60, 1.0\ns_add_u32 s58, s58, s56\ns_mov_b32 s61, 0")
    coef_prep(k, vq.after("coef"))
    k("s_waitcnt lgkmcnt(0)\ns_barrier")
    k.stamp(3)
    def wread(st, ts=range(4)):
        for t in ts:
            for u in range(2):
                a_ = (st % RING) * 4096 + u * 1024
                k(f"ds_read_b64_tr_b16 {vr(WB+16*(st%2)+4*t+2*u,2)}, {v(AW+4*(a_>>16)+t)} offset:{a_ & 0xffff}")
                L.add(("w", st, t, u))
    def cread(st, which=(0, 1)):
        for x in which:
            k(f"ds_read_b128 {vr(CB+8*(st%2)+4*x,4)}, v14 offset:{(1280 if x == 0 else 0) + 32*st}"); L.add(("c", st, x))
    def mix(st, j0, j1):
        T = TR + 4 * (st % NR); C1 = CB + 8 * (st % 2); C0 = C1 + 4
        for j in range(j0, j1):
            o = j & 1
            k(f"v_fma_mix_f32 {v(HF+j)}, {v(T+j//2)}, {v(C1+j//2)}, {v(C0+j//2)} op_sel:[{o},{o},{o}] op_sel_hi:[1,1,1]")
    def cvt(st, ds=range(4)):
        for d in ds: k(f"v_cvt_pk_bf16_f32 {v(HB+4*(st%2)+d)}, {v(HF+2*d)}, {v(HF+2*d+1)}")
    def mfma(st, t):
        L.wait(("w", st, t, 1))
        w = vr(WB + 16 * (st % 2) + 4 * t, 4); h = vr(HB + 4 * (st % 2), 4); ac = vr(ACC + 16 * t, 16)
        k(f"v_mfma_f32_32x32x16_bf16 {ac}, {h}, {w}, {ac}" if isv else f"v_mfma_f32_32x32x16_bf16 {ac}, {w}, {h}, {ac}")
    cread(0); wread(0); cread(1)
    L.wait(("c", 0, 1)); vq.wait(("t", 0)); mix(0, 0, 8); cvt(0)
    for st in range(40):
        last = st == 39; more = st + 2 < 40
        mfma(st, 0)
        if st in (5, 34): k("s_barrier")
        if not last:
            wread(st + 1, [0])
            if more: cread(st + 2, [0])
            L.wait(("c", st + 1, 1)); vq.wait(("t", st + 1))
            mix(st + 1, 0, 3)
        mfma(st, 1)
        if not last:
            wread(st + 1, [1])
            if more: cread(st + 2, [1])
            mix(st + 1, 3, 6)
        mfma(st, 2)
        if not last:
            wread(st + 1, [2]); mix(st + 1, 6, 8); cvt(st + 1, [0, 1])
        mfma(st, 3)
        if not last:
            wread(st + 1, [3]); cvt(st + 1, [2, 3])
            n = 0
            while nxt[0] < 40 and nxt[0] <= st + 1 + DEPTH and nxt[0] - NR <= st + 1 and n < 2:
                tload(nxt[0]); nxt[0] += 1; n += 1
    k.stamp(4)
    if not isv:
        for t in range(4):
            r = ACC + 16 * t; d = TR + 8 * t
            for j in range(0, 16, 2): k(f"v_pk_mul_f32 {vr(r+j,2)}, {vr(r+j,2)}, s[60:61] op_sel_hi:[1,0]")
            for j in range(8): k(f"v_cvt_pk_bf16_f32 {v(d+j)}, {v(r+2*j)}, {v(r+2*j+1)}")
            for j in range(2):
                b = d + 4 * j
                k(f"v_permlane32_swap_b32 {v(b)}, {v(b+2)}\nv_permlane32_swap_b32 {v(b+1)}, {v(b+3)}")
                k(f"buffer_store_dwordx4 {vr(b,4)}, v5, {sr(WSR,4)}, s58 offen offset:{1024*j} {HO}")
            k("s_add_u32 s58, s58, 2048")
    else:
        for t in range(4):
            for g in range(2):
                r = ACC + 16 * t + 8 * g; d = TR + 4 * (2 * t + g)
                for j in range(4): k(f"v_cvt_pk_bf16_f32 {v(d+j)}, {v(r+2*j)}, {v(r+2*j+1)}")
                k(f"buffer_store_dwordx4 {vr(d,4)}, {v(OFF+t)}, {sr(WSR,4)}, s58 offen offset:{640*g} {HO}")

def consumer01(k, after):
    mod_job(k)
    k.stamp(1)
    sync01_consumer(k)
    k.stamp(2)
    idle, lv = k.lab("qidle"), k.lab("qv")
    k(f"s_cmp_eq_u32 {s(scb)}, 15\ns_cbranch_scc1 {idle}")
    k(f"s_cmp_ge_u32 {s(scb)}, 10\ns_cbranch_scc1 {lv}")
    qkv_consumer(k, False)
    k(f"s_branch {after}")
    k.label(lv)
    qkv_consumer(k, True)
    k(f"s_branch {after}")
    k.label(idle)
    k("s_barrier\ns_barrier\ns_barrier")
    k(f"s_branch {after}")

def producer01(k, after):
    lnw, joined, notile, notile2 = k.lab("lnw"), k.lab("pj"), k.lab("nt"), k.lab("nt2")
    wtile_setup(k)
    k(f"s_cmp_eq_u32 {s(sw)}, 4\ns_cbranch_scc1 {lnw}")
    k(f"s_cmp_eq_u32 {s(scb)}, 15\ns_cbranch_scc1 {joined}")
    k(f"s_sub_u32 s59, {s(sw)}, 5")
    wtile_issue(k, 0, 40, 3)
    k(f"s_branch {joined}")
    k.label(lnw)
    ln_job(k)
    k("s_waitcnt vmcnt(0)")
    k(f"s_cmp_eq_u32 {s(scb)}, 15\ns_cbranch_scc1 {joined}")
    wtile_setup(k)
    k("s_mov_b32 s59, 120")
    wtile_issue(k, 0, 20, 1)
    k.label(joined)
    mini_issue(k, 0)
    k.stamp(1)
    k("s_barrier")
    k("s_waitcnt vmcnt(4)")
    k("s_barrier")
    k.stamp(2)
    noc = k.lab("noc")
    k(f"s_cmp_lg_u32 {s(sw)}, 4\ns_cbranch_scc1 {noc}")
    k(f"s_cmp_eq_u32 {s(scb)}, 15\ns_cbranch_scc1 {noc}")
    coef_load(k); coef_prep(k, 0)
    k.label(noc)
    k("s_waitcnt lgkmcnt(0)\ns_barrier")
    mini_finish(k, 0)
    k("s_barrier")
    k(f"s_cmp_eq_u32 {s(scb)}, 15\ns_cbranch_scc1 {notile}")
    wtile_setup(k)
    k(f"s_sub_u32 s59, {s(sw)}, 4\ns_mul_i32 s59, s59, 5\ns_add_u32 s59, s59, 140")
    wtile_issue(k, 0, 5, 1, wrap=True)
    k.label(notile)
    mini_issue(k, 1)
    nj, jj = k.lab("nj"), k.lab("jj")
    k(f"s_cmp_eq_u32 s69, 0\ns_cbranch_scc1 {nj}\ns_waitcnt vmcnt(4)\ns_branch {jj}")
    k.label(nj); k("s_waitcnt vmcnt(0)"); k.label(jj)
    k("s_barrier")
    mini_finish(k, 0)
    k.stamp(4)
    k(f"s_branch {after}")
```

```python
from mcommon import *

SLOT = 22528
R = 3
CONST = R * SLOT
FLAG = CONST + 5120
XCH = 0
shead, sqb, sgrp = 4, 5, 6
sG, sSt, sL, sNext, sLoad, sCh, sIt, sflag = 52, 55, 58, 61, 62, 63, 64, 65

QMA, QRA, QMB, QRB = 16, 20, 22, 26
SA, SB = 28, 60
PA, PB, OA, OB, MNA, MNB = 92, 100, 108, 124, 140, 156
KM, KR, VV = 172, 180, 184
vKm0, vKr0, vV0, vVm, vKm, vKr, vV, vD = 200, 201, 202, 203, 204, 205, 206, 207
MA, MB = 210, 211
FIN = 212

def ids(k):
    k(f"""s_and_b32 s48, {s(sIDX)}, 3
    s_lshl_b32 {s(shead)}, {s(sXCD)}, 2
    s_add_u32 {s(shead)}, {s(shead)}, s48
    s_lshr_b32 {s(sqb)}, {s(sIDX)}, 2
    s_lshr_b32 {s(sgrp)}, {s(sw)}, 2""")

def setup(k):
    ids(k)
    k(f"s_mul_i32 s48, {s(shead)}, 5\ns_lshr_b32 s48, s48, 1\ns_lshl_b32 s7, s48, 9")
    k("v_lshlrev_b32 v2, 4, v1")
    for i in range(3):
        k(f"s_add_u32 s48, {s(sw)}, {8*i}")
        if i == 2: k("s_cmp_ge_u32 s48, 22\ns_cselect_b32 s49, 2, 0\ns_sub_u32 s48, s48, s49")
        k(f"s_lshl_b32 {s(sL+i)}, s48, 10")
        k(f"""v_add_u32 v3, {s(sL+i)}, v2
        v_lshrrev_b32 v4, 9, v3
        v_mul_u32_u24 v4, 43, v4
        v_lshrrev_b32 v4, 7, v4
        v_mul_u32_u24 v5, 0x600, v4
        v_sub_u32 v5, v3, v5
        s_mov_b32 s49, 40960
        v_mad_u32_u24 v5, v4, s49, v5
        v_subrev_u32 v3, 0x3000, v3
        s_cmp_lt_u32 s48, 12
        s_cselect_b64 vcc, -1, 0
        v_cndmask_b32 {v(vD+i)}, v3, v5, vcc""")
        k(f"s_mul_i32 s49, {s(shead)}, 81920\ns_add_u32 s49, s49, {WS['V']}\ns_add_u32 s50, s7, {WS['KK']}")
        k(f"s_cmp_lt_u32 s48, 12\ns_cselect_b32 {s(sG+i)}, s50, s49\ns_mov_b32 s50, {8*40960}\ns_cselect_b32 {s(sSt+i)}, s50, 10240")
    k(f"""v_and_b32 v3, 31, v1
    v_lshrrev_b32 v4, 5, v1
    s_mul_i32 s48, {s(sgrp)}, 6144
    v_add_u32 {v(vKm0)}, s48, v2
    v_lshlrev_b32 v5, 4, v3
    v_lshl_add_u32 v5, v4, 3, v5
    s_add_u32 s48, s48, 1024
    v_add_u32 {v(vKr0)}, s48, v5
    v_mul_u32_u24 v5, 0x140, v4
    v_lshl_add_u32 v5, v3, 4, v5
    s_mul_i32 s48, {s(sgrp)}, 5120
    v_add_u32 v5, s48, v5
    v_mov_b32 v6, {CONST - 12288}
    v_mov_b32 v7, {CONST + 16 - 12288}
    v_cmp_lt_u32 vcc, 20, v3
    v_cndmask_b32 v6, v6, v7, vcc
    v_cmp_le_u32 vcc, 20, v3
    v_cndmask_b32 {v(vV0)}, v5, v6, vcc
    v_mov_b32 v7, 1
    v_cndmask_b32_e64 {v(vVm)}, v7, 0, vcc""")
    for j in range(16): k(f"v_mov_b32 {v(MNA+j)}, 0\nv_mov_b32 {v(MNB+j)}, 0")
    k(f"s_mov_b32 {s(sflag)}, 0")
    noc = k.lab("noc")
    k(f"s_cmp_lg_u32 {s(sw)}, 1\ns_cbranch_scc1 {noc}")
    k(f"""v_mov_b32 v8, 0x3f803f80
    v_mov_b32 v9, 0x3f803f80
    v_mov_b32 v10, 0x3f803f80
    v_mov_b32 v11, 0x3f803f80
    v_mov_b32 v12, 0
    v_mov_b32 v13, 0
    v_mov_b32 v14, 0
    v_mov_b32 v15, 0
    v_min_u32 v5, 7, v1
    v_mul_u32_u24 v5, 0x280, v5
    v_add_u32 v5, {CONST}, v5
    ds_write_b128 v5, v[8:11]
    ds_write_b128 v5, v[12:15] offset:16
    v_mov_b32 v5, {FLAG}
    ds_write_b32 v5, v12
    s_waitcnt lgkmcnt(0)""")
    k.label(noc)

def dma(k, i, sslot):
    k(f"s_add_u32 m0, {s(sL+i)}, {s(sslot)}\ns_nop 0\nbuffer_load_dwordx4 {v(vD+i)}, {sr(WSR,4)}, {s(sG+i)} offen sc1 lds")

def load_q(k):
    k(f"""s_lshl_b32 s48, {s(sqb)}, 3
    s_and_b32 s49, {s(sw)}, 3
    s_lshl_b32 s49, s49, 1
    s_add_u32 s48, s48, s49
    s_mul_i32 s48, s48, 40960
    s_add_u32 s48, s48, s7
    s_add_u32 s48, s48, {WS['Q']}
    s_add_u32 s49, s48, 40960
    v_lshlrev_b32 v2, 4, v1
    v_and_b32 v3, 31, v1
    v_lshrrev_b32 v4, 5, v1
    v_lshlrev_b32 v5, 4, v3
    v_lshl_add_u32 v5, v4, 3, v5""")
    k(f"buffer_load_dwordx4 {vr(QMA,4)}, v2, {sr(WSR,4)}, s48 offen {HL}\nbuffer_load_dwordx2 {vr(QRA,2)}, v5, {sr(WSR,4)}, s48 offen offset:1024 {HL}")
    k(f"buffer_load_dwordx4 {vr(QMB,4)}, v2, {sr(WSR,4)}, s49 offen {HL}\nbuffer_load_dwordx2 {vr(QRB,2)}, v5, {sr(WSR,4)}, s49 offen offset:1024 {HL}")
def mask_q(k):
    odd, done = k.lab("qodd"), k.lab("qdone")
    k(f"s_bitcmp1_b32 {s(shead)}, 0\ns_cbranch_scc1 {odd}")
    k("v_cmp_le_u32 vcc, 32, v1")
    for r in (QRA, QRA + 1, QRB, QRB + 1): k(f"v_cndmask_b32_e64 {v(r)}, {v(r)}, 0, vcc")
    k(f"s_branch {done}")
    k.label(odd)
    k("v_cmp_gt_u32 vcc, 32, v1")
    for r in (QMA, QMA + 1, QMB, QMB + 1): k(f"v_cndmask_b32_e64 {v(r)}, {v(r)}, 0, vcc")
    k.label(done)

def readK(k, tau, buf):
    k(f"ds_read_b128 {vr(KM+4*buf,4)}, {v(vKm)} offset:{1536*tau}\nds_read_b64 {vr(KR+2*buf,2)}, {v(vKr)} offset:{1536*tau}")
def readV(k, tau, buf):
    for g in range(2): k(f"ds_read_b128 {vr(VV+8*buf+4*g,4)}, {v(vV)} offset:{12288 + 640*(2*tau+g)}")
def S1(k, X, b, kb):
    Sx, Qm, MN = (SA, QMA, MNA) if X == 0 else (SB, QMB, MNB)
    k(f"v_mfma_f32_32x32x16_bf16 {vr(Sx+16*b,16)}, {vr(KM+4*kb,4)}, {vr(Qm,4)}, {vr(MN,16)}")
def S2(k, X, b, kb):
    Sx, Qr = (SA, QRA) if X == 0 else (SB, QRB)
    k(f"v_mfma_f32_32x32x8_bf16 {vr(Sx+16*b,16)}, {vr(KR+2*kb,2)}, {vr(Qr,2)}, {vr(Sx+16*b,16)}")
def PV(k, X, g, vb):
    O, P = (OA, PA) if X == 0 else (OB, PB)
    k(f"v_mfma_f32_32x32x16_bf16 {vr(O,16)}, {vr(VV+8*vb+4*g,4)}, {vr(P+4*g,4)}, {vr(O,16)}")
def exps(k, X, b, a0, a1):
    Sx = (SA if X == 0 else SB) + 16 * b
    for j in range(a0, a1): k(f"v_exp_f32 {v(Sx+j)}, {v(Sx+j)}")
def cvts(k, X, b, a0, a1):
    Sx = (SA if X == 0 else SB) + 16 * b; P = PA if X == 0 else PB
    for j in range(a0, a1): k(f"v_cvt_pk_bf16_f32 {v(P+j)}, {v(Sx+2*j)}, {v(Sx+2*j+1)}")

def stream_start(k):
    k(f"s_mul_i32 s48, {s(shead)}, 81920\ns_add_u32 s49, s48, {WS['V']}\ns_add_u32 s50, s7, {WS['KK']}")
    for i in range(3):
        k(f"s_cmp_eq_u32 {s(sSt+i)}, 10240\ns_cselect_b32 {s(sG+i)}, s49, s50")
    k(f"s_mov_b32 {s(sLoad)}, 0")
    for i in range(3): dma(k, i, sLoad)
    k(f"v_mov_b32 {v(vKm)}, {v(vKm0)}\nv_mov_b32 {v(vKr)}, {v(vKr0)}\nv_mov_b32 {v(vV)}, {v(vV0)}")
    k("s_waitcnt vmcnt(0)\ns_barrier")
    for i in range(3): k(f"s_add_u32 {s(sG+i)}, {s(sG+i)}, {s(sSt+i)}")
    k(f"s_mov_b32 {s(sLoad)}, {SLOT}\ns_mov_b32 {s(sNext)}, {SLOT}\ns_mov_b32 {s(sCh)}, 1")
    dma(k, 0, sLoad); dma(k, 1, sLoad)

def advance(k):
    k(f"v_add_u32 {v(vKm)}, {s(sNext)}, {v(vKm0)}\nv_add_u32 {v(vKr)}, {s(sNext)}, {v(vKr0)}")
    k(f"s_add_u32 {s(sCh)}, {s(sCh)}, 1\ns_cmp_le_u32 {s(sCh)}, 7")
    for i in range(3): k(f"s_cselect_b32 s48, {s(sSt+i)}, 0\ns_add_u32 {s(sG+i)}, {s(sG+i)}, s48\ns_cmp_le_u32 {s(sCh)}, 7")
    k(f"s_add_u32 {s(sLoad)}, {s(sLoad)}, {SLOT}\ns_cmp_ge_u32 {s(sLoad)}, {R*SLOT}\ns_cselect_b32 s48, {R*SLOT}, 0\ns_sub_u32 {s(sLoad)}, {s(sLoad)}, s48")

def next_slot(k):
    k(f"s_add_u32 {s(sNext)}, {s(sNext)}, {SLOT}\ns_cmp_ge_u32 {s(sNext)}, {R*SLOT}\ns_cselect_b32 s48, {R*SLOT}, 0\ns_sub_u32 {s(sNext)}, {s(sNext)}, s48")

def main_pass(k):
    stream_start(k)
    for j in range(16): k(f"v_mov_b32 {v(OA+j)}, 0\nv_mov_b32 {v(OB+j)}, 0")
    readK(k, 0, 0); readV(k, 0, 0); readK(k, 1, 1)
    k("s_waitcnt lgkmcnt(4)")
    S1(k, 0, 0, 0); S1(k, 1, 0, 0); S2(k, 0, 0, 0); S2(k, 1, 0, 0)
    k.stamp(6)
    k(f"s_mov_b32 {s(sIt)}, 0")
    loop = k.lab("aloop")
    k.label(loop)
    for j in range(4):
        b, nb = j % 2, (j + 1) % 2
        k(f"s_setprio {3 - ((j - 2) % 4)}")
        k("s_waitcnt lgkmcnt(0)")
        if j == 2:
            k("s_waitcnt vmcnt(0)\ns_barrier")
            advance(k); dma(k, 0, sLoad)
        if j == 3:
            k(f"v_mad_u32_u24 {v(vV)}, {v(vVm)}, {s(sNext)}, {v(vV0)}")
            dma(k, 1, sLoad); next_slot(k)
        if j == 0: dma(k, 2, sLoad)
        readK(k, (j + 2) % 4, b); readV(k, (j + 1) % 4, nb)
        S1(k, 0, nb, nb); exps(k, 0, b, 0, 4)
        S2(k, 0, nb, nb); exps(k, 0, b, 4, 8); cvts(k, 0, b, 0, 4)
        S1(k, 1, nb, nb); exps(k, 0, b, 8, 12)
        PV(k, 0, 0, b); exps(k, 0, b, 12, 16); cvts(k, 0, b, 4, 8)
        S2(k, 1, nb, nb); exps(k, 1, b, 0, 2)
        PV(k, 0, 1, b); exps(k, 1, b, 2, 8); cvts(k, 1, b, 0, 4); exps(k, 1, b, 8, 10)
        PV(k, 1, 0, b); exps(k, 1, b, 10, 16); cvts(k, 1, b, 4, 8)
        PV(k, 1, 1, b)
    k(f"s_add_u32 {s(sIt)}, {s(sIt)}, 1\ns_cmp_lt_u32 {s(sIt)}, 8\ns_cbranch_scc1 {loop}")
    k("s_setprio 0\ns_waitcnt vmcnt(0) lgkmcnt(0)\ns_barrier")

def max_pass(k):
    for j in range(16): k(f"v_mov_b32 {v(MNA+j)}, 0\nv_mov_b32 {v(MNB+j)}, 0")
    stream_start(k)
    k(f"v_mov_b32 {v(MA)}, 0xff800000\nv_mov_b32 {v(MB)}, 0xff800000\ns_mov_b32 {s(sIt)}, 0")
    loop = k.lab("mloop")
    k.label(loop)
    dma(k, 2, sLoad)
    for j in range(4):
        readK(k, j, 0)
        k("s_waitcnt lgkmcnt(0)")
        S1(k, 0, 0, 0); S1(k, 1, 0, 0); S2(k, 0, 0, 0); S2(k, 1, 0, 0)
        for a in range(0, 16, 2): k(f"v_max3_f32 {v(MA)}, {v(SA+a)}, {v(SA+a+1)}, {v(MA)}")
        for a in range(0, 16, 2): k(f"v_max3_f32 {v(MB)}, {v(SB+a)}, {v(SB+a+1)}, {v(MB)}")
    k("s_waitcnt vmcnt(0)\ns_barrier")
    advance(k); dma(k, 0, sLoad); dma(k, 1, sLoad); next_slot(k)
    k(f"s_add_u32 {s(sIt)}, {s(sIt)}, 1\ns_cmp_lt_u32 {s(sIt)}, 8\ns_cbranch_scc1 {loop}")
    k("s_waitcnt vmcnt(0) lgkmcnt(0)\ns_barrier")
    for M in (MA, MB):
        k(f"v_mov_b32 v2, {v(M)}\nv_permlane32_swap_b32 v2, {v(M)}\nv_max_f32 {v(M)}, v2, {v(M)}")
    k(f"s_lshl_b32 s48, {s(sw)}, 9\nv_lshlrev_b32 v2, 3, v1\nv_add_u32 v3, s48, v2\nds_write_b64 v3, {vr(MA,2)}\ns_waitcnt lgkmcnt(0)\ns_barrier")
    k(f"s_xor_b32 s48, {s(sw)}, 4\ns_lshl_b32 s48, s48, 9\nv_add_u32 v3, s48, v2\nds_read_b64 v[4:5], v3\ns_waitcnt lgkmcnt(0)")
    k(f"v_max_f32 v4, v4, {v(MA)}\nv_max_f32 v5, v5, {v(MB)}\nv_sub_f32 v4, 0, v4\nv_sub_f32 v5, 0, v5")
    for j in range(16): k(f"v_mov_b32 {v(MNA+j)}, v4\nv_mov_b32 {v(MNB+j)}, v5")
    k("s_barrier")

def merge(k):
    g1, sent, g1b, got = k.lab("mg1"), k.lab("msent"), k.lab("mg1b"), k.lab("mgot")
    k(f"s_mul_i32 s48, {s(sw)}, 3072\nv_lshlrev_b32 v2, 4, v1\nv_add_u32 v3, s48, v2")
    k(f"s_cmp_eq_u32 {s(sgrp)}, 1\ns_cbranch_scc1 {g1}")
    for j in range(3): k(f"ds_write_b128 v3, {vr(OB+4*j,4)} offset:{1024*j}")
    k(f"s_branch {sent}")
    k.label(g1)
    for j in range(3): k(f"ds_write_b128 v3, {vr(OA+4*j,4)} offset:{1024*j}")
    k.label(sent)
    k(f"s_waitcnt lgkmcnt(0)\ns_barrier\ns_xor_b32 s48, {s(sw)}, 4\ns_mul_i32 s48, s48, 3072\nv_add_u32 v3, s48, v2")
    for j in range(3): k(f"ds_read_b128 {vr(FIN+4*j,4)}, v3 offset:{1024*j}")
    k("s_waitcnt lgkmcnt(0)")
    k(f"s_cmp_eq_u32 {s(sgrp)}, 1\ns_cbranch_scc1 {g1b}")
    for j in range(12): k(f"v_add_f32 {v(FIN+j)}, {v(FIN+j)}, {v(OA+j)}")
    k(f"s_branch {got}")
    k.label(g1b)
    for j in range(12): k(f"v_add_f32 {v(FIN+j)}, {v(FIN+j)}, {v(OB+j)}")
    k.label(got)
    k(f"v_mov_b32 v2, {v(FIN+8)}\nv_mov_b32 {v(FIN+12)}, {v(FIN+8)}\nv_permlane32_swap_b32 v2, {v(FIN+12)}")

def attention(k):
    load_q(k)
    k("s_waitcnt vmcnt(0)")
    mask_q(k)
    again, fin, good = k.lab("again"), k.lab("fin"), k.lab("good")
    k.label(again)
    main_pass(k)
    k.stamp(7)
    merge(k)
    k(f"s_cmp_lg_u32 {s(sflag)}, 0\ns_cbranch_scc1 {fin}")
    k(f"v_add_f32 v2, |{v(FIN)}|, |{v(FIN+1)}|")
    for j in range(2, 12): k(f"v_add_f32 v2, v2, |{v(FIN+j)}|")
    k(f"""v_mov_b32 v3, {hex(f32bits(2.0**-80))}
    v_mov_b32 v4, {hex(f32bits(2.0**100))}
    v_mov_b32 v5, 0x7f800000
    v_cmp_le_f32 s[48:49], v3, {v(FIN+12)}
    v_cmp_ge_f32 s[50:51], v4, {v(FIN+12)}
    v_cmp_lt_f32 vcc, v2, v5
    s_and_b64 s[48:49], s[48:49], s[50:51]
    s_and_b64 s[48:49], s[48:49], vcc
    s_cmp_eq_u64 s[48:49], exec
    s_cbranch_scc1 {good}""")
    k(f"v_mov_b32 v2, {FLAG}\nv_mov_b32 v3, 1\nds_write_b32 v2, v3")
    k.label(good)
    k(f"s_waitcnt lgkmcnt(0)\ns_barrier\nv_mov_b32 v2, {FLAG}\nds_read_b32 v3, v2\ns_waitcnt lgkmcnt(0)\nv_readfirstlane_b32 s48, v3")
    k(f"s_cmp_eq_u32 s48, 0\ns_cbranch_scc1 {fin}")
    max_pass(k)
    k(f"s_mov_b32 {s(sflag)}, 1\ns_branch {again}")
    k.label(fin)
    k(f"v_rcp_f32 v2, {v(FIN+12)}")
    for j in range(12): k(f"v_mul_f32 {v(FIN+j)}, v2, {v(FIN+j)}")
    for j in range(6): k(f"v_cvt_pk_bf16_f32 {v(PA+j)}, {v(FIN+2*j)}, {v(FIN+2*j+1)}")
    k(f"v_permlane32_swap_b32 {v(PA)}, {v(PA+2)}\nv_permlane32_swap_b32 {v(PA+1)}, {v(PA+3)}")
    k(f"""v_and_b32 v2, 31, v1
    v_lshrrev_b32 v3, 4, v2
    v_mul_u32_u24 v3, 0x5000, v3
    v_and_b32 v4, 15, v2
    v_lshl_add_u32 v3, v4, 4, v3
    v_lshrrev_b32 v5, 5, v1
    v_lshl_add_u32 v5, v5, 8, v3
    s_lshl_b32 s48, {s(sqb)}, 3
    s_and_b32 s49, {s(sw)}, 3
    s_lshl_b32 s49, s49, 1
    s_add_u32 s48, s48, s49
    s_add_u32 s48, s48, {s(sgrp)}
    s_lshl_b32 s48, s48, 1
    s_mul_i32 s48, s48, 0x5000
    s_add_u32 s48, s48, {WS['O']}
    s_lshr_b32 s49, {s(shead)}, 1
    s_mul_i32 s49, s49, 1280
    s_add_u32 s48, s48, s49
    s_and_b32 s50, {s(shead)}, 1
    s_lshl_b32 s51, s50, 9
    s_add_u32 s51, s51, s48
    s_lshl_b32 s50, s50, 3
    s_add_u32 s50, s50, s48
    s_add_u32 s50, s50, 1024""")
    k(f"buffer_store_dwordx4 {vr(PA,4)}, v5, {sr(WSR,4)}, s51 offen {HO}")
    k("v_cmp_gt_u32 vcc, 32, v1\ns_and_saveexec_b64 s[48:49], vcc")
    k(f"buffer_store_dwordx2 {vr(PA+4,2)}, v3, {sr(WSR,4)}, s50 offen {HO}")
    k("s_mov_b64 exec, s[48:49]")
```

```python
from mcommon import *

srb, scb = 4, 5
grb, gfb = 6, 7
WO_L = 49152
VEC3 = WO_L + 102400
GCH, GSLOT = 24576, 6
UBL = GSLOT * GCH
DCH = 20480
DSLOT = [0, 20480, 98304, 118784, 49152, 69632, 139264]
VEC5 = 159744
X1 = 246

def ids(k):
    k(f"""s_lshr_b32 s48, {s(sXCD)}, 1
    s_lshl_b32 s48, s48, 3
    s_and_b32 s49, {s(sIDX)}, 7
    s_add_u32 {s(srb)}, s48, s49
    s_and_b32 s48, {s(sXCD)}, 1
    s_lshl_b32 s48, s48, 2
    s_lshr_b32 s49, {s(sIDX)}, 3
    s_add_u32 {s(scb)}, s48, s49
    s_and_b32 s48, {s(sXCD)}, 1
    s_lshl_b32 s48, s48, 3
    s_and_b32 s49, {s(sIDX)}, 7
    s_add_u32 {s(grb)}, s48, s49
    s_lshr_b32 s48, {s(sXCD)}, 1
    s_lshl_b32 s48, s48, 2
    s_lshr_b32 s49, {s(sIDX)}, 3
    s_add_u32 {s(gfb)}, s48, s49""")

def wo_prefetch(k):
    k(f"s_mul_i32 s52, {s(scb)}, 102400\ns_add_u32 s52, s52, {WS['WO']}\ns_sub_u32 s53, {s(sw)}, 1\ns_lshl_b32 s53, s53, 10\ns_add_u32 s52, s52, s53\ns_add_u32 s53, s53, {WO_L}")
    k(f"v_lshlrev_b32 v9, 4, v1\ns_sub_u32 s54, {s(sw)}, 1")
    loop = k.lab("wop")
    k.label(loop)
    k(f"s_mov_b32 m0, s53\ns_add_u32 s53, s53, 7168\nbuffer_load_dwordx4 v9, {sr(WSR,4)}, s52 offen sc1 lds")
    k(f"s_add_u32 s52, s52, 7168\ns_add_u32 s54, s54, 7\ns_cmp_lt_u32 s54, 100\ns_cbranch_scc1 {loop}")

def vec_load(k, chunks, dst):
    n = len(chunks)
    k("s_movk_i32 s52, 3277\nv_mul_u32_u24 v6, s52, v1\nv_lshrrev_b32 v6, 16, v6\nv_mad_i32_i24 v7, v6, -16, v1\nv_mad_i32_i24 v7, v6, -4, v7")
    k(f"v_mov_b32 v8, {chunks[0][0]*2560}\nv_mov_b32 v10, {'1.0' if chunks[0][1] else '0'}")
    for j in range(1, n):
        k(f"v_cmp_eq_u32 vcc, {j}, v6\nv_mov_b32 v9, {chunks[j][0]*2560}\nv_cndmask_b32 v8, v8, v9, vcc\nv_mov_b32 v9, {'1.0' if chunks[j][1] else '0'}\nv_cndmask_b32 v10, v10, v9, vcc")
    k(f"s_mul_i32 s52, {s(scb)}, 320\ns_add_u32 s52, s52, {WS['MOD']}\nv_lshl_add_u32 v8, v7, 4, v8")
    k(f"buffer_load_dwordx4 v[12:15], v8, {sr(WSR,4)}, s52 offen {HL}\ns_waitcnt vmcnt(0)")
    for j in range(4): k(f"v_add_f32 {v(12+j)}, {v(12+j)}, v10")
    k(f"v_lshlrev_b32 v9, 4, v1\nv_add_u32 v9, {dst}, v9\nv_cmp_gt_u32 vcc, {20*n}, v1\ns_and_saveexec_b64 s[52:53], vcc\nds_write_b128 v9, v[12:15]\ns_mov_b64 exec, s[52:53]\ns_waitcnt lgkmcnt(0)")

def ub_job(k):
    skip = k.lab("noub")
    k(f"s_cmp_ge_u32 s2, 96\ns_cbranch_scc1 {skip}")
    sdiv(k, 52, 2, 6)
    k(f"s_mul_i32 s53, s52, 6\ns_sub_u32 s53, s2, s53\ns_sub_u32 s54, {s(sw)}, 4")
    k(f"s_mul_i32 s55, s52, {40*6144}\ns_mul_i32 s56, s54, {10*6144}\ns_add_u32 s55, s55, s56\ns_lshl_b32 s56, s53, 10\ns_add_u32 s55, s55, s56\ns_add_u32 s55, s55, {WS['WGU']}")
    k("v_lshlrev_b32 v9, 4, v1")
    for st in range(10): k(f"buffer_load_dwordx4 {vr(32+4*st,4)}, v9, {sr(WSR,4)}, s55 offen {HL}\ns_add_u32 s55, s55, 6144")
    k(f"""v_and_b32 v3, 31, v1
    v_lshrrev_b32 v4, 5, v1
    v_cmp_eq_u32 vcc, 0, v3
    v_mov_b32 v5, {3*2560}
    v_mov_b32 v6, {4*2560}
    v_cndmask_b32 v5, v5, v6, vcc
    v_lshl_add_u32 v5, v4, 5, v5
    v_mov_b32 v6, 0
    v_cndmask_b32_e64 v6, v6, 1.0, vcc
    s_mul_i32 s56, s54, 640
    s_add_u32 s56, s56, {WS['MOD']}""")
    for st in range(10):
        k(f"buffer_load_dwordx4 {vr(72+8*st,4)}, v5, {sr(WSR,4)}, s56 offen offset:{64*st} {HL}\nbuffer_load_dwordx4 {vr(76+8*st,4)}, v5, {sr(WSR,4)}, s56 offen offset:{64*st+16} {HL}")
    for j in range(16): k(f"v_mov_b32 {v(16+j)}, 0")
    k("s_waitcnt vmcnt(0)")
    for st in range(10):
        b = 72 + 8 * st
        for j in range(8): k(f"v_add_f32 {v(b+j)}, {v(b+j)}, v6")
        for j in range(4): k(f"v_cvt_pk_bf16_f32 {v(b+j)}, {v(b+2*j)}, {v(b+2*j+1)}")
        k(f"v_mfma_f32_32x32x16_bf16 v[16:31], {vr(32+4*st,4)}, {vr(b,4)}, v[16:31]")
    k(f"s_mov_b32 s57, {hex(f32bits(-LOG2E))}\ns_cmp_lt_u32 s53, 3\ns_cselect_b32 s57, s57, 1.0")
    for j in range(16): k(f"v_mul_f32 {v(16+j)}, s57, {v(16+j)}")
    k(f"s_lshl_b32 s56, s2, 8\ns_add_u32 s56, s56, {WS['UB']}\nv_lshlrev_b32 v8, 4, v4\nv_lshl_add_u32 v8, v3, 7, v8")
    k("v_cmp_gt_u32 vcc, 2, v3\ns_and_saveexec_b64 s[58:59], vcc")
    for j in range(16):
        k(f"buffer_atomic_add_f32 {v(16+j)}, v8, {sr(WSR,4)}, s56 offen offset:{32*(j//4) + 4*(j%4)}")
    k("s_mov_b64 exec, s[58:59]\ns_waitcnt vmcnt(0)")
    k.label(skip)

ACC, TR, WB = 16, 40, 104
NR, PRE, DEPTH = 16, 6, 10

def n640_addr(k):
    k("v_and_b32 v3, 15, v1\nv_lshrrev_b32 v4, 4, v1\nv_lshlrev_b32 v5, 4, v1")
    k(f"s_lshl_b32 s15, {s(srb)}, 2\ns_add_u32 s15, s15, {s(sw)}")
    k(f"s_lshl_b32 s52, s15, 4\nv_add_u32 v6, s52, v3\ns_movk_i32 s52, 1280\nv_mul_u32_u24 v6, s52, v6")
    k(f"s_mul_i32 s52, {s(scb)}, 160\nv_lshl_add_u32 v6, v4, 3, v6\nv_add_u32 v6, s52, v6")
    k("v_add_u32 v8, 0x10000, v5\nv_add_u32 v9, 0x20000, v5")

def n640_loop(k, NS, tbase, waddr, barrier_steps, pre_hook=None):
    vq = Q(k, "vmcnt"); L = Q(k, "lgkmcnt")
    k(f"s_mul_i32 s53, s15, {NS*1024}\ns_add_u32 s53, s53, {WS[tbase]}")
    def tload(st):
        k(f"s_add_u32 s54, s53, {st*1024}\nbuffer_load_dwordx4 {vr(TR+4*(st%NR),4)}, v5, {sr(WSR,4)}, s54 offen {HL}"); vq.add(("t", st))
    for st in range(PRE): tload(st)
    if pre_hook: pre_hook(vq)
    nxt = [PRE]
    for j in range(20): k(f"v_mov_b32 {v(ACC+j)}, 0")
    def wread(st, ts=range(5)):
        for t in ts:
            a_ = waddr(st) + 1024 * t
            k(f"ds_read_b128 {vr(WB+20*(st%2)+4*t,4)}, {v([5,8,9][a_ >> 16])} offset:{a_ & 0xffff}"); L.add((st, t))
    wread(0)
    for st in range(NS):
        last = st == NS - 1
        vq.wait(("t", st))
        for t in range(5):
            L.wait((st, t))
            ac = vr(ACC + 4 * t, 4)
            k(f"v_mfma_f32_16x16x32_bf16 {ac}, {vr(WB+20*(st%2)+4*t,4)}, {vr(TR+4*(st%NR),4)}, {ac}")
            if not last:
                if t == 0 and (st + 1) in barrier_steps: k("s_barrier")
                wread(st + 1, [t])
        n = 0
        while nxt[0] < NS and nxt[0] <= st + DEPTH and nxt[0] - NR <= st and n < 2:
            tload(nxt[0]); nxt[0] += 1; n += 1
    return vq

def wo_consumer(k):
    n640_addr(k)
    srd(k, RA, P_X, 2048 * 1280)
    XR = 144
    def xload(vq):
        for t in range(5):
            k(f"buffer_load_dwordx2 {vr(XR+2*t,2)}, v6, {sr(RA,4)}, 0 offen offset:{32*t}"); vq.add(("x", t))
    vq = n640_loop(k, 20, "O", lambda st: WO_L + st * 5120, (), xload)
    k.stamp(9)
    k(f"v_lshlrev_b32 v10, 4, v4\nv_add_u32 v10, {VEC3}, v10")
    G, C1, T = 48, 68, 160
    for t in range(5): k(f"ds_read_b128 {vr(G+4*t,4)}, v10 offset:{64*t}")
    for t in range(5): k(f"ds_read_b128 {vr(C1+4*t,4)}, v10 offset:{320+64*t}")
    for t in range(5):
        for d in range(2):
            k(f"v_lshlrev_b32 {v(T+4*t+2*d)}, 16, {v(XR+2*t+d)}\nv_and_b32 {v(T+4*t+2*d+1)}, 0xffff0000, {v(XR+2*t+d)}")
    k("s_waitcnt lgkmcnt(5)")
    for j in range(20): k(f"v_fmac_f32 {v(T+j)}, {v(G+j)}, {v(ACC+j)}")
    k("s_waitcnt lgkmcnt(0)")
    for j in range(20): k(f"v_mul_f32 {v(C1+j)}, {v(C1+j)}, {v(T+j)}")
    Yp = 48
    for t in range(5): k(f"v_cvt_pk_bf16_f32 {v(Yp+2*t)}, {v(C1+4*t)}, {v(C1+4*t+1)}\nv_cvt_pk_bf16_f32 {v(Yp+2*t+1)}, {v(C1+4*t+2)}, {v(C1+4*t+3)}")
    k(f"v_mov_b32 {v(Yp+10)}, {v(Yp+8)}\nv_mov_b32 {v(Yp+11)}, {v(Yp+9)}")
    k(f"""s_lshr_b32 s52, s15, 1
    s_mul_i32 s52, s52, 40960
    s_mul_i32 s53, {s(scb)}, 5120
    s_add_u32 s52, s52, s53
    s_and_b32 s53, s15, 1
    s_lshl_b32 s53, s53, 8
    s_add_u32 s52, s52, s53
    s_add_u32 s52, s52, {WS['Y']}
    v_and_b32 v11, 1, v4
    v_lshlrev_b32 v11, 10, v11
    v_lshrrev_b32 v12, 1, v4
    v_lshl_add_u32 v11, v12, 9, v11
    v_lshl_add_u32 v11, v3, 4, v11""")
    for pr in range(3):
        b = Yp + 4 * pr
        k(f"v_permlane16_swap_b32 {v(b)}, {v(b+2)}\nv_permlane16_swap_b32 {v(b+1)}, {v(b+3)}")
    for pr in range(2):
        k(f"buffer_store_dwordx4 {vr(Yp+4*pr,4)}, v11, {sr(WSR,4)}, s52 offen offset:{2048*pr} {HO}")
    k("s_add_u32 s52, s52, 4096\nv_and_b32 v12, 1, v4\nv_cmp_eq_u32 vcc, 0, v12\ns_and_saveexec_b64 s[54:55], vcc")
    k(f"buffer_store_dwordx4 {vr(Yp+8,4)}, v11, {sr(WSR,4)}, s52 offen {HO}")
    k("s_mov_b64 exec, s[54:55]")
    for t in range(5): k(f"v_cvt_pk_bf16_f32 {v(X1+2*t)}, {v(T+4*t)}, {v(T+4*t+1)}\nv_cvt_pk_bf16_f32 {v(X1+2*t+1)}, {v(T+4*t+2)}, {v(T+4*t+3)}")
    k(f"v_add_f32 v12, {v(T)}, {v(T+1)}")
    for j in range(2, 20): k(f"v_add_f32 v12, v12, {v(T+j)}")
    red_q(k, 12, 14, 15)
    k(f"v_mul_f32 v14, {hex(f32bits(-1.0/80))}, v12\nv_mov_b32 v13, 0")
    for j in range(20): k(f"v_add_f32 {v(T+j)}, v14, {v(T+j)}\nv_fmac_f32 v13, {v(T+j)}, {v(T+j)}")
    red_q(k, 13, 14, 15)
    k(f"s_lshl_b32 s52, s15, 10\ns_lshl_b32 s53, {s(scb)}, 3\ns_add_u32 s52, s52, s53\ns_add_u32 s52, s52, {WS['STATS']}\nv_lshlrev_b32 v14, 6, v3")
    k("v_cmp_gt_u32 vcc, 16, v1\ns_and_saveexec_b64 s[54:55], vcc")
    k(f"buffer_store_dwordx2 v[12:13], v14, {sr(WSR,4)}, s52 offen {HO}")
    k("s_mov_b64 exec, s[54:55]")

def down_consumer(k):
    n640_addr(k)
    waddr = lambda st: DSLOT[(st // 4) % 7] + (st % 4) * 5120
    n640_loop(k, 48, "HH", waddr, set(range(4, 48, 4)))
    k.stamp(11) if False else None
    k(f"v_lshlrev_b32 v10, 4, v4\nv_add_u32 v10, {VEC5}, v10")
    G, T = 48, 160
    for t in range(5): k(f"ds_read_b128 {vr(G+4*t,4)}, v10 offset:{64*t}")
    for t in range(5):
        for d in range(2):
            k(f"v_lshlrev_b32 {v(T+4*t+2*d)}, 16, {v(X1+2*t+d)}\nv_and_b32 {v(T+4*t+2*d+1)}, 0xffff0000, {v(X1+2*t+d)}")
    k("s_waitcnt lgkmcnt(0)")
    for j in range(20): k(f"v_fmac_f32 {v(T+j)}, {v(G+j)}, {v(ACC+j)}")
    srd(k, RA, P_OUT, 2048 * 1280)
    for t in range(5):
        k(f"v_cvt_pk_bf16_f32 {v(G+2*t)}, {v(T+4*t)}, {v(T+4*t+1)}\nv_cvt_pk_bf16_f32 {v(G+2*t+1)}, {v(T+4*t+2)}, {v(T+4*t+3)}")
        k(f"buffer_store_dwordx2 {vr(G+2*t,2)}, v6, {sr(RA,4)}, 0 offen offset:{32*t}")

GACC, GTR, GWB, ST = 16, 112, 176, 224
def gu_consumer(k):
    k("v_and_b32 v3, 31, v1\nv_lshrrev_b32 v4, 5, v1\nv_lshlrev_b32 v5, 4, v1")
    k(f"s_lshl_b32 s15, {s(grb)}, 2\ns_add_u32 s15, s15, {s(sw)}")
    k(f"s_mul_i32 s52, s15, 40960\ns_add_u32 s52, s52, {WS['Y']}")
    vq = Q(k, "vmcnt"); L = Q(k, "lgkmcnt")
    def tload(st):
        k(f"s_add_u32 s53, s52, {st*1024}\nbuffer_load_dwordx4 {vr(GTR+4*(st%16),4)}, v5, {sr(WSR,4)}, s53 offen {HL}"); vq.add(("t", st))
    k(f"s_lshl_b32 s54, s15, 11\ns_add_u32 s54, s54, {WS['STATS']}\nv_lshlrev_b32 v6, 6, v3\nv_lshl_add_u32 v6, v4, 5, v6")
    for st in range(2): tload(st)
    k(f"buffer_load_dwordx4 {vr(ST,4)}, v6, {sr(WSR,4)}, s54 offen {HL}\nbuffer_load_dwordx4 {vr(ST+4,4)}, v6, {sr(WSR,4)}, s54 offen offset:16 {HL}")
    vq.add(("s", 0)); vq.add(("s", 1))
    for st in range(2, 6): tload(st)
    nxt = [6]
    for j in range(96): k(f"v_mov_b32 {v(GACC+j)}, 0")
    k("v_add_u32 v8, 0x10000, v5\nv_add_u32 v9, 0x20000, v5")
    def wread(st, ts=range(6)):
        base = ((st // 4) % GSLOT) * GCH + (st % 4) * 6144
        for t in ts:
            a_ = base + 1024 * t
            k(f"ds_read_b128 {vr(GWB+24*(st%2)+4*t,4)}, {v([5,8,9][a_ >> 16])} offset:{a_ & 0xffff}"); L.add((st, t))
    wread(0)
    def stats():
        a = ST
        vq.wait(("s", 1))
        k(f"""v_add_f32 {v(a+8)}, {v(a)}, {v(a+2)}
        v_add_f32 {v(a+9)}, {v(a+4)}, {v(a+6)}
        v_add_f32 {v(a+8)}, {v(a+8)}, {v(a+9)}
        v_mov_b32 {v(a+9)}, {v(a+8)}
        v_mov_b32 {v(a+10)}, {v(a+8)}
        v_permlane32_swap_b32 {v(a+9)}, {v(a+10)}
        v_add_f32 {v(a+8)}, {v(a+9)}, {v(a+10)}
        v_mul_f32 {v(a+8)}, {hex(f32bits(1.0/640))}, {v(a+8)}
        s_mov_b32 s55, {hex(f32bits(1.0/80))}
        v_add_f32 {v(a+9)}, {v(a+1)}, {v(a+3)}
        v_add_f32 {v(a+10)}, {v(a+5)}, {v(a+7)}
        v_add_f32 {v(a+9)}, {v(a+9)}, {v(a+10)}
        v_mov_b32 {v(a+10)}, 0""")
        for r in (a, a + 2, a + 4, a + 6):
            k(f"v_fma_f32 {v(r)}, {v(r)}, s55, -{v(a+8)}\nv_fmac_f32 {v(a+10)}, {v(r)}, {v(r)}")
        k(f"""v_mov_b32 {v(a+11)}, 0x42a00000
        v_fmac_f32 {v(a+9)}, {v(a+10)}, {v(a+11)}
        v_mov_b32 {v(a+10)}, {v(a+9)}
        v_mov_b32 {v(a+11)}, {v(a+9)}
        v_permlane32_swap_b32 {v(a+10)}, {v(a+11)}
        v_add_f32 {v(a+9)}, {v(a+10)}, {v(a+11)}
        v_mov_b32 {v(a+10)}, {hex(f32bits(1e-5))}
        v_mov_b32 {v(a+11)}, {hex(f32bits(1.0/640))}
        v_fmac_f32 {v(a+10)}, {v(a+9)}, {v(a+11)}
        v_rsq_f32 {v(a+10)}, {v(a+10)}
        s_nop 0
        v_mov_b32 {v(a+12)}, {v(a+10)}
        v_mov_b32 {v(a+13)}, {v(a+10)}
        v_mul_f32 {v(a+14)}, {hex(f32bits(-LOG2E))}, {v(a+10)}
        v_mov_b32 {v(a+15)}, {v(a+14)}
        v_mul_f32 {v(a+16)}, {v(a+8)}, {v(a+10)}
        v_sub_f32 {v(a+16)}, 0, {v(a+16)}
        v_mov_b32 {v(a+17)}, {v(a+16)}""")
    RS, RG, NM = vr(ST + 12, 2), vr(ST + 14, 2), vr(ST + 16, 2)
    for st in range(40):
        last = st == 39
        vq.wait(("t", st))
        for t in range(6):
            L.wait((st, t))
            ac = vr(GACC + 16 * t, 16)
            k(f"v_mfma_f32_32x32x16_bf16 {ac}, {vr(GWB+24*(st%2)+4*t,4)}, {vr(GTR+4*(st%16),4)}, {ac}")
            if not last:
                if t == 0 and (st + 1) % 4 == 0: k("s_barrier")
                wread(st + 1, [t])
        if st == 3: stats()
        n = 0
        while nxt[0] < 40 and nxt[0] <= st + DEPTH and nxt[0] - 16 <= st and n < 2:
            tload(nxt[0]); nxt[0] += 1; n += 1
    k.stamp(10) if False else None
    k(f"v_lshlrev_b32 v10, 4, v4\nv_add_u32 v10, {UBL}, v10")
    k(f"""s_lshl_b32 s52, s15, 1
    s_mul_i32 s52, s52, {48*1024}
    s_mul_i32 s53, {s(gfb)}, 3072
    s_add_u32 s52, s52, s53
    s_add_u32 s52, s52, {WS['HH']}
    v_lshrrev_b32 v11, 4, v3
    v_mul_u32_u24 v11, 0xc000, v11
    v_and_b32 v12, 15, v3
    v_lshl_add_u32 v11, v12, 4, v11
    v_lshl_add_u32 v11, v4, 8, v11""")
    U, B = GTR, GTR + 16
    def uread(tt):
        for part, t in ((0, tt), (1, tt + 3)):
            for a_ in range(4):
                k(f"ds_read_b128 {vr(U+32*part+4*a_,4)}, v10 offset:{t*256 + 32*a_}\nds_read_b128 {vr(B+32*part+4*a_,4)}, v10 offset:{t*256 + 128 + 32*a_}")
    for tt in range(3):
        uread(tt)
        k("s_waitcnt lgkmcnt(8)")
        g = GACC + 16 * tt; u = GACC + 16 * (tt + 3)
        for j in range(0, 16, 2):
            k(f"v_pk_fma_f32 {vr(B+j,2)}, {vr(U+j,2)}, {NM}, {vr(B+j,2)}\nv_pk_fma_f32 {vr(g+j,2)}, {vr(g+j,2)}, {RG}, {vr(B+j,2)}")
        for j in range(16): k(f"v_exp_f32 {v(g+j)}, {v(g+j)}")
        k("s_waitcnt lgkmcnt(0)")
        for j in range(0, 16, 2):
            k(f"v_pk_fma_f32 {vr(B+32+j,2)}, {vr(U+32+j,2)}, {NM}, {vr(B+32+j,2)}\nv_pk_fma_f32 {vr(u+j,2)}, {vr(u+j,2)}, {RS}, {vr(B+32+j,2)}")
        for j in range(16): k(f"v_add_f32 {v(g+j)}, 1.0, {v(g+j)}")
        for j in range(16): k(f"v_rcp_f32 {v(g+j)}, {v(g+j)}")
        for j in range(0, 16, 2): k(f"v_pk_mul_f32 {vr(g+j,2)}, {vr(g+j,2)}, {vr(u+j,2)}")
        Pk = GWB + 8 * tt
        for j in range(8): k(f"v_cvt_pk_bf16_f32 {v(Pk+j)}, {v(g+2*j)}, {v(g+2*j+1)}")
        for jj in range(2):
            b = Pk + 4 * jj
            k(f"v_permlane32_swap_b32 {v(b)}, {v(b+2)}\nv_permlane32_swap_b32 {v(b+1)}, {v(b+3)}")
            k(f"buffer_store_dwordx4 {vr(b,4)}, v11, {sr(WSR,4)}, s52 offen offset:{512*jj} {HO}")
        k("s_add_u32 s52, s52, 1024")

class Prod:
    def __init__(self, k): self.k = k; self.vq = Q(k, "vmcnt")
    def gu_setup(self):
        self.k(f"v_lshlrev_b32 v5, 4, v1\ns_sub_u32 s60, {s(sw)}, 4\ns_mul_i32 s61, s60, 6144\ns_mul_i32 s62, {s(gfb)}, {40*6144}\ns_add_u32 s62, s62, s61\ns_add_u32 s62, s62, {WS['WGU']}")
    def gu_issue(self, c):
        k = self.k
        for t in range(6):
            k(f"s_add_u32 m0, s61, {(c % GSLOT)*GCH + t*1024}\ns_add_u32 s63, s62, {c*GCH + t*1024}\nbuffer_load_dwordx4 v5, {sr(WSR,4)}, s63 offen sc1 lds")
            self.vq.add(("g", c, t))
    def d_setup(self):
        self.k(f"s_mul_i32 s64, s60, 5120\ns_mul_i32 s65, {s(scb)}, {48*5120}\ns_add_u32 s65, s65, s64\ns_add_u32 s65, s65, {WS['WD']}")
    def d_issue(self, c):
        k = self.k
        for t in range(5):
            k(f"s_add_u32 m0, s64, {DSLOT[c % 7] + t*1024}\ns_add_u32 s63, s65, {c*DCH + t*1024}\nbuffer_load_dwordx4 v5, {sr(WSR,4)}, s63 offen sc1 lds")
            self.vq.add(("d", c, t))
    def ub_dma(self):
        k = self.k
        skip = k.lab("noubd")
        k(f"s_cmp_ge_u32 s60, 2\ns_cbranch_scc1 {skip}")
        k(f"s_mul_i32 s63, {s(gfb)}, 1536\ns_lshl_b32 s66, s60, 10\ns_add_u32 s63, s63, s66\ns_add_u32 s63, s63, {WS['UB']}\ns_add_u32 m0, s66, {UBL}\ns_nop 0")
        k(f"buffer_load_dwordx4 v5, {sr(WSR,4)}, s63 offen sc1 lds\ns_waitcnt vmcnt(0)")
        k.label(skip)
```

```python
import sys, os
sys.path.insert(0, os.path.dirname(os.path.abspath(__file__)))
from mcommon import *
import p01, p2, p345

NAME = "adaLN_cond__mha_block__glu_gated_glu__prompt_kernel"
STOP = int(os.environ.get("STOP", "9"))
LDS = 163840

def finish(k):
    k.stamp(23)
    k.stamp_flush(WSR, sw)
    k("s_endpgm")

def build():
    k = K(NAME, 256)
    k.name_short = "m"
    end = k.lab("end")
    k(f"s_cmp_ge_u32 s2, 256\ns_cbranch_scc1 {end}")
    if STAMPS:
        for i in range(24): k(f"s_mov_b32 s{70+i}, 0")
    k.stamp(0)
    k("s_load_dwordx16 s[16:31], s[0:1], 0\ns_load_dwordx8 s[32:39], s[0:1], 64")
    k(f"v_and_b32 v1, 63, v0\nv_lshrrev_b32 v2, 6, v0\nv_readfirstlane_b32 {s(sw)}, v2")
    k(f"s_and_b32 {s(sXCD)}, s2, 7\ns_lshr_b32 {s(sIDX)}, s2, 3")
    p01.tile_ids(k)
    k("s_waitcnt lgkmcnt(0)")
    srd(k, WSR, P_WS, (64 << 20) if STAMPS else WS["END"])
    p01.zero_init(k)
    prod01, p1done = k.lab("prod01"), k.lab("p1done")
    k(f"s_cmp_ge_u32 {s(sw)}, 4\ns_cbranch_scc1 {prod01}")
    p01.consumer01(k, p1done)
    k.label(prod01)
    p01.producer01(k, p1done)
    k.label(p1done)
    k("s_waitcnt vmcnt(0)\ns_barrier")
    nw = k.lab("s12w")
    k(f"s_cmp_lg_u32 {s(sw)}, 0\ns_cbranch_scc1 {nw}")
    k(f"s_and_b32 s52, s2, 15\ns_add_u32 s52, s52, {C_S12}")
    arrive(k, 52)
    k.label(nw)
    if STOP == 1: finish(k); k.label(end); k("s_endpgm"); return k
    p2.setup(k)
    nw = k.lab("s12p")
    k(f"s_cmp_lg_u32 {s(sw)}, 0\ns_cbranch_scc1 {nw}")
    poll_setup(k, [(C_S12, 16, 16)]); poll(k, 5, 6)
    k.label(nw)
    k("s_barrier")
    k.stamp(5)
    p2.attention(k)
    k("s_waitcnt vmcnt(0)\ns_barrier")
    w0, rdy = k.lab("s23w0"), k.lab("s23r")
    k(f"s_cmp_lg_u32 {s(sw)}, 0\ns_cbranch_scc1 {w0}")
    k(f"s_add_u32 s52, {s(p2.sqb)}, {C_O}")
    arrive(k, 52)
    if STOP == 2:
        k.label(w0); finish(k); k.label(end); k("s_endpgm"); return k
    p345.ids(k)
    k(f"s_lshr_b32 s52, {s(p345.srb)}, 2\ns_add_u32 s52, s52, {C_O}")
    poll_setup(k, [("s52", 1, 32)]); poll(k, 5, 6)
    k(f"s_branch {rdy}")
    k.label(w0)
    p345.ids(k)
    p345.wo_prefetch(k)
    nv = k.lab("nov3")
    k(f"s_cmp_lg_u32 {s(sw)}, 7\ns_cbranch_scc1 {nv}")
    p345.vec_load(k, [(2, False), (4, True)], p345.VEC3)
    k.label(nv)
    k("s_waitcnt vmcnt(0)")
    k.label(rdy)
    k("s_barrier")
    k.stamp(8)
    prod3 = k.lab("prod3")
    k(f"s_cmp_ge_u32 {s(sw)}, 4\ns_cbranch_scc1 {prod3}")
    p345.wo_consumer(k)
    k("s_waitcnt vmcnt(0)\ns_barrier")
    nw = k.lab("s34w")
    k(f"s_cmp_lg_u32 {s(sw)}, 0\ns_cbranch_scc1 {nw}")
    k(f"s_lshr_b32 s52, {s(p345.srb)}, 1\ns_add_u32 s52, s52, {C_Y}")
    arrive(k, 52)
    nu = k.lab("nou")
    k(f"s_cmp_ge_u32 s2, 96\ns_cbranch_scc1 {nu}")
    sdiv(k, 52, 2, 6); k(f"s_add_u32 s52, s52, {C_U}")
    arrive(k, 52)
    k.label(nu)
    if STOP > 3:
        k(f"s_add_u32 s52, {s(p345.grb)}, {C_Y}\ns_add_u32 s53, {s(p345.gfb)}, {C_U}")
        poll_setup(k, [("s52", 1, 16), ("s53", 1, 6)]); poll(k, 5, 6)
    k.label(nw)
    if STOP == 3: finish(k)
    else:
        k("s_barrier")
        k.stamp(10)
        p345.gu_consumer(k)
        k.stamp(12)
        k("s_waitcnt vmcnt(0)\ns_barrier")
        nw = k.lab("s45w")
        k(f"s_cmp_lg_u32 {s(sw)}, 0\ns_cbranch_scc1 {nw}")
        k(f"s_add_u32 s52, {s(p345.grb)}, {C_H}")
        arrive(k, 52)
        if STOP > 4:
            k(f"s_lshr_b32 s52, {s(p345.srb)}, 1\ns_add_u32 s52, s52, {C_H}")
            poll_setup(k, [("s52", 1, 16)]); poll(k, 5, 6)
        k.label(nw)
        if STOP == 4: finish(k)
        else:
            k("s_barrier")
            k.stamp(13)
            p345.down_consumer(k)
            finish(k)
    k.label(prod3)
    P = p345.Prod(k); vq = P.vq
    if STOP > 3:
        P.gu_setup(); P.gu_issue(0); P.gu_issue(1)
    p345.ub_job(k)
    k("s_barrier")
    if STOP == 3: finish(k)
    else:
        P.gu_setup()
        P.gu_issue(2); P.gu_issue(3)
        vq.wait(("g", 0, 5))
        k("s_barrier")
        k(f"s_min_u32 s66, s60, 1\ns_lshl_b32 s66, s66, 10\ns_mul_i32 s63, {s(p345.gfb)}, 1536\ns_add_u32 s63, s63, s66\ns_add_u32 s63, s63, {WS['UB']}")
        k(f"s_add_u32 m0, s66, {p345.UBL}\ns_nop 0\nbuffer_load_dwordx4 v5, {sr(WSR,4)}, s63 offen sc1 lds"); vq.add("ub")
        issued = 4
        for c in range(1, 10):
            while issued < 10 and issued <= c + 3 and issued - p345.GSLOT <= c - 3:
                P.gu_issue(issued); issued += 1
            vq.wait(("g", c, 5))
            k("s_barrier")
        if STOP > 4:
            P.d_setup()
            nv = k.lab("nov5")
            k(f"s_cmp_lg_u32 {s(sw)}, 7\ns_cbranch_scc1 {nv}")
            p345.vec_load(k, [(5, False)], p345.VEC5)
            k("v_lshlrev_b32 v5, 4, v1")
            k.label(nv)
            for c in range(4): P.d_issue(c)
        k("s_barrier")
        if STOP == 4: finish(k)
        else:
            for c in range(4, 7): P.d_issue(c)
            vq.wait(("d", 0, 4))
            k("s_barrier")
            issued = 7
            for c in range(1, 12):
                while issued < 12 and issued - 7 <= c - 3:
                    P.d_issue(issued); issued += 1
                vq.wait(("d", c, 4))
                k("s_barrier")
            finish(k)
    k.label(end)
    k("s_endpgm")
    return k

def generate():
    here = os.path.dirname(os.path.abspath(__file__))
    head = open(os.path.join(here, "header.txt")).read()
    k = build()
    t, n = k.text()
    return head + f"; @launch grid=(256,1,1) block=(512,1,1) lds={LDS}\n" + '.amdgcn_target "amdgcn-amd-amdhsa--gfx950"\n.text\n' + t + '.section .rodata,"a"\n' + k.desc()

if __name__ == "__main__":
    txt = generate()
    open(sys.argv[1], "w").write(txt)
    print("wrote", sys.argv[1], len(txt), "bytes,", txt.count("\n"), "lines")
```

```python
import os, struct
from asmlib import *
from asmlib import STAMPS
from mlayout import *

def f32bits(x): return struct.unpack("<I", struct.pack("<f", x))[0]
LOG2E = 1.4426950408889634

WSR = 8
sw = 12
P_X, P_WQKV, P_WO, P_BX, P_WG, P_WU, P_WD, P_C = 16, 18, 20, 22, 24, 26, 28, 30
P_WMOD, P_OUT, P_DBG, P_WS = 32, 34, 36, 38
RA, RB = 40, 44
sXCD, sIDX = 13, 14
SPIN_LIMIT = 200000
HO = "sc0 sc1"
HL = "sc1"

PROBE = os.environ.get("PROBE", "s23")
def probe(k, group, i):
    if PROBE == group: k.stamp(18 + i)

def srd(k, sd, sp, nbytes):
    k(f"s_mov_b32 {s(sd)}, {s(sp)}\ns_mov_b32 {s(sd+1)}, {s(sp+1)}\ns_mov_b32 {s(sd+2)}, {hex(nbytes)}\ns_mov_b32 {s(sd+3)}, {hex(SRD3)}")

def sdiv(k, sq, sx, d):
    m = ((1 << 20) + d - 1) // d
    for x in range(1 << 12): assert (x * m) >> 20 == x // d, (d, x)
    k(f"s_mul_i32 {s(sq)}, {s(sx)}, {m}\ns_lshr_b32 {s(sq)}, {s(sq)}, 20")

def arrive(k, cnt, n, go, ngo=1, root=None, nroot=0):
    done = k.lab("arr")
    def idx(x, dst):
        if isinstance(x, int): k(f"s_mov_b32 {dst}, {WS['CNT'] + x*CSTRIDE}")
        else: k(f"s_lshl_b32 {dst}, {x}, 8\ns_add_u32 {dst}, {dst}, {WS['CNT']}")
    def bump(x, target):
        idx(x, "s48")
        k(f"v_mov_b32 v2, 0\nv_mov_b32 v3, 1\ns_mov_b64 exec, 1\nbuffer_atomic_add v3, v2, {sr(WSR,4)}, s48 offen sc0 sc1\ns_waitcnt vmcnt(0)\ns_mov_b64 exec, -1")
        k(f"v_readfirstlane_b32 s49, v3\ns_cmp_lg_u32 s49, {target-1}\ns_cbranch_scc1 {done}")
    bump(cnt, n)
    if root is not None: bump(root, nroot)
    idx(go, "s48")
    k(f"v_lshlrev_b32 v2, 8, v1\nv_mov_b32 v3, 1\ns_mov_b32 exec_lo, {hex((1 << ngo) - 1)}\ns_mov_b32 exec_hi, 0")
    k(f"buffer_store_dword v3, v2, {sr(WSR,4)}, s48 offen sc0 sc1\ns_mov_b64 exec, -1")
    k.label(done)

def poll(k, voff, target, vt=4):
    loop, done = k.lab("poll"), k.lab("polled")
    k(f"s_mov_b32 s49, {WS['CNT']}\ns_mov_b32 s50, 0")
    k.label(loop)
    k(f"buffer_load_dword {v(vt)}, {v(voff)}, {sr(WSR,4)}, s49 offen sc1")
    k("s_waitcnt vmcnt(0)")
    k(f"v_cmp_lt_u32 vcc, {v(vt)}, {v(target)}\ns_cmp_eq_u64 vcc, 0\ns_cbranch_scc1 {done}")
    k(f"s_add_u32 s50, s50, 1\ns_cmp_ge_u32 s50, {SPIN_LIMIT}\ns_cbranch_scc1 {done}\ns_sleep {os.environ.get('PSLEEP', '2')}\ns_branch {loop}")
    k.label(done)

def poll_setup(k, specs, voff=5, vtg=6, lane=1):
    k(f"v_mov_b32 {v(voff)}, 0\nv_mov_b32 {v(vtg)}, 0")
    first = 0
    for base, n, target in specs:
        if isinstance(base, int): k(f"s_mov_b32 s51, {base - first}")
        else: k(f"s_sub_u32 s51, {base}, {first}" if first else f"s_mov_b32 s51, {base}")
        k(f"v_add_u32 v7, s51, {v(lane)}\nv_lshlrev_b32 v7, 8, v7")
        k(f"v_subrev_u32 v8, {first}, {v(lane)}\nv_cmp_gt_u32 vcc, {n}, v8")
        k(f"v_cndmask_b32 {v(voff)}, {v(voff)}, v7, vcc\nv_mov_b32 v7, {target}\nv_cndmask_b32 {v(vtg)}, {v(vtg)}, v7, vcc")
        first += n

def red8(k, r):
    k(f"v_add_f32_dpp {v(r)}, {v(r)}, {v(r)} quad_perm:[1,0,3,2] row_mask:0xf bank_mask:0xf")
    k(f"v_add_f32_dpp {v(r)}, {v(r)}, {v(r)} quad_perm:[2,3,0,1] row_mask:0xf bank_mask:0xf")
    k(f"v_add_f32_dpp {v(r)}, {v(r)}, {v(r)} row_half_mirror row_mask:0xf bank_mask:0xf")

def red_q(k, r, t0, t1):
    k(f"v_mov_b32 {v(t0)}, {v(r)}\nv_mov_b32 {v(t1)}, {v(r)}\nv_permlane16_swap_b32 {v(t0)}, {v(t1)}\nv_add_f32 {v(r)}, {v(t0)}, {v(t1)}")
    k(f"v_mov_b32 {v(t0)}, {v(r)}\nv_mov_b32 {v(t1)}, {v(r)}\nv_permlane32_swap_b32 {v(t0)}, {v(t1)}\nv_add_f32 {v(r)}, {v(t0)}, {v(t1)}")

class Q:
    def __init__(self, k, name): self.k, self.name, self.q = k, name, []
    def add(self, tag): self.q.append(tag)
    def after(self, tag): return len(self.q) - 1 - self.q.index(tag)
    def wait(self, tag):
        n = self.after(tag)
        lim = 63 if self.name == "vmcnt" else 15
        self.k(f"s_waitcnt {self.name}({min(n, lim)})")
```

```python
S, D, H, DH, F = 2048, 640, 32, 20, 1536

def _alloc():
    off = 0
    out = {}
    def put(name, n):
        nonlocal off
        out[name] = off
        off += (n + 4095) // 4096 * 4096
    put("ZERO", 90112)
    put("MODP", 4 * 1280 * 4)
    put("XN", S * D * 2)
    put("WGU", D * 2 * F * 2)
    put("WO", D * D * 2)
    put("WD", F * D * 2)
    put("Q", S * D * 2)
    put("KK", S * D * 2)
    put("V", S * D * 2)
    put("O", S * D * 2)
    put("Y", S * D * 2)
    put("STATS", 2048 * 8 * 8)
    put("HH", S * F * 2)
    out["END"] = off
    out["CNT"] = out["ZERO"]
    out["MOD"] = out["ZERO"] + 45056
    out["UB"] = out["ZERO"] + 60416
    return out
WS = _alloc()
CSTRIDE = 256
C_Q, C_D, C_O, C_Y, C_U, C_H, C_S01 = 0, 16, 32, 40, 56, 72, 88
R_D, R_U, R_S01 = 104, 105, 106
G_Q, G_O, G_Y, G_H, G_S01, G_D, G_U = 108, 124, 132, 148, 164, 172, 173
NCNT = 174
assert NCNT * CSTRIDE <= 45056

A_X, A_WQKV, A_WO, A_BX, A_WG, A_WU, A_WD, A_C, A_WMOD, A_OUT, A_DBG, A_WS = [8 * i for i in range(12)]
SRD3 = 0x00020000

def wo_row_perm():
    p = []
    for kp in range(640):
        pair, r = divmod(kp, 40)
        if r < 16: k = 40 * pair + r
        elif r < 32: k = 40 * pair + 20 + (r - 16)
        elif r < 36: k = 40 * pair + 16 + (r - 32)
        else: k = 40 * pair + 36 + (r - 36)
        p.append(k)
    return p
```

```python
from mcommon import *

QSCALE = LOG2E * 20 ** -0.5
RING = 35
COEF = RING * 4096
STG = COEF + 2560
assert STG + 16384 <= 163840
srb, scb, scq = 15, 4, 5

def tile_ids(k):
    k(f"""s_and_b32 s48, {s(sIDX)}, 3
    s_lshr_b32 s49, {s(sXCD)}, 1
    s_lshl_b32 s49, s49, 2
    s_add_u32 {s(srb)}, s49, s48
    s_lshr_b32 s48, {s(sIDX)}, 2
    s_and_b32 s49, {s(sXCD)}, 1
    s_lshl_b32 s49, s49, 3
    s_add_u32 {s(scb)}, s49, s48""")
    sdiv(k, 48, scb, 5)
    k(f"s_mul_i32 s48, s48, 5\ns_sub_u32 {s(scq)}, {s(scb)}, s48")

def zero_init(k):
    skip = k.lab("noinit")
    k(f"s_cmp_lg_u32 s2, 255\ns_cbranch_scc1 {skip}")
    k("v_mov_b32 v4, 0\nv_mov_b32 v5, 0\nv_mov_b32 v6, 0\nv_mov_b32 v7, 0\nv_lshlrev_b32 v8, 4, v1")
    k(f"s_mul_i32 s48, {s(sw)}, 11264\ns_add_u32 s48, s48, {WS['ZERO']}")
    for i in range(11):
        k(f"buffer_store_dwordx4 v[4:7], v8, {sr(WSR,4)}, s48 offen {HO}\ns_add_u32 s48, s48, 1024")
    k("s_waitcnt vmcnt(0)\ns_barrier")
    k(f"s_cmp_lg_u32 {s(sw)}, 0\ns_cbranch_scc1 {skip}")
    srd(k, RB, P_DBG, 256)
    k("v_mov_b32 v4, 1\nv_mov_b32 v5, 0\ns_mov_b64 exec, 1")
    k(f"buffer_store_dword v4, v5, {sr(RB,4)}, 0 offen offset:4 {HO}")
    k("s_mov_b64 exec, -1")
    k.label(skip)

def wait_ready(k):
    srd(k, RB, P_DBG, 256)
    loop, done = k.lab("rdy"), k.lab("rdyd")
    k("v_mov_b32 v60, 0\ns_mov_b32 s50, 0")
    k.label(loop)
    k(f"buffer_load_dword v61, v60, {sr(RB,4)}, 0 offen offset:4 sc1\ns_waitcnt vmcnt(0)\nv_readfirstlane_b32 s51, v61")
    k(f"s_cmp_lg_u32 s51, 0\ns_cbranch_scc1 {done}\ns_add_u32 s50, s50, 1\ns_cmp_ge_u32 s50, {SPIN_LIMIT}\ns_cbranch_scc1 {done}\ns_sleep 6\ns_branch {loop}")
    k.label(done)

MACC = 162304
assert MACC + 512 <= 163840

def mod_load(k, R0, scb_, sks, wv):
    srd(k, RA, P_WMOD, 640 * 7680); srd(k, RB, P_C, 1280)
    k("v_lshrrev_b32 v3, 3, v1\nv_and_b32 v4, 7, v1")
    k(f"s_mul_i32 s54, {s(sks)}, 160\ns_mul_i32 s55, {s(wv)}, 40\ns_add_u32 s54, s54, s55")
    k(f"v_add_u32 v5, s54, v3\ns_movk_i32 s55, 7680\nv_mul_u32_u24 v6, s55, v5\ns_lshl_b32 s56, {s(scb_)}, 7")
    k("v_lshlrev_b32 v7, 4, v4\nv_add3_u32 v6, v6, v7, s56\nv_lshlrev_b32 v8, 1, v5")
    for i in range(5):
        k(f"s_mov_b32 s57, {61440*i}\nbuffer_load_dwordx4 {vr(R0+4*i,4)}, v6, {sr(RA,4)}, s57 offen")
    for i in range(5):
        k(f"buffer_load_ushort {v(R0+20+i)}, v8, {sr(RB,4)}, 0 offen offset:{16*i}")

def mod_compute(k, R0, T):
    C = R0 + 20
    for j in range(8): k(f"v_mov_b32 {v(T+j)}, 0")
    k("s_mov_b32 s57, 0xbfb8aa3b")
    E = T + 8
    for i in range(5): k(f"v_lshlrev_b32 {v(C+i)}, 16, {v(C+i)}\nv_mul_f32 {v(E+i)}, s57, {v(C+i)}\nv_exp_f32 {v(E+i)}, {v(E+i)}")
    for i in range(5): k(f"v_add_f32 {v(E+i)}, 1.0, {v(E+i)}")
    for i in range(5): k(f"v_rcp_f32 {v(E+i)}, {v(E+i)}")
    for i in range(5): k(f"v_mul_f32 {v(C+i)}, {v(C+i)}, {v(E+i)}")
    for i in range(5):
        for d in range(4):
            r = R0 + 4 * i + d
            k(f"v_lshlrev_b32 {v(T+16)}, 16, {v(r)}\nv_and_b32 {v(T+17)}, 0xffff0000, {v(r)}\nv_fmac_f32 {v(T+2*d)}, {v(C+i)}, {v(T+16)}\nv_fmac_f32 {v(T+2*d+1)}, {v(C+i)}, {v(T+17)}")
    k(f"v_and_b32 {v(T+16)}, 8, v1\nv_cmp_ne_u32 vcc, 0, {v(T+16)}")
    for j in range(4):
        k(f"v_cndmask_b32 {v(T+8+j)}, {v(T+4+j)}, {v(T+j)}, vcc\nv_cndmask_b32 {v(T+12+j)}, {v(T+j)}, {v(T+4+j)}, vcc")
    for j in range(4):
        k(f"v_add_f32_dpp {v(T+12+j)}, {v(T+8+j)}, {v(T+12+j)} row_ror:8 row_mask:0xf bank_mask:0xf")
    a = T + 12
    k(f"v_permlane16_swap_b32 {v(a)}, {v(a+2)}\nv_permlane16_swap_b32 {v(a+1)}, {v(a+3)}\nv_add_f32 {v(a)}, {v(a)}, {v(a+2)}\nv_add_f32 {v(a+1)}, {v(a+1)}, {v(a+3)}")
    k(f"v_permlane32_swap_b32 {v(a)}, {v(a+1)}\nv_add_f32 {v(a)}, {v(a)}, {v(a+1)}")
    c, t = T + 16, T + 17
    k(f"""v_and_b32 {v(c)}, 7, v1
    v_lshlrev_b32 {v(c)}, 3, {v(c)}
    v_bfe_u32 {v(t)}, v1, 3, 1
    v_lshl_add_u32 {v(c)}, {v(t)}, 2, {v(c)}
    v_bfe_u32 {v(t)}, v1, 4, 1
    v_lshl_add_u32 {v(c)}, {v(t)}, 1, {v(c)}
    v_lshrrev_b32 {v(t)}, 5, v1
    v_add_u32 {v(c)}, {v(c)}, {v(t)}""")

def macc_init(k):
    skip = k.lab("nomacc")
    k(f"s_cmp_lg_u32 {s(sw)}, 0\ns_cbranch_scc1 {skip}")
    k(f"v_mov_b32 v2, 0\nv_lshlrev_b32 v3, 2, v1\nv_add_u32 v3, {MACC}, v3\nds_write_b32 v3, v2\nds_write_b32 v3, v2 offset:256\ns_waitcnt lgkmcnt(0)")
    k.label(skip)
    k("s_barrier")

def mod_job(k):
    skip = k.lab("nomod")
    k(f"s_cmp_ge_u32 s2, 80\ns_cbranch_scc1 {skip}")
    sdiv(k, 52, 2, 20)
    k("s_mul_i32 s53, s52, 20\ns_sub_u32 s53, s2, s53")
    mod_load(k, 16, 53, 52, sw)
    k("s_waitcnt vmcnt(0)")
    probe(k, "p0", 1)
    mod_compute(k, 16, 44)
    k(f"v_lshlrev_b32 v60, 2, v60\nv_add_u32 v60, {MACC}, v60\nds_add_f32 v60, v56\nv_mov_b32 v61, {MACC+256}\nv_mov_b32 v62, 1\ns_waitcnt lgkmcnt(0)")
    k("s_mov_b64 exec, 1\nds_add_rtn_u32 v63, v61, v62\ns_waitcnt lgkmcnt(0)\ns_mov_b64 exec, -1\nv_readfirstlane_b32 s57, v63")
    probe(k, "p0", 2)
    k(f"s_cmp_lg_u32 s57, 3\ns_cbranch_scc1 {skip}")
    k(f"v_lshlrev_b32 v60, 2, v1\nv_add_u32 v61, {MACC}, v60\nds_read_b32 v62, v61")
    k(f"s_mul_i32 s56, s52, 5120\ns_lshl_b32 s57, s53, 8\ns_add_u32 s56, s56, s57\ns_add_u32 s56, s56, {WS['MODP']}\ns_waitcnt lgkmcnt(0)")
    k(f"buffer_store_dword v62, v60, {sr(WSR,4)}, s56 offen {HO}")
    k.label(skip)

MR, MT = 64, 96
def mod_rest_load(k):
    skip = k.lab("nomr")
    k(f"s_cmp_lt_u32 s2, 80\ns_cbranch_scc1 {skip}\ns_cmp_ge_u32 s2, 240\ns_cbranch_scc1 {skip}")
    k("s_sub_u32 s53, s2, 80")
    sdiv(k, 52, 53, 40)
    k(f"s_mul_i32 s54, s52, 40\ns_sub_u32 s53, s53, s54\ns_add_u32 s53, s53, 20\ns_sub_u32 s68, {s(sw)}, 4")
    mod_load(k, MR, 53, 52, 68)
    k.label(skip)
def mod_rest_finish(k):
    skip = k.lab("nomf")
    k(f"s_cmp_lt_u32 s2, 80\ns_cbranch_scc1 {skip}\ns_cmp_ge_u32 s2, 240\ns_cbranch_scc1 {skip}")
    mod_compute(k, MR, MT)
    k("s_sub_u32 s53, s2, 80")
    sdiv(k, 52, 53, 40)
    k(f"s_mul_i32 s54, s52, 40\ns_sub_u32 s53, s53, s54\ns_add_u32 s53, s53, 20\ns_lshl_b32 s56, s53, 8\ns_add_u32 s56, s56, {WS['MOD']}")
    k(f"v_lshlrev_b32 {v(MT+16)}, 2, {v(MT+16)}")
    wait_ready(k)
    k(f"buffer_atomic_add_f32 {v(MT+12)}, {v(MT+16)}, {sr(WSR,4)}, s56 offen")
    k.label(skip)

def red16(k, r):
    red8(k, r)
    k(f"v_add_f32_dpp {v(r)}, {v(r)}, {v(r)} row_mirror row_mask:0xf bank_mask:0xf")

def ln_job(k):
    L, Fq, N = 8, 48, 5
    srd(k, RA, P_X, 2048 * 1280)
    k("v_lshrrev_b32 v3, 4, v1\nv_and_b32 v4, 15, v1")
    k(f"s_lshl_b32 s52, s2, 3\ns_sub_u32 s53, {s(sw)}, 4\ns_lshl_b32 s53, s53, 2\ns_add_u32 s52, s52, s53")
    k("v_add_u32 v6, s52, v3\ns_movk_i32 s54, 1280\nv_mul_u32_u24 v6, s54, v6\nv_lshl_add_u32 v6, v4, 4, v6")
    for i in range(N): k(f"buffer_load_dwordx4 {vr(L+4*i,4)}, v6, {sr(RA,4)}, 0 offen offset:{256*i}")
    k("v_mov_b32 v128, 0\nv_mov_b32 v129, 0\nv_mov_b32 v132, 0\nv_mov_b32 v133, 0")
    if STAMPS and PROBE == "p0":
        k("s_waitcnt vmcnt(0)")
        probe(k, "p0", 1)
    for i in range(N):
        k(f"s_waitcnt vmcnt({N-1-i})")
        for d in range(4):
            r = L + 4 * i + d; f = Fq + 8 * i + 2 * d
            k(f"v_lshlrev_b32 {v(f)}, 16, {v(r)}\nv_and_b32 {v(f+1)}, 0xffff0000, {v(r)}")
        for d in range(4):
            f = Fq + 8 * i + 2 * d
            k(f"v_pk_add_f32 v[128:129], v[128:129], {vr(f,2)}")
    k("v_add_f32 v128, v128, v129")
    red16(k, 128)
    k(f"v_mul_f32 v130, {hex(f32bits(-1.0/640))}, v128\nv_mov_b32 v131, v130")
    for j in range(0, 8 * N, 2): k(f"v_pk_add_f32 {vr(Fq+j,2)}, {vr(Fq+j,2)}, v[130:131]")
    for j in range(0, 8 * N, 2): k(f"v_pk_fma_f32 v[132:133], {vr(Fq+j,2)}, {vr(Fq+j,2)}, v[132:133]")
    k("v_add_f32 v132, v132, v133")
    red16(k, 132)
    k(f"v_mov_b32 v134, {hex(f32bits(1e-5))}\nv_mov_b32 v135, {hex(f32bits(1.0/640))}\nv_fmac_f32 v134, v132, v135\nv_rsq_f32 v134, v134\ns_nop 0\nv_mov_b32 v135, v134")
    k(f"s_lshr_b32 s53, s52, 5\ns_mul_i32 s53, s53, 40960\ns_and_b32 s52, s52, 31\ns_lshl_b32 s52, s52, 4\ns_add_u32 s52, s52, s53\ns_add_u32 s52, s52, {WS['XN']}")
    k("v_lshlrev_b32 v6, 9, v4\nv_lshl_add_u32 v6, v3, 4, v6")
    for i in range(N):
        for d in range(4):
            f = Fq + 8 * i + 2 * d
            k(f"v_pk_mul_f32 {vr(f,2)}, {vr(f,2)}, v[134:135]")
        for d in range(4):
            f = Fq + 8 * i + 2 * d
            k(f"v_cvt_pk_f16_f32 {v(L+4*i+d)}, {v(f)}, {v(f+1)}")
        k(f"buffer_store_dwordx4 {vr(L+4*i,4)}, v6, {sr(WSR,4)}, s52 offen {HO}\ns_add_u32 s52, s52, 8192")

def line_prefetch(k, ptr, nbytes, nper, dst, first=0):
    srd(k, RB, ptr, nbytes)
    k("v_lshlrev_b32 v146, 7, v1")
    for j in range(nper):
        k(f"s_add_u32 s50, s2, {first + 256*j}\ns_lshl_b32 s50, s50, 13\nbuffer_load_dword {v(dst+j)}, v146, {sr(RB,4)}, s50 offen")

def code_prefetch(k):
    here, skip = k.lab("pc"), k.lab("nopc")
    k(f"s_cmp_ge_u32 {s(sIDX)}, 8\ns_cbranch_scc1 {skip}")
    k("s_getpc_b64 s[48:49]")
    k.label(here)
    k(f"s_sub_u32 s48, s48, {here}-{k.name}\ns_subb_u32 s49, s49, 0")
    k(f"s_lshl_b32 s50, {s(sIDX)}, 13\nv_lshlrev_b32 v144, 7, v1\nv_add_u32 v144, s50, v144")
    k(f"s_mov_b32 s50, CODE_END-{k.name}-4\nv_min_u32 v144, s50, v144")
    k("global_load_dword v148, v144, s[48:49]")
    k.label(skip)

def wtile_setup(k):
    srd(k, RA, P_WQKV, 640 * 3840)
    k("""v_lshrrev_b32 v141, 4, v1
    v_bfe_u32 v142, v1, 2, 2
    """ + ("v_xor_b32 v142, v142, v141" if not os.environ.get("NOSWZ") else "s_nop 0") + """
    v_lshlrev_b32 v142, 6, v142
    v_and_b32 v143, 3, v1
    v_lshl_add_u32 v142, v143, 4, v142
    s_movk_i32 s52, 3840
    v_mad_u32_u24 v140, v141, s52, v142""")
    k(f"s_lshl_b32 s58, {s(scb)}, 8")

def wtile_issue(k, first, count, stride, wrap=False):
    loop = k.lab("wdma")
    k(f"s_mul_i32 s60, s59, 15360\ns_add_u32 s60, s60, s58\ns_lshl_b32 s61, s59, 10")
    if wrap: k(f"s_sub_u32 s61, s61, {RING*4096}")
    k(f"s_mov_b32 s62, {count}")
    k.label(loop)
    k(f"s_mov_b32 m0, s61\ns_add_u32 s61, s61, {stride*1024}\nbuffer_load_dwordx4 v140, {sr(RA,4)}, s60 offen lds")
    k(f"s_add_u32 s60, s60, {stride*15360}\ns_sub_u32 s62, s62, 1\ns_cmp_lg_u32 s62, 0\ns_cbranch_scc1 {loop}")

def wtile_issue_rot(k, count, stride):
    loop = k.lab("wrot")
    NP = 4 * RING
    k(f"s_mul_i32 s60, {s(srb)}, 9\ns_add_u32 s59, s59, s60\ns_mov_b32 s62, {count}")
    k.label(loop)
    k(f"s_cmp_ge_u32 s59, {NP}\ns_cselect_b32 s60, {NP}, 0\ns_sub_u32 s59, s59, s60")
    k(f"s_lshl_b32 m0, s59, 10\ns_mul_i32 s60, s59, 15360\ns_add_u32 s60, s60, s58\nbuffer_load_dwordx4 v140, {sr(RA,4)}, s60 offen lds")
    k(f"s_waitcnt vmcnt({int(os.environ.get('WINFL', '40'))})")
    k(f"s_add_u32 s59, s59, {stride}\ns_sub_u32 s62, s62, 1\ns_cmp_lg_u32 s62, 0\ns_cbranch_scc1 {loop}")

N_G, N_U, N_O, N_D = 480, 480, 200, 480
sJ = 63
def mini_issue(k, rnd):
    p = 52
    nojob, go = k.lab("mjno"), k.lab("mjgo")
    k(f"s_sub_u32 s52, {s(sw)}, 4\ns_lshl_b32 {s(sJ)}, s2, 2\ns_add_u32 {s(sJ)}, {s(sJ)}, s52\ns_add_u32 {s(sJ)}, {s(sJ)}, {1024*rnd}")
    k(f"s_lshl_b32 s53, s52, 12\ns_add_u32 s53, s53, {STG}")
    k(f"s_mov_b32 s69, 0\ns_cmp_ge_u32 {s(sJ)}, {N_G+N_U+N_O+N_D}\ns_cbranch_scc1 {nojob}")
    labs = [k.lab("mj") for _ in range(4)]
    lim = 0
    for n, lab in zip((N_G, N_U, N_O), labs):
        lim += n
        k(f"s_cmp_lt_u32 {s(sJ)}, {lim}\ns_cbranch_scc1 {lab}")
    k(f"s_branch {labs[3]}")
    types = [("g", P_WG, 640 * 3072, 3072, 12, 0, True, 3, 40, 6, 0, "WGU"), ("u", P_WU, 640 * 3072, 3072, 12, N_G, True, 3, 40, 6, 3, "WGU"),
             ("o", P_WO, 640 * 1280, 1280, 10, N_G + N_U, False, 5, 20, 5, 0, "WO"), ("d", P_WD, 1536 * 1280, 1280, 10, N_G + N_U + N_O, False, 5, 48, 5, 0, "WD")]
    for (name, ptr, nbytes, stride, ncb, start, wide, dv, NS, NT, tadd, base), lab in zip(types, labs):
        k.label(lab)
        srd(k, RB, ptr, nbytes)
        k(f"s_sub_u32 s54, {s(sJ)}, {start}")
        sdiv(k, 55, 54, ncb)
        k(f"s_mul_i32 s56, s55, {ncb}\ns_sub_u32 s54, s54, s56")
        for tt in range(4):
            k(f"s_lshl_b32 s56, s54, 2\ns_add_u32 s56, s56, {tt}")
            sdiv(k, 57, 56, dv)
            k(f"s_mul_i32 {s(64+tt)}, s57, {dv}\ns_sub_u32 s56, s56, {s(64+tt)}\ns_mul_i32 s57, s57, {NS}\ns_add_u32 s57, s57, s55")
            k(f"s_mul_i32 s57, s57, {NT}\ns_add_u32 s57, s57, s56\ns_lshl_b32 s57, s57, 10\ns_add_u32 {s(64+tt)}, s57, {WS[base] + tadd*1024}")
        if wide:
            k(f"""s_mov_b32 s69, 1
            s_lshl_b32 s55, s55, 4
            s_lshl_b32 s54, s54, 8
            v_lshrrev_b32 v8, 4, v1
            v_and_b32 v9, 15, v1
            v_lshl_add_u32 v9, v9, 4, s54""")
            for i in range(4): k(f"v_add_u32 {v(10+i)}, s55, v8\nv_add_u32 {v(10+i)}, {4*i}, {v(10+i)}")
        else:
            k(f"""s_mov_b32 s69, 2
            s_lshl_b32 s55, s55, 5
            s_lshl_b32 s54, s54, 7
            v_lshrrev_b32 v8, 3, v1
            v_and_b32 v9, 7, v1
            v_lshl_add_u32 v9, v9, 4, s54""")
            for i in range(4): k(f"v_add_u32 {v(10+i)}, s55, v8\nv_add_u32 {v(10+i)}, {8*i}, {v(10+i)}")
            if name == "o":
                k("s_movk_i32 s56, 1639")
                for i in range(4):
                    r = 10 + i
                    k(f"""v_mul_u32_u24 v14, s56, {v(r)}
                    v_lshrrev_b32 v14, 16, v14
                    v_mul_u32_u24 v14, 40, v14
                    v_sub_u32 v14, {v(r)}, v14
                    v_mov_b32 v15, 0
                    v_cmp_le_u32 vcc, 16, v14
                    v_cndmask_b32_e64 v15, v15, 4, vcc
                    v_cmp_le_u32 vcc, 32, v14
                    v_cndmask_b32_e64 v15, v15, -16, vcc
                    v_cmp_le_u32 vcc, 36, v14
                    v_cndmask_b32_e64 v15, v15, 0, vcc
                    v_add_u32 {v(r)}, {v(r)}, v15""")
        k(f"s_movk_i32 s56, {stride}")
        for i in range(4): k(f"v_mad_u32_u24 {v(10+i)}, {v(10+i)}, s56, v9")
        k(f"s_branch {go}")
    k.label(go)
    for i in range(4):
        k(f"s_add_u32 m0, s53, {1024*i}\ns_nop 0\nbuffer_load_dwordx4 {v(10+i)}, {sr(RB,4)}, 0 offen lds")
    k.label(nojob)

def mini_finish(k, later):
    done, narrow, rd = k.lab("mfd"), k.lab("mfn"), k.lab("mfr")
    k(f"s_cmp_eq_u32 s69, 0\ns_cbranch_scc1 {done}")
    k(f"s_waitcnt vmcnt({later})")
    k("v_and_b32 v8, 15, v1\nv_lshrrev_b32 v8, 2, v8\nv_and_b32 v9, 3, v1")
    k(f"s_cmp_eq_u32 s69, 2\ns_cbranch_scc1 {narrow}")
    k("""v_lshrrev_b32 v16, 5, v1
    v_lshl_add_u32 v16, v16, 3, v8
    v_lshlrev_b32 v16, 8, v16
    v_bfe_u32 v17, v1, 4, 1
    v_lshlrev_b32 v17, 5, v17
    v_lshl_add_u32 v17, v9, 3, v17
    v_add3_u32 v16, v16, v17, s53""")
    for tt in range(4):
        k(f"ds_read_b64_tr_b16 {vr(20+4*tt,2)}, v16 offset:{64*tt}\nds_read_b64_tr_b16 {vr(22+4*tt,2)}, v16 offset:{64*tt+1024}")
    k(f"s_branch {rd}")
    k.label(narrow)
    k("""v_lshrrev_b32 v16, 4, v1
    v_lshl_add_u32 v16, v16, 3, v8
    v_lshlrev_b32 v16, 7, v16
    v_lshl_add_u32 v16, v9, 3, v16
    v_add_u32 v16, s53, v16""")
    for tt in range(4):
        k(f"ds_read_b64_tr_b16 {vr(20+4*tt,2)}, v16 offset:{32*tt}\nds_read_b64_tr_b16 {vr(22+4*tt,2)}, v16 offset:{32*tt+512}")
    k.label(rd)
    k("v_lshlrev_b32 v17, 4, v1")
    for tt in range(4):
        k(f"s_waitcnt lgkmcnt({6-2*tt})\nbuffer_store_dwordx4 {vr(20+4*tt,4)}, v17, {sr(WSR,4)}, {s(64+tt)} offen {HO}")
    k.label(done)

def sync01_consumer(k):
    k("s_waitcnt vmcnt(0)\ns_barrier")
    probe(k, "p0", 4)
    nw = k.lab("s01w")
    k(f"s_cmp_lg_u32 {s(sw)}, 0\ns_cbranch_scc1 {nw}")
    wait_ready(k)
    probe(k, "p0", 3)
    k(f"s_and_b32 s52, s2, 15\ns_add_u32 s52, s52, {C_S01}")
    arrive(k, "s52", 16, G_S01, 8, R_S01, 16)
    k(f"s_add_u32 s52, {s(sXCD)}, {G_S01}")
    poll_setup(k, [("s52", 1, 1)])
    if not os.environ.get("NOPOLL01"): poll(k, 5, 6)
    k.label(nw)
    k("s_barrier")

CL = 224
def coef_load(k):
    k(f"v_lshlrev_b32 v9, 4, v0\nv_and_b32 v15, 15, v1\nv_lshlrev_b32 v15, 4, v15\ns_lshl_b32 s55, {s(sw)}, 8\ns_add_u32 s55, s55, 4096\nv_add_u32 v15, s55, v15")
    for ks in range(4):
        k(f"s_mov_b32 s52, {WS['MODP'] + ks*5120}\nbuffer_load_dwordx4 {vr(CL+4*ks,4)}, v9, {sr(WSR,4)}, s52 offen {HL}\nbuffer_load_dwordx4 {vr(CL+16+4*ks,4)}, v15, {sr(WSR,4)}, s52 offen {HL}")
def coef_prep(k, later):
    k(f"s_waitcnt vmcnt({later})")
    k("v_cmp_le_u32 vcc, 160, v0\nv_mov_b32 v6, 0\nv_cndmask_b32_e64 v6, v6, 1.0, vcc")
    for b in (CL, CL + 16):
        for j in range(4):
            k(f"v_add_f32 {v(b+j)}, {v(b+j)}, {v(b+4+j)}\nv_add_f32 {v(b+8+j)}, {v(b+8+j)}, {v(b+12+j)}")
        for j in range(4):
            k(f"v_add_f32 {v(b+j)}, {v(b+j)}, {v(b+8+j)}")
    for j in range(4): k(f"v_add_f32 {v(CL+j)}, {v(CL+j)}, v6\nv_add_f32 {v(CL+16+j)}, 1.0, {v(CL+16+j)}")
    k(f"v_cvt_pk_f16_f32 {v(CL+4)}, {v(CL)}, {v(CL+1)}\nv_cvt_pk_f16_f32 {v(CL+5)}, {v(CL+2)}, {v(CL+3)}\nv_lshlrev_b32 v7, 3, v0\nv_add_u32 v7, {COEF}, v7\nds_write_b64 v7, {vr(CL+4,2)}")
    k(f"v_cvt_pk_f16_f32 {v(CL+20)}, {v(CL+16)}, {v(CL+17)}\nv_cvt_pk_f16_f32 {v(CL+21)}, {v(CL+18)}, {v(CL+19)}\nv_lshrrev_b32 v7, 1, v15\nv_add_u32 v7, {COEF}, v7\nds_write_b64 v7, {vr(CL+20,2)}")

ACC, TR, WB, CB, HF, HB, AW, OFF = 16, 80, 144, 176, 192, 200, 208, 220
NR, PRE, DEPTH = 16, 4, 10

def qkv_consumer(k, isv):
    k("v_and_b32 v3, 31, v1\nv_lshrrev_b32 v4, 5, v1\nv_lshlrev_b32 v5, 4, v1")
    k(f"s_lshl_b32 s53, {s(srb)}, 2\ns_add_u32 s53, s53, {s(sw)}")
    k(f"s_mul_i32 s54, s53, 40960\ns_add_u32 s54, s54, {WS['XN']}")
    vq = Q(k, "vmcnt"); L = Q(k, "lgkmcnt")
    coef_load(k)
    for j in range(7): vq.add(("coef", j))
    vq.add("coef")
    def tload(st):
        k(f"s_add_u32 s55, s54, {st*1024}\nbuffer_load_dwordx4 {vr(TR+4*(st%NR),4)}, v5, {sr(WSR,4)}, s55 offen {HL}"); vq.add(("t", st))
    for st in range(PRE): tload(st)
    nxt = [PRE]
    for j in range(64): k(f"v_mov_b32 {v(ACC+j)}, 0")
    k("""v_and_b32 v8, 15, v1
    v_lshrrev_b32 v8, 2, v8
    v_lshl_add_u32 v9, v4, 3, v8
    v_lshlrev_b32 v9, 8, v9
    v_bfe_u32 v10, v1, 4, 1
    v_lshl_add_u32 v9, v10, 5, v9
    v_and_b32 v10, 3, v1
    v_lshl_add_u32 v9, v10, 3, v9""")
    for t in range(4):
        k(f"v_xor_b32 v10, {t}, v8\nv_lshl_add_u32 {v(AW+t)}, v10, 6, v9")
        k(f"v_add_u32 {v(AW+4+t)}, 0x10000, {v(AW+t)}\nv_add_u32 {v(AW+8+t)}, 0x20000, {v(AW+t)}")
    k(f"v_lshlrev_b32 v14, 4, v4\nv_add_u32 v14, {COEF}, v14")
    if isv:
        k(f"s_lshl_b32 s56, {s(scq)}, 7\nv_add_u32 v6, s56, v3\ns_movk_i32 s56, 3277\ns_mov_b32 s57, 81920\nv_mul_u32_u24 v7, 0x140, v4")
        for t in range(4):
            k(f"""v_add_u32 v9, {32*t}, v6
            v_mul_u32_u24 v10, s56, v9
            v_lshrrev_b32 v10, 16, v10
            v_mad_i32_i24 v9, v10, -16, v9
            v_mad_i32_i24 v9, v10, -4, v9
            v_lshl_add_u32 v9, v9, 4, v7
            v_mad_u32_u24 {v(OFF+t)}, v10, s57, v9""")
        k(f"s_lshl_b32 s58, s53, 1\ns_mul_i32 s58, s58, 640\ns_add_u32 s58, s58, {WS['V']}")
    else:
        k(f"s_mul_i32 s58, s53, 40960\ns_lshl_b32 s56, {s(scq)}, 13\ns_add_u32 s58, s58, s56\ns_mov_b32 s56, {WS['Q']}\ns_mov_b32 s60, {hex(f32bits(QSCALE))}")
        k(f"s_cmp_lt_u32 {s(scb)}, 5\ns_cselect_b32 s56, s56, {WS['KK']}\ns_cselect_b32 s60, s60, 1.0\ns_add_u32 s58, s58, s56\ns_mov_b32 s61, 0")
    coef_prep(k, vq.after("coef"))
    k("s_waitcnt lgkmcnt(0)\ns_barrier")
    k.stamp(3)
    def wread(st, ts=range(4)):
        for t in ts:
            for u in range(2):
                a_ = (st % RING) * 4096 + u * 1024
                k(f"ds_read_b64_tr_b16 {vr(WB+16*(st%2)+4*t+2*u,2)}, {v(AW+4*(a_>>16)+t)} offset:{a_ & 0xffff}")
                L.add(("w", st, t, u))
    def cread(st, which=(0, 1)):
        for x in which:
            k(f"ds_read_b128 {vr(CB+8*(st%2)+4*x,4)}, v14 offset:{(1280 if x == 0 else 0) + 32*st}"); L.add(("c", st, x))
    def mix(st, j0, j1):
        T = TR + 4 * (st % NR); C1 = CB + 8 * (st % 2); C0 = C1 + 4
        for j in range(j0, j1):
            o = j & 1
            k(f"v_fma_mix_f32 {v(HF+j)}, {v(T+j//2)}, {v(C1+j//2)}, {v(C0+j//2)} op_sel:[{o},{o},{o}] op_sel_hi:[1,1,1]")
    def cvt(st, ds=range(4)):
        for d in ds: k(f"v_cvt_pk_bf16_f32 {v(HB+4*(st%2)+d)}, {v(HF+2*d)}, {v(HF+2*d+1)}")
    def mfma(st, t):
        L.wait(("w", st, t, 1))
        w = vr(WB + 16 * (st % 2) + 4 * t, 4); h = vr(HB + 4 * (st % 2), 4); ac = vr(ACC + 16 * t, 16)
        k(f"v_mfma_f32_32x32x16_bf16 {ac}, {h}, {w}, {ac}" if isv else f"v_mfma_f32_32x32x16_bf16 {ac}, {w}, {h}, {ac}")
    cread(0); wread(0); cread(1)
    L.wait(("c", 0, 1)); vq.wait(("t", 0)); mix(0, 0, 8); cvt(0)
    for st in range(40):
        last = st == 39; more = st + 2 < 40
        mfma(st, 0)
        if st in (5, 34): k("s_barrier")
        if not last:
            wread(st + 1, [0])
            if more: cread(st + 2, [0])
            L.wait(("c", st + 1, 1)); vq.wait(("t", st + 1))
            mix(st + 1, 0, 3)
        mfma(st, 1)
        if not last:
            wread(st + 1, [1])
            if more: cread(st + 2, [1])
            mix(st + 1, 3, 6)
        mfma(st, 2)
        if not last:
            wread(st + 1, [2]); mix(st + 1, 6, 8); cvt(st + 1, [0, 1])
        mfma(st, 3)
        if not last:
            wread(st + 1, [3]); cvt(st + 1, [2, 3])
            n = 0
            while nxt[0] < 40 and nxt[0] <= st + 1 + DEPTH and nxt[0] - NR <= st + 1 and n < 2:
                tload(nxt[0]); nxt[0] += 1; n += 1
    k.stamp(4)
    if not isv:
        for t in range(4):
            r = ACC + 16 * t; d = TR + 8 * t
            for j in range(0, 16, 2): k(f"v_pk_mul_f32 {vr(r+j,2)}, {vr(r+j,2)}, s[60:61] op_sel_hi:[1,0]")
            for j in range(8): k(f"v_cvt_pk_bf16_f32 {v(d+j)}, {v(r+2*j)}, {v(r+2*j+1)}")
            for j in range(2):
                b = d + 4 * j
                k(f"v_permlane32_swap_b32 {v(b)}, {v(b+2)}\nv_permlane32_swap_b32 {v(b+1)}, {v(b+3)}")
                k(f"buffer_store_dwordx4 {vr(b,4)}, v5, {sr(WSR,4)}, s58 offen offset:{1024*j} {HO}")
            k("s_add_u32 s58, s58, 2048")
    else:
        for t in range(4):
            for g in range(2):
                r = ACC + 16 * t + 8 * g; d = TR + 4 * (2 * t + g)
                for j in range(4): k(f"v_cvt_pk_bf16_f32 {v(d+j)}, {v(r+2*j)}, {v(r+2*j+1)}")
                k(f"buffer_store_dwordx4 {vr(d,4)}, {v(OFF+t)}, {sr(WSR,4)}, s58 offen offset:{640*g} {HO}")

def consumer01(k, after):
    mod_job(k)
    k.stamp(1)
    sync01_consumer(k)
    k.stamp(2)
    idle, lv = k.lab("qidle"), k.lab("qv")
    k(f"s_cmp_eq_u32 {s(scb)}, 15\ns_cbranch_scc1 {idle}")
    k(f"s_cmp_ge_u32 {s(scb)}, 10\ns_cbranch_scc1 {lv}")
    qkv_consumer(k, False)
    k(f"s_branch {after}")
    k.label(lv)
    qkv_consumer(k, True)
    k(f"s_branch {after}")
    k.label(idle)
    k("s_barrier\ns_barrier\ns_barrier")
    k(f"s_branch {after}")

def producer01(k, after):
    lnw, joined, notile, nt2 = k.lab("lnw"), k.lab("pj"), k.lab("nt"), k.lab("nt2")
    k(f"s_cmp_lt_u32 {s(sw)}, 6\ns_cbranch_scc1 {lnw}")
    w7 = k.lab("w7")
    k(f"s_cmp_eq_u32 {s(sw)}, 7\ns_cbranch_scc1 {w7}")
    line_prefetch(k, P_WQKV, 640 * 3840, 2, 150)
    code_prefetch(k)
    k(f"s_branch {joined}")
    k.label(w7)
    if os.environ.get("BATCH2") == "1":
        line_prefetch(k, P_WO, 640 * 1280, 1, 150)
        k("s_waitcnt vmcnt(0)")
        line_prefetch(k, P_WMOD, 640 * 7680, 3, 151)
        line_prefetch(k, P_WG, 640 * 3072, 1, 154)
        line_prefetch(k, P_WU, 640 * 3072, 1, 155)
        line_prefetch(k, P_WD, 1536 * 1280, 1, 156)
    k(f"s_branch {joined}")
    k.label(lnw)
    ln_job(k)
    probe(k, "p0", 2)
    k("s_waitcnt vmcnt(0)")
    probe(k, "p0", 3)
    k.label(joined)
    k.stamp(1)
    k("s_barrier")
    k(f"s_cmp_eq_u32 {s(scb)}, 15\ns_cbranch_scc1 {nt2}")
    wtile_setup(k)
    k(f"s_sub_u32 s59, {s(sw)}, 4")
    wtile_issue_rot(k, 35, 4)
    k.label(nt2)
    mini_issue(k, 0)
    k("s_waitcnt vmcnt(4)")
    probe(k, "p0", 4)
    k("s_barrier")
    k.stamp(2)
    k("s_barrier")
    mini_finish(k, 0)
    k("s_barrier")
    k(f"s_cmp_eq_u32 {s(scb)}, 15\ns_cbranch_scc1 {notile}")
    wtile_setup(k)
    k(f"s_sub_u32 s59, {s(sw)}, 4\ns_mul_i32 s59, s59, 5\ns_add_u32 s59, s59, 140")
    wtile_issue(k, 0, 5, 1, wrap=True)
    k.label(notile)
    k("s_waitcnt vmcnt(0)")
    mod_rest_load(k)
    mini_issue(k, 1)
    k("s_barrier")
    k("s_waitcnt vmcnt(0)")
    mini_finish(k, 0)
    mod_rest_finish(k)
    k.stamp(4)
    k(f"s_branch {after}")
```

```python
from mcommon import *

SLOT = 22528
R = 3
CONST = R * SLOT
FLAG = CONST + 5120
XCH = 0
shead, sqb, sgrp = 4, 5, 6
sG, sSt, sL, sNext, sLoad, sCh, sIt, sflag = 52, 55, 58, 61, 62, 63, 64, 65

QMA, QRA, QMB, QRB = 16, 20, 22, 26
SA, SB = 28, 60
PA, PB, OA, OB, MNA, MNB = 92, 100, 108, 124, 140, 156
KM, KR, VV = 172, 180, 184
vKm0, vKr0, vV0, vVm, vKm, vKr, vV, vD = 200, 201, 202, 203, 204, 205, 206, 207
MA, MB = 210, 211
FIN = 212
vCA, vCD, sChk = 225, 226, 66

def ids(k):
    k(f"""s_and_b32 s48, {s(sIDX)}, 3
    s_lshl_b32 {s(shead)}, {s(sXCD)}, 2
    s_add_u32 {s(shead)}, {s(shead)}, s48
    s_lshr_b32 {s(sqb)}, {s(sIDX)}, 2
    s_lshr_b32 {s(sgrp)}, {s(sw)}, 2""")

def setup(k):
    ids(k)
    k(f"s_mul_i32 s48, {s(shead)}, 5\ns_lshr_b32 s48, s48, 1\ns_lshl_b32 s7, s48, 9")
    k("v_lshlrev_b32 v2, 4, v1")
    for i in range(3):
        k(f"s_add_u32 s48, {s(sw)}, {8*i}")
        if i == 2: k("s_cmp_ge_u32 s48, 22\ns_cselect_b32 s49, 2, 0\ns_sub_u32 s48, s48, s49")
        k(f"s_lshl_b32 {s(sL+i)}, s48, 10")
        k(f"""v_add_u32 v3, {s(sL+i)}, v2
        v_lshrrev_b32 v4, 9, v3
        v_mul_u32_u24 v4, 43, v4
        v_lshrrev_b32 v4, 7, v4
        v_mul_u32_u24 v5, 0x600, v4
        v_sub_u32 v5, v3, v5
        s_mov_b32 s49, 40960
        v_mad_u32_u24 v5, v4, s49, v5
        v_subrev_u32 v3, 0x3000, v3
        s_cmp_lt_u32 s48, 12
        s_cselect_b64 vcc, -1, 0
        v_cndmask_b32 {v(vD+i)}, v3, v5, vcc""")
        k(f"s_mul_i32 s49, {s(shead)}, 81920\ns_add_u32 s49, s49, {WS['V']}\ns_add_u32 s50, s7, {WS['KK']}")
        k(f"s_cmp_lt_u32 s48, 12\ns_cselect_b32 {s(sG+i)}, s50, s49\ns_mov_b32 s50, {8*40960}\ns_cselect_b32 {s(sSt+i)}, s50, 10240")
    k(f"""v_and_b32 v3, 31, v1
    v_lshrrev_b32 v4, 5, v1
    s_mul_i32 s48, {s(sgrp)}, 6144
    v_add_u32 {v(vKm0)}, s48, v2
    v_lshlrev_b32 v5, 4, v3
    v_lshl_add_u32 v5, v4, 3, v5
    s_add_u32 s48, s48, 1024
    v_add_u32 {v(vKr0)}, s48, v5
    v_mul_u32_u24 v5, 0x140, v4
    v_lshl_add_u32 v5, v3, 4, v5
    s_mul_i32 s48, {s(sgrp)}, 5120
    v_add_u32 v5, s48, v5
    v_mov_b32 v6, {CONST - 12288}
    v_mov_b32 v7, {CONST + 16 - 12288}
    v_cmp_lt_u32 vcc, 20, v3
    v_cndmask_b32 v6, v6, v7, vcc
    v_cmp_le_u32 vcc, 20, v3
    v_cndmask_b32 {v(vV0)}, v5, v6, vcc
    v_mov_b32 v7, 1
    v_cndmask_b32_e64 {v(vVm)}, v7, 0, vcc""")
    for j in range(16): k(f"v_mov_b32 {v(MNA+j)}, 0\nv_mov_b32 {v(MNB+j)}, 0")
    k(f"s_mov_b32 {s(sflag)}, 0")
    k(f"s_cmp_eq_u32 {s(sw)}, 0\ns_cselect_b32 {s(sChk)}, 1, 0xff")
    k(f"v_mov_b32 {v(vCA)}, {G_D*256}")
    noc = k.lab("noc")
    k(f"s_cmp_lg_u32 {s(sw)}, 1\ns_cbranch_scc1 {noc}")
    k(f"""v_mov_b32 v8, 0x3f803f80
    v_mov_b32 v9, 0x3f803f80
    v_mov_b32 v10, 0x3f803f80
    v_mov_b32 v11, 0x3f803f80
    v_mov_b32 v12, 0
    v_mov_b32 v13, 0
    v_mov_b32 v14, 0
    v_mov_b32 v15, 0
    v_min_u32 v5, 7, v1
    v_mul_u32_u24 v5, 0x280, v5
    v_add_u32 v5, {CONST}, v5
    ds_write_b128 v5, v[8:11]
    ds_write_b128 v5, v[12:15] offset:16
    v_mov_b32 v5, {FLAG}
    ds_write_b32 v5, v12
    s_waitcnt lgkmcnt(0)""")
    k.label(noc)

def dep_counters(k):
    k(f"""s_lshr_b32 s48, s7, 9
    s_lshr_b32 s49, s48, 4
    s_add_u32 s50, s48, 2
    s_lshr_b32 s50, s50, 4
    s_mul_i32 s51, {s(shead)}, 20
    s_add_u32 s52, s51, 19
    s_lshr_b32 s51, s51, 7
    s_lshr_b32 s52, s52, 7
    v_mov_b32 v5, s49
    v_mov_b32 v6, 1""")
    for lane, (reg, addk) in enumerate([(50, 0), (49, 5), (50, 5), (51, 10), (52, 10)], start=1):
        k(f"s_add_u32 s53, s{reg}, {addk}\nv_mov_b32 v7, s53\nv_cmp_eq_u32 vcc, {lane}, v1\nv_cndmask_b32 v5, v5, v7, vcc")
    k(f"v_add_u32 v5, {G_Q}, v5\nv_lshlrev_b32 v5, 8, v5")

def dma(k, i, sslot):
    k(f"s_add_u32 m0, {s(sL+i)}, {s(sslot)}\ns_nop 0\nbuffer_load_dwordx4 {v(vD+i)}, {sr(WSR,4)}, {s(sG+i)} offen sc1 lds")

def load_q(k):
    k(f"""s_lshl_b32 s48, {s(sqb)}, 3
    s_and_b32 s49, {s(sw)}, 3
    s_lshl_b32 s49, s49, 1
    s_add_u32 s48, s48, s49
    s_mul_i32 s48, s48, 40960
    s_add_u32 s48, s48, s7
    s_add_u32 s48, s48, {WS['Q']}
    s_add_u32 s49, s48, 40960
    v_lshlrev_b32 v2, 4, v1
    v_and_b32 v3, 31, v1
    v_lshrrev_b32 v4, 5, v1
    v_lshlrev_b32 v5, 4, v3
    v_lshl_add_u32 v5, v4, 3, v5""")
    k(f"buffer_load_dwordx4 {vr(QMA,4)}, v2, {sr(WSR,4)}, s48 offen {HL}\nbuffer_load_dwordx2 {vr(QRA,2)}, v5, {sr(WSR,4)}, s48 offen offset:1024 {HL}")
    k(f"buffer_load_dwordx4 {vr(QMB,4)}, v2, {sr(WSR,4)}, s49 offen {HL}\nbuffer_load_dwordx2 {vr(QRB,2)}, v5, {sr(WSR,4)}, s49 offen offset:1024 {HL}")
def mask_q(k):
    odd, done = k.lab("qodd"), k.lab("qdone")
    k(f"s_bitcmp1_b32 {s(shead)}, 0\ns_cbranch_scc1 {odd}")
    k("v_cmp_le_u32 vcc, 32, v1")
    for r in (QRA, QRA + 1, QRB, QRB + 1): k(f"v_cndmask_b32_e64 {v(r)}, {v(r)}, 0, vcc")
    k(f"s_branch {done}")
    k.label(odd)
    k("v_cmp_gt_u32 vcc, 32, v1")
    for r in (QMA, QMA + 1, QMB, QMB + 1): k(f"v_cndmask_b32_e64 {v(r)}, {v(r)}, 0, vcc")
    k.label(done)

def readK(k, tau, buf):
    k(f"ds_read_b128 {vr(KM+4*buf,4)}, {v(vKm)} offset:{1536*tau}\nds_read_b64 {vr(KR+2*buf,2)}, {v(vKr)} offset:{1536*tau}")
def readV(k, tau, buf):
    for g in range(2): k(f"ds_read_b128 {vr(VV+8*buf+4*g,4)}, {v(vV)} offset:{12288 + 640*(2*tau+g)}")
def S1(k, X, b, kb):
    Sx, Qm, MN = (SA, QMA, MNA) if X == 0 else (SB, QMB, MNB)
    k(f"v_mfma_f32_32x32x16_bf16 {vr(Sx+16*b,16)}, {vr(KM+4*kb,4)}, {vr(Qm,4)}, {vr(MN,16)}")
def S2(k, X, b, kb):
    Sx, Qr = (SA, QRA) if X == 0 else (SB, QRB)
    k(f"v_mfma_f32_32x32x8_bf16 {vr(Sx+16*b,16)}, {vr(KR+2*kb,2)}, {vr(Qr,2)}, {vr(Sx+16*b,16)}")
def PV(k, X, g, vb):
    O, P = (OA, PA) if X == 0 else (OB, PB)
    k(f"v_mfma_f32_32x32x16_bf16 {vr(O,16)}, {vr(VV+8*vb+4*g,4)}, {vr(P+4*g,4)}, {vr(O,16)}")
def exps(k, X, b, a0, a1):
    Sx = (SA if X == 0 else SB) + 16 * b
    for j in range(a0, a1): k(f"v_exp_f32 {v(Sx+j)}, {v(Sx+j)}")
def cvts(k, X, b, a0, a1):
    Sx = (SA if X == 0 else SB) + 16 * b; P = PA if X == 0 else PB
    for j in range(a0, a1): k(f"v_cvt_pk_bf16_f32 {v(P+j)}, {v(Sx+2*j)}, {v(Sx+2*j+1)}")

def stream_start(k):
    k(f"s_mul_i32 s48, {s(shead)}, 81920\ns_add_u32 s49, s48, {WS['V']}\ns_add_u32 s50, s7, {WS['KK']}")
    for i in range(3):
        k(f"s_cmp_eq_u32 {s(sSt+i)}, 10240\ns_cselect_b32 {s(sG+i)}, s49, s50")
    k(f"s_mov_b32 {s(sLoad)}, 0")
    for i in range(3): dma(k, i, sLoad)
    k(f"v_mov_b32 {v(vKm)}, {v(vKm0)}\nv_mov_b32 {v(vKr)}, {v(vKr0)}\nv_mov_b32 {v(vV)}, {v(vV0)}")
    k("s_waitcnt vmcnt(0)\ns_barrier")
    for i in range(3): k(f"s_add_u32 {s(sG+i)}, {s(sG+i)}, {s(sSt+i)}")
    k(f"s_mov_b32 {s(sLoad)}, {SLOT}\ns_mov_b32 {s(sNext)}, {SLOT}\ns_mov_b32 {s(sCh)}, 1")
    dma(k, 0, sLoad); dma(k, 1, sLoad)

def advance(k):
    k(f"v_add_u32 {v(vKm)}, {s(sNext)}, {v(vKm0)}\nv_add_u32 {v(vKr)}, {s(sNext)}, {v(vKr0)}")
    k(f"s_add_u32 {s(sCh)}, {s(sCh)}, 1\ns_cmp_le_u32 {s(sCh)}, 7")
    for i in range(3): k(f"s_cselect_b32 s48, {s(sSt+i)}, 0\ns_add_u32 {s(sG+i)}, {s(sG+i)}, s48\ns_cmp_le_u32 {s(sCh)}, 7")
    k(f"s_add_u32 {s(sLoad)}, {s(sLoad)}, {SLOT}\ns_cmp_ge_u32 {s(sLoad)}, {R*SLOT}\ns_cselect_b32 s48, {R*SLOT}, 0\ns_sub_u32 {s(sLoad)}, {s(sLoad)}, s48")

def next_slot(k):
    k(f"s_add_u32 {s(sNext)}, {s(sNext)}, {SLOT}\ns_cmp_ge_u32 {s(sNext)}, {R*SLOT}\ns_cselect_b32 s48, {R*SLOT}, 0\ns_sub_u32 {s(sNext)}, {s(sNext)}, s48")

def main_pass(k):
    stream_start(k)
    for j in range(16): k(f"v_mov_b32 {v(OA+j)}, 0\nv_mov_b32 {v(OB+j)}, 0")
    readK(k, 0, 0); readV(k, 0, 0); readK(k, 1, 1)
    k("s_waitcnt lgkmcnt(4)")
    S1(k, 0, 0, 0); S1(k, 1, 0, 0); S2(k, 0, 0, 0); S2(k, 1, 0, 0)
    k.stamp(6)
    k(f"s_mov_b32 {s(sIt)}, 0")
    loop = k.lab("aloop")
    k.label(loop)
    for j in range(4):
        b, nb = j % 2, (j + 1) % 2
        k(f"s_setprio {3 - ((j - 2) % 4)}")
        k("s_waitcnt lgkmcnt(0)")
        if j == 2:
            k("s_waitcnt vmcnt(0)")
            okc = k.lab("okc")
            k(f"s_cmp_lg_u32 {s(sIt)}, {s(sChk)}\ns_cbranch_scc1 {okc}")
            k(f"v_cmp_gt_u32 vcc, 1, {v(vCD)}\ns_cmp_eq_u64 vcc, 0\ns_cbranch_scc1 {okc}")
            k(f"v_mov_b32 v2, 1")
            poll(k, vCA, 2)
            k.label(okc)
            k("s_barrier")
            advance(k); dma(k, 0, sLoad)
        if j == 3:
            k(f"v_mad_u32_u24 {v(vV)}, {v(vVm)}, {s(sNext)}, {v(vV0)}")
            dma(k, 1, sLoad); next_slot(k)
        if j == 0:
            dma(k, 2, sLoad)
            nock = k.lab("nock")
            k(f"s_cmp_lg_u32 {s(sIt)}, {s(sChk)}\ns_cbranch_scc1 {nock}\ns_mov_b32 s48, {WS['CNT']}")
            k(f"buffer_load_dword {v(vCD)}, {v(vCA)}, {sr(WSR,4)}, s48 offen sc1")
            k.label(nock)
        readK(k, (j + 2) % 4, b); readV(k, (j + 1) % 4, nb)
        S1(k, 0, nb, nb); exps(k, 0, b, 0, 4)
        S2(k, 0, nb, nb); exps(k, 0, b, 4, 8); cvts(k, 0, b, 0, 4)
        S1(k, 1, nb, nb); exps(k, 0, b, 8, 12)
        PV(k, 0, 0, b); exps(k, 0, b, 12, 16); cvts(k, 0, b, 4, 8)
        S2(k, 1, nb, nb); exps(k, 1, b, 0, 2)
        PV(k, 0, 1, b); exps(k, 1, b, 2, 8); cvts(k, 1, b, 0, 4); exps(k, 1, b, 8, 10)
        PV(k, 1, 0, b); exps(k, 1, b, 10, 16); cvts(k, 1, b, 4, 8)
        PV(k, 1, 1, b)
    k(f"s_add_u32 {s(sIt)}, {s(sIt)}, 1\ns_cmp_lt_u32 {s(sIt)}, 8\ns_cbranch_scc1 {loop}")
    k("s_setprio 0\ns_waitcnt vmcnt(0) lgkmcnt(0)\ns_barrier")

def max_pass(k):
    for j in range(16): k(f"v_mov_b32 {v(MNA+j)}, 0\nv_mov_b32 {v(MNB+j)}, 0")
    stream_start(k)
    k(f"v_mov_b32 {v(MA)}, 0xff800000\nv_mov_b32 {v(MB)}, 0xff800000\ns_mov_b32 {s(sIt)}, 0")
    loop = k.lab("mloop")
    k.label(loop)
    dma(k, 2, sLoad)
    for j in range(4):
        readK(k, j, 0)
        k("s_waitcnt lgkmcnt(0)")
        S1(k, 0, 0, 0); S1(k, 1, 0, 0); S2(k, 0, 0, 0); S2(k, 1, 0, 0)
        for a in range(0, 16, 2): k(f"v_max3_f32 {v(MA)}, {v(SA+a)}, {v(SA+a+1)}, {v(MA)}")
        for a in range(0, 16, 2): k(f"v_max3_f32 {v(MB)}, {v(SB+a)}, {v(SB+a+1)}, {v(MB)}")
    k("s_waitcnt vmcnt(0)\ns_barrier")
    advance(k); dma(k, 0, sLoad); dma(k, 1, sLoad); next_slot(k)
    k(f"s_add_u32 {s(sIt)}, {s(sIt)}, 1\ns_cmp_lt_u32 {s(sIt)}, 8\ns_cbranch_scc1 {loop}")
    k("s_waitcnt vmcnt(0) lgkmcnt(0)\ns_barrier")
    for M in (MA, MB):
        k(f"v_mov_b32 v2, {v(M)}\nv_permlane32_swap_b32 v2, {v(M)}\nv_max_f32 {v(M)}, v2, {v(M)}")
    k(f"s_lshl_b32 s48, {s(sw)}, 9\nv_lshlrev_b32 v2, 3, v1\nv_add_u32 v3, s48, v2\nds_write_b64 v3, {vr(MA,2)}\ns_waitcnt lgkmcnt(0)\ns_barrier")
    k(f"s_xor_b32 s48, {s(sw)}, 4\ns_lshl_b32 s48, s48, 9\nv_add_u32 v3, s48, v2\nds_read_b64 v[4:5], v3\ns_waitcnt lgkmcnt(0)")
    k(f"v_max_f32 v4, v4, {v(MA)}\nv_max_f32 v5, v5, {v(MB)}\nv_sub_f32 v4, 0, v4\nv_sub_f32 v5, 0, v5")
    for j in range(16): k(f"v_mov_b32 {v(MNA+j)}, v4\nv_mov_b32 {v(MNB+j)}, v5")
    k("s_barrier")

def merge(k):
    g1, sent, g1b, got = k.lab("mg1"), k.lab("msent"), k.lab("mg1b"), k.lab("mgot")
    k(f"s_mul_i32 s48, {s(sw)}, 3072\nv_lshlrev_b32 v2, 4, v1\nv_add_u32 v3, s48, v2")
    k(f"s_cmp_eq_u32 {s(sgrp)}, 1\ns_cbranch_scc1 {g1}")
    for j in range(3): k(f"ds_write_b128 v3, {vr(OB+4*j,4)} offset:{1024*j}")
    k(f"s_branch {sent}")
    k.label(g1)
    for j in range(3): k(f"ds_write_b128 v3, {vr(OA+4*j,4)} offset:{1024*j}")
    k.label(sent)
    k(f"s_waitcnt lgkmcnt(0)\ns_barrier\ns_xor_b32 s48, {s(sw)}, 4\ns_mul_i32 s48, s48, 3072\nv_add_u32 v3, s48, v2")
    for j in range(3): k(f"ds_read_b128 {vr(FIN+4*j,4)}, v3 offset:{1024*j}")
    k("s_waitcnt lgkmcnt(0)")
    k(f"s_cmp_eq_u32 {s(sgrp)}, 1\ns_cbranch_scc1 {g1b}")
    for j in range(12): k(f"v_add_f32 {v(FIN+j)}, {v(FIN+j)}, {v(OA+j)}")
    k(f"s_branch {got}")
    k.label(g1b)
    for j in range(12): k(f"v_add_f32 {v(FIN+j)}, {v(FIN+j)}, {v(OB+j)}")
    k.label(got)
    k(f"v_mov_b32 v2, {v(FIN+8)}\nv_mov_b32 {v(FIN+12)}, {v(FIN+8)}\nv_permlane32_swap_b32 v2, {v(FIN+12)}")

def attention(k):
    load_q(k)
    k("s_waitcnt vmcnt(0)")
    mask_q(k)
    again, fin, good = k.lab("again"), k.lab("fin"), k.lab("good")
    k.label(again)
    main_pass(k)
    k.stamp(7)
    merge(k)
    k(f"s_cmp_lg_u32 {s(sflag)}, 0\ns_cbranch_scc1 {fin}")
    k(f"v_add_f32 v2, |{v(FIN)}|, |{v(FIN+1)}|")
    for j in range(2, 12): k(f"v_add_f32 v2, v2, |{v(FIN+j)}|")
    k(f"""v_mov_b32 v3, {hex(f32bits(2.0**-80))}
    v_mov_b32 v4, {hex(f32bits(2.0**100))}
    v_mov_b32 v5, 0x7f800000
    v_cmp_le_f32 s[48:49], v3, {v(FIN+12)}
    v_cmp_ge_f32 s[50:51], v4, {v(FIN+12)}
    v_cmp_lt_f32 vcc, v2, v5
    s_and_b64 s[48:49], s[48:49], s[50:51]
    s_and_b64 s[48:49], s[48:49], vcc
    s_cmp_eq_u64 s[48:49], exec
    s_cbranch_scc1 {good}""")
    k(f"v_mov_b32 v2, {FLAG}\nv_mov_b32 v3, 1\nds_write_b32 v2, v3")
    k.label(good)
    k(f"s_waitcnt lgkmcnt(0)\ns_barrier\nv_mov_b32 v2, {FLAG}\nds_read_b32 v3, v2\ns_waitcnt lgkmcnt(0)\nv_readfirstlane_b32 s48, v3")
    k(f"s_cmp_eq_u32 s48, 0\ns_cbranch_scc1 {fin}")
    max_pass(k)
    k(f"s_mov_b32 {s(sflag)}, 1\ns_branch {again}")
    k.label(fin)
    k(f"v_rcp_f32 v2, {v(FIN+12)}")
    for j in range(12): k(f"v_mul_f32 {v(FIN+j)}, v2, {v(FIN+j)}")
    for j in range(6): k(f"v_cvt_pk_bf16_f32 {v(PA+j)}, {v(FIN+2*j)}, {v(FIN+2*j+1)}")
    k(f"v_permlane32_swap_b32 {v(PA)}, {v(PA+2)}\nv_permlane32_swap_b32 {v(PA+1)}, {v(PA+3)}")
    k(f"""v_and_b32 v2, 31, v1
    v_lshrrev_b32 v3, 4, v2
    v_mul_u32_u24 v3, 0x5000, v3
    v_and_b32 v4, 15, v2
    v_lshl_add_u32 v3, v4, 4, v3
    v_lshrrev_b32 v5, 5, v1
    v_lshl_add_u32 v5, v5, 8, v3
    s_lshl_b32 s48, {s(sqb)}, 3
    s_and_b32 s49, {s(sw)}, 3
    s_lshl_b32 s49, s49, 1
    s_add_u32 s48, s48, s49
    s_add_u32 s48, s48, {s(sgrp)}
    s_lshl_b32 s48, s48, 1
    s_mul_i32 s48, s48, 0x5000
    s_add_u32 s48, s48, {WS['O']}
    s_lshr_b32 s49, {s(shead)}, 1
    s_mul_i32 s49, s49, 1280
    s_add_u32 s48, s48, s49
    s_and_b32 s50, {s(shead)}, 1
    s_lshl_b32 s51, s50, 9
    s_add_u32 s51, s51, s48
    s_lshl_b32 s50, s50, 3
    s_add_u32 s50, s50, s48
    s_add_u32 s50, s50, 1024""")
    k(f"buffer_store_dwordx4 {vr(PA,4)}, v5, {sr(WSR,4)}, s51 offen {HO}")
    k("v_cmp_gt_u32 vcc, 32, v1\ns_and_saveexec_b64 s[48:49], vcc")
    k(f"buffer_store_dwordx2 {vr(PA+4,2)}, v3, {sr(WSR,4)}, s50 offen {HO}")
    k("s_mov_b64 exec, s[48:49]")
```

```python
from mcommon import *

srb, scb = 4, 5
grb, gfb = 6, 7
WO_L = 49152
VEC3 = WO_L + 102400
GCH, GSLOT = 24576, 6
UBL = GSLOT * GCH
DCH = 20480
DSLOT = [0, 20480, 98304, 118784, 49152, 69632, 139264]
VEC5 = 159744
X1 = 246

def ids(k):
    k(f"""s_lshr_b32 s48, {s(sXCD)}, 1
    s_lshl_b32 s48, s48, 3
    s_and_b32 s49, {s(sIDX)}, 7
    s_add_u32 {s(srb)}, s48, s49
    s_and_b32 s48, {s(sXCD)}, 1
    s_lshl_b32 s48, s48, 2
    s_lshr_b32 s49, {s(sIDX)}, 3
    s_add_u32 {s(scb)}, s48, s49
    s_and_b32 s48, {s(sXCD)}, 1
    s_lshl_b32 s48, s48, 3
    s_and_b32 s49, {s(sIDX)}, 7
    s_add_u32 {s(grb)}, s48, s49
    s_lshr_b32 s48, {s(sXCD)}, 1
    s_lshl_b32 s48, s48, 2
    s_lshr_b32 s49, {s(sIDX)}, 3
    s_add_u32 {s(gfb)}, s48, s49""")

def wo_prefetch(k):
    k(f"s_mul_i32 s52, {s(scb)}, 102400\ns_add_u32 s52, s52, {WS['WO']}\ns_sub_u32 s53, {s(sw)}, 1\ns_lshl_b32 s53, s53, 10\ns_add_u32 s52, s52, s53\ns_add_u32 s53, s53, {WO_L}")
    k(f"v_lshlrev_b32 v9, 4, v1\ns_sub_u32 s54, {s(sw)}, 1")
    loop = k.lab("wop")
    k.label(loop)
    k(f"s_mov_b32 m0, s53\ns_add_u32 s53, s53, 7168\nbuffer_load_dwordx4 v9, {sr(WSR,4)}, s52 offen sc1 lds")
    k(f"s_add_u32 s52, s52, 7168\ns_add_u32 s54, s54, 7\ns_cmp_lt_u32 s54, 100\ns_cbranch_scc1 {loop}")

def vec_load(k, chunks, dst):
    n = len(chunks)
    k("s_movk_i32 s52, 3277\nv_mul_u32_u24 v6, s52, v1\nv_lshrrev_b32 v6, 16, v6\nv_mad_i32_i24 v7, v6, -16, v1\nv_mad_i32_i24 v7, v6, -4, v7")
    k(f"v_mov_b32 v8, {chunks[0][0]*2560}\nv_mov_b32 v10, {'1.0' if chunks[0][1] else '0'}")
    for j in range(1, n):
        k(f"v_cmp_eq_u32 vcc, {j}, v6\nv_mov_b32 v9, {chunks[j][0]*2560}\nv_cndmask_b32 v8, v8, v9, vcc\nv_mov_b32 v9, {'1.0' if chunks[j][1] else '0'}\nv_cndmask_b32 v10, v10, v9, vcc")
    k(f"s_mul_i32 s52, {s(scb)}, 320\ns_add_u32 s52, s52, {WS['MOD']}\nv_lshl_add_u32 v8, v7, 4, v8")
    k(f"buffer_load_dwordx4 v[12:15], v8, {sr(WSR,4)}, s52 offen {HL}\ns_waitcnt vmcnt(0)")
    for j in range(4): k(f"v_add_f32 {v(12+j)}, {v(12+j)}, v10")
    k(f"v_lshlrev_b32 v9, 4, v1\nv_add_u32 v9, {dst}, v9\nv_cmp_gt_u32 vcc, {20*n}, v1\ns_and_saveexec_b64 s[52:53], vcc\nds_write_b128 v9, v[12:15]\ns_mov_b64 exec, s[52:53]\ns_waitcnt lgkmcnt(0)")

UBS = 152576
def ub_job(k):
    skip = k.lab("noub")
    k(f"s_cmp_ge_u32 s2, 240\ns_cbranch_scc1 {skip}")
    k(f"s_sub_u32 s54, {s(sw)}, 4\ns_lshl_b32 s52, s2, 2\ns_add_u32 s52, s52, s54")
    sdiv(k, 53, 52, 10)
    k("s_mul_i32 s55, s53, 10\ns_sub_u32 s52, s52, s55")
    sdiv(k, 55, 53, 6)
    k("s_mul_i32 s56, s55, 6\ns_sub_u32 s56, s53, s56")
    k(f"s_mul_i32 s57, s55, {40*6144}\ns_mul_i32 s58, s52, {4*6144}\ns_add_u32 s57, s57, s58\ns_lshl_b32 s58, s56, 10\ns_add_u32 s57, s57, s58\ns_add_u32 s57, s57, {WS['WGU']}")
    k("v_lshlrev_b32 v9, 4, v1")
    for st in range(4): k(f"buffer_load_dwordx4 {vr(32+4*st,4)}, v9, {sr(WSR,4)}, s57 offen {HL}\ns_add_u32 s57, s57, 6144")
    k(f"""v_and_b32 v3, 31, v1
    v_lshrrev_b32 v4, 5, v1
    v_cmp_eq_u32 vcc, 0, v3
    v_mov_b32 v10, {3*2560}
    v_mov_b32 v6, {4*2560}
    v_cndmask_b32 v10, v10, v6, vcc
    v_lshl_add_u32 v10, v4, 5, v10
    v_mov_b32 v6, 0
    v_cndmask_b32_e64 v6, v6, 1.0, vcc
    s_lshl_b32 s58, s52, 8
    s_add_u32 s58, s58, {WS['MOD']}""")
    for st in range(4):
        k(f"buffer_load_dwordx4 {vr(72+8*st,4)}, v10, {sr(WSR,4)}, s58 offen offset:{64*st} {HL}\nbuffer_load_dwordx4 {vr(76+8*st,4)}, v10, {sr(WSR,4)}, s58 offen offset:{64*st+16} {HL}")
    for j in range(16): k(f"v_mov_b32 {v(16+j)}, 0")
    k("s_waitcnt vmcnt(0)")
    for st in range(4):
        b = 72 + 8 * st
        for j in range(8): k(f"v_add_f32 {v(b+j)}, {v(b+j)}, v6")
        for j in range(4): k(f"v_cvt_pk_bf16_f32 {v(b+j)}, {v(b+2*j)}, {v(b+2*j+1)}")
        k(f"v_mfma_f32_32x32x16_bf16 v[16:31], {vr(32+4*st,4)}, {vr(b,4)}, v[16:31]")
    k(f"s_lshl_b32 s58, s54, 8\ns_add_u32 s58, s58, {UBS}\nv_lshlrev_b32 v8, 4, v4\nv_lshl_add_u32 v8, v3, 7, v8\nv_add_u32 v8, s58, v8")
    k("v_cmp_gt_u32 vcc, 2, v3\ns_and_saveexec_b64 s[60:61], vcc")
    for a_ in range(4): k(f"ds_write_b128 v8, {vr(16+4*a_,4)} offset:{32*a_}")
    k("s_mov_b64 exec, s[60:61]\ns_waitcnt lgkmcnt(0)")
    k("v_lshlrev_b32 v8, 2, v1\nv_add_u32 v9, s58, v8\nds_read_b32 v10, v9")
    k(f"s_mov_b32 s57, {hex(f32bits(-LOG2E))}\ns_cmp_lt_u32 s56, 3\ns_cselect_b32 s57, s57, 1.0\ns_lshl_b32 s58, s53, 8\ns_add_u32 s58, s58, {WS['UB']}")
    k("s_waitcnt lgkmcnt(0)\nv_mul_f32 v10, s57, v10")
    k(f"buffer_atomic_add_f32 v10, v8, {sr(WSR,4)}, s58 offen\ns_waitcnt vmcnt(0)")
    k.label(skip)

ACC, TR, WB = 16, 40, 104
NR, PRE, DEPTH = 16, 6, 10

def n640_addr(k):
    k("v_and_b32 v3, 15, v1\nv_lshrrev_b32 v4, 4, v1\nv_lshlrev_b32 v5, 4, v1")
    k(f"s_lshl_b32 s15, {s(srb)}, 2\ns_add_u32 s15, s15, {s(sw)}")
    k(f"s_lshl_b32 s52, s15, 4\nv_add_u32 v6, s52, v3\ns_movk_i32 s52, 1280\nv_mul_u32_u24 v6, s52, v6")
    k(f"s_mul_i32 s52, {s(scb)}, 160\nv_lshl_add_u32 v6, v4, 3, v6\nv_add_u32 v6, s52, v6")
    k("v_add_u32 v8, 0x10000, v5\nv_add_u32 v9, 0x20000, v5")

def n640_loop(k, NS, tbase, waddr, barrier_steps, pre_hook=None, PRE=PRE):
    vq = Q(k, "vmcnt"); L = Q(k, "lgkmcnt")
    k(f"s_mul_i32 s53, s15, {NS*1024}\ns_add_u32 s53, s53, {WS[tbase]}")
    def tload(st):
        k(f"s_add_u32 s54, s53, {st*1024}\nbuffer_load_dwordx4 {vr(TR+4*(st%NR),4)}, v5, {sr(WSR,4)}, s54 offen {HL}"); vq.add(("t", st))
    for st in range(PRE): tload(st)
    if pre_hook: pre_hook(vq)
    nxt = [PRE]
    for j in range(20): k(f"v_mov_b32 {v(ACC+j)}, 0")
    def wread(st, ts=range(5)):
        for t in ts:
            a_ = waddr(st) + 1024 * t
            k(f"ds_read_b128 {vr(WB+20*(st%2)+4*t,4)}, {v([5,8,9][a_ >> 16])} offset:{a_ & 0xffff}"); L.add((st, t))
    wread(0)
    for st in range(NS):
        last = st == NS - 1
        vq.wait(("t", st))
        for t in range(5):
            L.wait((st, t))
            ac = vr(ACC + 4 * t, 4)
            k(f"v_mfma_f32_16x16x32_bf16 {ac}, {vr(WB+20*(st%2)+4*t,4)}, {vr(TR+4*(st%NR),4)}, {ac}")
            if not last:
                if t == 0 and (st + 1) in barrier_steps: k("s_barrier")
                wread(st + 1, [t])
        n = 0
        while nxt[0] < NS and nxt[0] <= st + DEPTH and nxt[0] - NR <= st and n < 2:
            tload(nxt[0]); nxt[0] += 1; n += 1
    return vq

def wo_consumer(k):
    n640_addr(k)
    srd(k, RA, P_X, 2048 * 1280)
    XR = 144
    def xload(vq):
        for t in range(5):
            k(f"buffer_load_dwordx2 {vr(XR+2*t,2)}, v6, {sr(RA,4)}, 0 offen offset:{32*t}"); vq.add(("x", t))
    vq = n640_loop(k, 20, "O", lambda st: WO_L + st * 5120, (), xload, PRE=14)
    k.stamp(9)
    k(f"v_lshlrev_b32 v10, 4, v4\nv_add_u32 v10, {VEC3}, v10")
    G, C1, T = 48, 68, 160
    for t in range(5): k(f"ds_read_b128 {vr(G+4*t,4)}, v10 offset:{64*t}")
    for t in range(5): k(f"ds_read_b128 {vr(C1+4*t,4)}, v10 offset:{320+64*t}")
    for t in range(5):
        for d in range(2):
            k(f"v_lshlrev_b32 {v(T+4*t+2*d)}, 16, {v(XR+2*t+d)}\nv_and_b32 {v(T+4*t+2*d+1)}, 0xffff0000, {v(XR+2*t+d)}")
    k("s_waitcnt lgkmcnt(5)")
    for j in range(20): k(f"v_fmac_f32 {v(T+j)}, {v(G+j)}, {v(ACC+j)}")
    k("s_waitcnt lgkmcnt(0)")
    for j in range(20): k(f"v_mul_f32 {v(C1+j)}, {v(C1+j)}, {v(T+j)}")
    Yp = 48
    for t in range(5): k(f"v_cvt_pk_bf16_f32 {v(Yp+2*t)}, {v(C1+4*t)}, {v(C1+4*t+1)}\nv_cvt_pk_bf16_f32 {v(Yp+2*t+1)}, {v(C1+4*t+2)}, {v(C1+4*t+3)}")
    k(f"v_mov_b32 {v(Yp+10)}, {v(Yp+8)}\nv_mov_b32 {v(Yp+11)}, {v(Yp+9)}")
    k(f"""s_lshr_b32 s52, s15, 1
    s_mul_i32 s52, s52, 40960
    s_mul_i32 s53, {s(scb)}, 5120
    s_add_u32 s52, s52, s53
    s_and_b32 s53, s15, 1
    s_lshl_b32 s53, s53, 8
    s_add_u32 s52, s52, s53
    s_add_u32 s52, s52, {WS['Y']}
    v_and_b32 v11, 1, v4
    v_lshlrev_b32 v11, 10, v11
    v_lshrrev_b32 v12, 1, v4
    v_lshl_add_u32 v11, v12, 9, v11
    v_lshl_add_u32 v11, v3, 4, v11""")
    for pr in range(3):
        b = Yp + 4 * pr
        k(f"v_permlane16_swap_b32 {v(b)}, {v(b+2)}\nv_permlane16_swap_b32 {v(b+1)}, {v(b+3)}")
    for pr in range(2):
        k(f"buffer_store_dwordx4 {vr(Yp+4*pr,4)}, v11, {sr(WSR,4)}, s52 offen offset:{2048*pr} {HO}")
    k("s_add_u32 s52, s52, 4096\nv_and_b32 v12, 1, v4\nv_cmp_eq_u32 vcc, 0, v12\ns_and_saveexec_b64 s[54:55], vcc")
    k(f"buffer_store_dwordx4 {vr(Yp+8,4)}, v11, {sr(WSR,4)}, s52 offen {HO}")
    k("s_mov_b64 exec, s[54:55]")
    for t in range(5): k(f"v_cvt_pk_bf16_f32 {v(X1+2*t)}, {v(T+4*t)}, {v(T+4*t+1)}\nv_cvt_pk_bf16_f32 {v(X1+2*t+1)}, {v(T+4*t+2)}, {v(T+4*t+3)}")
    k(f"v_add_f32 v12, {v(T)}, {v(T+1)}")
    for j in range(2, 20): k(f"v_add_f32 v12, v12, {v(T+j)}")
    red_q(k, 12, 14, 15)
    k(f"v_mul_f32 v14, {hex(f32bits(-1.0/80))}, v12\nv_mov_b32 v13, 0")
    for j in range(20): k(f"v_add_f32 {v(T+j)}, v14, {v(T+j)}\nv_fmac_f32 v13, {v(T+j)}, {v(T+j)}")
    red_q(k, 13, 14, 15)
    k(f"s_lshl_b32 s52, s15, 10\ns_lshl_b32 s53, {s(scb)}, 3\ns_add_u32 s52, s52, s53\ns_add_u32 s52, s52, {WS['STATS']}\nv_lshlrev_b32 v14, 6, v3")
    k("v_cmp_gt_u32 vcc, 16, v1\ns_and_saveexec_b64 s[54:55], vcc")
    k(f"buffer_store_dwordx2 v[12:13], v14, {sr(WSR,4)}, s52 offen {HO}")
    k("s_mov_b64 exec, s[54:55]")

def down_consumer(k):
    n640_addr(k)
    waddr = lambda st: DSLOT[(st // 4) % 7] + (st % 4) * 5120
    n640_loop(k, 48, "HH", waddr, set(range(4, 48, 4)))
    k.stamp(17)
    k(f"v_lshlrev_b32 v10, 4, v4\nv_add_u32 v10, {VEC5}, v10")
    G, T = 48, 160
    for t in range(5): k(f"ds_read_b128 {vr(G+4*t,4)}, v10 offset:{64*t}")
    for t in range(5):
        for d in range(2):
            k(f"v_lshlrev_b32 {v(T+4*t+2*d)}, 16, {v(X1+2*t+d)}\nv_and_b32 {v(T+4*t+2*d+1)}, 0xffff0000, {v(X1+2*t+d)}")
    k("s_waitcnt lgkmcnt(0)")
    for j in range(20): k(f"v_fmac_f32 {v(T+j)}, {v(G+j)}, {v(ACC+j)}")
    srd(k, RA, P_OUT, 2048 * 1280)
    for t in range(5):
        k(f"v_cvt_pk_bf16_f32 {v(G+2*t)}, {v(T+4*t)}, {v(T+4*t+1)}\nv_cvt_pk_bf16_f32 {v(G+2*t+1)}, {v(T+4*t+2)}, {v(T+4*t+3)}")
        k(f"buffer_store_dwordx2 {vr(G+2*t,2)}, v6, {sr(RA,4)}, 0 offen offset:{32*t}")

GACC, GTR, GWB, ST = 16, 112, 176, 224
def gu_consumer(k):
    k("v_and_b32 v3, 31, v1\nv_lshrrev_b32 v4, 5, v1\nv_lshlrev_b32 v5, 4, v1")
    k(f"s_lshl_b32 s15, {s(grb)}, 2\ns_add_u32 s15, s15, {s(sw)}")
    k(f"s_mul_i32 s52, s15, 40960\ns_add_u32 s52, s52, {WS['Y']}")
    vq = Q(k, "vmcnt"); L = Q(k, "lgkmcnt")
    def tload(st):
        k(f"s_add_u32 s53, s52, {st*1024}\nbuffer_load_dwordx4 {vr(GTR+4*(st%16),4)}, v5, {sr(WSR,4)}, s53 offen {HL}"); vq.add(("t", st))
    k(f"s_lshl_b32 s54, s15, 11\ns_add_u32 s54, s54, {WS['STATS']}\nv_lshlrev_b32 v6, 6, v3\nv_lshl_add_u32 v6, v4, 5, v6")
    for st in range(2): tload(st)
    k(f"buffer_load_dwordx4 {vr(ST,4)}, v6, {sr(WSR,4)}, s54 offen {HL}\nbuffer_load_dwordx4 {vr(ST+4,4)}, v6, {sr(WSR,4)}, s54 offen offset:16 {HL}")
    vq.add(("s", 0)); vq.add(("s", 1))
    for st in range(2, 6): tload(st)
    nxt = [6]
    for j in range(96): k(f"v_mov_b32 {v(GACC+j)}, 0")
    k("v_add_u32 v8, 0x10000, v5\nv_add_u32 v9, 0x20000, v5")
    def wread(st, ts=range(6)):
        base = ((st // 4) % GSLOT) * GCH + (st % 4) * 6144
        for t in ts:
            a_ = base + 1024 * t
            k(f"ds_read_b128 {vr(GWB+24*(st%2)+4*t,4)}, {v([5,8,9][a_ >> 16])} offset:{a_ & 0xffff}"); L.add((st, t))
    wread(0)
    def stats():
        a = ST
        vq.wait(("s", 1))
        k(f"""v_add_f32 {v(a+8)}, {v(a)}, {v(a+2)}
        v_add_f32 {v(a+9)}, {v(a+4)}, {v(a+6)}
        v_add_f32 {v(a+8)}, {v(a+8)}, {v(a+9)}
        v_mov_b32 {v(a+9)}, {v(a+8)}
        v_mov_b32 {v(a+10)}, {v(a+8)}
        v_permlane32_swap_b32 {v(a+9)}, {v(a+10)}
        v_add_f32 {v(a+8)}, {v(a+9)}, {v(a+10)}
        v_mul_f32 {v(a+8)}, {hex(f32bits(1.0/640))}, {v(a+8)}
        s_mov_b32 s55, {hex(f32bits(1.0/80))}
        v_add_f32 {v(a+9)}, {v(a+1)}, {v(a+3)}
        v_add_f32 {v(a+10)}, {v(a+5)}, {v(a+7)}
        v_add_f32 {v(a+9)}, {v(a+9)}, {v(a+10)}
        v_mov_b32 {v(a+10)}, 0""")
        for r in (a, a + 2, a + 4, a + 6):
            k(f"v_fma_f32 {v(r)}, {v(r)}, s55, -{v(a+8)}\nv_fmac_f32 {v(a+10)}, {v(r)}, {v(r)}")
        k(f"""v_mov_b32 {v(a+11)}, 0x42a00000
        v_fmac_f32 {v(a+9)}, {v(a+10)}, {v(a+11)}
        v_mov_b32 {v(a+10)}, {v(a+9)}
        v_mov_b32 {v(a+11)}, {v(a+9)}
        v_permlane32_swap_b32 {v(a+10)}, {v(a+11)}
        v_add_f32 {v(a+9)}, {v(a+10)}, {v(a+11)}
        v_mov_b32 {v(a+10)}, {hex(f32bits(1e-5))}
        v_mov_b32 {v(a+11)}, {hex(f32bits(1.0/640))}
        v_fmac_f32 {v(a+10)}, {v(a+9)}, {v(a+11)}
        v_rsq_f32 {v(a+10)}, {v(a+10)}
        s_nop 0
        v_mov_b32 {v(a+12)}, {v(a+10)}
        v_mov_b32 {v(a+13)}, {v(a+10)}
        v_mul_f32 {v(a+14)}, {hex(f32bits(-LOG2E))}, {v(a+10)}
        v_mov_b32 {v(a+15)}, {v(a+14)}
        v_mul_f32 {v(a+16)}, {v(a+8)}, {v(a+10)}
        v_sub_f32 {v(a+16)}, 0, {v(a+16)}
        v_mov_b32 {v(a+17)}, {v(a+16)}""")
    RS, RG, NM = vr(ST + 12, 2), vr(ST + 14, 2), vr(ST + 16, 2)
    for st in range(40):
        last = st == 39
        vq.wait(("t", st))
        for t in range(6):
            L.wait((st, t))
            ac = vr(GACC + 16 * t, 16)
            k(f"v_mfma_f32_32x32x16_bf16 {ac}, {vr(GWB+24*(st%2)+4*t,4)}, {vr(GTR+4*(st%16),4)}, {ac}")
            if not last:
                if t == 0 and (st + 1) % 4 == 0: k("s_barrier")
                wread(st + 1, [t])
        if st == 3: stats()
        n = 0
        while nxt[0] < 40 and nxt[0] <= st + DEPTH and nxt[0] - 16 <= st and n < 2:
            tload(nxt[0]); nxt[0] += 1; n += 1
    k.stamp(11)
    k(f"v_lshlrev_b32 v10, 4, v4\nv_add_u32 v10, {UBL}, v10")
    k(f"""s_lshl_b32 s52, s15, 1
    s_mul_i32 s52, s52, {48*1024}
    s_mul_i32 s53, {s(gfb)}, 3072
    s_add_u32 s52, s52, s53
    s_add_u32 s52, s52, {WS['HH']}
    v_lshrrev_b32 v11, 4, v3
    v_mul_u32_u24 v11, 0xc000, v11
    v_and_b32 v12, 15, v3
    v_lshl_add_u32 v11, v12, 4, v11
    v_lshl_add_u32 v11, v4, 8, v11""")
    U, B = GTR, GTR + 16
    def uread(tt):
        for part, t in ((0, tt), (1, tt + 3)):
            for a_ in range(4):
                k(f"ds_read_b128 {vr(U+32*part+4*a_,4)}, v10 offset:{t*256 + 32*a_}\nds_read_b128 {vr(B+32*part+4*a_,4)}, v10 offset:{t*256 + 128 + 32*a_}")
    for tt in range(3):
        uread(tt)
        k("s_waitcnt lgkmcnt(8)")
        g = GACC + 16 * tt; u = GACC + 16 * (tt + 3)
        for j in range(0, 16, 2):
            k(f"v_pk_fma_f32 {vr(B+j,2)}, {vr(U+j,2)}, {NM}, {vr(B+j,2)}\nv_pk_fma_f32 {vr(g+j,2)}, {vr(g+j,2)}, {RG}, {vr(B+j,2)}")
        for j in range(16): k(f"v_exp_f32 {v(g+j)}, {v(g+j)}")
        k("s_waitcnt lgkmcnt(0)")
        for j in range(0, 16, 2):
            k(f"v_pk_fma_f32 {vr(B+32+j,2)}, {vr(U+32+j,2)}, {NM}, {vr(B+32+j,2)}\nv_pk_fma_f32 {vr(u+j,2)}, {vr(u+j,2)}, {RS}, {vr(B+32+j,2)}")
        for j in range(16): k(f"v_add_f32 {v(g+j)}, 1.0, {v(g+j)}")
        for j in range(16): k(f"v_rcp_f32 {v(g+j)}, {v(g+j)}")
        for j in range(0, 16, 2): k(f"v_pk_mul_f32 {vr(g+j,2)}, {vr(g+j,2)}, {vr(u+j,2)}")
        Pk = GWB + 8 * tt
        for j in range(8): k(f"v_cvt_pk_bf16_f32 {v(Pk+j)}, {v(g+2*j)}, {v(g+2*j+1)}")
        for jj in range(2):
            b = Pk + 4 * jj
            k(f"v_permlane32_swap_b32 {v(b)}, {v(b+2)}\nv_permlane32_swap_b32 {v(b+1)}, {v(b+3)}")
            k(f"buffer_store_dwordx4 {vr(b,4)}, v11, {sr(WSR,4)}, s52 offen offset:{512*jj} {HO}")
        k("s_add_u32 s52, s52, 1024")

class Prod:
    def __init__(self, k): self.k = k; self.vq = Q(k, "vmcnt")
    def gu_setup(self):
        self.k(f"v_lshlrev_b32 v5, 4, v1\ns_sub_u32 s60, {s(sw)}, 4\ns_mul_i32 s61, s60, 6144\ns_mul_i32 s62, {s(gfb)}, {40*6144}\ns_add_u32 s62, s62, s61\ns_add_u32 s62, s62, {WS['WGU']}")
    def gu_issue(self, c):
        k = self.k
        for t in range(6):
            k(f"s_add_u32 m0, s61, {(c % GSLOT)*GCH + t*1024}\ns_add_u32 s63, s62, {c*GCH + t*1024}\nbuffer_load_dwordx4 v5, {sr(WSR,4)}, s63 offen sc1 lds")
            self.vq.add(("g", c, t))
    def d_setup(self):
        self.k(f"s_mul_i32 s64, s60, 5120\ns_mul_i32 s65, {s(scb)}, {48*5120}\ns_add_u32 s65, s65, s64\ns_add_u32 s65, s65, {WS['WD']}")
    def d_issue(self, c):
        k = self.k
        for t in range(5):
            k(f"s_add_u32 m0, s64, {DSLOT[c % 7] + t*1024}\ns_add_u32 s63, s65, {c*DCH + t*1024}\nbuffer_load_dwordx4 v5, {sr(WSR,4)}, s63 offen sc1 lds")
            self.vq.add(("d", c, t))
    def ub_dma(self):
        k = self.k
        skip = k.lab("noubd")
        k(f"s_cmp_ge_u32 s60, 2\ns_cbranch_scc1 {skip}")
        k(f"s_mul_i32 s63, {s(gfb)}, 1536\ns_lshl_b32 s66, s60, 10\ns_add_u32 s63, s63, s66\ns_add_u32 s63, s63, {WS['UB']}\ns_add_u32 m0, s66, {UBL}\ns_nop 0")
        k(f"buffer_load_dwordx4 v5, {sr(WSR,4)}, s63 offen sc1 lds\ns_waitcnt vmcnt(0)")
        k.label(skip)
```

```python
import sys, os
sys.path.insert(0, os.path.dirname(os.path.abspath(__file__)))
from mcommon import *
import p01, p2, p345

NAME = "adaLN_cond__mha_block__glu_gated_glu__prompt_kernel"
STOP = int(os.environ.get("STOP", "9"))
LDS = 163840

def finish(k):
    k.stamp(23)
    k.stamp_flush(WSR, sw)
    k("s_endpgm")

def build():
    k = K(NAME, 256)
    k.name_short = "m"
    end = k.lab("end")
    k(f"s_cmp_ge_u32 s2, 256\ns_cbranch_scc1 {end}")
    if STAMPS:
        for i in range(24): k(f"s_mov_b32 s{70+i}, 0")
    k.stamp(0)
    k("s_load_dwordx16 s[16:31], s[0:1], 0\ns_load_dwordx8 s[32:39], s[0:1], 64")
    k(f"v_and_b32 v1, 63, v0\nv_lshrrev_b32 v2, 6, v0\nv_readfirstlane_b32 {s(sw)}, v2")
    k(f"s_and_b32 {s(sXCD)}, s2, 7\ns_lshr_b32 {s(sIDX)}, s2, 3")
    p01.tile_ids(k)
    k("s_waitcnt lgkmcnt(0)")
    probe(k, "p0", 0)
    srd(k, WSR, P_WS, (64 << 20) if STAMPS else WS["END"])
    p01.zero_init(k)
    p01.macc_init(k)
    prod01, p1done = k.lab("prod01"), k.lab("p1done")
    k(f"s_cmp_ge_u32 {s(sw)}, 4\ns_cbranch_scc1 {prod01}")
    p01.consumer01(k, p1done)
    k.label(prod01)
    p01.producer01(k, p1done)
    k.label(p1done)
    k.stamp(14)
    k("s_waitcnt vmcnt(0)")
    probe(k, "s12", 0)
    k("s_barrier")
    probe(k, "s12", 1)
    nw = k.lab("s12w")
    k(f"s_cmp_lg_u32 {s(sw)}, 0\ns_cbranch_scc1 {nw}")
    p01.wait_ready(k)
    nq = k.lab("noq")
    k(f"s_cmp_eq_u32 {s(p01.scb)}, 15\ns_cbranch_scc1 {nq}")
    k(f"s_add_u32 s52, {s(p01.scb)}, {C_Q}\ns_add_u32 s53, {s(p01.scb)}, {G_Q}")
    arrive(k, "s52", 16, "s53")
    k.label(nq)
    k(f"s_and_b32 s52, s2, 15\ns_add_u32 s52, s52, {C_D}")
    arrive(k, "s52", 16, G_D, 1, R_D, 16)
    k.label(nw)
    if STOP == 1: finish(k); k.label(end); k("s_endpgm"); k.label("CODE_END"); return k
    p2.setup(k)
    probe(k, "s12", 2)
    nw = k.lab("s12p")
    k(f"s_cmp_lg_u32 {s(sw)}, 0\ns_cbranch_scc1 {nw}")
    p2.dep_counters(k)
    poll(k, 5, 6)
    probe(k, "s12", 3)
    k.label(nw)
    k("s_barrier")
    k.stamp(5)
    p2.attention(k)
    k.stamp(15)
    k("s_waitcnt vmcnt(0)")
    probe(k, "s23", 0)
    k("s_barrier")
    probe(k, "s23", 1)
    w0, rdy = k.lab("s23w0"), k.lab("s23r")
    k(f"s_cmp_lg_u32 {s(sw)}, 0\ns_cbranch_scc1 {w0}")
    k(f"s_add_u32 s52, {s(p2.sqb)}, {C_O}\ns_add_u32 s53, {s(p2.sqb)}, {G_O}")
    arrive(k, "s52", 32, "s53")
    if STOP == 2:
        k.label(w0); finish(k); k.label(end); k("s_endpgm"); k.label("CODE_END"); return k
    p345.ids(k)
    k(f"s_lshr_b32 s52, {s(p345.srb)}, 2\ns_add_u32 s52, s52, {G_O}")
    poll_setup(k, [("s52", 1, 1)]); poll(k, 5, 6)
    k(f"s_branch {rdy}")
    k.label(w0)
    p345.ids(k)
    p345.wo_prefetch(k)
    nv = k.lab("nov3")
    k(f"s_cmp_lg_u32 {s(sw)}, 7\ns_cbranch_scc1 {nv}")
    p345.vec_load(k, [(2, False), (4, True)], p345.VEC3)
    k.label(nv)
    k("s_waitcnt vmcnt(0)")
    k.label(rdy)
    probe(k, "s23", 2)
    k("s_barrier")
    k.stamp(8)
    prod3 = k.lab("prod3")
    k(f"s_cmp_ge_u32 {s(sw)}, 4\ns_cbranch_scc1 {prod3}")
    p345.wo_consumer(k)
    k.stamp(16)
    k("s_waitcnt vmcnt(0)")
    probe(k, "s23", 3)
    k("s_barrier")
    probe(k, "s23", 4)
    nw = k.lab("s34w")
    k(f"s_cmp_lg_u32 {s(sw)}, 0\ns_cbranch_scc1 {nw}")
    k(f"s_lshr_b32 s53, {s(p345.srb)}, 1\ns_add_u32 s52, s53, {C_Y}\ns_add_u32 s53, s53, {G_Y}")
    arrive(k, "s52", 16, "s53")
    k(f"s_and_b32 s52, s2, 15\ns_add_u32 s52, s52, {C_U}")
    arrive(k, "s52", 16, G_U, 1, R_U, 16)
    if STOP > 3:
        k(f"s_add_u32 s52, {s(p345.grb)}, {G_Y}")
        poll_setup(k, [("s52", 1, 1)]); poll(k, 5, 6)
    k.label(nw)
    if STOP == 3: finish(k)
    else:
        k("s_barrier")
        k.stamp(10)
        p345.gu_consumer(k)
        k.stamp(12)
        k("s_waitcnt vmcnt(0)\ns_barrier")
        nw = k.lab("s45w")
        k(f"s_cmp_lg_u32 {s(sw)}, 0\ns_cbranch_scc1 {nw}")
        k(f"s_add_u32 s52, {s(p345.grb)}, {C_H}\ns_add_u32 s53, {s(p345.grb)}, {G_H}")
        arrive(k, "s52", 16, "s53")
        if STOP > 4:
            k(f"s_lshr_b32 s52, {s(p345.srb)}, 1\ns_add_u32 s52, s52, {G_H}")
            poll_setup(k, [("s52", 1, 1)]); poll(k, 5, 6)
        k.label(nw)
        if STOP == 4: finish(k)
        else:
            k("s_barrier")
            k.stamp(13)
            p345.down_consumer(k)
            finish(k)
    k.label(prod3)
    P = p345.Prod(k); vq = P.vq
    if STOP > 3:
        P.gu_setup(); P.gu_issue(0); P.gu_issue(1)
    p345.ub_job(k)
    k("s_barrier")
    if STOP == 3: finish(k)
    else:
        P.gu_setup()
        P.gu_issue(2); P.gu_issue(3)
        vq.wait(("g", 0, 5))
        k("s_barrier")
        issued = 4
        for c in range(1, 10):
            while issued < 10 and issued <= c + 3 and issued - p345.GSLOT <= c - 3:
                P.gu_issue(issued); issued += 1
            vq.wait(("g", c, 5))
            k("s_barrier")
            if c == 5:
                nu = k.lab("noubd")
                k(f"s_cmp_lg_u32 {s(sw)}, 4\ns_cbranch_scc1 {nu}")
                k(f"v_mov_b32 v6, 1\nv_mov_b32 v7, {G_U*256}")
                poll(k, 7, 6, 8)
                k(f"s_mul_i32 s63, {s(p345.gfb)}, 1536\ns_add_u32 s63, s63, {WS['UB']}")
                k(f"s_mov_b32 m0, {p345.UBL}\ns_nop 0\nbuffer_load_dwordx4 v5, {sr(WSR,4)}, s63 offen sc1 lds")
                k(f"s_add_u32 s63, s63, 1024\ns_mov_b32 m0, {p345.UBL + 1024}\ns_nop 0\nbuffer_load_dwordx4 v5, {sr(WSR,4)}, s63 offen sc1 lds")
                k.label(nu)
        if STOP > 4:
            P.d_setup()
            nv = k.lab("nov5")
            k(f"s_cmp_lg_u32 {s(sw)}, 7\ns_cbranch_scc1 {nv}")
            p345.vec_load(k, [(5, False)], p345.VEC5)
            k("v_lshlrev_b32 v5, 4, v1")
            k.label(nv)
            for c in range(4): P.d_issue(c)
        k("s_barrier")
        if STOP == 4: finish(k)
        else:
            for c in range(4, 7): P.d_issue(c)
            vq.wait(("d", 0, 4))
            k("s_barrier")
            issued = 7
            for c in range(1, 12):
                while issued < 12 and issued - 7 <= c - 3:
                    P.d_issue(issued); issued += 1
                vq.wait(("d", c, 4))
                k("s_barrier")
            finish(k)
    k.label(end)
    k("s_endpgm")
    k.label("CODE_END")
    return k

def generate():
    here = os.path.dirname(os.path.abspath(__file__))
    head = open(os.path.join(here, "header.txt")).read()
    k = build()
    t, n = k.text()
    return head + f"; @launch grid=(256,1,1) block=(512,1,1) lds={LDS}\n" + '.amdgcn_target "amdgcn-amd-amdhsa--gfx950"\n.text\n' + t + '.section .rodata,"a"\n' + k.desc()

if __name__ == "__main__":
    txt = generate()
    open(sys.argv[1], "w").write(txt)
    print("wrote", sys.argv[1], len(txt), "bytes,", txt.count("\n"), "lines")
```

```python
import re

def v(i): return "v%d" % i
def s(i): return "s%d" % i
def a(i): return "a%d" % i
def vr(i, n): return "v%d" % i if n == 1 else "v[%d:%d]" % (i, i + n - 1)
def sr(i, n): return "s%d" % i if n == 1 else "s[%d:%d]" % (i, i + n - 1)
def ar(i, n): return "a%d" % i if n == 1 else "a[%d:%d]" % (i, i + n - 1)

_REG = re.compile(r"^(-|\|)?(abs\()?([vsa])(\d+)\)?\|?$")
_RNG = re.compile(r"^(-)?([vsa])\[(\d+):(\d+)\]$")

def regs_of(tok):
    tok = tok.strip()
    m = _RNG.match(tok)
    if m: return {(m.group(2), i) for i in range(int(m.group(3)), int(m.group(4)) + 1)}
    m = _REG.match(tok)
    if m: return {(m.group(3), int(m.group(4)))}
    if tok in ("vcc", "vcc_lo", "vcc_hi"): return {("x", "vcc")}
    if tok in ("exec", "exec_lo", "exec_hi"): return {("x", "exec")}
    if tok == "m0": return {("x", "m0")}
    return set()

TRANS = ("v_exp_f32", "v_log_f32", "v_rcp_f32", "v_rsq_f32", "v_sqrt_f32", "v_sin_f32", "v_cos_f32", "v_exp_f16", "v_rcp_f16")
RMW_DST = ("v_fmac_", "v_pk_fmac", "v_dot2c", "v_fma_mixhi", "v_fma_mixlo", "v_writelane")

class Ins:
    __slots__ = ("text", "mn", "ops", "kind", "wr", "rd", "passes", "srcA", "srcC", "dpp", "sdwa", "is_store", "store_data",
                 "wide_store", "lds_dma", "target", "uncond", "nop", "salu_wr", "lane_rd")
    def __init__(self, text):
        self.text = text
        t = text.split(";")[0].strip()
        self.mn = t.split()[0]
        rest = t[len(self.mn):].strip()
        raw = [x.strip() for x in rest.split(",")] if rest else []
        ops = []
        for i, x in enumerate(raw):
            ops.append(x.split()[0] if x else x)
        self.ops = ops
        self.wr, self.rd = set(), set()
        self.passes = 0; self.srcA = set(); self.srcC = set()
        self.dpp = ("row_" in t or "quad_perm" in t or "wave_" in t or "_dpp" in self.mn)
        self.sdwa = "_sdwa" in self.mn or ("op_sel" in t and self.mn.startswith("v_fma_mix") and not self.mn.startswith("v_fma_mix_f32"))
        self.is_store = False; self.store_data = set(); self.wide_store = False
        self.lds_dma = False; self.target = None; self.uncond = False; self.nop = 0; self.salu_wr = set(); self.lane_rd = set()
        mn = self.mn
        R = lambda i: regs_of(ops[i]) if i < len(ops) else set()
        if mn.startswith("v_mfma") or mn.startswith("v_smfmac"):
            self.kind = "mfma"
            self.passes = 4 if "16x16" in mn else 8
            if "4x4" in mn: self.passes = 2
            if "_2b" in mn or ("32x32x4" in mn): self.passes = 16
            if "16x16x4" in mn and "4b" in mn: self.passes = 8
            self.wr = R(0); self.srcA = R(1) | R(2); self.srcC = R(3); self.rd = self.srcA | self.srcC
        elif mn.startswith("v_"):
            self.kind = "valu"
            nd = 1
            if mn.startswith(("v_add_co", "v_sub_co", "v_addc_co", "v_subb_co", "v_subrev_co", "v_mad_u64_u32", "v_div_scale")): nd = 2
            if mn.startswith(("v_permlane32_swap", "v_permlane16_swap", "v_swap_b32")):
                self.wr = R(0) | R(1); self.rd = R(0) | R(1)
            else:
                for i in range(nd): self.wr |= R(i)
                for i in range(nd, len(ops)): self.rd |= R(i)
                if mn.startswith(RMW_DST) or "UNUSED_PRESERVE" in t: self.rd |= R(0)
                if mn.startswith("v_cndmask") and len(ops) == 3: self.rd.add(("x", "vcc"))
                if mn.startswith(("v_addc_co", "v_subb_co")): pass
            if mn.startswith("v_cmpx"): self.wr.add(("x", "exec"))
            if mn.startswith(("v_readlane", "v_readfirstlane")): self.lane_rd = R(1)
        elif mn.startswith("ds_"):
            self.kind = "ds"
            if mn.startswith(("ds_read", "ds_bpermute", "ds_permute", "ds_swizzle")):
                self.wr = R(0)
                for i in range(1, len(ops)): self.rd |= R(i)
            else:
                for i in range(len(ops)): self.rd |= R(i)
        elif mn.startswith(("buffer_", "global_", "flat_")):
            self.kind = "vmem"
            if mn in ("buffer_inv", "buffer_wbl2"):
                pass
            elif " lds" in (" " + t) and mn.startswith("buffer_load") or mn.startswith("global_load_lds"):
                self.lds_dma = True
                for i in range(len(ops)): self.rd |= R(i)
                self.rd.add(("x", "m0"))
            elif "_load" in mn:
                self.wr = R(0)
                for i in range(1, len(ops)): self.rd |= R(i)
            elif "atomic" in mn:
                for i in range(len(ops)): self.rd |= R(i)
                if " sc0" in t: self.wr = R(0)
            else:
                self.is_store = True
                self.store_data = R(0) if mn.startswith("buffer_") else R(1)
                self.wide_store = mn.endswith(("x3", "x4"))
                for i in range(len(ops)): self.rd |= R(i)
        elif mn.startswith("s_"):
            self.kind = "salu"
            if mn == "s_nop":
                self.nop = int(ops[0], 0) + 1
            elif mn.startswith("s_cbranch") or mn == "s_branch":
                self.kind = "branch"; self.target = ops[0]; self.uncond = (mn == "s_branch")
            elif mn == "s_endpgm":
                self.kind = "end"; self.uncond = True
            elif mn.startswith(("s_cmp", "s_waitcnt", "s_barrier", "s_setprio", "s_sleep", "s_bitcmp")):
                for i in range(len(ops)): self.rd |= R(i)
            else:
                self.wr = R(0)
                for i in range(1, len(ops)): self.rd |= R(i)
                if "saveexec" in mn: self.wr.add(("x", "exec"))
                self.salu_wr = set(self.wr)
        else:
            raise ValueError("unknown instruction class: " + text)

def _isv(r): return r[0] in ("v", "a")
def _iss(r): return r[0] == "s" or r == ("x", "vcc")

def need(p, c):
    n = 0
    if p.kind == "valu":
        vw = {r for r in p.wr if _isv(r)}
        sw = {r for r in p.wr if _iss(r)}
        if c.kind == "mfma" and vw & c.rd: n = max(n, 2)
        if c.kind == "valu":
            if c.lane_rd & vw: n = max(n, 1)
            if c.dpp and (vw & c.rd): n = max(n, 2)
            if c.mn.startswith("v_permlane") and (vw & c.rd): n = max(n, 2)
            if p.mn.startswith(TRANS) and (vw & c.rd): n = max(n, 1)
            if p.sdwa and (vw & (c.rd | c.wr)): n = max(n, 1)
            if sw & c.rd: n = max(n, 4 if c.mn.startswith(("v_readlane", "v_writelane")) else 2)
        if c.kind == "vmem" and (sw & c.rd): n = max(n, 5)
        if c.kind in ("salu", "branch") and (sw & c.rd): n = max(n, 4)
        if c.kind == "branch" and ("x", "vcc") in p.wr and "vcc" in c.mn: n = max(n, 5)
        if ("x", "exec") in p.wr:
            if c.kind == "mfma": n = max(n, 4)
            if c.kind == "valu": n = max(n, 5)
    elif p.kind == "mfma":
        ps = p.passes
        far = {2: 5, 4: 8, 8: 12, 16: 20}[ps]
        if c.kind == "mfma":
            if p.wr & c.srcA: n = max(n, far)
            if p.wr & c.srcC:
                if p.wr == c.srcC and ps == c.passes: n = max(n, 2 if ps == 2 else 0)
                else: n = max(n, {2: 4, 4: 6, 8: 10, 16: 18}[ps])
            elif p.wr & c.wr: n = max(n, far)
        elif c.kind in ("valu", "ds", "vmem"):
            if p.wr & (c.rd | c.wr): n = max(n, far)
            if c.kind == "valu" and (p.srcC & c.wr): n = max(n, {2: 1, 4: 3, 8: 7, 16: 15}[ps])
    elif p.kind == "vmem":
        if p.wide_store and (p.store_data & c.wr): n = max(n, 2 if c.kind == "valu" else 1)
    elif p.kind == "salu":
        if ("x", "m0") in p.wr and (c.lds_dma or c.mn.startswith("s_movrel") or "addtid" in c.mn): n = max(n, 1)
    return n

MAXD = 21

def hazard_pass(lines):
    items = []
    for ln in lines:
        t = ln.strip()
        if not t or t.startswith(";") or t.startswith("."):
            items.append(("x", ln))
        elif re.match(r"^[A-Za-z_][\w.$]*:$", t):
            items.append(("l", t[:-1]))
        else:
            items.append(("i", Ins(t)))
    total = 0
    while True:
        labels = {it[1]: k for k, it in enumerate(items) if it[0] == "l"}
        branches = {}
        for k, it in enumerate(items):
            if it[0] == "i" and it[1].target: branches.setdefault(it[1].target, []).append(k)
        inserted = []
        for k, it in enumerate(items):
            if it[0] != "i": continue
            c = it[1]
            if c.kind == "salu" and not c.rd: continue
            worst = 0
            stack = [(k - 1, 0)]
            seen = {}
            while stack:
                j, d = stack.pop()
                while j >= 0 and d < MAXD:
                    jt = items[j]
                    if jt[0] == "l":
                        for b in branches.get(jt[1], []):
                            key = (b, d)
                            if key not in seen:
                                seen[key] = 1
                                stack.append((b, d))
                        pj = j - 1
                        while pj >= 0 and items[pj][0] == "x": pj -= 1
                        if pj >= 0 and items[pj][0] == "i" and items[pj][1].uncond: break
                        j -= 1; continue
                    if jt[0] == "x":
                        j -= 1; continue
                    p = jt[1]
                    nd = need(p, c)
                    if nd > d: worst = max(worst, nd - d)
                    d += p.nop if p.nop else 1
                    j -= 1
            if worst: inserted.append((k, worst))
        if not inserted: break
        k, w = inserted[0]
        batch = [inserted[0]]
        last = k
        for kk, ww in inserted[1:]:
            if kk - last > MAXD + 4:
                batch.append((kk, ww)); last = kk
        for kk, ww in reversed(batch):
            nops = []
            while ww > 0:
                n = min(ww, 16); nops.append(("i", Ins("s_nop %d" % (n - 1)))); ww -= n
            items[kk:kk] = nops
            total += 1
    out = []
    for it in items:
        if it[0] == "x": out.append(it[1])
        elif it[0] == "l": out.append(it[1] + ":")
        else: out.append("  " + it[1].text)
    return out, total

import os
STAMPS = bool(os.environ.get("STAMPS"))
STAMP_BASE = 40 << 20

import subprocess, tempfile
def ins_sizes(lines):
    src = '.amdgcn_target "amdgcn-amd-amdhsa--gfx950"\n.text\n' + "\n".join(lines) + "\n"
    with tempfile.TemporaryDirectory() as d:
        open(d + "/a.s", "w").write(src)
        subprocess.run(["clang", "-x", "assembler", "-target", "amdgcn-amd-amdhsa", "-mcpu=gfx950", "-c", d + "/a.s", "-o", d + "/a.o"], check=True)
        out = subprocess.run(["llvm-objdump", "-d", "--mcpu=gfx950", d + "/a.o"], capture_output=True, text=True).stdout
    sz = []
    for ln in out.split("\n"):
        m = re.search(r"// [0-9A-F]{12}: ((?:[0-9A-F]{8} ?)+)", ln)
        if m: sz.append(4 * len(m.group(1).split()))
    res = []; j = 0
    for ln in lines:
        t = ln.strip()
        if not t or t.startswith((";", ".")) or t.endswith(":"): res.append(None)
        else: res.append(sz[j]); j += 1
    assert j == len(sz), (j, len(sz))
    return res

_PROMOTABLE = ("v_exp_f32", "v_rcp_f32", "v_add_f32", "v_mul_f32", "v_mov_b32", "v_max_f32", "v_sub_f32", "v_fmac_f32")
def align_pass(lines):
    if not any(l.strip() == ";@align" for l in lines): return lines
    sizes = ins_sizes(lines)
    out = []; on = False; phase = 0; cand = None
    for ln, sz in zip(lines, sizes):
        t = ln.strip()
        if t == ";@align":
            on = True; phase = 0; cand = None; out.append(".p2align 3"); continue
        if t == ";@endalign":
            on = False; continue
        if not on or sz is None:
            out.append(ln); continue
        if sz == 8 and phase == 4:
            if cand is not None:
                mn = out[cand].split()[0]
                out[cand] = out[cand].replace(mn, mn + "_e64", 1)
            else:
                out.append("  s_nop 0")
            phase = 0
        out.append(ln)
        if sz == 8: cand = None
        elif sz == 4:
            mn = t.split()[0]
            if mn in _PROMOTABLE and "0x" not in t: cand = len(out) - 1
        phase = (phase + sz) % 8
    return out

class K:
    count = 0
    def __init__(self, name, nvgpr, nsgpr=102, accum=None):
        self.name = name; self.lines = []; self.nvgpr = nvgpr; self.nsgpr = nsgpr; self.accum = accum or nvgpr
        self.uid = 0
        self.index = K.count; K.count += 1
    def stamp(self, i):
        if not STAMPS: return
        self("s_memtime s[94:95]")
        if i == 0: self("s_memrealtime s[96:97]")
        self(f"s_waitcnt lgkmcnt(0)\ns_mov_b32 s{70+i}, s94")
    def stamp_flush(self, srd, swave, n=24):
        if not STAMPS: return
        if os.environ.get("DBGOUT"):
            skip = self.lab("nodbg")
            self(f"s_memrealtime s[98:99]\ns_waitcnt lgkmcnt(0)\ns_cmp_lg_u32 s2, 8\ns_cbranch_scc1 {skip}\ns_cmp_lg_u32 s{swave}, 0\ns_cbranch_scc1 {skip}")
            self("s_mov_b32 s44, s36\ns_mov_b32 s45, s37\ns_mov_b32 s46, 256\ns_mov_b32 s47, 0x00020000\nv_mov_b32 v2, 0")
            for w, i in enumerate([2, 3, 4, 5, 6, 7, 8, 9, 10, 11, 13, 17, 23]):
                self(f"s_sub_u32 s94, s{70+i}, s70\nv_mov_b32 v3, s94\nbuffer_store_dword v3, v2, s[44:47], 0 offen offset:{8+4*w}")
            self("s_sub_u32 s94, s98, s96\nv_mov_b32 v3, s94\nbuffer_store_dword v3, v2, s[44:47], 0 offen offset:60")
            self.label(skip)
            return
        self("s_memrealtime s[98:99]\ns_waitcnt lgkmcnt(0)")
        self(f"s_lshl_b32 s94, s2, 3\ns_add_u32 s94, s94, s{swave}\ns_lshl_b32 s94, s94, 7\ns_add_u32 s94, s94, {STAMP_BASE}")
        self("v_mov_b32 v2, 0")
        for i in range(n):
            self(f"v_mov_b32 v3, s{70+i}\nbuffer_store_dword v3, v2, s[{srd}:{srd+3}], s94 offen offset:{4*i}")
        self(f"v_mov_b32 v3, s96\nbuffer_store_dword v3, v2, s[{srd}:{srd+3}], s94 offen offset:120")
        self(f"v_mov_b32 v3, s98\nbuffer_store_dword v3, v2, s[{srd}:{srd+3}], s94 offen offset:124")
    def __call__(self, txt):
        for ln in txt.strip().split("\n"):
            ln = ln.strip()
            if ln: self.lines.append(ln)
    def label(self, l): self.lines.append(l + ":")
    def lab(self, base):
        self.uid += 1
        return "%s_%s%d" % (self.name.replace("_kernel", ""), base, self.uid)
    def c(self, txt): self.lines.append("; " + txt)
    def text(self):
        body, n = hazard_pass(self.lines)
        body = align_pass(body)
        head = [".globl %s" % self.name, ".p2align 8", ".type %s,@function" % self.name, "%s:" % self.name]
        return "\n".join(head + body) + "\n", n
    def desc(self):
        return f""".p2align 6
.amdhsa_kernel {self.name}
  .amdhsa_next_free_vgpr {self.nvgpr}
  .amdhsa_next_free_sgpr {self.nsgpr}
  .amdhsa_accum_offset {self.accum}
  .amdhsa_group_segment_fixed_size 0
  .amdhsa_kernarg_size 96
  .amdhsa_user_sgpr_count 2
  .amdhsa_user_sgpr_kernarg_segment_ptr 1
  .amdhsa_system_sgpr_workgroup_id_x 1
.end_amdhsa_kernel
"""
```

```python
S, D, H, DH, F = 2048, 640, 32, 20, 1536

def _alloc():
    off = 0
    out = {}
    def put(name, n):
        nonlocal off
        out[name] = off
        off += (n + 4095) // 4096 * 4096
    put("ZERO", 90112)
    put("MODP", 4 * 1280 * 4)
    put("LNST", S * 8)
    put("XN", S * D * 2)
    put("WGU", D * 2 * F * 2)
    put("WO", D * D * 2)
    put("WD", F * D * 2)
    put("Q", S * D * 2)
    put("KK", S * D * 2)
    put("V", S * D * 2)
    put("O", S * D * 2)
    put("Y", S * D * 2)
    put("STATS", 2048 * 8 * 8)
    put("HH", S * F * 2)
    out["END"] = off
    out["CNT"] = out["ZERO"]
    out["MOD"] = out["ZERO"] + 50176
    out["UB"] = out["ZERO"] + 65536
    return out
WS = _alloc()
CSTRIDE = 256
C_Q, C_D, C_O, C_Y, C_U, C_H, C_X = 0, 16, 32, 40, 56, 72, 88
R_D, R_U, R_M = 104, 105, 106
G_Q, G_O, G_Y, G_H, G_M, G_D, G_U = 108, 124, 132, 148, 164, 172, 173
G_X, C_M = 174, 190
NCNT = 195
assert NCNT * CSTRIDE <= 50176

A_X, A_WQKV, A_WO, A_BX, A_WG, A_WU, A_WD, A_C, A_WMOD, A_OUT, A_DBG, A_WS = [8 * i for i in range(12)]
SRD3 = 0x00020000

def wo_row_perm():
    p = []
    for kp in range(640):
        pair, r = divmod(kp, 40)
        if r < 16: k = 40 * pair + r
        elif r < 32: k = 40 * pair + 20 + (r - 16)
        elif r < 36: k = 40 * pair + 16 + (r - 32)
        else: k = 40 * pair + 36 + (r - 36)
        p.append(k)
    return p
```

```python
from mcommon import *

QSCALE = LOG2E * 20 ** -0.5
RING = 35
COEF = RING * 4096
STG = COEF + 2560
assert STG + 16384 <= 163840
srb, scb, scq = 15, 4, 5

def tile_ids(k):
    k(f"""s_and_b32 s48, {s(sIDX)}, 3
    s_lshr_b32 s49, {s(sXCD)}, 1
    s_lshl_b32 s49, s49, 2
    s_add_u32 {s(srb)}, s49, s48
    s_lshr_b32 s48, {s(sIDX)}, 2
    s_and_b32 s49, {s(sXCD)}, 1
    s_lshl_b32 s49, s49, 3
    s_add_u32 {s(scb)}, s49, s48""")
    sdiv(k, 48, scb, 5)
    k(f"s_mul_i32 s48, s48, 5\ns_sub_u32 {s(scq)}, {s(scb)}, s48")

def zero_init(k):
    skip = k.lab("noinit")
    k(f"s_cmp_lg_u32 s2, 255\ns_cbranch_scc1 {skip}")
    k("v_mov_b32 v4, 0\nv_mov_b32 v5, 0\nv_mov_b32 v6, 0\nv_mov_b32 v7, 0\nv_lshlrev_b32 v8, 4, v1")
    k(f"s_mul_i32 s48, {s(sw)}, 11264\ns_add_u32 s48, s48, {WS['ZERO']}")
    for i in range(11):
        k(f"buffer_store_dwordx4 v[4:7], v8, {sr(WSR,4)}, s48 offen {HO}\ns_add_u32 s48, s48, 1024")
    k("s_waitcnt vmcnt(0)\ns_barrier")
    k(f"s_cmp_lg_u32 {s(sw)}, 0\ns_cbranch_scc1 {skip}")
    srd(k, RB, P_DBG, 256)
    k("v_mov_b32 v4, 1\nv_mov_b32 v5, 0\ns_mov_b64 exec, 1")
    k(f"buffer_store_dword v4, v5, {sr(RB,4)}, 0 offen offset:4 {HO}")
    k("s_mov_b64 exec, -1")
    k.label(skip)

def wait_ready(k):
    srd(k, RB, P_DBG, 256)
    loop, done = k.lab("rdy"), k.lab("rdyd")
    k("v_mov_b32 v60, 0\ns_mov_b32 s50, 0")
    k.label(loop)
    k(f"buffer_load_dword v61, v60, {sr(RB,4)}, 0 offen offset:4 sc1\ns_waitcnt vmcnt(0)\nv_readfirstlane_b32 s51, v61")
    k(f"s_cmp_lg_u32 s51, 0\ns_cbranch_scc1 {done}\ns_add_u32 s50, s50, 1\ns_cmp_ge_u32 s50, {SPIN_LIMIT}\ns_cbranch_scc1 {done}\ns_sleep 6\ns_branch {loop}")
    k.label(done)

MACC = 162304
assert MACC + 512 <= 163840

def mod_load(k, R0, scb_, sks, wv):
    srd(k, RA, P_WMOD, 640 * 7680); srd(k, RB, P_C, 1280)
    k("v_lshrrev_b32 v3, 3, v1\nv_and_b32 v4, 7, v1")
    k(f"s_mul_i32 s54, {s(sks)}, 160\ns_mul_i32 s55, {s(wv)}, 40\ns_add_u32 s54, s54, s55")
    k(f"v_add_u32 v5, s54, v3\ns_movk_i32 s55, 7680\nv_mul_u32_u24 v6, s55, v5\ns_lshl_b32 s56, {s(scb_)}, 7")
    k("v_lshlrev_b32 v7, 4, v4\nv_add3_u32 v6, v6, v7, s56\nv_lshlrev_b32 v8, 1, v5")
    for i in range(5):
        k(f"s_mov_b32 s57, {61440*i}\nbuffer_load_dwordx4 {vr(R0+4*i,4)}, v6, {sr(RA,4)}, s57 offen")
    for i in range(5):
        k(f"buffer_load_ushort {v(R0+20+i)}, v8, {sr(RB,4)}, 0 offen offset:{16*i}")

def mod_compute(k, R0, T):
    C = R0 + 20
    for j in range(8): k(f"v_mov_b32 {v(T+j)}, 0")
    k("s_mov_b32 s57, 0xbfb8aa3b")
    E = T + 8
    for i in range(5): k(f"v_lshlrev_b32 {v(C+i)}, 16, {v(C+i)}\nv_mul_f32 {v(E+i)}, s57, {v(C+i)}\nv_exp_f32 {v(E+i)}, {v(E+i)}")
    for i in range(5): k(f"v_add_f32 {v(E+i)}, 1.0, {v(E+i)}")
    for i in range(5): k(f"v_rcp_f32 {v(E+i)}, {v(E+i)}")
    for i in range(5): k(f"v_mul_f32 {v(C+i)}, {v(C+i)}, {v(E+i)}")
    for i in range(5):
        for d in range(4):
            r = R0 + 4 * i + d
            k(f"v_lshlrev_b32 {v(T+16)}, 16, {v(r)}\nv_and_b32 {v(T+17)}, 0xffff0000, {v(r)}\nv_fmac_f32 {v(T+2*d)}, {v(C+i)}, {v(T+16)}\nv_fmac_f32 {v(T+2*d+1)}, {v(C+i)}, {v(T+17)}")
    k(f"v_and_b32 {v(T+16)}, 8, v1\nv_cmp_ne_u32 vcc, 0, {v(T+16)}")
    for j in range(4):
        k(f"v_cndmask_b32 {v(T+8+j)}, {v(T+4+j)}, {v(T+j)}, vcc\nv_cndmask_b32 {v(T+12+j)}, {v(T+j)}, {v(T+4+j)}, vcc")
    for j in range(4):
        k(f"v_add_f32_dpp {v(T+12+j)}, {v(T+8+j)}, {v(T+12+j)} row_ror:8 row_mask:0xf bank_mask:0xf")
    a = T + 12
    k(f"v_permlane16_swap_b32 {v(a)}, {v(a+2)}\nv_permlane16_swap_b32 {v(a+1)}, {v(a+3)}\nv_add_f32 {v(a)}, {v(a)}, {v(a+2)}\nv_add_f32 {v(a+1)}, {v(a+1)}, {v(a+3)}")
    k(f"v_permlane32_swap_b32 {v(a)}, {v(a+1)}\nv_add_f32 {v(a)}, {v(a)}, {v(a+1)}")
    c, t = T + 16, T + 17
    k(f"""v_and_b32 {v(c)}, 7, v1
    v_lshlrev_b32 {v(c)}, 3, {v(c)}
    v_bfe_u32 {v(t)}, v1, 3, 1
    v_lshl_add_u32 {v(c)}, {v(t)}, 2, {v(c)}
    v_bfe_u32 {v(t)}, v1, 4, 1
    v_lshl_add_u32 {v(c)}, {v(t)}, 1, {v(c)}
    v_lshrrev_b32 {v(t)}, 5, v1
    v_add_u32 {v(c)}, {v(c)}, {v(t)}""")

def macc_init(k):
    skip = k.lab("nomacc")
    k(f"s_cmp_lg_u32 {s(sw)}, 0\ns_cbranch_scc1 {skip}")
    k(f"v_mov_b32 v2, 0\nv_lshlrev_b32 v3, 2, v1\nv_add_u32 v3, {MACC}, v3\nds_write_b32 v3, v2\nds_write_b32 v3, v2 offset:256\ns_waitcnt lgkmcnt(0)")
    k.label(skip)
    k("s_barrier")

def mod_job(k):
    skip = k.lab("nomod")
    k(f"s_cmp_ge_u32 s2, 80\ns_cbranch_scc1 {skip}")
    sdiv(k, 52, 2, 20)
    k("s_mul_i32 s53, s52, 20\ns_sub_u32 s53, s2, s53")
    mod_load(k, 16, 53, 52, sw)
    k("s_waitcnt vmcnt(0)")
    probe(k, "p0", 1)
    mod_compute(k, 16, 44)
    k(f"v_lshlrev_b32 v60, 2, v60\nv_add_u32 v60, {MACC}, v60\nds_add_f32 v60, v56\nv_mov_b32 v61, {MACC+256}\nv_mov_b32 v62, 1\ns_waitcnt lgkmcnt(0)")
    k("s_mov_b64 exec, 1\nds_add_rtn_u32 v63, v61, v62\ns_waitcnt lgkmcnt(0)\ns_mov_b64 exec, -1\nv_readfirstlane_b32 s57, v63")
    probe(k, "p0", 2)
    k(f"s_cmp_lg_u32 s57, 3\ns_cbranch_scc1 {skip}")
    k(f"v_lshlrev_b32 v60, 2, v1\nv_add_u32 v61, {MACC}, v60\nds_read_b32 v62, v61")
    k(f"s_mul_i32 s56, s52, 5120\ns_lshl_b32 s57, s53, 8\ns_add_u32 s56, s56, s57\ns_add_u32 s56, s56, {WS['MODP']}\ns_waitcnt lgkmcnt(0)")
    k(f"buffer_store_dword v62, v60, {sr(WSR,4)}, s56 offen {HO}")
    k.label(skip)

MR, MT = 64, 96
def mod_rest_load(k):
    skip = k.lab("nomr")
    k(f"s_cmp_lt_u32 s2, 80\ns_cbranch_scc1 {skip}\ns_cmp_ge_u32 s2, 240\ns_cbranch_scc1 {skip}")
    k("s_sub_u32 s53, s2, 80")
    sdiv(k, 52, 53, 40)
    k(f"s_mul_i32 s54, s52, 40\ns_sub_u32 s53, s53, s54\ns_add_u32 s53, s53, 20\ns_sub_u32 s68, {s(sw)}, 4")
    mod_load(k, MR, 53, 52, 68)
    k.label(skip)
def mod_rest_finish(k):
    skip = k.lab("nomf")
    k(f"s_cmp_lt_u32 s2, 80\ns_cbranch_scc1 {skip}\ns_cmp_ge_u32 s2, 240\ns_cbranch_scc1 {skip}")
    mod_compute(k, MR, MT)
    k("s_sub_u32 s53, s2, 80")
    sdiv(k, 52, 53, 40)
    k(f"s_mul_i32 s54, s52, 40\ns_sub_u32 s53, s53, s54\ns_add_u32 s53, s53, 20\ns_lshl_b32 s56, s53, 8\ns_add_u32 s56, s56, {WS['MOD']}")
    k(f"v_lshlrev_b32 {v(MT+16)}, 2, {v(MT+16)}")
    k(f"buffer_atomic_add_f32 {v(MT+12)}, {v(MT+16)}, {sr(WSR,4)}, s56 offen")
    k.label(skip)

def red16(k, r):
    red8(k, r)
    k(f"v_add_f32_dpp {v(r)}, {v(r)}, {v(r)} row_mirror row_mask:0xf bank_mask:0xf")

def ln_job(k):
    L, Fq, N = 8, 48, 5
    srd(k, RA, P_X, 2048 * 1280)
    k("v_lshrrev_b32 v3, 4, v1\nv_and_b32 v4, 15, v1")
    k(f"s_lshl_b32 s52, s2, 3\ns_sub_u32 s53, {s(sw)}, 4\ns_lshl_b32 s53, s53, 2\ns_add_u32 s52, s52, s53")
    k("v_add_u32 v6, s52, v3\ns_movk_i32 s54, 1280\nv_mul_u32_u24 v6, s54, v6\nv_lshl_add_u32 v6, v4, 4, v6")
    for i in range(N): k(f"buffer_load_dwordx4 {vr(L+4*i,4)}, v6, {sr(RA,4)}, 0 offen offset:{256*i}")
    k("v_mov_b32 v128, 0\nv_mov_b32 v129, 0\nv_mov_b32 v132, 0\nv_mov_b32 v133, 0")
    if STAMPS and PROBE == "p0":
        k("s_waitcnt vmcnt(0)")
        probe(k, "p0", 1)
    for i in range(N):
        k(f"s_waitcnt vmcnt({N-1-i})")
        for d in range(4):
            r = L + 4 * i + d; f = Fq + 8 * i + 2 * d
            k(f"v_lshlrev_b32 {v(f)}, 16, {v(r)}\nv_and_b32 {v(f+1)}, 0xffff0000, {v(r)}")
        for d in range(4):
            f = Fq + 8 * i + 2 * d
            k(f"v_pk_add_f32 v[128:129], v[128:129], {vr(f,2)}")
    k("v_add_f32 v128, v128, v129")
    red16(k, 128)
    k(f"v_mul_f32 v130, {hex(f32bits(-1.0/640))}, v128\nv_mov_b32 v131, v130")
    for j in range(0, 8 * N, 2): k(f"v_pk_add_f32 {vr(Fq+j,2)}, {vr(Fq+j,2)}, v[130:131]")
    for j in range(0, 8 * N, 2): k(f"v_pk_fma_f32 v[132:133], {vr(Fq+j,2)}, {vr(Fq+j,2)}, v[132:133]")
    k("v_add_f32 v132, v132, v133")
    red16(k, 132)
    k(f"v_mov_b32 v134, {hex(f32bits(1e-5))}\nv_mov_b32 v135, {hex(f32bits(1.0/640))}\nv_fmac_f32 v134, v132, v135\nv_rsq_f32 v134, v134\ns_nop 0\nv_mov_b32 v135, v134")
    k(f"s_lshr_b32 s53, s52, 5\ns_mul_i32 s53, s53, 40960\ns_and_b32 s52, s52, 31\ns_lshl_b32 s52, s52, 4\ns_add_u32 s52, s52, s53\ns_add_u32 s52, s52, {WS['XN']}")
    k("v_lshlrev_b32 v6, 9, v4\nv_lshl_add_u32 v6, v3, 4, v6")
    for i in range(N):
        for d in range(4):
            f = Fq + 8 * i + 2 * d
            k(f"v_pk_mul_f32 {vr(f,2)}, {vr(f,2)}, v[134:135]")
        for d in range(4):
            f = Fq + 8 * i + 2 * d
            k(f"v_cvt_pk_f16_f32 {v(L+4*i+d)}, {v(f)}, {v(f+1)}")
        k(f"buffer_store_dwordx4 {vr(L+4*i,4)}, v6, {sr(WSR,4)}, s52 offen {HO}\ns_add_u32 s52, s52, 8192")

def line_prefetch(k, ptr, nbytes, nper, dst, first=0):
    srd(k, RB, ptr, nbytes)
    k("v_lshlrev_b32 v146, 7, v1")
    for j in range(nper):
        k(f"s_add_u32 s50, s2, {first + 256*j}\ns_lshl_b32 s50, s50, 13\nbuffer_load_dword {v(dst+j)}, v146, {sr(RB,4)}, s50 offen")

def code_prefetch(k):
    here, skip = k.lab("pc"), k.lab("nopc")
    k(f"s_cmp_ge_u32 {s(sIDX)}, 8\ns_cbranch_scc1 {skip}")
    k("s_getpc_b64 s[48:49]")
    k.label(here)
    k(f"s_sub_u32 s48, s48, {here}-{k.name}\ns_subb_u32 s49, s49, 0")
    k(f"s_lshl_b32 s50, {s(sIDX)}, 13\nv_lshlrev_b32 v144, 7, v1\nv_add_u32 v144, s50, v144")
    k(f"s_mov_b32 s50, CODE_END-{k.name}-4\nv_min_u32 v144, s50, v144")
    k("global_load_dword v148, v144, s[48:49]")
    k.label(skip)

def wtile_setup(k):
    srd(k, RA, P_WQKV, 640 * 3840)
    k("""v_lshrrev_b32 v141, 4, v1
    v_bfe_u32 v142, v1, 2, 2
    """ + ("v_xor_b32 v142, v142, v141" if not os.environ.get("NOSWZ") else "s_nop 0") + """
    v_lshlrev_b32 v142, 6, v142
    v_and_b32 v143, 3, v1
    v_lshl_add_u32 v142, v143, 4, v142
    s_movk_i32 s52, 3840
    v_mad_u32_u24 v140, v141, s52, v142""")
    k(f"s_lshl_b32 s58, {s(scb)}, 8")

def wtile_issue(k, first, count, stride, wrap=False):
    loop = k.lab("wdma")
    k(f"s_mul_i32 s60, s59, 15360\ns_add_u32 s60, s60, s58\ns_lshl_b32 s61, s59, 10")
    if wrap: k(f"s_sub_u32 s61, s61, {RING*4096}")
    k(f"s_mov_b32 s62, {count}")
    k.label(loop)
    k(f"s_mov_b32 m0, s61\ns_add_u32 s61, s61, {stride*1024}\nbuffer_load_dwordx4 v140, {sr(RA,4)}, s60 offen lds")
    k(f"s_add_u32 s60, s60, {stride*15360}\ns_sub_u32 s62, s62, 1\ns_cmp_lg_u32 s62, 0\ns_cbranch_scc1 {loop}")

def wtile_issue_rot(k, count, stride):
    loop = k.lab("wrot")
    NP = 4 * RING
    k(f"s_mul_i32 s60, {s(srb)}, 9\ns_add_u32 s59, s59, s60\ns_mov_b32 s62, {count}")
    k.label(loop)
    k(f"s_cmp_ge_u32 s59, {NP}\ns_cselect_b32 s60, {NP}, 0\ns_sub_u32 s59, s59, s60")
    k(f"s_lshl_b32 m0, s59, 10\ns_mul_i32 s60, s59, 15360\ns_add_u32 s60, s60, s58\nbuffer_load_dwordx4 v140, {sr(RA,4)}, s60 offen lds")
    k(f"s_waitcnt vmcnt({int(os.environ.get('WINFL', '40'))})")
    k(f"s_add_u32 s59, s59, {stride}\ns_sub_u32 s62, s62, 1\ns_cmp_lg_u32 s62, 0\ns_cbranch_scc1 {loop}")

N_G, N_U, N_O, N_D = 480, 480, 200, 480
sJ = 63
def mini_issue(k, rnd):
    p = 52
    nojob, go = k.lab("mjno"), k.lab("mjgo")
    k(f"s_sub_u32 s52, {s(sw)}, 4\ns_lshl_b32 {s(sJ)}, s2, 2\ns_add_u32 {s(sJ)}, {s(sJ)}, s52\ns_add_u32 {s(sJ)}, {s(sJ)}, {1024*rnd}")
    k(f"s_lshl_b32 s53, s52, 12\ns_add_u32 s53, s53, {STG}")
    k(f"s_mov_b32 s69, 0\ns_cmp_ge_u32 {s(sJ)}, {N_G+N_U+N_O+N_D}\ns_cbranch_scc1 {nojob}")
    labs = [k.lab("mj") for _ in range(4)]
    lim = 0
    for n, lab in zip((N_G, N_U, N_O), labs):
        lim += n
        k(f"s_cmp_lt_u32 {s(sJ)}, {lim}\ns_cbranch_scc1 {lab}")
    k(f"s_branch {labs[3]}")
    types = [("g", P_WG, 640 * 3072, 3072, 12, 0, True, 3, 40, 6, 0, "WGU"), ("u", P_WU, 640 * 3072, 3072, 12, N_G, True, 3, 40, 6, 3, "WGU"),
             ("o", P_WO, 640 * 1280, 1280, 10, N_G + N_U, False, 5, 20, 5, 0, "WO"), ("d", P_WD, 1536 * 1280, 1280, 10, N_G + N_U + N_O, False, 5, 48, 5, 0, "WD")]
    for (name, ptr, nbytes, stride, ncb, start, wide, dv, NS, NT, tadd, base), lab in zip(types, labs):
        k.label(lab)
        srd(k, RB, ptr, nbytes)
        k(f"s_sub_u32 s54, {s(sJ)}, {start}")
        sdiv(k, 55, 54, ncb)
        k(f"s_mul_i32 s56, s55, {ncb}\ns_sub_u32 s54, s54, s56")
        for tt in range(4):
            k(f"s_lshl_b32 s56, s54, 2\ns_add_u32 s56, s56, {tt}")
            sdiv(k, 57, 56, dv)
            k(f"s_mul_i32 {s(64+tt)}, s57, {dv}\ns_sub_u32 s56, s56, {s(64+tt)}\ns_mul_i32 s57, s57, {NS}\ns_add_u32 s57, s57, s55")
            k(f"s_mul_i32 s57, s57, {NT}\ns_add_u32 s57, s57, s56\ns_lshl_b32 s57, s57, 10\ns_add_u32 {s(64+tt)}, s57, {WS[base] + tadd*1024}")
        if wide:
            k(f"""s_mov_b32 s69, 1
            s_lshl_b32 s55, s55, 4
            s_lshl_b32 s54, s54, 8
            v_lshrrev_b32 v8, 4, v1
            v_and_b32 v9, 15, v1
            v_lshl_add_u32 v9, v9, 4, s54""")
            for i in range(4): k(f"v_add_u32 {v(10+i)}, s55, v8\nv_add_u32 {v(10+i)}, {4*i}, {v(10+i)}")
        else:
            k(f"""s_mov_b32 s69, 2
            s_lshl_b32 s55, s55, 5
            s_lshl_b32 s54, s54, 7
            v_lshrrev_b32 v8, 3, v1
            v_and_b32 v9, 7, v1
            v_lshl_add_u32 v9, v9, 4, s54""")
            for i in range(4): k(f"v_add_u32 {v(10+i)}, s55, v8\nv_add_u32 {v(10+i)}, {8*i}, {v(10+i)}")
            if name == "o":
                k("s_movk_i32 s56, 1639")
                for i in range(4):
                    r = 10 + i
                    k(f"""v_mul_u32_u24 v14, s56, {v(r)}
                    v_lshrrev_b32 v14, 16, v14
                    v_mul_u32_u24 v14, 40, v14
                    v_sub_u32 v14, {v(r)}, v14
                    v_mov_b32 v15, 0
                    v_cmp_le_u32 vcc, 16, v14
                    v_cndmask_b32_e64 v15, v15, 4, vcc
                    v_cmp_le_u32 vcc, 32, v14
                    v_cndmask_b32_e64 v15, v15, -16, vcc
                    v_cmp_le_u32 vcc, 36, v14
                    v_cndmask_b32_e64 v15, v15, 0, vcc
                    v_add_u32 {v(r)}, {v(r)}, v15""")
        k(f"s_movk_i32 s56, {stride}")
        for i in range(4): k(f"v_mad_u32_u24 {v(10+i)}, {v(10+i)}, s56, v9")
        k(f"s_branch {go}")
    k.label(go)
    for i in range(4):
        k(f"s_add_u32 m0, s53, {1024*i}\ns_nop 0\nbuffer_load_dwordx4 {v(10+i)}, {sr(RB,4)}, 0 offen lds")
    k.label(nojob)

def mini_finish(k, later):
    done, narrow, rd = k.lab("mfd"), k.lab("mfn"), k.lab("mfr")
    k(f"s_cmp_eq_u32 s69, 0\ns_cbranch_scc1 {done}")
    k(f"s_waitcnt vmcnt({later})")
    k("v_and_b32 v8, 15, v1\nv_lshrrev_b32 v8, 2, v8\nv_and_b32 v9, 3, v1")
    k(f"s_cmp_eq_u32 s69, 2\ns_cbranch_scc1 {narrow}")
    k("""v_lshrrev_b32 v16, 5, v1
    v_lshl_add_u32 v16, v16, 3, v8
    v_lshlrev_b32 v16, 8, v16
    v_bfe_u32 v17, v1, 4, 1
    v_lshlrev_b32 v17, 5, v17
    v_lshl_add_u32 v17, v9, 3, v17
    v_add3_u32 v16, v16, v17, s53""")
    for tt in range(4):
        k(f"ds_read_b64_tr_b16 {vr(20+4*tt,2)}, v16 offset:{64*tt}\nds_read_b64_tr_b16 {vr(22+4*tt,2)}, v16 offset:{64*tt+1024}")
    k(f"s_branch {rd}")
    k.label(narrow)
    k("""v_lshrrev_b32 v16, 4, v1
    v_lshl_add_u32 v16, v16, 3, v8
    v_lshlrev_b32 v16, 7, v16
    v_lshl_add_u32 v16, v9, 3, v16
    v_add_u32 v16, s53, v16""")
    for tt in range(4):
        k(f"ds_read_b64_tr_b16 {vr(20+4*tt,2)}, v16 offset:{32*tt}\nds_read_b64_tr_b16 {vr(22+4*tt,2)}, v16 offset:{32*tt+512}")
    k.label(rd)
    k("v_lshlrev_b32 v17, 4, v1")
    for tt in range(4):
        k(f"s_waitcnt lgkmcnt({6-2*tt})\nbuffer_store_dwordx4 {vr(20+4*tt,4)}, v17, {sr(WSR,4)}, {s(64+tt)} offen {HO}")
    k.label(done)

def sync01_consumer(k):
    k("s_waitcnt vmcnt(0)\ns_barrier")
    probe(k, "p0", 4)
    nw, n1 = k.lab("s01w"), k.lab("s01w1")
    k(f"s_cmp_lg_u32 {s(sw)}, 1\ns_cbranch_scc1 {n1}\ns_cmp_ge_u32 s2, 80\ns_cbranch_scc1 {n1}")
    k(f"s_lshr_b32 s52, s2, 4\ns_add_u32 s52, s52, {C_M}")
    arrive(k, "s52", 16, G_M, 8, R_M, 5)
    k.label(n1)
    k(f"s_cmp_lg_u32 {s(sw)}, 0\ns_cbranch_scc1 {nw}")
    probe(k, "p0", 3)
    k(f"s_lshr_b32 s53, s2, 4\ns_add_u32 s52, s53, {C_X}\ns_add_u32 s53, s53, {G_X}")
    arrive(k, "s52", 16, "s53")
    k(f"s_add_u32 s52, {s(sXCD)}, {G_M}\ns_add_u32 s54, {s(srb)}, {G_X}")
    poll_setup(k, [("s52", 1, 1), ("s54", 1, 1)])
    if not os.environ.get("NOPOLL01"): poll(k, 5, 6)
    k.label(nw)
    k("s_barrier")

CL = 224
def coef_load(k):
    k(f"v_lshlrev_b32 v9, 4, v0\nv_and_b32 v15, 15, v1\nv_lshlrev_b32 v15, 4, v15\ns_lshl_b32 s55, {s(sw)}, 8\ns_add_u32 s55, s55, 4096\nv_add_u32 v15, s55, v15")
    for ks in range(4):
        k(f"s_mov_b32 s52, {WS['MODP'] + ks*5120}\nbuffer_load_dwordx4 {vr(CL+4*ks,4)}, v9, {sr(WSR,4)}, s52 offen {HL}\nbuffer_load_dwordx4 {vr(CL+16+4*ks,4)}, v15, {sr(WSR,4)}, s52 offen {HL}")
def coef_prep(k, later):
    k(f"s_waitcnt vmcnt({later})")
    k("v_cmp_le_u32 vcc, 160, v0\nv_mov_b32 v6, 0\nv_cndmask_b32_e64 v6, v6, 1.0, vcc")
    for b in (CL, CL + 16):
        for j in range(4):
            k(f"v_add_f32 {v(b+j)}, {v(b+j)}, {v(b+4+j)}\nv_add_f32 {v(b+8+j)}, {v(b+8+j)}, {v(b+12+j)}")
        for j in range(4):
            k(f"v_add_f32 {v(b+j)}, {v(b+j)}, {v(b+8+j)}")
    for j in range(4): k(f"v_add_f32 {v(CL+j)}, {v(CL+j)}, v6\nv_add_f32 {v(CL+16+j)}, 1.0, {v(CL+16+j)}")
    k(f"v_cvt_pk_f16_f32 {v(CL+4)}, {v(CL)}, {v(CL+1)}\nv_cvt_pk_f16_f32 {v(CL+5)}, {v(CL+2)}, {v(CL+3)}\nv_lshlrev_b32 v7, 3, v0\nv_add_u32 v7, {COEF}, v7\nds_write_b64 v7, {vr(CL+4,2)}")
    k(f"v_cvt_pk_f16_f32 {v(CL+20)}, {v(CL+16)}, {v(CL+17)}\nv_cvt_pk_f16_f32 {v(CL+21)}, {v(CL+18)}, {v(CL+19)}\nv_lshrrev_b32 v7, 1, v15\nv_add_u32 v7, {COEF}, v7\nds_write_b64 v7, {vr(CL+20,2)}")

ACC, TR, WB, CB, HF, HB, AW, OFF = 16, 80, 144, 176, 192, 200, 208, 220
NR, PRE, DEPTH = 16, 4, 10

def qkv_consumer(k, isv):
    k("v_and_b32 v3, 31, v1\nv_lshrrev_b32 v4, 5, v1\nv_lshlrev_b32 v5, 4, v1")
    k(f"s_lshl_b32 s53, {s(srb)}, 2\ns_add_u32 s53, s53, {s(sw)}")
    k(f"s_mul_i32 s54, s53, 40960\ns_add_u32 s54, s54, {WS['XN']}")
    vq = Q(k, "vmcnt"); L = Q(k, "lgkmcnt")
    coef_load(k)
    for j in range(7): vq.add(("coef", j))
    vq.add("coef")
    def tload(st):
        k(f"s_add_u32 s55, s54, {st*1024}\nbuffer_load_dwordx4 {vr(TR+4*(st%NR),4)}, v5, {sr(WSR,4)}, s55 offen {HL}"); vq.add(("t", st))
    for st in range(PRE): tload(st)
    nxt = [PRE]
    for j in range(64): k(f"v_mov_b32 {v(ACC+j)}, 0")
    k("""v_and_b32 v8, 15, v1
    v_lshrrev_b32 v8, 2, v8
    v_lshl_add_u32 v9, v4, 3, v8
    v_lshlrev_b32 v9, 8, v9
    v_bfe_u32 v10, v1, 4, 1
    v_lshl_add_u32 v9, v10, 5, v9
    v_and_b32 v10, 3, v1
    v_lshl_add_u32 v9, v10, 3, v9""")
    for t in range(4):
        k(f"v_xor_b32 v10, {t}, v8\nv_lshl_add_u32 {v(AW+t)}, v10, 6, v9")
        k(f"v_add_u32 {v(AW+4+t)}, 0x10000, {v(AW+t)}\nv_add_u32 {v(AW+8+t)}, 0x20000, {v(AW+t)}")
    k(f"v_lshlrev_b32 v14, 4, v4\nv_add_u32 v14, {COEF}, v14")
    if isv:
        k(f"s_lshl_b32 s56, {s(scq)}, 7\nv_add_u32 v6, s56, v3\ns_movk_i32 s56, 3277\ns_mov_b32 s57, 81920\nv_mul_u32_u24 v7, 0x140, v4")
        for t in range(4):
            k(f"""v_add_u32 v9, {32*t}, v6
            v_mul_u32_u24 v10, s56, v9
            v_lshrrev_b32 v10, 16, v10
            v_mad_i32_i24 v9, v10, -16, v9
            v_mad_i32_i24 v9, v10, -4, v9
            v_lshl_add_u32 v9, v9, 4, v7
            v_mad_u32_u24 {v(OFF+t)}, v10, s57, v9""")
        k(f"s_lshl_b32 s58, s53, 1\ns_mul_i32 s58, s58, 640\ns_add_u32 s58, s58, {WS['V']}")
    else:
        k(f"s_mul_i32 s58, s53, 40960\ns_lshl_b32 s56, {s(scq)}, 13\ns_add_u32 s58, s58, s56\ns_mov_b32 s56, {WS['Q']}\ns_mov_b32 s60, {hex(f32bits(QSCALE))}")
        k(f"s_cmp_lt_u32 {s(scb)}, 5\ns_cselect_b32 s56, s56, {WS['KK']}\ns_cselect_b32 s60, s60, 1.0\ns_add_u32 s58, s58, s56\ns_mov_b32 s61, 0")
    coef_prep(k, vq.after("coef"))
    k("s_waitcnt lgkmcnt(0)\ns_barrier")
    k.stamp(3)
    def wread(st, ts=range(4)):
        for t in ts:
            for u in range(2):
                a_ = (st % RING) * 4096 + u * 1024
                k(f"ds_read_b64_tr_b16 {vr(WB+16*(st%2)+4*t+2*u,2)}, {v(AW+4*(a_>>16)+t)} offset:{a_ & 0xffff}")
                L.add(("w", st, t, u))
    def cread(st, which=(0, 1)):
        for x in which:
            k(f"ds_read_b128 {vr(CB+8*(st%2)+4*x,4)}, v14 offset:{(1280 if x == 0 else 0) + 32*st}"); L.add(("c", st, x))
    def mix(st, j0, j1):
        T = TR + 4 * (st % NR); C1 = CB + 8 * (st % 2); C0 = C1 + 4
        for j in range(j0, j1):
            o = j & 1
            k(f"v_fma_mix_f32 {v(HF+j)}, {v(T+j//2)}, {v(C1+j//2)}, {v(C0+j//2)} op_sel:[{o},{o},{o}] op_sel_hi:[1,1,1]")
    def cvt(st, ds=range(4)):
        for d in ds: k(f"v_cvt_pk_bf16_f32 {v(HB+4*(st%2)+d)}, {v(HF+2*d)}, {v(HF+2*d+1)}")
    def mfma(st, t):
        L.wait(("w", st, t, 1))
        w = vr(WB + 16 * (st % 2) + 4 * t, 4); h = vr(HB + 4 * (st % 2), 4); ac = vr(ACC + 16 * t, 16)
        k(f"v_mfma_f32_32x32x16_bf16 {ac}, {h}, {w}, {ac}" if isv else f"v_mfma_f32_32x32x16_bf16 {ac}, {w}, {h}, {ac}")
    cread(0); wread(0); cread(1)
    L.wait(("c", 0, 1)); vq.wait(("t", 0)); mix(0, 0, 8); cvt(0)
    for st in range(40):
        last = st == 39; more = st + 2 < 40
        mfma(st, 0)
        if st in (5, 34): k("s_barrier")
        if not last:
            wread(st + 1, [0])
            if more: cread(st + 2, [0])
            L.wait(("c", st + 1, 1)); vq.wait(("t", st + 1))
            mix(st + 1, 0, 3)
        mfma(st, 1)
        if not last:
            wread(st + 1, [1])
            if more: cread(st + 2, [1])
            mix(st + 1, 3, 6)
        mfma(st, 2)
        if not last:
            wread(st + 1, [2]); mix(st + 1, 6, 8); cvt(st + 1, [0, 1])
        mfma(st, 3)
        if not last:
            wread(st + 1, [3]); cvt(st + 1, [2, 3])
            n = 0
            while nxt[0] < 40 and nxt[0] <= st + 1 + DEPTH and nxt[0] - NR <= st + 1 and n < 2:
                tload(nxt[0]); nxt[0] += 1; n += 1
    k.stamp(4)
    if not isv:
        for t in range(4):
            r = ACC + 16 * t; d = TR + 8 * t
            for j in range(0, 16, 2): k(f"v_pk_mul_f32 {vr(r+j,2)}, {vr(r+j,2)}, s[60:61] op_sel_hi:[1,0]")
            for j in range(8): k(f"v_cvt_pk_bf16_f32 {v(d+j)}, {v(r+2*j)}, {v(r+2*j+1)}")
            for j in range(2):
                b = d + 4 * j
                k(f"v_permlane32_swap_b32 {v(b)}, {v(b+2)}\nv_permlane32_swap_b32 {v(b+1)}, {v(b+3)}")
                k(f"buffer_store_dwordx4 {vr(b,4)}, v5, {sr(WSR,4)}, s58 offen offset:{1024*j} {HO}")
            k("s_add_u32 s58, s58, 2048")
    else:
        for t in range(4):
            for g in range(2):
                r = ACC + 16 * t + 8 * g; d = TR + 4 * (2 * t + g)
                for j in range(4): k(f"v_cvt_pk_bf16_f32 {v(d+j)}, {v(r+2*j)}, {v(r+2*j+1)}")
                k(f"buffer_store_dwordx4 {vr(d,4)}, {v(OFF+t)}, {sr(WSR,4)}, s58 offen offset:{640*g} {HO}")

def consumer01(k, after):
    mod_job(k)
    k.stamp(1)
    sync01_consumer(k)
    k.stamp(2)
    idle, lv = k.lab("qidle"), k.lab("qv")
    k(f"s_cmp_eq_u32 {s(scb)}, 15\ns_cbranch_scc1 {idle}")
    k(f"s_cmp_ge_u32 {s(scb)}, 10\ns_cbranch_scc1 {lv}")
    qkv_consumer(k, False)
    k(f"s_branch {after}")
    k.label(lv)
    qkv_consumer(k, True)
    k(f"s_branch {after}")
    k.label(idle)
    k("s_barrier\ns_barrier\ns_barrier")
    k(f"s_branch {after}")

def producer01(k, after):
    lnw, joined, notile, nt2 = k.lab("lnw"), k.lab("pj"), k.lab("nt"), k.lab("nt2")
    k(f"s_cmp_lt_u32 {s(sw)}, 6\ns_cbranch_scc1 {lnw}")
    w7 = k.lab("w7")
    k(f"s_cmp_eq_u32 {s(sw)}, 7\ns_cbranch_scc1 {w7}")
    line_prefetch(k, P_WQKV, 640 * 3840, 2, 150)
    code_prefetch(k)
    k("s_waitcnt vmcnt(0)")
    wait_ready(k)
    k(f"s_branch {joined}")
    k.label(w7)
    if os.environ.get("BATCH2") == "1":
        line_prefetch(k, P_WO, 640 * 1280, 1, 150)
        k("s_waitcnt vmcnt(0)")
        line_prefetch(k, P_WMOD, 640 * 7680, 3, 151)
        line_prefetch(k, P_WG, 640 * 3072, 1, 154)
        line_prefetch(k, P_WU, 640 * 3072, 1, 155)
        line_prefetch(k, P_WD, 1536 * 1280, 1, 156)
    k(f"s_branch {joined}")
    k.label(lnw)
    ln_job(k)
    probe(k, "p0", 2)
    k("s_waitcnt vmcnt(0)")
    probe(k, "p0", 3)
    k.label(joined)
    k.stamp(1)
    k("s_barrier")
    k(f"s_cmp_eq_u32 {s(scb)}, 15\ns_cbranch_scc1 {nt2}")
    wtile_setup(k)
    k(f"s_sub_u32 s59, {s(sw)}, 4")
    wtile_issue_rot(k, 35, 4)
    k.label(nt2)
    mini_issue(k, 0)
    k("s_waitcnt vmcnt(4)")
    probe(k, "p0", 4)
    k("s_barrier")
    k.stamp(2)
    k("s_barrier")
    mini_finish(k, 0)
    k("s_barrier")
    k(f"s_cmp_eq_u32 {s(scb)}, 15\ns_cbranch_scc1 {notile}")
    wtile_setup(k)
    k(f"s_sub_u32 s59, {s(sw)}, 4\ns_mul_i32 s59, s59, 5\ns_add_u32 s59, s59, 140")
    wtile_issue(k, 0, 5, 1, wrap=True)
    k.label(notile)
    k("s_waitcnt vmcnt(0)")
    mod_rest_load(k)
    mini_issue(k, 1)
    k("s_barrier")
    k("s_waitcnt vmcnt(0)")
    mini_finish(k, 0)
    mod_rest_finish(k)
    k.stamp(4)
    k(f"s_branch {after}")
```

```python
from mcommon import *

SLOT = 22528
R = 3
CONST = R * SLOT
FLAG = CONST + 5120
XCH = 0
shead, sqb, sgrp = 4, 5, 6
sG, sSt, sL, sNext, sLoad, sCh, sIt, sflag = 52, 55, 58, 61, 62, 63, 64, 65

QMA, QRA, QMB, QRB = 16, 20, 22, 26
SA, SB = 28, 60
PA, PB, OA, OB, MNA, MNB = 92, 100, 108, 124, 140, 156
KM, KR, VV = 172, 180, 184
vKm0, vKr0, vV0, vVm, vKm, vKr, vV, vD = 200, 201, 202, 203, 204, 205, 206, 207
MA, MB = 210, 211
FIN = 212
vCA, vCD, sChk = 225, 226, 66

def ids(k):
    k(f"""s_and_b32 s48, {s(sIDX)}, 3
    s_lshl_b32 {s(shead)}, {s(sXCD)}, 2
    s_add_u32 {s(shead)}, {s(shead)}, s48
    s_lshr_b32 {s(sqb)}, {s(sIDX)}, 2
    s_lshr_b32 {s(sgrp)}, {s(sw)}, 2""")

def setup(k):
    ids(k)
    k(f"s_mul_i32 s48, {s(shead)}, 5\ns_lshr_b32 s48, s48, 1\ns_lshl_b32 s7, s48, 9")
    k("v_lshlrev_b32 v2, 4, v1")
    for i in range(3):
        k(f"s_add_u32 s48, {s(sw)}, {8*i}")
        if i == 2: k("s_cmp_ge_u32 s48, 22\ns_cselect_b32 s49, 2, 0\ns_sub_u32 s48, s48, s49")
        k(f"s_lshl_b32 {s(sL+i)}, s48, 10")
        k(f"""v_add_u32 v3, {s(sL+i)}, v2
        v_lshrrev_b32 v4, 9, v3
        v_mul_u32_u24 v4, 43, v4
        v_lshrrev_b32 v4, 7, v4
        v_mul_u32_u24 v5, 0x600, v4
        v_sub_u32 v5, v3, v5
        s_mov_b32 s49, 40960
        v_mad_u32_u24 v5, v4, s49, v5
        v_subrev_u32 v3, 0x3000, v3
        s_cmp_lt_u32 s48, 12
        s_cselect_b64 vcc, -1, 0
        v_cndmask_b32 {v(vD+i)}, v3, v5, vcc""")
        k(f"s_mul_i32 s49, {s(shead)}, 81920\ns_add_u32 s49, s49, {WS['V']}\ns_add_u32 s50, s7, {WS['KK']}")
        k(f"s_cmp_lt_u32 s48, 12\ns_cselect_b32 {s(sG+i)}, s50, s49\ns_mov_b32 s50, {8*40960}\ns_cselect_b32 {s(sSt+i)}, s50, 10240")
    k(f"""v_and_b32 v3, 31, v1
    v_lshrrev_b32 v4, 5, v1
    s_mul_i32 s48, {s(sgrp)}, 6144
    v_add_u32 {v(vKm0)}, s48, v2
    v_lshlrev_b32 v5, 4, v3
    v_lshl_add_u32 v5, v4, 3, v5
    s_add_u32 s48, s48, 1024
    v_add_u32 {v(vKr0)}, s48, v5
    v_mul_u32_u24 v5, 0x140, v4
    v_lshl_add_u32 v5, v3, 4, v5
    s_mul_i32 s48, {s(sgrp)}, 5120
    v_add_u32 v5, s48, v5
    v_mov_b32 v6, {CONST - 12288}
    v_mov_b32 v7, {CONST + 16 - 12288}
    v_cmp_lt_u32 vcc, 20, v3
    v_cndmask_b32 v6, v6, v7, vcc
    v_cmp_le_u32 vcc, 20, v3
    v_cndmask_b32 {v(vV0)}, v5, v6, vcc
    v_mov_b32 v7, 1
    v_cndmask_b32_e64 {v(vVm)}, v7, 0, vcc""")
    for j in range(16): k(f"v_mov_b32 {v(MNA+j)}, 0\nv_mov_b32 {v(MNB+j)}, 0")
    k(f"s_mov_b32 {s(sflag)}, 0")
    k(f"s_cmp_eq_u32 {s(sw)}, 0\ns_cselect_b32 {s(sChk)}, 1, 0xff")
    k(f"v_mov_b32 {v(vCA)}, {G_D*256}")
    noc = k.lab("noc")
    k(f"s_cmp_lg_u32 {s(sw)}, 1\ns_cbranch_scc1 {noc}")
    k(f"""v_mov_b32 v8, 0x3f803f80
    v_mov_b32 v9, 0x3f803f80
    v_mov_b32 v10, 0x3f803f80
    v_mov_b32 v11, 0x3f803f80
    v_mov_b32 v12, 0
    v_mov_b32 v13, 0
    v_mov_b32 v14, 0
    v_mov_b32 v15, 0
    v_min_u32 v5, 7, v1
    v_mul_u32_u24 v5, 0x280, v5
    v_add_u32 v5, {CONST}, v5
    ds_write_b128 v5, v[8:11]
    ds_write_b128 v5, v[12:15] offset:16
    v_mov_b32 v5, {FLAG}
    ds_write_b32 v5, v12
    s_waitcnt lgkmcnt(0)""")
    k.label(noc)

def dep_counters(k):
    k(f"""s_lshr_b32 s48, s7, 9
    s_lshr_b32 s49, s48, 4
    s_add_u32 s50, s48, 2
    s_lshr_b32 s50, s50, 4
    s_mul_i32 s51, {s(shead)}, 20
    s_add_u32 s52, s51, 19
    s_lshr_b32 s51, s51, 7
    s_lshr_b32 s52, s52, 7
    v_mov_b32 v5, s49
    v_mov_b32 v6, 1""")
    for lane, (reg, addk) in enumerate([(50, 0), (49, 5), (50, 5), (51, 10), (52, 10)], start=1):
        k(f"s_add_u32 s53, s{reg}, {addk}\nv_mov_b32 v7, s53\nv_cmp_eq_u32 vcc, {lane}, v1\nv_cndmask_b32 v5, v5, v7, vcc")
    k(f"v_add_u32 v5, {G_Q}, v5\nv_lshlrev_b32 v5, 8, v5")

def dma(k, i, sslot):
    if "nodma" in os.environ.get("AV", "") and getattr(k, "inloop", False): return
    k(f"s_add_u32 m0, {s(sL+i)}, {s(sslot)}\ns_nop 0\nbuffer_load_dwordx4 {v(vD+i)}, {sr(WSR,4)}, {s(sG+i)} offen sc1 lds")

def load_q(k):
    k(f"""s_lshl_b32 s48, {s(sqb)}, 3
    s_and_b32 s49, {s(sw)}, 3
    s_lshl_b32 s49, s49, 1
    s_add_u32 s48, s48, s49
    s_mul_i32 s48, s48, 40960
    s_add_u32 s48, s48, s7
    s_add_u32 s48, s48, {WS['Q']}
    s_add_u32 s49, s48, 40960
    v_lshlrev_b32 v2, 4, v1
    v_and_b32 v3, 31, v1
    v_lshrrev_b32 v4, 5, v1
    v_lshlrev_b32 v5, 4, v3
    v_lshl_add_u32 v5, v4, 3, v5""")
    k(f"buffer_load_dwordx4 {vr(QMA,4)}, v2, {sr(WSR,4)}, s48 offen {HL}\nbuffer_load_dwordx2 {vr(QRA,2)}, v5, {sr(WSR,4)}, s48 offen offset:1024 {HL}")
    k(f"buffer_load_dwordx4 {vr(QMB,4)}, v2, {sr(WSR,4)}, s49 offen {HL}\nbuffer_load_dwordx2 {vr(QRB,2)}, v5, {sr(WSR,4)}, s49 offen offset:1024 {HL}")
def mask_q(k):
    odd, done = k.lab("qodd"), k.lab("qdone")
    k(f"s_bitcmp1_b32 {s(shead)}, 0\ns_cbranch_scc1 {odd}")
    k("v_cmp_le_u32 vcc, 32, v1")
    for r in (QRA, QRA + 1, QRB, QRB + 1): k(f"v_cndmask_b32_e64 {v(r)}, {v(r)}, 0, vcc")
    k(f"s_branch {done}")
    k.label(odd)
    k("v_cmp_gt_u32 vcc, 32, v1")
    for r in (QMA, QMA + 1, QMB, QMB + 1): k(f"v_cndmask_b32_e64 {v(r)}, {v(r)}, 0, vcc")
    k.label(done)

def readK(k, tau, buf):
    k(f"ds_read_b128 {vr(KM+4*buf,4)}, {v(vKm)} offset:{1536*tau}\nds_read_b64 {vr(KR+2*buf,2)}, {v(vKr)} offset:{1536*tau}")
def readV(k, tau, buf):
    for g in range(2): k(f"ds_read_b128 {vr(VV+8*buf+4*g,4)}, {v(vV)} offset:{12288 + 640*(2*tau+g)}")
def S1(k, X, b, kb):
    Sx, Qm, MN = (SA, QMA, MNA) if X == 0 else (SB, QMB, MNB)
    k(f"v_mfma_f32_32x32x16_bf16 {vr(Sx+16*b,16)}, {vr(KM+4*kb,4)}, {vr(Qm,4)}, {vr(MN,16)}")
def S2(k, X, b, kb):
    Sx, Qr = (SA, QRA) if X == 0 else (SB, QRB)
    k(f"v_mfma_f32_32x32x8_bf16 {vr(Sx+16*b,16)}, {vr(KR+2*kb,2)}, {vr(Qr,2)}, {vr(Sx+16*b,16)}")
def PV(k, X, g, vb):
    O, P = (OA, PA) if X == 0 else (OB, PB)
    k(f"v_mfma_f32_32x32x16_bf16 {vr(O,16)}, {vr(VV+8*vb+4*g,4)}, {vr(P+4*g,4)}, {vr(O,16)}")
def exps(k, X, b, a0, a1):
    Sx = (SA if X == 0 else SB) + 16 * b
    for j in range(a0, a1): k(f"v_exp_f32 {v(Sx+j)}, {v(Sx+j)}")
def cvts(k, X, b, a0, a1):
    Sx = (SA if X == 0 else SB) + 16 * b; P = PA if X == 0 else PB
    for j in range(a0, a1): k(f"v_cvt_pk_bf16_f32 {v(P+j)}, {v(Sx+2*j)}, {v(Sx+2*j+1)}")

def stream_start(k, with_q=False):
    k(f"s_mul_i32 s48, {s(shead)}, 81920\ns_add_u32 s49, s48, {WS['V']}\ns_add_u32 s50, s7, {WS['KK']}")
    for i in range(3):
        k(f"s_cmp_eq_u32 {s(sSt+i)}, 10240\ns_cselect_b32 {s(sG+i)}, s49, s50")
    k(f"s_mov_b32 {s(sLoad)}, 0")
    for i in range(3): dma(k, i, sLoad)
    if with_q:
        first = k.lab("hasq")
        k(f"s_cmp_lg_u32 {s(sflag)}, 0\ns_cbranch_scc1 {first}")
        load_q(k)
        k("s_waitcnt vmcnt(0)")
        mask_q(k)
        k.label(first)
    k(f"v_mov_b32 {v(vKm)}, {v(vKm0)}\nv_mov_b32 {v(vKr)}, {v(vKr0)}\nv_mov_b32 {v(vV)}, {v(vV0)}")
    k("s_waitcnt vmcnt(0)\ns_barrier")
    for i in range(3): k(f"s_add_u32 {s(sG+i)}, {s(sG+i)}, {s(sSt+i)}")
    k(f"s_mov_b32 {s(sLoad)}, {SLOT}\ns_mov_b32 {s(sNext)}, {SLOT}\ns_mov_b32 {s(sCh)}, 1")
    dma(k, 0, sLoad); dma(k, 1, sLoad)

def advance(k):
    k(f"v_add_u32 {v(vKm)}, {s(sNext)}, {v(vKm0)}\nv_add_u32 {v(vKr)}, {s(sNext)}, {v(vKr0)}")
    k(f"s_add_u32 {s(sCh)}, {s(sCh)}, 1\ns_cmp_le_u32 {s(sCh)}, 7")
    for i in range(3): k(f"s_cselect_b32 s48, {s(sSt+i)}, 0\ns_add_u32 {s(sG+i)}, {s(sG+i)}, s48\ns_cmp_le_u32 {s(sCh)}, 7")
    k(f"s_add_u32 {s(sLoad)}, {s(sLoad)}, {SLOT}\ns_cmp_ge_u32 {s(sLoad)}, {R*SLOT}\ns_cselect_b32 s48, {R*SLOT}, 0\ns_sub_u32 {s(sLoad)}, {s(sLoad)}, s48")

def next_slot(k):
    k(f"s_add_u32 {s(sNext)}, {s(sNext)}, {SLOT}\ns_cmp_ge_u32 {s(sNext)}, {R*SLOT}\ns_cselect_b32 s48, {R*SLOT}, 0\ns_sub_u32 {s(sNext)}, {s(sNext)}, s48")

def main_pass(k):
    stream_start(k, True)
    for j in range(16): k(f"v_mov_b32 {v(OA+j)}, 0\nv_mov_b32 {v(OB+j)}, 0")
    for j in range(4): k(f"v_mov_b32 {v(PB+4+j)}, 0\nv_mov_b32 {v(VV+12+j)}, 0")
    readK(k, 0, 0); readV(k, 0, 0); readK(k, 1, 1)
    k("s_waitcnt lgkmcnt(4)")
    S1(k, 0, 0, 0); S1(k, 1, 0, 0); S2(k, 0, 0, 0); S2(k, 1, 0, 0)
    k.stamp(6)
    k(f"s_mov_b32 {s(sIt)}, 0")
    loop = k.lab("aloop")
    k.label(loop)
    k.inloop = True
    for j in range(4):
        b, nb = j % 2, (j + 1) % 2
        AV = os.environ.get("AV", "")
        if "noprio" not in AV: k(f"s_setprio {3 - ((j - 2) % 4)}")
        k("s_waitcnt lgkmcnt(0)")
        if j == 2:
            k("s_waitcnt vmcnt(0)")
            okc = k.lab("okc")
            k(f"s_cmp_lg_u32 {s(sIt)}, {s(sChk)}\ns_cbranch_scc1 {okc}")
            k(f"v_cmp_gt_u32 vcc, 1, {v(vCD)}\ns_cmp_eq_u64 vcc, 0\ns_cbranch_scc1 {okc}")
            k(f"v_mov_b32 v2, 1")
            poll(k, vCA, 2)
            k.label(okc)
            k("s_barrier")
            advance(k); dma(k, 0, sLoad)
        if j == 3:
            k(f"v_mad_u32_u24 {v(vV)}, {v(vVm)}, {s(sNext)}, {v(vV0)}")
            dma(k, 1, sLoad); next_slot(k)
        if j == 0:
            dma(k, 2, sLoad)
            nock = k.lab("nock")
            k(f"s_cmp_lg_u32 {s(sIt)}, {s(sChk)}\ns_cbranch_scc1 {nock}\ns_mov_b32 s48, {WS['CNT']}")
            k(f"buffer_load_dword {v(vCD)}, {v(vCA)}, {sr(WSR,4)}, s48 offen sc1")
            k.label(nock)
        S1(k, 0, nb, nb); readK(k, (j + 2) % 4, b); exps(k, 0, b, 0, 4)
        PV(k, 1, 1, nb); exps(k, 0, b, 4, 8); cvts(k, 0, b, 0, 4)
        S2(k, 0, nb, nb); readV(k, (j + 1) % 4, nb); exps(k, 0, b, 8, 12)
        PV(k, 0, 0, b); exps(k, 0, b, 12, 16); cvts(k, 0, b, 4, 8)
        S1(k, 1, nb, nb); exps(k, 1, b, 0, 4)
        PV(k, 0, 1, b); exps(k, 1, b, 4, 8); cvts(k, 1, b, 0, 4)
        S2(k, 1, nb, nb); exps(k, 1, b, 8, 12)
        PV(k, 1, 0, b); exps(k, 1, b, 12, 16); cvts(k, 1, b, 4, 8)
    k.inloop = False
    k(f"s_add_u32 {s(sIt)}, {s(sIt)}, 1\ns_cmp_lt_u32 {s(sIt)}, 8\ns_cbranch_scc1 {loop}")
    PV(k, 1, 1, 1)
    k("s_setprio 0\ns_waitcnt vmcnt(0) lgkmcnt(0)\ns_barrier")

def max_pass(k):
    for j in range(16): k(f"v_mov_b32 {v(MNA+j)}, 0\nv_mov_b32 {v(MNB+j)}, 0")
    stream_start(k)
    k(f"v_mov_b32 {v(MA)}, 0xff800000\nv_mov_b32 {v(MB)}, 0xff800000\ns_mov_b32 {s(sIt)}, 0")
    loop = k.lab("mloop")
    k.label(loop)
    dma(k, 2, sLoad)
    for j in range(4):
        readK(k, j, 0)
        k("s_waitcnt lgkmcnt(0)")
        S1(k, 0, 0, 0); S1(k, 1, 0, 0); S2(k, 0, 0, 0); S2(k, 1, 0, 0)
        for a in range(0, 16, 2): k(f"v_max3_f32 {v(MA)}, {v(SA+a)}, {v(SA+a+1)}, {v(MA)}")
        for a in range(0, 16, 2): k(f"v_max3_f32 {v(MB)}, {v(SB+a)}, {v(SB+a+1)}, {v(MB)}")
    k("s_waitcnt vmcnt(0)\ns_barrier")
    advance(k); dma(k, 0, sLoad); dma(k, 1, sLoad); next_slot(k)
    k(f"s_add_u32 {s(sIt)}, {s(sIt)}, 1\ns_cmp_lt_u32 {s(sIt)}, 8\ns_cbranch_scc1 {loop}")
    k("s_waitcnt vmcnt(0) lgkmcnt(0)\ns_barrier")
    for M in (MA, MB):
        k(f"v_mov_b32 v2, {v(M)}\nv_permlane32_swap_b32 v2, {v(M)}\nv_max_f32 {v(M)}, v2, {v(M)}")
    k(f"s_lshl_b32 s48, {s(sw)}, 9\nv_lshlrev_b32 v2, 3, v1\nv_add_u32 v3, s48, v2\nds_write_b64 v3, {vr(MA,2)}\ns_waitcnt lgkmcnt(0)\ns_barrier")
    k(f"s_xor_b32 s48, {s(sw)}, 4\ns_lshl_b32 s48, s48, 9\nv_add_u32 v3, s48, v2\nds_read_b64 v[4:5], v3\ns_waitcnt lgkmcnt(0)")
    k(f"v_max_f32 v4, v4, {v(MA)}\nv_max_f32 v5, v5, {v(MB)}\nv_sub_f32 v4, 0, v4\nv_sub_f32 v5, 0, v5")
    for j in range(16): k(f"v_mov_b32 {v(MNA+j)}, v4\nv_mov_b32 {v(MNB+j)}, v5")
    k("s_barrier")

def merge(k):
    g1, sent, g1b, got = k.lab("mg1"), k.lab("msent"), k.lab("mg1b"), k.lab("mgot")
    k(f"s_mul_i32 s48, {s(sw)}, 3072\nv_lshlrev_b32 v2, 4, v1\nv_add_u32 v3, s48, v2")
    k(f"s_cmp_eq_u32 {s(sgrp)}, 1\ns_cbranch_scc1 {g1}")
    for j in range(3): k(f"ds_write_b128 v3, {vr(OB+4*j,4)} offset:{1024*j}")
    k(f"s_branch {sent}")
    k.label(g1)
    for j in range(3): k(f"ds_write_b128 v3, {vr(OA+4*j,4)} offset:{1024*j}")
    k.label(sent)
    k(f"s_waitcnt lgkmcnt(0)\ns_barrier\ns_xor_b32 s48, {s(sw)}, 4\ns_mul_i32 s48, s48, 3072\nv_add_u32 v3, s48, v2")
    for j in range(3): k(f"ds_read_b128 {vr(FIN+4*j,4)}, v3 offset:{1024*j}")
    k("s_waitcnt lgkmcnt(0)")
    k(f"s_cmp_eq_u32 {s(sgrp)}, 1\ns_cbranch_scc1 {g1b}")
    for j in range(12): k(f"v_add_f32 {v(FIN+j)}, {v(FIN+j)}, {v(OA+j)}")
    k(f"s_branch {got}")
    k.label(g1b)
    for j in range(12): k(f"v_add_f32 {v(FIN+j)}, {v(FIN+j)}, {v(OB+j)}")
    k.label(got)
    k(f"v_mov_b32 v2, {v(FIN+8)}\nv_mov_b32 {v(FIN+12)}, {v(FIN+8)}\nv_permlane32_swap_b32 v2, {v(FIN+12)}")

def attention(k):
    again, fin, good = k.lab("again"), k.lab("fin"), k.lab("good")
    k.label(again)
    main_pass(k)
    k.stamp(7)
    merge(k)
    k(f"s_cmp_lg_u32 {s(sflag)}, 0\ns_cbranch_scc1 {fin}")
    k(f"v_add_f32 v2, |{v(FIN)}|, |{v(FIN+1)}|")
    for j in range(2, 12): k(f"v_add_f32 v2, v2, |{v(FIN+j)}|")
    k(f"""v_mov_b32 v3, {hex(f32bits(2.0**-80))}
    v_mov_b32 v4, {hex(f32bits(2.0**100))}
    v_mov_b32 v5, 0x7f800000
    v_cmp_le_f32 s[48:49], v3, {v(FIN+12)}
    v_cmp_ge_f32 s[50:51], v4, {v(FIN+12)}
    v_cmp_lt_f32 vcc, v2, v5
    s_and_b64 s[48:49], s[48:49], s[50:51]
    s_and_b64 s[48:49], s[48:49], vcc
    s_cmp_eq_u64 s[48:49], exec
    s_cbranch_scc1 {good}""")
    k(f"v_mov_b32 v2, {FLAG}\nv_mov_b32 v3, 1\nds_write_b32 v2, v3")
    k.label(good)
    k(f"s_waitcnt lgkmcnt(0)\ns_barrier\nv_mov_b32 v2, {FLAG}\nds_read_b32 v3, v2\ns_waitcnt lgkmcnt(0)\nv_readfirstlane_b32 s48, v3")
    k(f"s_cmp_eq_u32 s48, 0\ns_cbranch_scc1 {fin}")
    max_pass(k)
    k(f"s_mov_b32 {s(sflag)}, 1\ns_branch {again}")
    k.label(fin)
    k(f"v_rcp_f32 v2, {v(FIN+12)}")
    for j in range(12): k(f"v_mul_f32 {v(FIN+j)}, v2, {v(FIN+j)}")
    for j in range(6): k(f"v_cvt_pk_bf16_f32 {v(PA+j)}, {v(FIN+2*j)}, {v(FIN+2*j+1)}")
    k(f"v_permlane32_swap_b32 {v(PA)}, {v(PA+2)}\nv_permlane32_swap_b32 {v(PA+1)}, {v(PA+3)}")
    k(f"""v_and_b32 v2, 31, v1
    v_lshrrev_b32 v3, 4, v2
    v_mul_u32_u24 v3, 0x5000, v3
    v_and_b32 v4, 15, v2
    v_lshl_add_u32 v3, v4, 4, v3
    v_lshrrev_b32 v5, 5, v1
    v_lshl_add_u32 v5, v5, 8, v3
    s_lshl_b32 s48, {s(sqb)}, 3
    s_and_b32 s49, {s(sw)}, 3
    s_lshl_b32 s49, s49, 1
    s_add_u32 s48, s48, s49
    s_add_u32 s48, s48, {s(sgrp)}
    s_lshl_b32 s48, s48, 1
    s_mul_i32 s48, s48, 0x5000
    s_add_u32 s48, s48, {WS['O']}
    s_lshr_b32 s49, {s(shead)}, 1
    s_mul_i32 s49, s49, 1280
    s_add_u32 s48, s48, s49
    s_and_b32 s50, {s(shead)}, 1
    s_lshl_b32 s51, s50, 9
    s_add_u32 s51, s51, s48
    s_lshl_b32 s50, s50, 3
    s_add_u32 s50, s50, s48
    s_add_u32 s50, s50, 1024""")
    k(f"buffer_store_dwordx4 {vr(PA,4)}, v5, {sr(WSR,4)}, s51 offen {HO}")
    k("v_cmp_gt_u32 vcc, 32, v1\ns_and_saveexec_b64 s[48:49], vcc")
    k(f"buffer_store_dwordx2 {vr(PA+4,2)}, v3, {sr(WSR,4)}, s50 offen {HO}")
    k("s_mov_b64 exec, s[48:49]")
```

```python
import sys, os
sys.path.insert(0, os.path.dirname(os.path.abspath(__file__)))
from mcommon import *
import p01, p2, p345

NAME = "adaLN_cond__mha_block__glu_gated_glu__prompt_kernel"
STOP = int(os.environ.get("STOP", "9"))
LDS = 163840

def finish(k):
    k.stamp(23)
    k.stamp_flush(WSR, sw)
    k("s_endpgm")

def build():
    k = K(NAME, 256)
    k.name_short = "m"
    end = k.lab("end")
    k(f"s_cmp_ge_u32 s2, 256\ns_cbranch_scc1 {end}")
    if STAMPS:
        for i in range(24): k(f"s_mov_b32 s{70+i}, 0")
    k.stamp(0)
    k("s_load_dwordx16 s[16:31], s[0:1], 0\ns_load_dwordx8 s[32:39], s[0:1], 64")
    k(f"v_and_b32 v1, 63, v0\nv_lshrrev_b32 v2, 6, v0\nv_readfirstlane_b32 {s(sw)}, v2")
    k(f"s_and_b32 {s(sXCD)}, s2, 7\ns_lshr_b32 {s(sIDX)}, s2, 3")
    p01.tile_ids(k)
    k("s_waitcnt lgkmcnt(0)")
    probe(k, "p0", 0)
    srd(k, WSR, P_WS, (64 << 20) if STAMPS else WS["END"])
    p01.zero_init(k)
    p01.macc_init(k)
    prod01, p1done = k.lab("prod01"), k.lab("p1done")
    k(f"s_cmp_ge_u32 {s(sw)}, 4\ns_cbranch_scc1 {prod01}")
    p01.consumer01(k, p1done)
    k.label(prod01)
    p01.producer01(k, p1done)
    k.label(p1done)
    k.stamp(14)
    k("s_waitcnt vmcnt(0)")
    probe(k, "s12", 0)
    k("s_barrier")
    probe(k, "s12", 1)
    nw, n1 = k.lab("s12w"), k.lab("s12w1")
    k(f"s_cmp_lg_u32 {s(sw)}, 1\ns_cbranch_scc1 {n1}")
    k(f"s_and_b32 s52, s2, 15\ns_add_u32 s52, s52, {C_D}")
    arrive(k, "s52", 16, G_D, 1, R_D, 16)
    k.label(n1)
    k(f"s_cmp_lg_u32 {s(sw)}, 0\ns_cbranch_scc1 {nw}")
    k(f"s_cmp_eq_u32 {s(p01.scb)}, 15\ns_cbranch_scc1 {nw}")
    k(f"s_add_u32 s52, {s(p01.scb)}, {C_Q}\ns_add_u32 s53, {s(p01.scb)}, {G_Q}")
    arrive(k, "s52", 16, "s53")
    k.label(nw)
    if STOP == 1: finish(k); k.label(end); k("s_endpgm"); k.label("CODE_END"); return k
    p2.setup(k)
    probe(k, "s12", 2)
    nw = k.lab("s12p")
    k(f"s_cmp_lg_u32 {s(sw)}, 0\ns_cbranch_scc1 {nw}")
    p2.dep_counters(k)
    poll(k, 5, 6)
    probe(k, "s12", 3)
    k.label(nw)
    k("s_barrier")
    k.stamp(5)
    p2.attention(k)
    k.stamp(15)
    k("s_waitcnt vmcnt(0)")
    probe(k, "s23", 0)
    k("s_barrier")
    probe(k, "s23", 1)
    w0, rdy = k.lab("s23w0"), k.lab("s23r")
    k(f"s_cmp_lg_u32 {s(sw)}, 0\ns_cbranch_scc1 {w0}")
    k(f"s_add_u32 s52, {s(p2.sqb)}, {C_O}\ns_add_u32 s53, {s(p2.sqb)}, {G_O}")
    arrive(k, "s52", 32, "s53")
    if STOP == 2:
        k.label(w0); finish(k); k.label(end); k("s_endpgm"); k.label("CODE_END"); return k
    p345.ids(k)
    k(f"s_lshr_b32 s52, {s(p345.srb)}, 2\ns_add_u32 s52, s52, {G_O}")
    poll_setup(k, [("s52", 1, 1)]); poll(k, 5, 6)
    k(f"s_branch {rdy}")
    k.label(w0)
    p345.ids(k)
    p345.wo_prefetch(k)
    nv = k.lab("nov3")
    k(f"s_cmp_lg_u32 {s(sw)}, 7\ns_cbranch_scc1 {nv}")
    p345.vec_load(k, [(2, False), (4, True)], p345.VEC3)
    k.label(nv)
    k("s_waitcnt vmcnt(0)")
    k.label(rdy)
    probe(k, "s23", 2)
    k("s_barrier")
    k.stamp(8)
    prod3 = k.lab("prod3")
    k(f"s_cmp_ge_u32 {s(sw)}, 4\ns_cbranch_scc1 {prod3}")
    p345.wo_consumer(k)
    k.stamp(16)
    k("s_waitcnt vmcnt(0)")
    probe(k, "s23", 3)
    k("s_barrier")
    probe(k, "s23", 4)
    nw, n1 = k.lab("s34w"), k.lab("s34w1")
    k(f"s_cmp_lg_u32 {s(sw)}, 1\ns_cbranch_scc1 {n1}")
    k(f"s_and_b32 s52, s2, 15\ns_add_u32 s52, s52, {C_U}")
    arrive(k, "s52", 16, G_U, 1, R_U, 16)
    k.label(n1)
    k(f"s_cmp_lg_u32 {s(sw)}, 0\ns_cbranch_scc1 {nw}")
    k(f"s_lshr_b32 s53, {s(p345.srb)}, 1\ns_add_u32 s52, s53, {C_Y}\ns_add_u32 s53, s53, {G_Y}")
    arrive(k, "s52", 16, "s53")
    if STOP > 3:
        k(f"s_add_u32 s52, {s(p345.grb)}, {G_Y}")
        poll_setup(k, [("s52", 1, 1)]); poll(k, 5, 6)
    k.label(nw)
    if STOP == 3: finish(k)
    else:
        k("s_barrier")
        k.stamp(10)
        p345.gu_consumer(k)
        k.stamp(12)
        k("s_waitcnt vmcnt(0)\ns_barrier")
        nw = k.lab("s45w")
        k(f"s_cmp_lg_u32 {s(sw)}, 0\ns_cbranch_scc1 {nw}")
        k(f"s_add_u32 s52, {s(p345.grb)}, {C_H}\ns_add_u32 s53, {s(p345.grb)}, {G_H}")
        arrive(k, "s52", 16, "s53")
        if STOP > 4:
            k(f"s_lshr_b32 s52, {s(p345.srb)}, 1\ns_add_u32 s52, s52, {G_H}")
            poll_setup(k, [("s52", 1, 1)]); poll(k, 5, 6)
        k.label(nw)
        if STOP == 4: finish(k)
        else:
            k("s_barrier")
            k.stamp(13)
            p345.down_consumer(k)
            finish(k)
    k.label(prod3)
    P = p345.Prod(k); vq = P.vq
    if STOP > 3:
        P.gu_setup(); P.gu_issue(0); P.gu_issue(1)
    p345.ub_job(k)
    k("s_barrier")
    if STOP == 3: finish(k)
    else:
        P.gu_setup()
        P.gu_issue(2); P.gu_issue(3)
        vq.wait(("g", 0, 5))
        k("s_barrier")
        issued = 4
        for c in range(1, 10):
            while issued < 10 and issued <= c + 3 and issued - p345.GSLOT <= c - 3:
                P.gu_issue(issued); issued += 1
            vq.wait(("g", c, 5))
            k("s_barrier")
            if c == 5:
                nu = k.lab("noubd")
                k(f"s_cmp_lg_u32 {s(sw)}, 4\ns_cbranch_scc1 {nu}")
                k(f"v_mov_b32 v6, 1\nv_mov_b32 v7, {G_U*256}")
                poll(k, 7, 6, 8)
                k(f"s_mul_i32 s63, {s(p345.gfb)}, 1536\ns_add_u32 s63, s63, {WS['UB']}")
                k(f"s_mov_b32 m0, {p345.UBL}\ns_nop 0\nbuffer_load_dwordx4 v5, {sr(WSR,4)}, s63 offen sc1 lds")
                k(f"s_add_u32 s63, s63, 1024\ns_mov_b32 m0, {p345.UBL + 1024}\ns_nop 0\nbuffer_load_dwordx4 v5, {sr(WSR,4)}, s63 offen sc1 lds")
                k.label(nu)
        if STOP > 4:
            P.d_setup()
            nv = k.lab("nov5")
            k(f"s_cmp_lg_u32 {s(sw)}, 7\ns_cbranch_scc1 {nv}")
            p345.vec_load(k, [(5, False)], p345.VEC5)
            k("v_lshlrev_b32 v5, 4, v1")
            k.label(nv)
            for c in range(4): P.d_issue(c)
        k("s_barrier")
        if STOP == 4: finish(k)
        else:
            for c in range(4, 7): P.d_issue(c)
            vq.wait(("d", 0, 4))
            k("s_barrier")
            issued = 7
            for c in range(1, 12):
                while issued < 12 and issued - 7 <= c - 3:
                    P.d_issue(issued); issued += 1
                vq.wait(("d", c, 4))
                k("s_barrier")
            finish(k)
    k.label(end)
    k("s_endpgm")
    k.label("CODE_END")
    return k

def generate():
    here = os.path.dirname(os.path.abspath(__file__))
    head = open(os.path.join(here, "header.txt")).read()
    k = build()
    t, n = k.text()
    return head + f"; @launch grid=(256,1,1) block=(512,1,1) lds={LDS}\n" + '.amdgcn_target "amdgcn-amd-amdhsa--gfx950"\n.text\n' + t + '.section .rodata,"a"\n' + k.desc()

if __name__ == "__main__":
    txt = generate()
    open(sys.argv[1], "w").write(txt)
    print("wrote", sys.argv[1], len(txt), "bytes,", txt.count("\n"), "lines")
```

```python
import os, struct
from asmlib import *
from asmlib import STAMPS
from mlayout import *

def f32bits(x): return struct.unpack("<I", struct.pack("<f", x))[0]
LOG2E = 1.4426950408889634

WSR = 8
sw = 12
P_X, P_WQKV, P_WO, P_BX, P_WG, P_WU, P_WD, P_C = 16, 18, 20, 22, 24, 26, 28, 30
P_WMOD, P_OUT, P_DBG, P_WS = 32, 34, 36, 38
RA, RB = 40, 44
sXCD, sIDX = 13, 14
SPIN_LIMIT = 200000
HO = "sc0 sc1"
HL = os.environ.get("HL", "sc1")

SIDE = os.environ.get("SIDE", "attn")
PROBE = os.environ.get("PROBE", "s23")
def probe(k, group, i):
    if PROBE == group: k.stamp(18 + i)

def srd(k, sd, sp, nbytes):
    k(f"s_mov_b32 {s(sd)}, {s(sp)}\ns_mov_b32 {s(sd+1)}, {s(sp+1)}\ns_mov_b32 {s(sd+2)}, {hex(nbytes)}\ns_mov_b32 {s(sd+3)}, {hex(SRD3)}")

def sdiv(k, sq, sx, d):
    m = ((1 << 20) + d - 1) // d
    for x in range(1 << 12): assert (x * m) >> 20 == x // d, (d, x)
    k(f"s_mul_i32 {s(sq)}, {s(sx)}, {m}\ns_lshr_b32 {s(sq)}, {s(sq)}, 20")

def arrive_direct(k, cnt):
    k(f"s_lshl_b32 s48, {cnt}, 8\ns_add_u32 s48, s48, {WS['CNT']}\nv_mov_b32 v2, 0\nv_mov_b32 v3, 1\ns_mov_b64 exec, 1")
    k(f"buffer_atomic_add v3, v2, {sr(WSR,4)}, s48 offen sc1\ns_mov_b64 exec, -1")

def arrive(k, cnt, n, go, ngo=1, root=None, nroot=0, word=None):
    done = k.lab("arr")
    def idx(x, dst):
        if isinstance(x, int): k(f"s_mov_b32 {dst}, {WS['CNT'] + x*CSTRIDE}")
        else: k(f"s_lshl_b32 {dst}, {x}, 8\ns_add_u32 {dst}, {dst}, {WS['CNT']}")
    def bump(x, target):
        idx(x, "s48")
        k(f"v_mov_b32 v2, 0\nv_mov_b32 v3, 1\ns_mov_b64 exec, 1\nbuffer_atomic_add v3, v2, {sr(WSR,4)}, s48 offen sc0 sc1\ns_waitcnt vmcnt(0)\ns_mov_b64 exec, -1")
        k(f"v_readfirstlane_b32 s49, v3\ns_cmp_lg_u32 s49, {target-1}\ns_cbranch_scc1 {done}")
    bump(cnt, n)
    if root is not None: bump(root, nroot)
    idx(go, "s48")
    if word: k(f"s_lshl_b32 s49, {word}, 2\ns_add_u32 s48, s48, s49")
    k(f"v_lshlrev_b32 v2, 8, v1\nv_mov_b32 v3, 1\ns_mov_b32 exec_lo, {hex((1 << ngo) - 1)}\ns_mov_b32 exec_hi, 0")
    k(f"buffer_store_dword v3, v2, {sr(WSR,4)}, s48 offen sc0 sc1\ns_mov_b64 exec, -1")
    k.label(done)

def poll(k, voff, target, vt=4):
    loop, done = k.lab("poll"), k.lab("polled")
    k(f"s_mov_b32 s49, {WS['CNT']}\ns_mov_b32 s50, 0")
    k.label(loop)
    k(f"buffer_load_dword {v(vt)}, {v(voff)}, {sr(WSR,4)}, s49 offen sc1")
    k("s_waitcnt vmcnt(0)")
    k(f"v_cmp_lt_u32 vcc, {v(vt)}, {v(target)}\ns_cmp_eq_u64 vcc, 0\ns_cbranch_scc1 {done}")
    k(f"s_add_u32 s50, s50, 1\ns_cmp_ge_u32 s50, {SPIN_LIMIT}\ns_cbranch_scc1 {done}\ns_sleep {os.environ.get('PSLEEP', '2')}\ns_branch {loop}")
    k.label(done)

def poll_setup(k, specs, voff=5, vtg=6, lane=1):
    k(f"v_mov_b32 {v(voff)}, 0\nv_mov_b32 {v(vtg)}, 0")
    first = 0
    for base, n, target in specs:
        if isinstance(base, int): k(f"s_mov_b32 s51, {base - first}")
        else: k(f"s_sub_u32 s51, {base}, {first}" if first else f"s_mov_b32 s51, {base}")
        k(f"v_add_u32 v7, s51, {v(lane)}\nv_lshlrev_b32 v7, 8, v7")
        k(f"v_subrev_u32 v8, {first}, {v(lane)}\nv_cmp_gt_u32 vcc, {n}, v8")
        k(f"v_cndmask_b32 {v(voff)}, {v(voff)}, v7, vcc\nv_mov_b32 v7, {target}\nv_cndmask_b32 {v(vtg)}, {v(vtg)}, v7, vcc")
        first += n

class Rot:
    def __init__(self, k, sA, sB, sLim, n, unit): self.k, self.sA, self.sB, self.sLim, self.n, self.unit = k, sA, sB, sLim, n, unit
    def setup(self, sbase, srot):
        k = self.k
        k(f"s_mul_i32 {s(self.sA)}, {s(srot)}, {self.unit}\ns_add_u32 {s(self.sA)}, {s(self.sA)}, {s(sbase)}")
        k(f"s_sub_u32 {s(self.sB)}, {s(self.sA)}, {self.n*self.unit}\ns_sub_u32 {s(self.sLim)}, {self.n}, {s(srot)}")
    def addr(self, dst, i, extra=0):
        k = self.k
        k(f"s_cmp_le_u32 {s(self.sLim)}, {i}\ns_cselect_b32 {s(dst)}, {s(self.sB)}, {s(self.sA)}\ns_add_u32 {s(dst)}, {s(dst)}, {i*self.unit + extra}")

def red8(k, r):
    k(f"v_add_f32_dpp {v(r)}, {v(r)}, {v(r)} quad_perm:[1,0,3,2] row_mask:0xf bank_mask:0xf")
    k(f"v_add_f32_dpp {v(r)}, {v(r)}, {v(r)} quad_perm:[2,3,0,1] row_mask:0xf bank_mask:0xf")
    k(f"v_add_f32_dpp {v(r)}, {v(r)}, {v(r)} row_half_mirror row_mask:0xf bank_mask:0xf")

def red_q(k, r, t0, t1):
    k(f"v_mov_b32 {v(t0)}, {v(r)}\nv_mov_b32 {v(t1)}, {v(r)}\nv_permlane16_swap_b32 {v(t0)}, {v(t1)}\nv_add_f32 {v(r)}, {v(t0)}, {v(t1)}")
    k(f"v_mov_b32 {v(t0)}, {v(r)}\nv_mov_b32 {v(t1)}, {v(r)}\nv_permlane32_swap_b32 {v(t0)}, {v(t1)}\nv_add_f32 {v(r)}, {v(t0)}, {v(t1)}")

class Q:
    def __init__(self, k, name): self.k, self.name, self.q = k, name, []
    def add(self, tag): self.q.append(tag)
    def after(self, tag): return len(self.q) - 1 - self.q.index(tag)
    def wait(self, tag):
        n = self.after(tag)
        lim = 63 if self.name == "vmcnt" else 15
        self.k(f"s_waitcnt {self.name}({min(n, lim)})")
```

```python
from mcommon import *

QSCALE = LOG2E * 20 ** -0.5
RING = 35
COEF = RING * 4096
STG = COEF + 2560
assert STG + 16384 <= 163840
srb, scb, scq = 15, 4, 5

def tile_ids(k):
    k(f"""s_and_b32 s48, {s(sIDX)}, 3
    s_lshr_b32 s49, {s(sXCD)}, 1
    s_lshl_b32 s49, s49, 2
    s_add_u32 {s(srb)}, s49, s48
    s_lshr_b32 s48, {s(sIDX)}, 2
    s_and_b32 s49, {s(sXCD)}, 1
    s_lshl_b32 s49, s49, 3
    s_add_u32 {s(scb)}, s49, s48""")
    sdiv(k, 48, scb, 5)
    k(f"s_mul_i32 s48, s48, 5\ns_sub_u32 {s(scq)}, {s(scb)}, s48")

def zero_init(k):
    skip = k.lab("noinit")
    k(f"s_cmp_lg_u32 s2, 255\ns_cbranch_scc1 {skip}")
    k("v_mov_b32 v4, 0\nv_mov_b32 v5, 0\nv_mov_b32 v6, 0\nv_mov_b32 v7, 0\nv_lshlrev_b32 v8, 4, v1")
    k(f"s_mul_i32 s48, {s(sw)}, 11264\ns_add_u32 s48, s48, {WS['ZERO']}")
    for i in range(11):
        k(f"buffer_store_dwordx4 v[4:7], v8, {sr(WSR,4)}, s48 offen {HO}\ns_add_u32 s48, s48, 1024")
    k("s_waitcnt vmcnt(0)\ns_barrier")
    k(f"s_cmp_lg_u32 {s(sw)}, 0\ns_cbranch_scc1 {skip}")
    srd(k, RB, P_DBG, 256)
    k("v_mov_b32 v4, 1\nv_mov_b32 v5, 0\ns_mov_b64 exec, 1")
    k(f"buffer_store_dword v4, v5, {sr(RB,4)}, 0 offen offset:4 {HO}")
    k("s_mov_b64 exec, -1")
    k.label(skip)

def wait_ready(k):
    srd(k, RB, P_DBG, 256)
    loop, done = k.lab("rdy"), k.lab("rdyd")
    k("v_mov_b32 v60, 0\ns_mov_b32 s50, 0")
    k.label(loop)
    k(f"buffer_load_dword v61, v60, {sr(RB,4)}, 0 offen offset:4 sc1\ns_waitcnt vmcnt(0)\nv_readfirstlane_b32 s51, v61")
    k(f"s_cmp_lg_u32 s51, 0\ns_cbranch_scc1 {done}\ns_add_u32 s50, s50, 1\ns_cmp_ge_u32 s50, {SPIN_LIMIT}\ns_cbranch_scc1 {done}\ns_sleep 6\ns_branch {loop}")
    k.label(done)

LCNT = 162304 + 320
MACC = 162304
assert MACC + 512 <= 163840

def mod_load(k, R0, scb_, sks, wv):
    srd(k, RA, P_WMOD, 640 * 7680); srd(k, RB, P_C, 1280)
    k("v_lshrrev_b32 v3, 3, v1\nv_and_b32 v4, 7, v1")
    k(f"s_mul_i32 s54, {s(sks)}, 160\ns_mul_i32 s55, {s(wv)}, 40\ns_add_u32 s54, s54, s55")
    k(f"v_add_u32 v5, s54, v3\ns_movk_i32 s55, 7680\nv_mul_u32_u24 v6, s55, v5\ns_lshl_b32 s56, {s(scb_)}, 7")
    k("v_lshlrev_b32 v7, 4, v4\nv_add3_u32 v6, v6, v7, s56\nv_lshlrev_b32 v8, 1, v5")
    for i in range(5):
        k(f"s_mov_b32 s57, {61440*i}\nbuffer_load_dwordx4 {vr(R0+4*i,4)}, v6, {sr(RA,4)}, s57 offen")
    for i in range(5):
        k(f"buffer_load_ushort {v(R0+20+i)}, v8, {sr(RB,4)}, 0 offen offset:{16*i}")

def mod_compute(k, R0, T, stmp=48):
    C = R0 + 20
    for j in range(8): k(f"v_mov_b32 {v(T+j)}, 0")
    k(f"s_mov_b32 {s(stmp)}, 0xbfb8aa3b")
    E = T + 8
    for i in range(5): k(f"v_lshlrev_b32 {v(C+i)}, 16, {v(C+i)}\nv_mul_f32 {v(E+i)}, {s(stmp)}, {v(C+i)}\nv_exp_f32 {v(E+i)}, {v(E+i)}")
    for i in range(5): k(f"v_add_f32 {v(E+i)}, 1.0, {v(E+i)}")
    for i in range(5): k(f"v_rcp_f32 {v(E+i)}, {v(E+i)}")
    for i in range(5): k(f"v_mul_f32 {v(C+i)}, {v(C+i)}, {v(E+i)}")
    for i in range(5):
        for d in range(4):
            r = R0 + 4 * i + d
            k(f"v_lshlrev_b32 {v(T+16)}, 16, {v(r)}\nv_and_b32 {v(T+17)}, 0xffff0000, {v(r)}\nv_fmac_f32 {v(T+2*d)}, {v(C+i)}, {v(T+16)}\nv_fmac_f32 {v(T+2*d+1)}, {v(C+i)}, {v(T+17)}")
    k(f"v_and_b32 {v(T+16)}, 8, v1\nv_cmp_ne_u32 vcc, 0, {v(T+16)}")
    for j in range(4):
        k(f"v_cndmask_b32 {v(T+8+j)}, {v(T+4+j)}, {v(T+j)}, vcc\nv_cndmask_b32 {v(T+12+j)}, {v(T+j)}, {v(T+4+j)}, vcc")
    for j in range(4):
        k(f"v_add_f32_dpp {v(T+12+j)}, {v(T+8+j)}, {v(T+12+j)} row_ror:8 row_mask:0xf bank_mask:0xf")
    a = T + 12
    k(f"v_permlane16_swap_b32 {v(a)}, {v(a+2)}\nv_permlane16_swap_b32 {v(a+1)}, {v(a+3)}\nv_add_f32 {v(a)}, {v(a)}, {v(a+2)}\nv_add_f32 {v(a+1)}, {v(a+1)}, {v(a+3)}")
    k(f"v_permlane32_swap_b32 {v(a)}, {v(a+1)}\nv_add_f32 {v(a)}, {v(a)}, {v(a+1)}")
    c, t = T + 16, T + 17
    k(f"""v_and_b32 {v(c)}, 7, v1
    v_lshlrev_b32 {v(c)}, 3, {v(c)}
    v_bfe_u32 {v(t)}, v1, 3, 1
    v_lshl_add_u32 {v(c)}, {v(t)}, 2, {v(c)}
    v_bfe_u32 {v(t)}, v1, 4, 1
    v_lshl_add_u32 {v(c)}, {v(t)}, 1, {v(c)}
    v_lshrrev_b32 {v(t)}, 5, v1
    v_add_u32 {v(c)}, {v(c)}, {v(t)}""")

def macc_init(k):
    skip = k.lab("nomacc")
    k(f"s_cmp_lg_u32 {s(sw)}, 0\ns_cbranch_scc1 {skip}")
    k(f"v_mov_b32 v2, 0\nv_lshlrev_b32 v3, 2, v1\nv_add_u32 v3, {MACC}, v3\nds_write_b32 v3, v2\nds_write_b32 v3, v2 offset:256\ns_waitcnt lgkmcnt(0)")
    k.label(skip)
    k("s_barrier")

def mod_job(k):
    skip = k.lab("nomod")
    k(f"s_cmp_ge_u32 s2, 80\ns_cbranch_scc1 {skip}")
    sdiv(k, 52, 2, 20)
    k("s_mul_i32 s53, s52, 20\ns_sub_u32 s53, s2, s53")
    mod_load(k, 16, 53, 52, sw)
    k("s_waitcnt vmcnt(0)")
    probe(k, "p0", 1)
    mod_compute(k, 16, 44)
    k(f"v_lshlrev_b32 v60, 2, v60\nv_add_u32 v60, {MACC}, v60\nds_add_f32 v60, v56\nv_mov_b32 v61, {MACC+256}\nv_mov_b32 v62, 1\ns_waitcnt lgkmcnt(0)")
    k("s_mov_b64 exec, 1\nds_add_rtn_u32 v63, v61, v62\ns_waitcnt lgkmcnt(0)\ns_mov_b64 exec, -1\nv_readfirstlane_b32 s57, v63")
    probe(k, "p0", 2)
    k(f"s_cmp_lg_u32 s57, 3\ns_cbranch_scc1 {skip}")
    k(f"v_lshlrev_b32 v60, 2, v1\nv_add_u32 v61, {MACC}, v60\nds_read_b32 v62, v61")
    k(f"s_mul_i32 s56, s52, 5120\ns_lshl_b32 s57, s53, 8\ns_add_u32 s56, s56, s57\ns_add_u32 s56, s56, {WS['MODP']}\ns_waitcnt lgkmcnt(0)")
    k(f"buffer_store_dword v62, v60, {sr(WSR,4)}, s56 offen {HO}")
    k.label(skip)

MR, MT = 60, 28
def mod_rest_load(k):
    if os.environ.get("NOSIDE"): return
    skip = k.lab("nomr")
    k(f"s_cmp_lt_u32 s2, 80\ns_cbranch_scc1 {skip}\ns_cmp_ge_u32 s2, 240\ns_cbranch_scc1 {skip}")
    k("s_sub_u32 s53, s2, 80")
    sdiv(k, 52, 53, 40)
    k(f"s_mul_i32 s54, s52, 40\ns_sub_u32 s53, s53, s54\ns_add_u32 s53, s53, 20\ns_sub_u32 s68, {s(sw)}, 4")
    mod_load(k, MR, 53, 52, 68)
    k.label(skip)
def mod_rest_finish(k):
    if os.environ.get("NOSIDE"): return
    skip = k.lab("nomf")
    k(f"s_cmp_lt_u32 s2, 80\ns_cbranch_scc1 {skip}\ns_cmp_ge_u32 s2, 240\ns_cbranch_scc1 {skip}")
    mod_compute(k, MR, MT)
    k("s_sub_u32 s49, s2, 80")
    sdiv(k, 50, 49, 40)
    k(f"s_mul_i32 s50, s50, 40\ns_sub_u32 s49, s49, s50\ns_add_u32 s49, s49, 20\ns_lshl_b32 s49, s49, 8\ns_add_u32 s49, s49, {WS['MOD']}")
    k(f"v_lshlrev_b32 {v(MT+16)}, 2, {v(MT+16)}")
    k(f"buffer_atomic_add_f32 {v(MT+12)}, {v(MT+16)}, {sr(WSR,4)}, s49 offen")
    k.label(skip)

def red16(k, r):
    red8(k, r)
    k(f"v_add_f32_dpp {v(r)}, {v(r)}, {v(r)} row_mirror row_mask:0xf bank_mask:0xf")

def ln_job(k):
    L, Fq, N = 8, 48, 5
    srd(k, RA, P_X, 2048 * 1280)
    k("v_lshrrev_b32 v3, 4, v1\nv_and_b32 v4, 15, v1")
    k(f"s_lshl_b32 s52, s2, 3\ns_sub_u32 s53, {s(sw)}, 4\ns_lshl_b32 s53, s53, 2\ns_add_u32 s52, s52, s53")
    k("v_add_u32 v6, s52, v3\ns_movk_i32 s54, 1280\nv_mul_u32_u24 v6, s54, v6\nv_lshl_add_u32 v6, v4, 4, v6")
    for i in range(N): k(f"buffer_load_dwordx4 {vr(L+4*i,4)}, v6, {sr(RA,4)}, 0 offen offset:{256*i}")
    k("v_mov_b32 v128, 0\nv_mov_b32 v129, 0\nv_mov_b32 v132, 0\nv_mov_b32 v133, 0")
    if STAMPS and PROBE == "p0":
        k("s_waitcnt vmcnt(0)")
        probe(k, "p0", 1)
    for i in range(N):
        k(f"s_waitcnt vmcnt({N-1-i})")
        for d in range(4):
            r = L + 4 * i + d; f = Fq + 8 * i + 2 * d
            k(f"v_lshlrev_b32 {v(f)}, 16, {v(r)}\nv_and_b32 {v(f+1)}, 0xffff0000, {v(r)}")
        for d in range(4):
            f = Fq + 8 * i + 2 * d
            k(f"v_pk_add_f32 v[128:129], v[128:129], {vr(f,2)}")
    k("v_add_f32 v128, v128, v129")
    red16(k, 128)
    k(f"v_mul_f32 v130, {hex(f32bits(-1.0/640))}, v128\nv_mov_b32 v131, v130")
    for j in range(0, 8 * N, 2): k(f"v_pk_add_f32 {vr(Fq+j,2)}, {vr(Fq+j,2)}, v[130:131]")
    for j in range(0, 8 * N, 2): k(f"v_pk_fma_f32 v[132:133], {vr(Fq+j,2)}, {vr(Fq+j,2)}, v[132:133]")
    k("v_add_f32 v132, v132, v133")
    red16(k, 132)
    k(f"v_mov_b32 v134, {hex(f32bits(1e-5))}\nv_mov_b32 v135, {hex(f32bits(1.0/640))}\nv_fmac_f32 v134, v132, v135\nv_rsq_f32 v134, v134\ns_nop 0\nv_mov_b32 v135, v134")
    k(f"s_lshr_b32 s53, s52, 5\ns_mul_i32 s53, s53, 40960\ns_and_b32 s52, s52, 31\ns_lshl_b32 s52, s52, 4\ns_add_u32 s52, s52, s53\ns_add_u32 s52, s52, {WS['XN']}")
    k("v_lshlrev_b32 v6, 9, v4\nv_lshl_add_u32 v6, v3, 4, v6")
    for i in range(N):
        for d in range(4):
            f = Fq + 8 * i + 2 * d
            k(f"v_pk_mul_f32 {vr(f,2)}, {vr(f,2)}, v[134:135]")
        for d in range(4):
            f = Fq + 8 * i + 2 * d
            k(f"v_cvt_pk_f16_f32 {v(L+4*i+d)}, {v(f)}, {v(f+1)}")
        k(f"buffer_store_dwordx4 {vr(L+4*i,4)}, v6, {sr(WSR,4)}, s52 offen {HO}\ns_add_u32 s52, s52, 8192")

def line_prefetch(k, ptr, nbytes, nper, dst, first=0):
    srd(k, RB, ptr, nbytes)
    k("v_lshlrev_b32 v146, 7, v1")
    for j in range(nper):
        k(f"s_add_u32 s50, s2, {first + 256*j}\ns_lshl_b32 s50, s50, 13\nbuffer_load_dword {v(dst+j)}, v146, {sr(RB,4)}, s50 offen")

def code_prefetch(k):
    here, skip = k.lab("pc"), k.lab("nopc")
    k(f"s_cmp_ge_u32 {s(sIDX)}, 8\ns_cbranch_scc1 {skip}")
    k("s_getpc_b64 s[48:49]")
    k.label(here)
    k(f"s_sub_u32 s48, s48, {here}-{k.name}\ns_subb_u32 s49, s49, 0")
    k(f"s_lshl_b32 s50, {s(sIDX)}, 13\nv_lshlrev_b32 v144, 7, v1\nv_add_u32 v144, s50, v144")
    k(f"s_mov_b32 s50, CODE_END-{k.name}-4\nv_min_u32 v144, s50, v144")
    k("global_load_dword v148, v144, s[48:49]")
    k.label(skip)

def wtile_setup(k):
    srd(k, RA, P_WQKV, 640 * 3840)
    k("""v_lshrrev_b32 v141, 4, v1
    v_bfe_u32 v142, v1, 2, 2
    """ + ("v_xor_b32 v142, v142, v141" if not os.environ.get("NOSWZ") else "s_nop 0") + """
    v_lshlrev_b32 v142, 6, v142
    v_and_b32 v143, 3, v1
    v_lshl_add_u32 v142, v143, 4, v142
    s_movk_i32 s52, 3840
    v_mad_u32_u24 v140, v141, s52, v142""")
    k(f"s_lshl_b32 s58, {s(scb)}, 8")

def wtile_issue(k, first, count, stride, wrap=False):
    loop = k.lab("wdma")
    k(f"s_mul_i32 s60, s59, 15360\ns_add_u32 s60, s60, s58\ns_lshl_b32 s61, s59, 10")
    if wrap: k(f"s_sub_u32 s61, s61, {RING*4096}")
    k(f"s_mov_b32 s62, {count}")
    k.label(loop)
    k(f"s_mov_b32 m0, s61\ns_add_u32 s61, s61, {stride*1024}\nbuffer_load_dwordx4 v140, {sr(RA,4)}, s60 offen lds")
    k(f"s_add_u32 s60, s60, {stride*15360}\ns_sub_u32 s62, s62, 1\ns_cmp_lg_u32 s62, 0\ns_cbranch_scc1 {loop}")

def wtile_issue_rot(k, count, stride):
    loop = k.lab("wrot")
    NP = 4 * RING
    k(f"s_mul_i32 s60, {s(srb)}, 9\ns_add_u32 s59, s59, s60\ns_mov_b32 s62, {count}")
    k.label(loop)
    k(f"s_cmp_ge_u32 s59, {NP}\ns_cselect_b32 s60, {NP}, 0\ns_sub_u32 s59, s59, s60")
    k(f"s_lshl_b32 m0, s59, 10\ns_mul_i32 s60, s59, 15360\ns_add_u32 s60, s60, s58\nbuffer_load_dwordx4 v140, {sr(RA,4)}, s60 offen lds")
    k(f"s_waitcnt vmcnt({int(os.environ.get('WINFL', '40'))})")
    k(f"s_add_u32 s59, s59, {stride}\ns_sub_u32 s62, s62, 1\ns_cmp_lg_u32 s62, 0\ns_cbranch_scc1 {loop}")

N_G, N_U, N_O, N_D = 480, 480, 200, 480
sJ = 63
def mini_issue(k, rnd):
    if os.environ.get("NOSIDE"):
        k("s_mov_b32 s69, 0"); return
    p = 52
    nojob, go = k.lab("mjno"), k.lab("mjgo")
    k(f"s_sub_u32 s52, {s(sw)}, 4\ns_lshl_b32 {s(sJ)}, s2, 2\ns_add_u32 {s(sJ)}, {s(sJ)}, s52\ns_add_u32 {s(sJ)}, {s(sJ)}, {1024*rnd}")
    k(f"s_lshl_b32 s53, s52, 12\ns_add_u32 s53, s53, {STG}")
    k(f"s_mov_b32 s69, 0\ns_cmp_ge_u32 {s(sJ)}, {N_G+N_U+N_O+N_D}\ns_cbranch_scc1 {nojob}")
    labs = [k.lab("mj") for _ in range(4)]
    lim = 0
    for n, lab in zip((N_G, N_U, N_O), labs):
        lim += n
        k(f"s_cmp_lt_u32 {s(sJ)}, {lim}\ns_cbranch_scc1 {lab}")
    k(f"s_branch {labs[3]}")
    types = [("g", P_WG, 640 * 3072, 3072, 12, 0, True, 3, 40, 6, 0, "WGU"), ("u", P_WU, 640 * 3072, 3072, 12, N_G, True, 3, 40, 6, 3, "WGU"),
             ("o", P_WO, 640 * 1280, 1280, 10, N_G + N_U, False, 5, 20, 5, 0, "WO"), ("d", P_WD, 1536 * 1280, 1280, 10, N_G + N_U + N_O, False, 5, 48, 5, 0, "WD")]
    for (name, ptr, nbytes, stride, ncb, start, wide, dv, NS, NT, tadd, base), lab in zip(types, labs):
        k.label(lab)
        srd(k, RB, ptr, nbytes)
        k(f"s_sub_u32 s54, {s(sJ)}, {start}")
        sdiv(k, 55, 54, ncb)
        k(f"s_mul_i32 s56, s55, {ncb}\ns_sub_u32 s54, s54, s56")
        for tt in range(4):
            k(f"s_lshl_b32 s56, s54, 2\ns_add_u32 s56, s56, {tt}")
            sdiv(k, 57, 56, dv)
            k(f"s_mul_i32 {s(64+tt)}, s57, {dv}\ns_sub_u32 s56, s56, {s(64+tt)}\ns_mul_i32 s57, s57, {NS}\ns_add_u32 s57, s57, s55")
            k(f"s_mul_i32 s57, s57, {NT}\ns_add_u32 s57, s57, s56\ns_lshl_b32 s57, s57, 10\ns_add_u32 {s(64+tt)}, s57, {WS[base] + tadd*1024}")
        if wide:
            k(f"""s_mov_b32 s69, 1
            s_lshl_b32 s55, s55, 4
            s_lshl_b32 s54, s54, 8
            v_lshrrev_b32 v8, 4, v1
            v_and_b32 v9, 15, v1
            v_lshl_add_u32 v9, v9, 4, s54""")
            for i in range(4): k(f"v_add_u32 {v(10+i)}, s55, v8\nv_add_u32 {v(10+i)}, {4*i}, {v(10+i)}")
        else:
            k(f"""s_mov_b32 s69, 2
            s_lshl_b32 s55, s55, 5
            s_lshl_b32 s54, s54, 7
            v_lshrrev_b32 v8, 3, v1
            v_and_b32 v9, 7, v1
            v_lshl_add_u32 v9, v9, 4, s54""")
            for i in range(4): k(f"v_add_u32 {v(10+i)}, s55, v8\nv_add_u32 {v(10+i)}, {8*i}, {v(10+i)}")
            if name == "o":
                k("s_movk_i32 s56, 1639")
                for i in range(4):
                    r = 10 + i
                    k(f"""v_mul_u32_u24 v14, s56, {v(r)}
                    v_lshrrev_b32 v14, 16, v14
                    v_mul_u32_u24 v14, 40, v14
                    v_sub_u32 v14, {v(r)}, v14
                    v_mov_b32 v15, 0
                    v_cmp_le_u32 vcc, 16, v14
                    v_cndmask_b32_e64 v15, v15, 4, vcc
                    v_cmp_le_u32 vcc, 32, v14
                    v_cndmask_b32_e64 v15, v15, -16, vcc
                    v_cmp_le_u32 vcc, 36, v14
                    v_cndmask_b32_e64 v15, v15, 0, vcc
                    v_add_u32 {v(r)}, {v(r)}, v15""")
        k(f"s_movk_i32 s56, {stride}")
        for i in range(4): k(f"v_mad_u32_u24 {v(10+i)}, {v(10+i)}, s56, v9")
        k(f"s_branch {go}")
    k.label(go)
    for i in range(4):
        k(f"s_add_u32 m0, s53, {1024*i}\ns_nop 0\nbuffer_load_dwordx4 {v(10+i)}, {sr(RB,4)}, 0 offen lds")
    k.label(nojob)

def mini_finish(k, later):
    done, narrow, rd = k.lab("mfd"), k.lab("mfn"), k.lab("mfr")
    k(f"s_cmp_eq_u32 s69, 0\ns_cbranch_scc1 {done}")
    k(f"s_waitcnt vmcnt({later})")
    k("v_and_b32 v8, 15, v1\nv_lshrrev_b32 v8, 2, v8\nv_and_b32 v9, 3, v1")
    k(f"s_cmp_eq_u32 s69, 2\ns_cbranch_scc1 {narrow}")
    k("""v_lshrrev_b32 v16, 5, v1
    v_lshl_add_u32 v16, v16, 3, v8
    v_lshlrev_b32 v16, 8, v16
    v_bfe_u32 v17, v1, 4, 1
    v_lshlrev_b32 v17, 5, v17
    v_lshl_add_u32 v17, v9, 3, v17
    v_add3_u32 v16, v16, v17, s53""")
    for tt in range(4):
        k(f"ds_read_b64_tr_b16 {vr(20+4*tt,2)}, v16 offset:{64*tt}\nds_read_b64_tr_b16 {vr(22+4*tt,2)}, v16 offset:{64*tt+1024}")
    k(f"s_branch {rd}")
    k.label(narrow)
    k("""v_lshrrev_b32 v16, 4, v1
    v_lshl_add_u32 v16, v16, 3, v8
    v_lshlrev_b32 v16, 7, v16
    v_lshl_add_u32 v16, v9, 3, v16
    v_add_u32 v16, s53, v16""")
    for tt in range(4):
        k(f"ds_read_b64_tr_b16 {vr(20+4*tt,2)}, v16 offset:{32*tt}\nds_read_b64_tr_b16 {vr(22+4*tt,2)}, v16 offset:{32*tt+512}")
    k.label(rd)
    k("v_lshlrev_b32 v17, 4, v1")
    for tt in range(4):
        k(f"s_waitcnt lgkmcnt({6-2*tt})\nbuffer_store_dwordx4 {vr(20+4*tt,4)}, v17, {sr(WSR,4)}, {s(64+tt)} offen {HO}")
    k.label(done)

def sync01_consumer(k):
    k("s_waitcnt vmcnt(0)\ns_barrier")
    probe(k, "p0", 4)
    nw, n1 = k.lab("s01w"), k.lab("s01w1")
    k(f"s_cmp_lg_u32 {s(sw)}, 1\ns_cbranch_scc1 {n1}\ns_cmp_ge_u32 s2, 80\ns_cbranch_scc1 {n1}")
    k(f"s_lshr_b32 s53, s2, 4\ns_add_u32 s52, s53, {C_M}")
    arrive(k, "s52", 16, G_M, 8, word="s53")
    k.label(n1)
    k(f"s_cmp_lg_u32 {s(sw)}, 0\ns_cbranch_scc1 {nw}")
    probe(k, "p0", 3)
    k(f"s_lshr_b32 s53, s2, 4\ns_add_u32 s52, s53, {C_X}\ns_add_u32 s53, s53, {G_X}")
    arrive(k, "s52", 16, "s53")
    if os.environ.get("SPARE", "0") == "1":
        nsp = k.lab("nsp0")
        k(f"s_cmp_lg_u32 {s(scb)}, 15\ns_cbranch_scc1 {nsp}")
        spare_prefetch(k)
        k(f"s_branch {nw}")
        k.label(nsp)
    k(f"s_add_u32 s52, {s(sXCD)}, {G_M}\ns_lshl_b32 s52, s52, 8\ns_add_u32 s54, {s(srb)}, {G_X}\ns_lshl_b32 s54, s54, 8")
    k("v_lshlrev_b32 v5, 2, v1\nv_add_u32 v5, s52, v5\nv_mov_b32 v7, s54\nv_cmp_gt_u32 vcc, 5, v1\nv_cndmask_b32 v5, v7, v5, vcc\nv_mov_b32 v6, 1")
    if not os.environ.get("NOPOLL01"): poll(k, 5, 6)
    k.label(nw)
    k("s_barrier")

CL = 224
def coef_load(k):
    k(f"v_lshlrev_b32 v9, 4, v0\nv_and_b32 v15, 15, v1\nv_lshlrev_b32 v15, 4, v15\ns_lshl_b32 s55, {s(sw)}, 8\ns_add_u32 s55, s55, 4096\nv_add_u32 v15, s55, v15")
    for ks in range(4):
        k(f"s_mov_b32 s52, {WS['MODP'] + ks*5120}\nbuffer_load_dwordx4 {vr(CL+4*ks,4)}, v9, {sr(WSR,4)}, s52 offen {HL}\nbuffer_load_dwordx4 {vr(CL+16+4*ks,4)}, v15, {sr(WSR,4)}, s52 offen {HL}")
def coef_prep(k, later):
    k(f"s_waitcnt vmcnt({later})")
    k("v_cmp_le_u32 vcc, 160, v0\nv_mov_b32 v6, 0\nv_cndmask_b32_e64 v6, v6, 1.0, vcc")
    for b in (CL, CL + 16):
        for j in range(4):
            k(f"v_add_f32 {v(b+j)}, {v(b+j)}, {v(b+4+j)}\nv_add_f32 {v(b+8+j)}, {v(b+8+j)}, {v(b+12+j)}")
        for j in range(4):
            k(f"v_add_f32 {v(b+j)}, {v(b+j)}, {v(b+8+j)}")
    for j in range(4): k(f"v_add_f32 {v(CL+j)}, {v(CL+j)}, v6\nv_add_f32 {v(CL+16+j)}, 1.0, {v(CL+16+j)}")
    k(f"v_cvt_pk_f16_f32 {v(CL+4)}, {v(CL)}, {v(CL+1)}\nv_cvt_pk_f16_f32 {v(CL+5)}, {v(CL+2)}, {v(CL+3)}\nv_lshlrev_b32 v7, 3, v0\nv_add_u32 v7, {COEF}, v7\nds_write_b64 v7, {vr(CL+4,2)}")
    k(f"v_cvt_pk_f16_f32 {v(CL+20)}, {v(CL+16)}, {v(CL+17)}\nv_cvt_pk_f16_f32 {v(CL+21)}, {v(CL+18)}, {v(CL+19)}\nv_lshrrev_b32 v7, 1, v15\nv_add_u32 v7, {COEF}, v7\nds_write_b64 v7, {vr(CL+20,2)}")

ACC, TR, WB, CB, HF, HB, AW, OFF = 16, 80, 144, 176, 192, 200, 208, 220
NR, PRE, DEPTH = 16, int(os.environ.get('PRE1', 4)), int(os.environ.get('DEP1', 10))

def qkv_consumer(k, isv):
    k("v_and_b32 v3, 31, v1\nv_lshrrev_b32 v4, 5, v1\nv_lshlrev_b32 v5, 4, v1")
    k(f"s_lshl_b32 s53, {s(srb)}, 2\ns_add_u32 s53, s53, {s(sw)}")
    k(f"s_mul_i32 s54, s53, 40960\ns_add_u32 s54, s54, {WS['XN']}")
    vq = Q(k, "vmcnt"); L = Q(k, "lgkmcnt")
    coef_load(k)
    for j in range(7): vq.add(("coef", j))
    vq.add("coef")
    def tload(st):
        k(f"s_add_u32 s55, s54, {st*1024}\nbuffer_load_dwordx4 {vr(TR+4*(st%NR),4)}, v5, {sr(WSR,4)}, s55 offen {HL}"); vq.add(("t", st))
    for st in range(PRE): tload(st)
    nxt = [PRE]
    for j in range(64): k(f"v_mov_b32 {v(ACC+j)}, 0")
    k("""v_and_b32 v8, 15, v1
    v_lshrrev_b32 v8, 2, v8
    v_lshl_add_u32 v9, v4, 3, v8
    v_lshlrev_b32 v9, 8, v9
    v_bfe_u32 v10, v1, 4, 1
    v_lshl_add_u32 v9, v10, 5, v9
    v_and_b32 v10, 3, v1
    v_lshl_add_u32 v9, v10, 3, v9""")
    for t in range(4):
        k(f"v_xor_b32 v10, {t}, v8\nv_lshl_add_u32 {v(AW+t)}, v10, 6, v9")
        k(f"v_add_u32 {v(AW+4+t)}, 0x10000, {v(AW+t)}\nv_add_u32 {v(AW+8+t)}, 0x20000, {v(AW+t)}")
    k(f"v_lshlrev_b32 v14, 4, v4\nv_add_u32 v14, {COEF}, v14")
    if isv:
        k(f"s_lshl_b32 s56, {s(scq)}, 7\nv_add_u32 v6, s56, v3\ns_movk_i32 s56, 3277\ns_mov_b32 s57, 81920\nv_mul_u32_u24 v7, 0x140, v4")
        for t in range(4):
            k(f"""v_add_u32 v9, {32*t}, v6
            v_mul_u32_u24 v10, s56, v9
            v_lshrrev_b32 v10, 16, v10
            v_mad_i32_i24 v9, v10, -16, v9
            v_mad_i32_i24 v9, v10, -4, v9
            v_lshl_add_u32 v9, v9, 4, v7
            v_mad_u32_u24 {v(OFF+t)}, v10, s57, v9""")
        k(f"s_lshl_b32 s58, s53, 1\ns_mul_i32 s58, s58, 640\ns_add_u32 s58, s58, {WS['V']}")
    else:
        k(f"s_mul_i32 s58, s53, 40960\ns_lshl_b32 s56, {s(scq)}, 13\ns_add_u32 s58, s58, s56\ns_mov_b32 s56, {WS['Q']}\ns_mov_b32 s60, {hex(f32bits(QSCALE))}")
        k(f"s_cmp_lt_u32 {s(scb)}, 5\ns_cselect_b32 s56, s56, {WS['KK']}\ns_cselect_b32 s60, s60, 1.0\ns_add_u32 s58, s58, s56\ns_mov_b32 s61, 0")
    coef_prep(k, vq.after("coef"))
    k("s_waitcnt lgkmcnt(0)\ns_barrier")
    k.stamp(3)
    def wread(st, ts=range(4)):
        for t in ts:
            for u in range(2):
                a_ = (st % RING) * 4096 + u * 1024
                k(f"ds_read_b64_tr_b16 {vr(WB+16*(st%2)+4*t+2*u,2)}, {v(AW+4*(a_>>16)+t)} offset:{a_ & 0xffff}")
                L.add(("w", st, t, u))
    def cread(st, which=(0, 1)):
        for x in which:
            k(f"ds_read_b128 {vr(CB+8*(st%2)+4*x,4)}, v14 offset:{(1280 if x == 0 else 0) + 32*st}"); L.add(("c", st, x))
    def mix(st, j0, j1):
        T = TR + 4 * (st % NR); C1 = CB + 8 * (st % 2); C0 = C1 + 4
        for j in range(j0, j1):
            o = j & 1
            k(f"v_fma_mix_f32 {v(HF+j)}, {v(T+j//2)}, {v(C1+j//2)}, {v(C0+j//2)} op_sel:[{o},{o},{o}] op_sel_hi:[1,1,1]")
    def cvt(st, ds=range(4)):
        for d in ds: k(f"v_cvt_pk_bf16_f32 {v(HB+4*(st%2)+d)}, {v(HF+2*d)}, {v(HF+2*d+1)}")
    def mfma(st, t):
        L.wait(("w", st, t, 1))
        w = vr(WB + 16 * (st % 2) + 4 * t, 4); h = vr(HB + 4 * (st % 2), 4); ac = vr(ACC + 16 * t, 16)
        k(f"v_mfma_f32_32x32x16_bf16 {ac}, {h}, {w}, {ac}" if isv else f"v_mfma_f32_32x32x16_bf16 {ac}, {w}, {h}, {ac}")
    cread(0); wread(0); cread(1)
    L.wait(("c", 0, 1)); vq.wait(("t", 0)); mix(0, 0, 8); cvt(0)
    for st in range(40):
        last = st == 39; more = st + 2 < 40
        if st in (1, 8, 16, 24, 32): probe(k, "p1", (1, 8, 16, 24, 32).index(st))
        mfma(st, 0)
        if st in (5, 34): k("s_barrier")
        if not last:
            wread(st + 1, [0])
            if more: cread(st + 2, [0])
            L.wait(("c", st + 1, 1)); vq.wait(("t", st + 1))
            mix(st + 1, 0, 3)
        mfma(st, 1)
        if not last:
            wread(st + 1, [1])
            if more: cread(st + 2, [1])
            mix(st + 1, 3, 6)
        mfma(st, 2)
        if not last:
            wread(st + 1, [2]); mix(st + 1, 6, 8); cvt(st + 1, [0, 1])
        mfma(st, 3)
        if not last:
            wread(st + 1, [3]); cvt(st + 1, [2, 3])
            n = 0
            while nxt[0] < 40 and nxt[0] <= st + 1 + DEPTH and nxt[0] - NR <= st + 1 and n < 2:
                tload(nxt[0]); nxt[0] += 1; n += 1
    k.stamp(4)
    if not isv:
        for t in range(4):
            r = ACC + 16 * t; d = TR + 8 * t
            for j in range(0, 16, 2): k(f"v_pk_mul_f32 {vr(r+j,2)}, {vr(r+j,2)}, s[60:61] op_sel_hi:[1,0]")
            for j in range(8): k(f"v_cvt_pk_bf16_f32 {v(d+j)}, {v(r+2*j)}, {v(r+2*j+1)}")
            for j in range(2):
                b = d + 4 * j
                k(f"v_permlane32_swap_b32 {v(b)}, {v(b+2)}\nv_permlane32_swap_b32 {v(b+1)}, {v(b+3)}")
                k(f"buffer_store_dwordx4 {vr(b,4)}, v5, {sr(WSR,4)}, s58 offen offset:{1024*j} {HO}")
            k("s_add_u32 s58, s58, 2048")
    else:
        for t in range(4):
            for g in range(2):
                r = ACC + 16 * t + 8 * g; d = TR + 4 * (2 * t + g)
                for j in range(4): k(f"v_cvt_pk_bf16_f32 {v(d+j)}, {v(r+2*j)}, {v(r+2*j+1)}")
                k(f"buffer_store_dwordx4 {vr(d,4)}, {v(OFF+t)}, {sr(WSR,4)}, s58 offen offset:{640*g} {HO}")

def spare_prefetch(k):
    k(f"v_lshlrev_b32 v146, 7, v1")
    dst = 64
    for ptr, nbytes in ((P_WG, 640 * 3072), (P_WU, 640 * 3072), (P_WO, 640 * 1280), (P_WMOD, 640 * 7680), (P_WD, 1536 * 1280)):
        srd(k, RB, ptr, nbytes)
        for j in range((nbytes // 8192 + 15) // 16):
            k(f"s_add_u32 s50, {s(srb)}, {16*j}\ns_lshl_b32 s50, s50, 13\nbuffer_load_dword {v(dst)}, v146, {sr(RB,4)}, s50 offen")
            dst += 1
    assert dst <= 256

def consumer01(k, after):
    mod_job(k)
    k.stamp(1)
    sync01_consumer(k)
    k.stamp(2)
    idle, lv = k.lab("qidle"), k.lab("qv")
    k(f"s_cmp_eq_u32 {s(scb)}, 15\ns_cbranch_scc1 {idle}")
    k(f"s_cmp_ge_u32 {s(scb)}, 10\ns_cbranch_scc1 {lv}")
    qkv_consumer(k, False)
    k(f"s_branch {after}")
    k.label(lv)
    qkv_consumer(k, True)
    k(f"s_branch {after}")
    k.label(idle)
    k("s_barrier\ns_barrier\ns_barrier")
    k(f"s_branch {after}")

def producer01(k, after):
    lnw, joined, notile, nt2 = k.lab("lnw"), k.lab("pj"), k.lab("nt"), k.lab("nt2")
    k(f"s_cmp_lt_u32 {s(sw)}, 6\ns_cbranch_scc1 {lnw}")
    w7 = k.lab("w7")
    k(f"s_cmp_eq_u32 {s(sw)}, 7\ns_cbranch_scc1 {w7}")
    line_prefetch(k, P_WQKV, 640 * 3840, 2, 150)
    code_prefetch(k)
    k("s_waitcnt vmcnt(0)")
    wait_ready(k)
    k(f"s_branch {joined}")
    k.label(w7)
    B2 = os.environ.get("BATCH2", "0")
    if B2 in ("1", "2"):
        if B2 == "1":
            line_prefetch(k, P_WO, 640 * 1280, 1, 150)
            k("s_waitcnt vmcnt(0)")
        else:
            k("s_sleep 8")
            line_prefetch(k, P_WO, 640 * 1280, 1, 150)
        line_prefetch(k, P_WG, 640 * 3072, 1, 154)
        line_prefetch(k, P_WU, 640 * 3072, 1, 155)
        line_prefetch(k, P_WMOD, 640 * 7680, 3, 151)
        line_prefetch(k, P_WD, 1536 * 1280, 1, 156)
    k(f"s_branch {joined}")
    k.label(lnw)
    ln_job(k)
    probe(k, "p0", 2)
    k("s_waitcnt vmcnt(0)")
    probe(k, "p0", 3)
    k.label(joined)
    k.stamp(1)
    k("s_barrier")
    k(f"s_cmp_eq_u32 {s(scb)}, 15\ns_cbranch_scc1 {nt2}")
    wtile_setup(k)
    k(f"s_sub_u32 s59, {s(sw)}, 4")
    wtile_issue_rot(k, 35, 4)
    k.label(nt2)
    k("s_waitcnt vmcnt(0)")
    probe(k, "p0", 4)
    k("s_barrier")
    k.stamp(2)
    k("s_barrier")
    k("s_barrier")
    k(f"s_cmp_eq_u32 {s(scb)}, 15\ns_cbranch_scc1 {notile}")
    wtile_setup(k)
    k(f"s_sub_u32 s59, {s(sw)}, 4\ns_mul_i32 s59, s59, 5\ns_add_u32 s59, s59, 140")
    wtile_issue(k, 0, 5, 1, wrap=True)
    k.label(notile)
    k("s_waitcnt vmcnt(0)\ns_barrier")
    k.stamp(4)
    k(f"s_branch {after}")
```

```python
from mcommon import *
import side

SLOT = 22528
R = 4
CONST = R * SLOT
FLAG = CONST + 5120
XCH = 0
shead, sqb, sgrp = 4, 5, 6
sG, sSt, sL, sNext, sLoad, sCh, sIt, sflag = 52, 55, 58, 61, 62, 63, 3, 15

QMA, QRA, QMB, QRB = 16, 20, 22, 26
SA, SB = 28, 60
PA, PB, OA, OB, MNA, MNB = 92, 100, 108, 124, 140, 156
KM, KR, VV = 172, 180, 184
vKm0, vKr0, vV0, vVm, vKm, vKr, vV, vD = 200, 201, 202, 203, 204, 205, 206, 207
MA, MB = 210, 211
FIN = 212
vCD = 15

def ids(k):
    k(f"""s_and_b32 s48, {s(sIDX)}, 3
    s_lshl_b32 {s(shead)}, {s(sXCD)}, 2
    s_add_u32 {s(shead)}, {s(shead)}, s48
    s_lshr_b32 {s(sqb)}, {s(sIDX)}, 2
    s_lshr_b32 {s(sgrp)}, {s(sw)}, 2""")

def setup(k):
    ids(k)
    k(f"s_mul_i32 s48, {s(shead)}, 5\ns_lshr_b32 s48, s48, 1\ns_lshl_b32 s7, s48, 9")
    k("v_lshlrev_b32 v2, 4, v1")
    for i in range(3):
        k(f"s_add_u32 s48, {s(sw)}, {8*i}")
        if i == 2: k("s_cmp_ge_u32 s48, 22\ns_cselect_b32 s49, 2, 0\ns_sub_u32 s48, s48, s49")
        k(f"s_lshl_b32 {s(sL+i)}, s48, 10")
        k(f"""v_add_u32 v3, {s(sL+i)}, v2
        v_lshrrev_b32 v4, 9, v3
        v_mul_u32_u24 v4, 43, v4
        v_lshrrev_b32 v4, 7, v4
        v_mul_u32_u24 v5, 0x600, v4
        v_sub_u32 v5, v3, v5
        s_mov_b32 s49, 40960
        v_mad_u32_u24 v5, v4, s49, v5
        v_subrev_u32 v3, 0x3000, v3
        s_cmp_lt_u32 s48, 12
        s_cselect_b64 vcc, -1, 0
        v_cndmask_b32 {v(vD+i)}, v3, v5, vcc""")
        k(f"s_mul_i32 s49, {s(shead)}, 81920\ns_add_u32 s49, s49, {WS['V']}\ns_add_u32 s50, s7, {WS['KK']}")
        k(f"s_cmp_lt_u32 s48, 12\ns_cselect_b32 {s(sG+i)}, s50, s49\ns_mov_b32 s50, {8*40960}\ns_cselect_b32 {s(sSt+i)}, s50, 10240")
    k(f"""v_and_b32 v3, 31, v1
    v_lshrrev_b32 v4, 5, v1
    s_mul_i32 s48, {s(sgrp)}, 6144
    v_add_u32 {v(vKm0)}, s48, v2
    v_lshlrev_b32 v5, 4, v3
    v_lshl_add_u32 v5, v4, 3, v5
    s_add_u32 s48, s48, 1024
    v_add_u32 {v(vKr0)}, s48, v5
    v_mul_u32_u24 v5, 0x140, v4
    v_lshl_add_u32 v5, v3, 4, v5
    s_mul_i32 s48, {s(sgrp)}, 5120
    v_add_u32 v5, s48, v5
    v_mov_b32 v6, {CONST - 12288}
    v_mov_b32 v7, {CONST + 16 - 12288}
    v_cmp_lt_u32 vcc, 20, v3
    v_cndmask_b32 v6, v6, v7, vcc
    v_cmp_le_u32 vcc, 20, v3
    v_cndmask_b32 {v(vV0)}, v5, v6, vcc
    v_mov_b32 v7, 1
    v_cndmask_b32_e64 {v(vVm)}, v7, 0, vcc""")
    for j in range(16): k(f"v_mov_b32 {v(MNA+j)}, 0\nv_mov_b32 {v(MNB+j)}, 0")
    k(f"s_mov_b32 {s(sflag)}, 0")

def write_consts(k):
    k(f"""v_mov_b32 v8, 0x3f803f80
    v_mov_b32 v9, 0x3f803f80
    v_mov_b32 v10, 0x3f803f80
    v_mov_b32 v11, 0x3f803f80
    v_mov_b32 v12, 0
    v_mov_b32 v13, 0
    v_mov_b32 v14, 0
    v_mov_b32 v15, 0
    v_min_u32 v5, 7, v1
    v_mul_u32_u24 v5, 0x280, v5
    v_add_u32 v5, {CONST}, v5
    ds_write_b128 v5, v[8:11]
    ds_write_b128 v5, v[12:15] offset:16
    v_mov_b32 v5, {FLAG}
    ds_write_b32 v5, v12
    s_waitcnt lgkmcnt(0)""")

def dep_counters(k):
    k(f"""s_lshr_b32 s48, s7, 9
    s_lshr_b32 s49, s48, 4
    s_add_u32 s50, s48, 2
    s_lshr_b32 s50, s50, 4
    s_mul_i32 s51, {s(shead)}, 20
    s_add_u32 s52, s51, 19
    s_lshr_b32 s51, s51, 7
    s_lshr_b32 s52, s52, 7
    v_mov_b32 v5, s49
    v_mov_b32 v6, 1""")
    for lane, (reg, addk) in enumerate([(50, 0), (49, 5), (50, 5), (51, 10), (52, 10)], start=1):
        k(f"s_add_u32 s53, s{reg}, {addk}\nv_mov_b32 v7, s53\nv_cmp_eq_u32 vcc, {lane}, v1\nv_cndmask_b32 v5, v5, v7, vcc")
    k(f"v_add_u32 v5, {G_Q}, v5\nv_lshlrev_b32 v5, 8, v5")

def dma(k, i, sslot):
    if "nodma" in os.environ.get("AV", "") and getattr(k, "inloop", False): return
    k(f"s_add_u32 m0, {s(sL+i)}, {s(sslot)}\ns_nop 0\nbuffer_load_dwordx4 {v(vD+i)}, {sr(WSR,4)}, {s(sG+i)} offen {HL} lds")

def load_q(k):
    k(f"""s_lshl_b32 s48, {s(sqb)}, 3
    s_and_b32 s49, {s(sw)}, 3
    s_lshl_b32 s49, s49, 1
    s_add_u32 s48, s48, s49
    s_mul_i32 s48, s48, 40960
    s_add_u32 s48, s48, s7
    s_add_u32 s48, s48, {WS['Q']}
    s_add_u32 s49, s48, 40960
    v_lshlrev_b32 v2, 4, v1
    v_and_b32 v3, 31, v1
    v_lshrrev_b32 v4, 5, v1
    v_lshlrev_b32 v5, 4, v3
    v_lshl_add_u32 v5, v4, 3, v5""")
    k(f"buffer_load_dwordx4 {vr(QMA,4)}, v2, {sr(WSR,4)}, s48 offen {HL}\nbuffer_load_dwordx2 {vr(QRA,2)}, v5, {sr(WSR,4)}, s48 offen offset:1024 {HL}")
    k(f"buffer_load_dwordx4 {vr(QMB,4)}, v2, {sr(WSR,4)}, s49 offen {HL}\nbuffer_load_dwordx2 {vr(QRB,2)}, v5, {sr(WSR,4)}, s49 offen offset:1024 {HL}")
def mask_q(k):
    odd, done = k.lab("qodd"), k.lab("qdone")
    k(f"s_bitcmp1_b32 {s(shead)}, 0\ns_cbranch_scc1 {odd}")
    k("v_cmp_le_u32 vcc, 32, v1")
    for r in (QRA, QRA + 1, QRB, QRB + 1): k(f"v_cndmask_b32_e64 {v(r)}, {v(r)}, 0, vcc")
    k(f"s_branch {done}")
    k.label(odd)
    k("v_cmp_gt_u32 vcc, 32, v1")
    for r in (QMA, QMA + 1, QMB, QMB + 1): k(f"v_cndmask_b32_e64 {v(r)}, {v(r)}, 0, vcc")
    k.label(done)

def readK(k, tau, buf):
    k(f"ds_read_b128 {vr(KM+4*buf,4)}, {v(vKm)} offset:{1536*tau}\nds_read_b64 {vr(KR+2*buf,2)}, {v(vKr)} offset:{1536*tau}")
def readV(k, tau, buf):
    for g in range(2): k(f"ds_read_b128 {vr(VV+8*buf+4*g,4)}, {v(vV)} offset:{12288 + 640*(2*tau+g)}")
def S1(k, X, b, kb):
    Sx, Qm, MN = (SA, QMA, MNA) if X == 0 else (SB, QMB, MNB)
    k(f"v_mfma_f32_32x32x16_bf16 {vr(Sx+16*b,16)}, {vr(KM+4*kb,4)}, {vr(Qm,4)}, {vr(MN,16)}")
def S2(k, X, b, kb):
    Sx, Qr = (SA, QRA) if X == 0 else (SB, QRB)
    k(f"v_mfma_f32_32x32x8_bf16 {vr(Sx+16*b,16)}, {vr(KR+2*kb,2)}, {vr(Qr,2)}, {vr(Sx+16*b,16)}")
def PV(k, X, g, vb):
    O, P = (OA, PA) if X == 0 else (OB, PB)
    k(f"v_mfma_f32_32x32x16_bf16 {vr(O,16)}, {vr(VV+8*vb+4*g,4)}, {vr(P+4*g,4)}, {vr(O,16)}")
def exps(k, X, b, a0, a1):
    Sx = (SA if X == 0 else SB) + 16 * b
    for j in range(a0, a1): k(f"v_exp_f32 {v(Sx+j)}, {v(Sx+j)}")
def cvts(k, X, b, a0, a1):
    Sx = (SA if X == 0 else SB) + 16 * b; P = PA if X == 0 else PB
    for j in range(a0, a1): k(f"v_cvt_pk_bf16_f32 {v(P+j)}, {v(Sx+2*j)}, {v(Sx+2*j+1)}")

def stream_start(k, with_q=False):
    k(f"s_mul_i32 s48, {s(shead)}, 81920\ns_add_u32 s49, s48, {WS['V']}\ns_add_u32 s50, s7, {WS['KK']}")
    for i in range(3):
        k(f"s_cmp_eq_u32 {s(sSt+i)}, 10240\ns_cselect_b32 {s(sG+i)}, s49, s50")
    k(f"s_mov_b32 {s(sLoad)}, 0")
    for i in range(3): dma(k, i, sLoad)
    if with_q:
        first = k.lab("hasq")
        k(f"s_cmp_lg_u32 {s(sflag)}, 0\ns_cbranch_scc1 {first}")
        load_q(k)
        k.label(first)
    for i in range(3): k(f"s_add_u32 {s(sG+i)}, {s(sG+i)}, {s(sSt+i)}")
    k(f"s_mov_b32 {s(sLoad)}, {SLOT}")
    for i in range(3): dma(k, i, sLoad)
    k("s_waitcnt vmcnt(3)")
    if with_q:
        first = k.lab("hasq")
        k(f"s_cmp_lg_u32 {s(sflag)}, 0\ns_cbranch_scc1 {first}")
        mask_q(k)
        k.label(first)
    k(f"v_mov_b32 {v(vKm)}, {v(vKm0)}\nv_mov_b32 {v(vKr)}, {v(vKr0)}\nv_mov_b32 {v(vV)}, {v(vV0)}")
    k("s_barrier")
    for i in range(3): k(f"s_add_u32 {s(sG+i)}, {s(sG+i)}, {s(sSt+i)}")
    k(f"s_mov_b32 {s(sLoad)}, {2*SLOT}\ns_mov_b32 {s(sNext)}, {SLOT}\ns_mov_b32 {s(sCh)}, 2")
    dma(k, 0, sLoad); dma(k, 1, sLoad)

def advance(k):
    k(f"v_add_u32 {v(vKm)}, {s(sNext)}, {v(vKm0)}\nv_add_u32 {v(vKr)}, {s(sNext)}, {v(vKr0)}")
    k(f"s_add_u32 {s(sCh)}, {s(sCh)}, 1\ns_cmp_le_u32 {s(sCh)}, 7")
    for i in range(3): k(f"s_cselect_b32 s48, {s(sSt+i)}, 0\ns_add_u32 {s(sG+i)}, {s(sG+i)}, s48\ns_cmp_le_u32 {s(sCh)}, 7")
    k(f"s_add_u32 {s(sLoad)}, {s(sLoad)}, {SLOT}\ns_cmp_ge_u32 {s(sLoad)}, {R*SLOT}\ns_cselect_b32 s48, {R*SLOT}, 0\ns_sub_u32 {s(sLoad)}, {s(sLoad)}, s48")

def next_slot(k):
    k(f"s_add_u32 {s(sNext)}, {s(sNext)}, {SLOT}\ns_cmp_ge_u32 {s(sNext)}, {R*SLOT}\ns_cselect_b32 s48, {R*SLOT}, 0\ns_sub_u32 {s(sNext)}, {s(sNext)}, s48")

sEv = 98
def cd_step(k, step):
    done = k.lab("cds")
    k(f"s_cmp_lg_u32 {s(sw)}, 0\ns_cbranch_scc1 {done}")
    if step == 1: k("s_waitcnt vmcnt(2)")
    if step == 2: k("s_waitcnt vmcnt(1)")
    if step > 0:
        k(f"v_readfirstlane_b32 s48, {v(vCD)}\ns_cmp_lg_u32 s48, 15\ns_cbranch_scc1 {done + 'n'}")
    if step == 0: k(f"s_and_b32 s48, s2, 15\ns_add_u32 s48, s48, {C_D}\ns_lshl_b32 s48, s48, 8\ns_add_u32 s48, s48, {WS['CNT']}")
    else: k(f"s_mov_b32 s48, {WS['CNT'] + (R_D if step == 1 else G_D)*CSTRIDE}")
    k(f"v_mov_b32 v2, 0\nv_mov_b32 {v(vCD)}, 1\ns_mov_b64 exec, 1")
    if step < 2: k(f"buffer_atomic_add {v(vCD)}, v2, {sr(WSR,4)}, s48 offen sc0 sc1")
    else: k(f"buffer_store_dword {v(vCD)}, v2, {sr(WSR,4)}, s48 offen sc0 sc1")
    k(f"s_mov_b64 exec, -1\ns_branch {done}")
    if step > 0:
        k.label(done + "n")
        k(f"v_mov_b32 {v(vCD)}, 0")
    k.label(done)

def main_pass(k):
    stream_start(k, True)
    for j in range(16): k(f"v_mov_b32 {v(OA+j)}, 0\nv_mov_b32 {v(OB+j)}, 0")
    for j in range(4): k(f"v_mov_b32 {v(PB+4+j)}, 0\nv_mov_b32 {v(VV+12+j)}, 0")
    readK(k, 0, 0); readV(k, 0, 0); readK(k, 1, 1)
    k("s_waitcnt lgkmcnt(4)")
    S1(k, 0, 0, 0); S1(k, 1, 0, 0); S2(k, 0, 0, 0); S2(k, 1, 0, 0)
    k.stamp(6)
    k(f"s_mov_b32 {s(sIt)}, 0")
    k(f"s_cmp_eq_u32 {s(sflag)}, 0\ns_cselect_b32 {s(sEv)}, 1, 0")
    loop = k.lab("aloop")
    events = []
    def event(table):
        go, back = k.lab("ev"), k.lab("evb")
        mask = sum(1 << it for it in table)
        k(f"s_and_b32 s48, {s(sEv)}, {mask}\ns_cbranch_scc1 {go}")
        k.label(back)
        def body():
            items = list(table.items())
            for n, (it, fn) in enumerate(items):
                if n < len(items) - 1:
                    nxt = k.lab("evn")
                    k(f"s_cmp_lg_u32 {s(sIt)}, {it}\ns_cbranch_scc1 {nxt}")
                    fn(); k(f"s_branch {back}")
                    k.label(nxt)
                else:
                    fn()
        events.append((go, back, body))
    k.label(loop)
    k.inloop = True
    for j in range(4):
        b, nb = j % 2, (j + 1) % 2
        AV = os.environ.get("AV", "")
        if "noprio" not in AV: k(f"s_setprio {3 - ((j - 2) % 4)}")
        k("s_waitcnt lgkmcnt(0)")
        if j == 2:
            lax, wd = k.lab("lax"), k.lab("laxd")
            k(f"s_and_b32 s48, {s(sEv)}, 3\ns_cbranch_scc1 {lax}\ns_waitcnt vmcnt(3)")
            k.label(wd)
            events.append((lax, wd, lambda: k(f"s_waitcnt vmcnt({3 + side.NSIDE})")))
            k("s_barrier")
            event({5: lambda: cd_step(k, 0), 6: lambda: cd_step(k, 2)})
            advance(k); dma(k, 0, sLoad)
        if j == 3:
            k(f"v_mad_u32_u24 {v(vV)}, {v(vVm)}, {s(sNext)}, {v(vV0)}")
            dma(k, 1, sLoad); next_slot(k)
            event({2: lambda: side.issue(k), 3: lambda: side.tr_read(k)})
        if j == 0:
            event({4: lambda: side.stores(k), 6: lambda: cd_step(k, 1)})
            dma(k, 2, sLoad)
        if j == 1:
            event({0: lambda: side.warm(k), 3: lambda: side.mod_finish(k)})
        S1(k, 0, nb, nb); readK(k, (j + 2) % 4, b); exps(k, 0, b, 0, 4)
        PV(k, 1, 1, nb); exps(k, 0, b, 4, 8); cvts(k, 0, b, 0, 4)
        S2(k, 0, nb, nb); readV(k, (j + 1) % 4, nb); exps(k, 0, b, 8, 12)
        PV(k, 0, 0, b); exps(k, 0, b, 12, 16); cvts(k, 0, b, 4, 8)
        S1(k, 1, nb, nb); exps(k, 1, b, 0, 4)
        PV(k, 0, 1, b); exps(k, 1, b, 4, 8); cvts(k, 1, b, 0, 4)
        S2(k, 1, nb, nb); exps(k, 1, b, 8, 12)
        PV(k, 1, 0, b); exps(k, 1, b, 12, 16); cvts(k, 1, b, 4, 8)
    k.inloop = False
    k(f"s_lshl_b32 {s(sEv)}, {s(sEv)}, 1\ns_add_u32 {s(sIt)}, {s(sIt)}, 1\ns_cmp_lt_u32 {s(sIt)}, 8\ns_cbranch_scc1 {loop}")
    over = k.lab("evover")
    k(f"s_branch {over}")
    for go, back, fn in events:
        k.label(go); fn(); k(f"s_branch {back}")
    k.label(over)
    PV(k, 1, 1, 1)
    k("s_setprio 0\ns_waitcnt vmcnt(0) lgkmcnt(0)\ns_barrier")

def max_pass(k):
    for j in range(16): k(f"v_mov_b32 {v(MNA+j)}, 0\nv_mov_b32 {v(MNB+j)}, 0")
    stream_start(k)
    k(f"v_mov_b32 {v(MA)}, 0xff800000\nv_mov_b32 {v(MB)}, 0xff800000\ns_mov_b32 {s(sIt)}, 0")
    loop = k.lab("mloop")
    k.label(loop)
    dma(k, 2, sLoad)
    for j in range(4):
        readK(k, j, 0)
        k("s_waitcnt lgkmcnt(0)")
        S1(k, 0, 0, 0); S1(k, 1, 0, 0); S2(k, 0, 0, 0); S2(k, 1, 0, 0)
        for a in range(0, 16, 2): k(f"v_max3_f32 {v(MA)}, {v(SA+a)}, {v(SA+a+1)}, {v(MA)}")
        for a in range(0, 16, 2): k(f"v_max3_f32 {v(MB)}, {v(SB+a)}, {v(SB+a+1)}, {v(MB)}")
    k("s_waitcnt vmcnt(3)\ns_barrier")
    advance(k); dma(k, 0, sLoad); dma(k, 1, sLoad); next_slot(k)
    k(f"s_add_u32 {s(sIt)}, {s(sIt)}, 1\ns_cmp_lt_u32 {s(sIt)}, 8\ns_cbranch_scc1 {loop}")
    k("s_waitcnt vmcnt(0) lgkmcnt(0)\ns_barrier")
    for M in (MA, MB):
        k(f"v_mov_b32 v2, {v(M)}\nv_permlane32_swap_b32 v2, {v(M)}\nv_max_f32 {v(M)}, v2, {v(M)}")
    k(f"s_lshl_b32 s48, {s(sw)}, 9\nv_lshlrev_b32 v2, 3, v1\nv_add_u32 v3, s48, v2\nds_write_b64 v3, {vr(MA,2)}\ns_waitcnt lgkmcnt(0)\ns_barrier")
    k(f"s_xor_b32 s48, {s(sw)}, 4\ns_lshl_b32 s48, s48, 9\nv_add_u32 v3, s48, v2\nds_read_b64 v[4:5], v3\ns_waitcnt lgkmcnt(0)")
    k(f"v_max_f32 v4, v4, {v(MA)}\nv_max_f32 v5, v5, {v(MB)}\nv_sub_f32 v4, 0, v4\nv_sub_f32 v5, 0, v5")
    for j in range(16): k(f"v_mov_b32 {v(MNA+j)}, v4\nv_mov_b32 {v(MNB+j)}, v5")
    k("s_barrier")

def merge(k):
    g1, sent, g1b, got = k.lab("mg1"), k.lab("msent"), k.lab("mg1b"), k.lab("mgot")
    k(f"s_mul_i32 s48, {s(sw)}, 3072\nv_lshlrev_b32 v2, 4, v1\nv_add_u32 v3, s48, v2")
    k(f"s_cmp_eq_u32 {s(sgrp)}, 1\ns_cbranch_scc1 {g1}")
    for j in range(3): k(f"ds_write_b128 v3, {vr(OB+4*j,4)} offset:{1024*j}")
    k(f"s_branch {sent}")
    k.label(g1)
    for j in range(3): k(f"ds_write_b128 v3, {vr(OA+4*j,4)} offset:{1024*j}")
    k.label(sent)
    k(f"s_waitcnt lgkmcnt(0)\ns_barrier\ns_xor_b32 s48, {s(sw)}, 4\ns_mul_i32 s48, s48, 3072\nv_add_u32 v3, s48, v2")
    for j in range(3): k(f"ds_read_b128 {vr(FIN+4*j,4)}, v3 offset:{1024*j}")
    k("s_waitcnt lgkmcnt(0)")
    k(f"s_cmp_eq_u32 {s(sgrp)}, 1\ns_cbranch_scc1 {g1b}")
    for j in range(12): k(f"v_add_f32 {v(FIN+j)}, {v(FIN+j)}, {v(OA+j)}")
    k(f"s_branch {got}")
    k.label(g1b)
    for j in range(12): k(f"v_add_f32 {v(FIN+j)}, {v(FIN+j)}, {v(OB+j)}")
    k.label(got)
    k(f"v_mov_b32 v2, {v(FIN+8)}\nv_mov_b32 {v(FIN+12)}, {v(FIN+8)}\nv_permlane32_swap_b32 v2, {v(FIN+12)}")

def attention(k):
    again, fin, good = k.lab("again"), k.lab("fin"), k.lab("good")
    k.label(again)
    main_pass(k)
    k.stamp(7)
    merge(k)
    k(f"s_cmp_lg_u32 {s(sflag)}, 0\ns_cbranch_scc1 {fin}")
    k(f"v_add_f32 v2, |{v(FIN)}|, |{v(FIN+1)}|")
    for j in range(2, 12): k(f"v_add_f32 v2, v2, |{v(FIN+j)}|")
    k(f"""v_mov_b32 v3, {hex(f32bits(2.0**-80))}
    v_mov_b32 v4, {hex(f32bits(2.0**100))}
    v_mov_b32 v5, 0x7f800000
    v_cmp_le_f32 s[48:49], v3, {v(FIN+12)}
    v_cmp_ge_f32 s[50:51], v4, {v(FIN+12)}
    v_cmp_lt_f32 vcc, v2, v5
    s_and_b64 s[48:49], s[48:49], s[50:51]
    s_and_b64 s[48:49], s[48:49], vcc
    s_cmp_eq_u64 s[48:49], exec
    s_cbranch_scc1 {good}""")
    k(f"v_mov_b32 v2, {FLAG}\nv_mov_b32 v3, 1\nds_write_b32 v2, v3")
    k.label(good)
    k(f"s_waitcnt lgkmcnt(0)\ns_barrier\nv_mov_b32 v2, {FLAG}\nds_read_b32 v3, v2\ns_waitcnt lgkmcnt(0)\nv_readfirstlane_b32 s48, v3")
    k(f"s_cmp_eq_u32 s48, 0\ns_cbranch_scc1 {fin}")
    max_pass(k)
    k(f"s_mov_b32 {s(sflag)}, 1\ns_branch {again}")
    k.label(fin)
    k(f"v_rcp_f32 v2, {v(FIN+12)}")
    for j in range(12): k(f"v_mul_f32 {v(FIN+j)}, v2, {v(FIN+j)}")
    for j in range(6): k(f"v_cvt_pk_bf16_f32 {v(PA+j)}, {v(FIN+2*j)}, {v(FIN+2*j+1)}")
    k(f"v_permlane32_swap_b32 {v(PA)}, {v(PA+2)}\nv_permlane32_swap_b32 {v(PA+1)}, {v(PA+3)}")
    k(f"""v_and_b32 v2, 31, v1
    v_lshrrev_b32 v3, 4, v2
    v_mul_u32_u24 v3, 0x5000, v3
    v_and_b32 v4, 15, v2
    v_lshl_add_u32 v3, v4, 4, v3
    v_lshrrev_b32 v5, 5, v1
    v_lshl_add_u32 v5, v5, 8, v3
    s_lshl_b32 s48, {s(sqb)}, 3
    s_and_b32 s49, {s(sw)}, 3
    s_lshl_b32 s49, s49, 1
    s_add_u32 s48, s48, s49
    s_add_u32 s48, s48, {s(sgrp)}
    s_lshl_b32 s48, s48, 1
    s_mul_i32 s48, s48, 0x5000
    s_add_u32 s48, s48, {WS['O']}
    s_lshr_b32 s49, {s(shead)}, 1
    s_mul_i32 s49, s49, 1280
    s_add_u32 s48, s48, s49
    s_and_b32 s50, {s(shead)}, 1
    s_lshl_b32 s51, s50, 9
    s_add_u32 s51, s51, s48
    s_lshl_b32 s50, s50, 3
    s_add_u32 s50, s50, s48
    s_add_u32 s50, s50, 1024""")
    k(f"buffer_store_dwordx4 {vr(PA,4)}, v5, {sr(WSR,4)}, s51 offen {HO}")
    k("v_cmp_gt_u32 vcc, 32, v1\ns_and_saveexec_b64 s[48:49], vcc")
    k(f"buffer_store_dwordx2 {vr(PA+4,2)}, v3, {sr(WSR,4)}, s50 offen {HO}")
    k("s_mov_b64 exec, s[48:49]")
```

```python
from mcommon import *

srb, scb = 4, 5
grb, gfb = 6, 7
WO_L = 49152
VEC3 = WO_L + 102400
GCH, GSLOT = 24576, 6
UBL = GSLOT * GCH
DCH = 20480
DSLOT = [0, 20480, 98304, 118784, 49152, 69632, 139264]
VEC5 = 159744
X1 = 246

def ids(k):
    if os.environ.get("MAP35", "48") == "84":
        k(f"""s_lshr_b32 s48, {s(sXCD)}, 1
        s_lshl_b32 s48, s48, 3
        s_and_b32 s49, {s(sIDX)}, 7
        s_add_u32 {s(srb)}, s48, s49
        s_and_b32 s48, {s(sXCD)}, 1
        s_lshl_b32 s48, s48, 2
        s_lshr_b32 s49, {s(sIDX)}, 3
        s_add_u32 {s(scb)}, s48, s49""")
    else:
        k(f"""s_lshl_b32 s48, {s(sXCD)}, 2
        s_and_b32 s49, {s(sIDX)}, 3
        s_add_u32 {s(srb)}, s48, s49
        s_lshr_b32 {s(scb)}, {s(sIDX)}, 2""")
    k(f"""    s_and_b32 s48, {s(sXCD)}, 1
    s_lshl_b32 s48, s48, 3
    s_and_b32 s49, {s(sIDX)}, 7
    s_add_u32 {s(grb)}, s48, s49
    s_lshr_b32 s48, {s(sXCD)}, 1
    s_lshl_b32 s48, s48, 2
    s_lshr_b32 s49, {s(sIDX)}, 3
    s_add_u32 {s(gfb)}, s48, s49""")

def wo_prefetch(k):
    k(f"s_mul_i32 s52, {s(scb)}, 102400\ns_add_u32 s52, s52, {WS['WO']}\ns_sub_u32 s53, {s(sw)}, 1\ns_lshl_b32 s53, s53, 10\ns_add_u32 s52, s52, s53\ns_add_u32 s53, s53, {WO_L}")
    k(f"v_lshlrev_b32 v9, 4, v1\ns_sub_u32 s54, {s(sw)}, 1")
    loop = k.lab("wop")
    k.label(loop)
    k(f"s_mov_b32 m0, s53\ns_add_u32 s53, s53, 7168\nbuffer_load_dwordx4 v9, {sr(WSR,4)}, s52 offen {HL} lds")
    k(f"s_add_u32 s52, s52, 7168\ns_add_u32 s54, s54, 7\ns_cmp_lt_u32 s54, 100\ns_cbranch_scc1 {loop}")

def vec_load(k, chunks, dst):
    n = len(chunks)
    k("s_movk_i32 s52, 3277\nv_mul_u32_u24 v6, s52, v1\nv_lshrrev_b32 v6, 16, v6\nv_mad_i32_i24 v7, v6, -16, v1\nv_mad_i32_i24 v7, v6, -4, v7")
    k(f"v_mov_b32 v8, {chunks[0][0]*2560}\nv_mov_b32 v10, {'1.0' if chunks[0][1] else '0'}")
    for j in range(1, n):
        k(f"v_cmp_eq_u32 vcc, {j}, v6\nv_mov_b32 v9, {chunks[j][0]*2560}\nv_cndmask_b32 v8, v8, v9, vcc\nv_mov_b32 v9, {'1.0' if chunks[j][1] else '0'}\nv_cndmask_b32 v10, v10, v9, vcc")
    k(f"s_mul_i32 s52, {s(scb)}, 320\ns_add_u32 s52, s52, {WS['MOD']}\nv_lshl_add_u32 v8, v7, 4, v8")
    k(f"buffer_load_dwordx4 v[12:15], v8, {sr(WSR,4)}, s52 offen {HL}\ns_waitcnt vmcnt(0)")
    for j in range(4): k(f"v_add_f32 {v(12+j)}, {v(12+j)}, v10")
    k(f"v_lshlrev_b32 v9, 4, v1\nv_add_u32 v9, {dst}, v9\nv_cmp_gt_u32 vcc, {20*n}, v1\ns_and_saveexec_b64 s[52:53], vcc\nds_write_b128 v9, v[12:15]\ns_mov_b64 exec, s[52:53]\ns_waitcnt lgkmcnt(0)")

UBS = 152576
def ub_job(k):
    skip = k.lab("noub")
    k(f"s_cmp_ge_u32 s2, 240\ns_cbranch_scc1 {skip}")
    k(f"s_sub_u32 s54, {s(sw)}, 4\ns_lshl_b32 s52, s2, 2\ns_add_u32 s52, s52, s54")
    sdiv(k, 53, 52, 10)
    k("s_mul_i32 s55, s53, 10\ns_sub_u32 s52, s52, s55")
    sdiv(k, 55, 53, 6)
    k("s_mul_i32 s56, s55, 6\ns_sub_u32 s56, s53, s56")
    k(f"s_mul_i32 s57, s55, {40*6144}\ns_mul_i32 s58, s52, {4*6144}\ns_add_u32 s57, s57, s58\ns_lshl_b32 s58, s56, 10\ns_add_u32 s57, s57, s58\ns_add_u32 s57, s57, {WS['WGU']}")
    k("v_lshlrev_b32 v9, 4, v1")
    for st in range(4): k(f"buffer_load_dwordx4 {vr(32+4*st,4)}, v9, {sr(WSR,4)}, s57 offen {HL}\ns_add_u32 s57, s57, 6144")
    k(f"""v_and_b32 v3, 31, v1
    v_lshrrev_b32 v4, 5, v1
    v_cmp_eq_u32 vcc, 0, v3
    v_mov_b32 v10, {3*2560}
    v_mov_b32 v6, {4*2560}
    v_cndmask_b32 v10, v10, v6, vcc
    v_lshl_add_u32 v10, v4, 5, v10
    v_mov_b32 v6, 0
    v_cndmask_b32_e64 v6, v6, 1.0, vcc
    s_lshl_b32 s58, s52, 8
    s_add_u32 s58, s58, {WS['MOD']}""")
    for st in range(4):
        k(f"buffer_load_dwordx4 {vr(72+8*st,4)}, v10, {sr(WSR,4)}, s58 offen offset:{64*st} {HL}\nbuffer_load_dwordx4 {vr(76+8*st,4)}, v10, {sr(WSR,4)}, s58 offen offset:{64*st+16} {HL}")
    for j in range(16): k(f"v_mov_b32 {v(16+j)}, 0")
    k("s_waitcnt vmcnt(0)")
    for st in range(4):
        b = 72 + 8 * st
        for j in range(8): k(f"v_add_f32 {v(b+j)}, {v(b+j)}, v6")
        for j in range(4): k(f"v_cvt_pk_bf16_f32 {v(b+j)}, {v(b+2*j)}, {v(b+2*j+1)}")
        k(f"v_mfma_f32_32x32x16_bf16 v[16:31], {vr(32+4*st,4)}, {vr(b,4)}, v[16:31]")
    k(f"s_lshl_b32 s58, s54, 8\ns_add_u32 s58, s58, {UBS}\nv_lshlrev_b32 v8, 4, v4\nv_lshl_add_u32 v8, v3, 7, v8\nv_add_u32 v8, s58, v8")
    k("v_cmp_gt_u32 vcc, 2, v3\ns_and_saveexec_b64 s[60:61], vcc")
    for a_ in range(4): k(f"ds_write_b128 v8, {vr(16+4*a_,4)} offset:{32*a_}")
    k("s_mov_b64 exec, s[60:61]\ns_waitcnt lgkmcnt(0)")
    k("v_lshlrev_b32 v8, 2, v1\nv_add_u32 v9, s58, v8\nds_read_b32 v10, v9")
    k(f"s_mov_b32 s57, {hex(f32bits(-LOG2E))}\ns_cmp_lt_u32 s56, 3\ns_cselect_b32 s57, s57, 1.0\ns_lshl_b32 s58, s53, 8\ns_add_u32 s58, s58, {WS['UB']}")
    k("s_waitcnt lgkmcnt(0)\nv_mul_f32 v10, s57, v10")
    k(f"buffer_atomic_add_f32 v10, v8, {sr(WSR,4)}, s58 offen\ns_waitcnt vmcnt(0)")
    k.label(skip)

ACC, TR, WB = 16, 40, 104
NR, PRE, DEPTH = 16, 6, 10
E = lambda n, d: int(os.environ.get(n, d))
PRE5, DEP5, PRE4, DEP4, AH4 = E('PRE5', 6), E('DEP5', 10), E('PRE4', 6), E('DEP4', 10), E('AH4', 3)

def n640_addr(k):
    k("v_and_b32 v3, 15, v1\nv_lshrrev_b32 v4, 4, v1\nv_lshlrev_b32 v5, 4, v1")
    k(f"s_lshl_b32 s15, {s(srb)}, 2\ns_add_u32 s15, s15, {s(sw)}")
    k(f"s_lshl_b32 s52, s15, 4\nv_add_u32 v6, s52, v3\ns_movk_i32 s52, 1280\nv_mul_u32_u24 v6, s52, v6")
    k(f"s_mul_i32 s52, {s(scb)}, 160\nv_lshl_add_u32 v6, v4, 3, v6\nv_add_u32 v6, s52, v6")
    k("v_add_u32 v8, 0x10000, v5\nv_add_u32 v9, 0x20000, v5")

ROT5 = int(os.environ.get("ROT5", "0"))
def rot5(k, dst):
    k(f"s_lshr_b32 {s(dst)}, {s(sIDX)}, 3\ns_mul_i32 {s(dst)}, {s(dst)}, {ROT5}")

def n640_loop(k, NS, tbase, waddr, barrier_steps, pre_hook=None, PRE=PRE, rot=False, DEPTH=DEPTH):
    vq = Q(k, "vmcnt"); L = Q(k, "lgkmcnt")
    k(f"s_mul_i32 s53, s15, {NS*1024}\ns_add_u32 s53, s53, {WS[tbase]}")
    R = Rot(k, 55, 56, 57, NS, 1024)
    if rot:
        rot5(k, 58); R.setup(53, 58)
    def tload(st):
        if rot: R.addr(54, st)
        else: k(f"s_add_u32 s54, s53, {st*1024}")
        k(f"buffer_load_dwordx4 {vr(TR+4*(st%NR),4)}, v5, {sr(WSR,4)}, s54 offen {HL}"); vq.add(("t", st))
    for st in range(PRE): tload(st)
    if pre_hook: pre_hook(vq)
    nxt = [PRE]
    for j in range(20): k(f"v_mov_b32 {v(ACC+j)}, 0")
    def wread(st, ts=range(5)):
        for t in ts:
            a_ = waddr(st) + 1024 * t
            k(f"ds_read_b128 {vr(WB+20*(st%2)+4*t,4)}, {v([5,8,9][a_ >> 16])} offset:{a_ & 0xffff}"); L.add((st, t))
    wread(0)
    for st in range(NS):
        last = st == NS - 1
        if NS == 48 and st in (1, 8, 20, 32, 40): probe(k, "p5", (1, 8, 20, 32, 40).index(st))
        vq.wait(("t", st))
        for t in range(5):
            L.wait((st, t))
            ac = vr(ACC + 4 * t, 4)
            k(f"v_mfma_f32_16x16x32_bf16 {ac}, {vr(WB+20*(st%2)+4*t,4)}, {vr(TR+4*(st%NR),4)}, {ac}")
            if not last:
                if t == 0 and (st + 1) in barrier_steps: k("s_barrier")
                wread(st + 1, [t])
        n = 0
        while nxt[0] < NS and nxt[0] <= st + DEPTH and nxt[0] - NR <= st and n < 2:
            tload(nxt[0]); nxt[0] += 1; n += 1
    return vq

def wo_consumer(k):
    n640_addr(k)
    srd(k, RA, P_X, 2048 * 1280)
    XR = 144
    def xload(vq):
        for t in range(5):
            k(f"buffer_load_dwordx2 {vr(XR+2*t,2)}, v6, {sr(RA,4)}, 0 offen offset:{32*t}"); vq.add(("x", t))
    vq = n640_loop(k, 20, "O", lambda st: WO_L + st * 5120, (), xload, PRE=14, DEPTH=15)
    k.stamp(9)
    k(f"v_lshlrev_b32 v10, 4, v4\nv_add_u32 v10, {VEC3}, v10")
    G, C1, T = 48, 68, 160
    for t in range(5): k(f"ds_read_b128 {vr(G+4*t,4)}, v10 offset:{64*t}")
    for t in range(5): k(f"ds_read_b128 {vr(C1+4*t,4)}, v10 offset:{320+64*t}")
    for t in range(5):
        for d in range(2):
            k(f"v_lshlrev_b32 {v(T+4*t+2*d)}, 16, {v(XR+2*t+d)}\nv_and_b32 {v(T+4*t+2*d+1)}, 0xffff0000, {v(XR+2*t+d)}")
    k("s_waitcnt lgkmcnt(5)")
    for j in range(20): k(f"v_fmac_f32 {v(T+j)}, {v(G+j)}, {v(ACC+j)}")
    k("s_waitcnt lgkmcnt(0)")
    for j in range(20): k(f"v_mul_f32 {v(C1+j)}, {v(C1+j)}, {v(T+j)}")
    Yp = 48
    for t in range(5): k(f"v_cvt_pk_bf16_f32 {v(Yp+2*t)}, {v(C1+4*t)}, {v(C1+4*t+1)}\nv_cvt_pk_bf16_f32 {v(Yp+2*t+1)}, {v(C1+4*t+2)}, {v(C1+4*t+3)}")
    k(f"v_mov_b32 {v(Yp+10)}, {v(Yp+8)}\nv_mov_b32 {v(Yp+11)}, {v(Yp+9)}")
    k(f"""s_lshr_b32 s52, s15, 1
    s_mul_i32 s52, s52, 40960
    s_mul_i32 s53, {s(scb)}, 5120
    s_add_u32 s52, s52, s53
    s_and_b32 s53, s15, 1
    s_lshl_b32 s53, s53, 8
    s_add_u32 s52, s52, s53
    s_add_u32 s52, s52, {WS['Y']}
    v_and_b32 v11, 1, v4
    v_lshlrev_b32 v11, 10, v11
    v_lshrrev_b32 v12, 1, v4
    v_lshl_add_u32 v11, v12, 9, v11
    v_lshl_add_u32 v11, v3, 4, v11""")
    for pr in range(3):
        b = Yp + 4 * pr
        k(f"v_permlane16_swap_b32 {v(b)}, {v(b+2)}\nv_permlane16_swap_b32 {v(b+1)}, {v(b+3)}")
    for pr in range(2):
        k(f"buffer_store_dwordx4 {vr(Yp+4*pr,4)}, v11, {sr(WSR,4)}, s52 offen offset:{2048*pr} {HO}")
    k("s_add_u32 s52, s52, 4096\nv_and_b32 v12, 1, v4\nv_cmp_eq_u32 vcc, 0, v12\ns_and_saveexec_b64 s[54:55], vcc")
    k(f"buffer_store_dwordx4 {vr(Yp+8,4)}, v11, {sr(WSR,4)}, s52 offen {HO}")
    k("s_mov_b64 exec, s[54:55]")
    for t in range(5): k(f"v_cvt_pk_bf16_f32 {v(X1+2*t)}, {v(T+4*t)}, {v(T+4*t+1)}\nv_cvt_pk_bf16_f32 {v(X1+2*t+1)}, {v(T+4*t+2)}, {v(T+4*t+3)}")
    k(f"v_add_f32 v12, {v(T)}, {v(T+1)}")
    for j in range(2, 20): k(f"v_add_f32 v12, v12, {v(T+j)}")
    red_q(k, 12, 14, 15)
    k(f"v_mul_f32 v14, {hex(f32bits(-1.0/80))}, v12\nv_mov_b32 v13, 0")
    for j in range(20): k(f"v_add_f32 {v(T+j)}, v14, {v(T+j)}\nv_fmac_f32 v13, {v(T+j)}, {v(T+j)}")
    red_q(k, 13, 14, 15)
    k(f"s_lshl_b32 s52, s15, 10\ns_lshl_b32 s53, {s(scb)}, 3\ns_add_u32 s52, s52, s53\ns_add_u32 s52, s52, {WS['STATS']}\nv_lshlrev_b32 v14, 6, v3")
    k("v_cmp_gt_u32 vcc, 16, v1\ns_and_saveexec_b64 s[54:55], vcc")
    k(f"buffer_store_dwordx2 v[12:13], v14, {sr(WSR,4)}, s52 offen {HO}")
    k("s_mov_b64 exec, s[54:55]")

def down_consumer(k):
    n640_addr(k)
    waddr = lambda st: DSLOT[(st // 4) % 7] + (st % 4) * 5120
    n640_loop(k, 48, "HH", waddr, set(range(4, 48, 4)), rot=ROT5 > 0, PRE=PRE5, DEPTH=DEP5)
    k.stamp(17)
    k(f"v_lshlrev_b32 v10, 4, v4\nv_add_u32 v10, {VEC5}, v10")
    G, T = 48, 160
    for t in range(5): k(f"ds_read_b128 {vr(G+4*t,4)}, v10 offset:{64*t}")
    for t in range(5):
        for d in range(2):
            k(f"v_lshlrev_b32 {v(T+4*t+2*d)}, 16, {v(X1+2*t+d)}\nv_and_b32 {v(T+4*t+2*d+1)}, 0xffff0000, {v(X1+2*t+d)}")
    k("s_waitcnt lgkmcnt(0)")
    for j in range(20): k(f"v_fmac_f32 {v(T+j)}, {v(G+j)}, {v(ACC+j)}")
    srd(k, RA, P_OUT, 2048 * 1280)
    for t in range(5):
        k(f"v_cvt_pk_bf16_f32 {v(G+2*t)}, {v(T+4*t)}, {v(T+4*t+1)}\nv_cvt_pk_bf16_f32 {v(G+2*t+1)}, {v(T+4*t+2)}, {v(T+4*t+3)}")
        k(f"buffer_store_dwordx2 {vr(G+2*t,2)}, v6, {sr(RA,4)}, 0 offen offset:{32*t}")

GACC, GTR, GWB, ST = 16, 112, 176, 224
def gu_consumer(k):
    k("v_and_b32 v3, 31, v1\nv_lshrrev_b32 v4, 5, v1\nv_lshlrev_b32 v5, 4, v1")
    k(f"s_lshl_b32 s15, {s(grb)}, 2\ns_add_u32 s15, s15, {s(sw)}")
    k(f"s_mul_i32 s52, s15, 40960\ns_add_u32 s52, s52, {WS['Y']}")
    vq = Q(k, "vmcnt"); L = Q(k, "lgkmcnt")
    def tload(st):
        k(f"s_add_u32 s53, s52, {st*1024}\nbuffer_load_dwordx4 {vr(GTR+4*(st%16),4)}, v5, {sr(WSR,4)}, s53 offen {HL}"); vq.add(("t", st))
    k(f"s_lshl_b32 s54, s15, 11\ns_add_u32 s54, s54, {WS['STATS']}\nv_lshlrev_b32 v6, 6, v3\nv_lshl_add_u32 v6, v4, 5, v6")
    for st in range(2): tload(st)
    k(f"buffer_load_dwordx4 {vr(ST,4)}, v6, {sr(WSR,4)}, s54 offen {HL}\nbuffer_load_dwordx4 {vr(ST+4,4)}, v6, {sr(WSR,4)}, s54 offen offset:16 {HL}")
    vq.add(("s", 0)); vq.add(("s", 1))
    for st in range(2, PRE4): tload(st)
    nxt = [PRE4]
    for j in range(96): k(f"v_mov_b32 {v(GACC+j)}, 0")
    k("v_add_u32 v8, 0x10000, v5\nv_add_u32 v9, 0x20000, v5")
    def wread(st, ts=range(6)):
        base = ((st // 4) % GSLOT) * GCH + (st % 4) * 6144
        for t in ts:
            a_ = base + 1024 * t
            k(f"ds_read_b128 {vr(GWB+24*(st%2)+4*t,4)}, {v([5,8,9][a_ >> 16])} offset:{a_ & 0xffff}"); L.add((st, t))
    wread(0)
    def stats():
        a = ST
        vq.wait(("s", 1))
        k(f"""v_add_f32 {v(a+8)}, {v(a)}, {v(a+2)}
        v_add_f32 {v(a+9)}, {v(a+4)}, {v(a+6)}
        v_add_f32 {v(a+8)}, {v(a+8)}, {v(a+9)}
        v_mov_b32 {v(a+9)}, {v(a+8)}
        v_mov_b32 {v(a+10)}, {v(a+8)}
        v_permlane32_swap_b32 {v(a+9)}, {v(a+10)}
        v_add_f32 {v(a+8)}, {v(a+9)}, {v(a+10)}
        v_mul_f32 {v(a+8)}, {hex(f32bits(1.0/640))}, {v(a+8)}
        s_mov_b32 s55, {hex(f32bits(1.0/80))}
        v_add_f32 {v(a+9)}, {v(a+1)}, {v(a+3)}
        v_add_f32 {v(a+10)}, {v(a+5)}, {v(a+7)}
        v_add_f32 {v(a+9)}, {v(a+9)}, {v(a+10)}
        v_mov_b32 {v(a+10)}, 0""")
        for r in (a, a + 2, a + 4, a + 6):
            k(f"v_fma_f32 {v(r)}, {v(r)}, s55, -{v(a+8)}\nv_fmac_f32 {v(a+10)}, {v(r)}, {v(r)}")
        k(f"""v_mov_b32 {v(a+11)}, 0x42a00000
        v_fmac_f32 {v(a+9)}, {v(a+10)}, {v(a+11)}
        v_mov_b32 {v(a+10)}, {v(a+9)}
        v_mov_b32 {v(a+11)}, {v(a+9)}
        v_permlane32_swap_b32 {v(a+10)}, {v(a+11)}
        v_add_f32 {v(a+9)}, {v(a+10)}, {v(a+11)}
        v_mov_b32 {v(a+10)}, {hex(f32bits(1e-5))}
        v_mov_b32 {v(a+11)}, {hex(f32bits(1.0/640))}
        v_fmac_f32 {v(a+10)}, {v(a+9)}, {v(a+11)}
        v_rsq_f32 {v(a+10)}, {v(a+10)}
        s_nop 0
        v_mov_b32 {v(a+12)}, {v(a+10)}
        v_mov_b32 {v(a+13)}, {v(a+10)}
        v_mul_f32 {v(a+14)}, {hex(f32bits(-LOG2E))}, {v(a+10)}
        v_mov_b32 {v(a+15)}, {v(a+14)}
        v_mul_f32 {v(a+16)}, {v(a+8)}, {v(a+10)}
        v_sub_f32 {v(a+16)}, 0, {v(a+16)}
        v_mov_b32 {v(a+17)}, {v(a+16)}""")
    RS, RG, NM = vr(ST + 12, 2), vr(ST + 14, 2), vr(ST + 16, 2)
    for st in range(40):
        last = st == 39
        if st in (1, 8, 16, 24, 32): probe(k, "p4", (1, 8, 16, 24, 32).index(st))
        vq.wait(("t", st))
        for t in range(6):
            L.wait((st, t))
            ac = vr(GACC + 16 * t, 16)
            k(f"v_mfma_f32_32x32x16_bf16 {ac}, {vr(GWB+24*(st%2)+4*t,4)}, {vr(GTR+4*(st%16),4)}, {ac}")
            if not last:
                if t == 0 and (st + 1) % 4 == 0: k("s_barrier")
                wread(st + 1, [t])
        if st == 3: stats()
        n = 0
        while nxt[0] < 40 and nxt[0] <= st + DEP4 and nxt[0] - 16 <= st and n < 2:
            tload(nxt[0]); nxt[0] += 1; n += 1
    k.stamp(11)
    k(f"v_lshlrev_b32 v10, 4, v4\nv_add_u32 v10, {UBL}, v10")
    k(f"""s_lshl_b32 s52, s15, 1
    s_mul_i32 s52, s52, {48*1024}
    s_mul_i32 s53, {s(gfb)}, 3072
    s_add_u32 s52, s52, s53
    s_add_u32 s52, s52, {WS['HH']}
    v_lshrrev_b32 v11, 4, v3
    v_mul_u32_u24 v11, 0xc000, v11
    v_and_b32 v12, 15, v3
    v_lshl_add_u32 v11, v12, 4, v11
    v_lshl_add_u32 v11, v4, 8, v11""")
    ONE = ST + 18
    k(f"v_mov_b32 {v(ONE)}, 1.0\nv_mov_b32 {v(ONE+1)}, 1.0")
    LQ = Q(k, "lgkmcnt")
    def uread(tt, part):
        t = tt + 3 * part
        r = vec(tt, part)
        for a_ in range(4):
            k(f"ds_read_b128 {vr(r+4*a_,4)}, v10 offset:{t*256 + 32*a_}"); LQ.add((tt, part, 0, a_))
        for a_ in range(4):
            k(f"ds_read_b128 {vr(r+16+4*a_,4)}, v10 offset:{t*256 + 128 + 32*a_}"); LQ.add((tt, part, 1, a_))
    slots = {(0, 0): GTR, (0, 1): GTR + 32, (1, 0): GWB + 16, (1, 1): GTR, (2, 0): GTR + 32, (2, 1): GWB + 16}
    vec = lambda tt, part: slots[(tt, part)]
    uread(0, 0); uread(0, 1)
    for tt in range(3):
        g = GACC + 16 * tt; u = GACC + 16 * (tt + 3)
        G0, U0 = vec(tt, 0), vec(tt, 1)
        LQ.wait((tt, 0, 1, 3))
        for j in range(0, 16, 2):
            k(f"v_pk_fma_f32 {vr(G0+16+j,2)}, {vr(G0+j,2)}, {NM}, {vr(G0+16+j,2)}\nv_pk_fma_f32 {vr(g+j,2)}, {vr(g+j,2)}, {RG}, {vr(G0+16+j,2)}")
        if tt == 0: uread(1, 0)
        for j in range(16): k(f"v_exp_f32 {v(g+j)}, {v(g+j)}")
        LQ.wait((tt, 1, 1, 3))
        for j in range(0, 16, 2):
            k(f"v_pk_fma_f32 {vr(U0+16+j,2)}, {vr(U0+j,2)}, {NM}, {vr(U0+16+j,2)}\nv_pk_fma_f32 {vr(u+j,2)}, {vr(u+j,2)}, {RS}, {vr(U0+16+j,2)}")
        for j in range(0, 16, 2): k(f"v_pk_add_f32 {vr(g+j,2)}, {vr(g+j,2)}, {vr(ONE,2)}")
        if tt == 0: uread(1, 1)
        if tt == 1: uread(2, 0); uread(2, 1)
        for j in range(16): k(f"v_rcp_f32 {v(g+j)}, {v(g+j)}")
        for j in range(0, 16, 2): k(f"v_pk_mul_f32 {vr(g+j,2)}, {vr(g+j,2)}, {vr(u+j,2)}")
        Pk = GWB + 8 * (tt % 2)
        for j in range(8): k(f"v_cvt_pk_bf16_f32 {v(Pk+j)}, {v(g+2*j)}, {v(g+2*j+1)}")
        for jj in range(2):
            b = Pk + 4 * jj
            k(f"v_permlane32_swap_b32 {v(b)}, {v(b+2)}\nv_permlane32_swap_b32 {v(b+1)}, {v(b+3)}")
            k(f"buffer_store_dwordx4 {vr(b,4)}, v11, {sr(WSR,4)}, s52 offen offset:{512*jj} {HO}")
        k("s_add_u32 s52, s52, 1024")

class Prod:
    def __init__(self, k): self.k = k; self.vq = Q(k, "vmcnt")
    def gu_setup(self):
        self.k(f"v_lshlrev_b32 v5, 4, v1\ns_sub_u32 s60, {s(sw)}, 4\ns_mul_i32 s61, s60, 6144\ns_mul_i32 s62, {s(gfb)}, {40*6144}\ns_add_u32 s62, s62, s61\ns_add_u32 s62, s62, {WS['WGU']}")
    def gu_issue(self, c):
        k = self.k
        for t in range(6):
            k(f"s_add_u32 m0, s61, {(c % GSLOT)*GCH + t*1024}\ns_add_u32 s63, s62, {c*GCH + t*1024}\nbuffer_load_dwordx4 v5, {sr(WSR,4)}, s63 offen {HL} lds")
            self.vq.add(("g", c, t))
    def d_setup(self):
        self.k(f"s_mul_i32 s64, s60, 5120\ns_mul_i32 s65, {s(scb)}, {48*5120}\ns_add_u32 s65, s65, s64\ns_add_u32 s65, s65, {WS['WD']}")
        rot5(self.k, 66); self.k("s_lshr_b32 s66, s66, 2")
        self.RD = Rot(self.k, 67, 68, 69, 12, DCH); self.RD.setup(65, 66)
    def d_issue(self, c):
        k = self.k
        for t in range(5):
            self.RD.addr(63, c, t*1024)
            k(f"s_add_u32 m0, s64, {DSLOT[c % 7] + t*1024}\ns_nop 0\nbuffer_load_dwordx4 v5, {sr(WSR,4)}, s63 offen {HL} lds")
            self.vq.add(("d", c, t))
    def ub_dma(self):
        k = self.k
        skip = k.lab("noubd")
        k(f"s_cmp_ge_u32 s60, 2\ns_cbranch_scc1 {skip}")
        k(f"s_mul_i32 s63, {s(gfb)}, 1536\ns_lshl_b32 s66, s60, 10\ns_add_u32 s63, s63, s66\ns_add_u32 s63, s63, {WS['UB']}\ns_add_u32 m0, s66, {UBL}\ns_nop 0")
        k(f"buffer_load_dwordx4 v5, {sr(WSR,4)}, s63 offen {HL} lds\ns_waitcnt vmcnt(0)")
        k.label(skip)
```

```python
from mcommon import *
import p01

N_G, N_U, N_O, N_D = 480, 480, 200, 480
NJOB = N_G + N_U + N_O + N_D
STG = 97280
SRC = 226
TRV = 212
MR, MT = 230, 212
vWO, vCO = 13, 14
RC = 20
sKind, sStg, sMod, sModDst = 69, 68, 100, 101
NSIDE = 2
vPM, vPW = 10, 11

def decode(k):
    nojob, go = k.lab("sjno"), k.lab("sjgo")
    k(f"s_lshl_b32 s63, s2, 3\ns_add_u32 s63, s63, {s(sw)}")
    k(f"s_lshl_b32 {s(sStg)}, {s(sw)}, 12\ns_add_u32 {s(sStg)}, {s(sStg)}, {STG}")
    k(f"s_mov_b32 {s(sKind)}, 0\ns_cmp_ge_u32 s63, {NJOB}\ns_cbranch_scc1 {nojob}")
    labs = [k.lab("sj") for _ in range(4)]
    lim = 0
    for n, lab in zip((N_G, N_U, N_O), labs):
        lim += n
        k(f"s_cmp_lt_u32 s63, {lim}\ns_cbranch_scc1 {lab}")
    k(f"s_branch {labs[3]}")
    types = [("g", P_WG, 640 * 3072, 3072, 12, 0, True, 3, 40, 6, 0, "WGU"), ("u", P_WU, 640 * 3072, 3072, 12, N_G, True, 3, 40, 6, 3, "WGU"),
             ("o", P_WO, 640 * 1280, 1280, 10, N_G + N_U, False, 5, 20, 5, 0, "WO"), ("d", P_WD, 1536 * 1280, 1280, 10, N_G + N_U + N_O, False, 5, 48, 5, 0, "WD")]
    for (name, ptr, nbytes, stride, ncb, start, wide, dv, NS, NT, tadd, base), lab in zip(types, labs):
        k.label(lab)
        srd(k, RB, ptr, nbytes)
        k(f"s_sub_u32 s54, s63, {start}")
        sdiv(k, 55, 54, ncb)
        k(f"s_mul_i32 s56, s55, {ncb}\ns_sub_u32 s54, s54, s56")
        for tt in range(4):
            k(f"s_lshl_b32 s56, s54, 2\ns_add_u32 s56, s56, {tt}")
            sdiv(k, 57, 56, dv)
            k(f"s_mul_i32 {s(64+tt)}, s57, {dv}\ns_sub_u32 s56, s56, {s(64+tt)}\ns_mul_i32 s57, s57, {NS}\ns_add_u32 s57, s57, s55")
            k(f"s_mul_i32 s57, s57, {NT}\ns_add_u32 s57, s57, s56\ns_lshl_b32 s57, s57, 10\ns_add_u32 {s(64+tt)}, s57, {WS[base] + tadd*1024}")
        sh, rows = (4, 4) if wide else (3, 8)
        k(f"""s_mov_b32 {s(sKind)}, {1 if wide else 2}
        s_lshl_b32 s55, s55, {4 if wide else 5}
        s_lshl_b32 s54, s54, {8 if wide else 7}
        v_lshrrev_b32 v8, {sh}, v1
        v_and_b32 v9, {(1 << sh) - 1}, v1
        v_lshl_add_u32 v9, v9, 4, s54""")
        for i in range(4): k(f"v_add_u32 {v(SRC+i)}, s55, v8\nv_add_u32 {v(SRC+i)}, {rows*i}, {v(SRC+i)}")
        if name == "o":
            k("s_movk_i32 s56, 1639")
            for i in range(4):
                r = SRC + i
                k(f"""v_mul_u32_u24 v10, s56, {v(r)}
                v_lshrrev_b32 v10, 16, v10
                v_mul_u32_u24 v10, 40, v10
                v_sub_u32 v10, {v(r)}, v10
                v_mov_b32 v11, 0
                v_cmp_le_u32 vcc, 16, v10
                v_cndmask_b32_e64 v11, v11, 4, vcc
                v_cmp_le_u32 vcc, 32, v10
                v_cndmask_b32_e64 v11, v11, -16, vcc
                v_cmp_le_u32 vcc, 36, v10
                v_cndmask_b32_e64 v11, v11, 0, vcc
                v_add_u32 {v(r)}, {v(r)}, v11""")
        k(f"s_movk_i32 s56, {stride}")
        for i in range(4): k(f"v_mad_u32_u24 {v(SRC+i)}, {v(SRC+i)}, s56, v9")
        if wide:
            k(f"v_and_b32 v8, 31, v1\nv_lshrrev_b32 v9, 1, v8\nv_add_u32 v9, s55, v9\nv_and_b32 v8, 1, v8\nv_lshlrev_b32 v8, 7, v8\nv_add_u32 v8, s54, v8\nv_mad_u32_u24 {v(vPM)}, v9, s56, v8")
        else:
            k(f"v_and_b32 v9, 31, v1\nv_add_u32 v9, s55, v9")
            if name == "o":
                k(f"""s_movk_i32 s57, 1639
                v_mul_u32_u24 v10, s57, v9
                v_lshrrev_b32 v10, 16, v10
                v_mul_u32_u24 v10, 40, v10
                v_sub_u32 v10, v9, v10
                v_mov_b32 v11, 0
                v_cmp_le_u32 vcc, 16, v10
                v_cndmask_b32_e64 v11, v11, 4, vcc
                v_cmp_le_u32 vcc, 32, v10
                v_cndmask_b32_e64 v11, v11, -16, vcc
                v_cmp_le_u32 vcc, 36, v10
                v_cndmask_b32_e64 v11, v11, 0, vcc
                v_add_u32 v9, v9, v11""")
            k(f"v_mov_b32 v8, s54\nv_mad_u32_u24 {v(vPM)}, v9, s56, v8")
        k(f"s_branch {go}")
    k.label(nojob)
    srd(k, RB, P_WS, 4096)
    for i in range(4): k(f"v_mov_b32 {v(SRC+i)}, 0")
    k(f"v_mov_b32 {v(vPM)}, 0")
    k.label(go)
    nomod = k.lab("sjnm")
    srd(k, RA, P_WMOD, 640 * 7680); srd(k, RC, P_C, 1280)
    k(f"s_mov_b32 {s(sMod)}, 0\nv_mov_b32 {v(vWO)}, 0\nv_mov_b32 {v(vCO)}, 0\nv_mov_b32 {v(vPW)}, 0")
    k(f"s_cmp_lt_u32 s2, 96\ns_cbranch_scc1 {nomod}\ns_cmp_ge_u32 {s(sw)}, 4\ns_cbranch_scc1 {nomod}")
    k("s_sub_u32 s53, s2, 96")
    sdiv(k, 52, 53, 40)
    k(f"""s_mul_i32 s54, s52, 40
    s_sub_u32 s53, s53, s54
    s_add_u32 s53, s53, 20
    s_mov_b32 {s(sMod)}, 1
    s_lshl_b32 {s(sModDst)}, s53, 8
    s_add_u32 {s(sModDst)}, {s(sModDst)}, {WS['MOD']}
    s_mul_i32 s54, s52, 160
    s_mul_i32 s55, {s(sw)}, 40
    s_add_u32 s54, s54, s55
    v_lshrrev_b32 v8, 3, v1
    v_and_b32 v9, 7, v1
    v_add_u32 v8, s54, v8
    s_movk_i32 s55, 7680
    v_mul_u32_u24 {v(vWO)}, s55, v8
    s_lshl_b32 s56, s53, 7
    v_lshlrev_b32 v9, 4, v9
    v_add3_u32 {v(vWO)}, {v(vWO)}, v9, s56
    v_lshlrev_b32 {v(vCO)}, 1, v8
    v_min_u32 v8, 39, v1
    v_add_u32 v8, s54, v8
    v_mov_b32 v9, s56
    v_mad_u32_u24 {v(vPW)}, v8, s55, v9""")
    k.label(nomod)

def warm(k):
    k(f"buffer_load_dword v12, {v(vPM)}, {sr(RB,4)}, 0 offen\nbuffer_load_dword v12, {v(vPW)}, {sr(RA,4)}, 0 offen")

def issue(k):
    nj, nm = k.lab("snj"), k.lab("snm")
    k(f"s_cmp_eq_u32 {s(sKind)}, 0\ns_cbranch_scc1 {nj}")
    for i in range(4): k(f"s_add_u32 m0, {s(sStg)}, {1024*i}\ns_nop 0\nbuffer_load_dwordx4 {v(SRC+i)}, {sr(RB,4)}, 0 offen lds")
    k.label(nj)
    k(f"s_cmp_eq_u32 {s(sMod)}, 0\ns_cbranch_scc1 {nm}")
    for i in range(5): k(f"s_mov_b32 s48, {61440*i}\nbuffer_load_dwordx4 {vr(MR+4*i,4)}, {v(vWO)}, {sr(RA,4)}, s48 offen")
    for i in range(5): k(f"buffer_load_ushort {v(MR+20+i)}, {v(vCO)}, {sr(RC,4)}, 0 offen offset:{16*i}")
    k.label(nm)

def tr_read(k):
    done, narrow = k.lab("std"), k.lab("stn")
    k(f"s_cmp_eq_u32 {s(sKind)}, 0\ns_cbranch_scc1 {done}")
    k("v_and_b32 v8, 15, v1\nv_lshrrev_b32 v8, 2, v8\nv_and_b32 v9, 3, v1")
    k(f"s_cmp_eq_u32 {s(sKind)}, 2\ns_cbranch_scc1 {narrow}")
    k(f"""v_lshrrev_b32 v10, 5, v1
    v_lshl_add_u32 v10, v10, 3, v8
    v_lshlrev_b32 v10, 8, v10
    v_bfe_u32 v11, v1, 4, 1
    v_lshlrev_b32 v11, 5, v11
    v_lshl_add_u32 v11, v9, 3, v11
    v_add3_u32 v10, v10, v11, {s(sStg)}""")
    for tt in range(4):
        k(f"ds_read_b64_tr_b16 {vr(TRV+4*tt,2)}, v10 offset:{64*tt}\nds_read_b64_tr_b16 {vr(TRV+2+4*tt,2)}, v10 offset:{64*tt+1024}")
    k(f"s_branch {done}")
    k.label(narrow)
    k(f"""v_lshrrev_b32 v10, 4, v1
    v_lshl_add_u32 v10, v10, 3, v8
    v_lshlrev_b32 v10, 7, v10
    v_lshl_add_u32 v10, v9, 3, v10
    v_add_u32 v10, {s(sStg)}, v10""")
    for tt in range(4):
        k(f"ds_read_b64_tr_b16 {vr(TRV+4*tt,2)}, v10 offset:{32*tt}\nds_read_b64_tr_b16 {vr(TRV+2+4*tt,2)}, v10 offset:{32*tt+512}")
    k.label(done)

def stores(k):
    done = k.lab("ssd")
    k(f"s_cmp_eq_u32 {s(sKind)}, 0\ns_cbranch_scc1 {done}")
    k("v_lshlrev_b32 v11, 4, v1")
    for tt in range(4): k(f"buffer_store_dwordx4 {vr(TRV+4*tt,4)}, v11, {sr(WSR,4)}, {s(64+tt)} offen {HO}")
    k.label(done)


def mod_finish(k):
    done = k.lab("smd")
    k(f"s_cmp_eq_u32 {s(sMod)}, 0\ns_cbranch_scc1 {done}")
    k("s_waitcnt vmcnt(1)")
    p01.mod_compute(k, MR, MT)
    k(f"v_lshlrev_b32 {v(MT+16)}, 2, {v(MT+16)}")
    k(f"buffer_atomic_add_f32 {v(MT+12)}, {v(MT+16)}, {sr(WSR,4)}, {s(sModDst)} offen")
    k.label(done)
```

```python
import sys, os
sys.path.insert(0, os.path.dirname(os.path.abspath(__file__)))
from mcommon import *
import p01, p2, p345, side

NAME = "adaLN_cond__mha_block__glu_gated_glu__prompt_kernel"
STOP = int(os.environ.get("STOP", "9"))
DIRECT = os.environ.get("DIRECT", "")
LDS = 163840

def finish(k):
    k.stamp(23)
    k.stamp_flush(WSR, sw)
    k("s_endpgm")

def build():
    k = K(NAME, 256)
    k.name_short = "m"
    end = k.lab("end")
    k(f"s_cmp_ge_u32 s2, 256\ns_cbranch_scc1 {end}")
    if STAMPS:
        for i in range(24): k(f"s_mov_b32 s{70+i}, 0")
    k.stamp(0)
    k("s_load_dwordx16 s[16:31], s[0:1], 0\ns_load_dwordx8 s[32:39], s[0:1], 64")
    k(f"v_and_b32 v1, 63, v0\nv_lshrrev_b32 v2, 6, v0\nv_readfirstlane_b32 {s(sw)}, v2")
    k(f"s_and_b32 {s(sXCD)}, s2, 7\ns_lshr_b32 {s(sIDX)}, s2, 3")
    p01.tile_ids(k)
    k("s_waitcnt lgkmcnt(0)")
    probe(k, "p0", 0)
    srd(k, WSR, P_WS, (64 << 20) if STAMPS else WS["END"])
    p01.zero_init(k)
    p01.macc_init(k)
    prod01, p1done = k.lab("prod01"), k.lab("p1done")
    k(f"s_cmp_ge_u32 {s(sw)}, 4\ns_cbranch_scc1 {prod01}")
    p01.consumer01(k, p1done)
    k.label(prod01)
    p01.producer01(k, p1done)
    k.label(p1done)
    k.stamp(14)
    nw = k.lab("s12w")
    k(f"s_cmp_ge_u32 {s(sw)}, 4\ns_cbranch_scc1 {nw}")
    k("s_waitcnt vmcnt(0)")
    probe(k, "s12", 0)
    k(f"v_mov_b32 v2, {p01.LCNT}\nv_mov_b32 v3, 1")
    k("s_mov_b64 exec, 1\nds_add_rtn_u32 v4, v2, v3\ns_waitcnt lgkmcnt(0)\ns_mov_b64 exec, -1\nv_readfirstlane_b32 s53, v4")
    k(f"s_cmp_lg_u32 s53, 3\ns_cbranch_scc1 {nw}")
    p2.write_consts(k)
    k(f"s_cmp_eq_u32 {s(p01.scb)}, 15\ns_cbranch_scc1 {nw}")
    k(f"s_add_u32 s52, {s(p01.scb)}, {C_Q}\ns_add_u32 s53, {s(p01.scb)}, {G_Q}")
    arrive(k, "s52", 16, "s53")
    k.label(nw)
    probe(k, "s12", 1)
    if STOP == 1: finish(k); k.label(end); k("s_endpgm"); k.label("CODE_END"); return k
    side.decode(k)
    p2.setup(k)
    probe(k, "s12", 2)
    nw = k.lab("s12p")
    k(f"s_cmp_lg_u32 {s(sw)}, 0\ns_cbranch_scc1 {nw}")
    p2.dep_counters(k)
    poll(k, 5, 6)
    probe(k, "s12", 3)
    k.label(nw)
    k("s_barrier")
    k.stamp(5)
    p2.attention(k)
    k.stamp(15)
    nd = k.lab("nogd")
    k(f"s_cmp_lg_u32 {s(sw)}, 0\ns_cbranch_scc1 {nd}")
    k(f"v_mov_b32 v7, {G_D*256}\nv_mov_b32 v6, 1")
    poll(k, 7, 6, 8)
    k.label(nd)
    k("s_waitcnt vmcnt(0)")
    probe(k, "s23", 0)
    k("s_barrier")
    probe(k, "s23", 1)
    w0, rdy = k.lab("s23w0"), k.lab("s23r")
    k(f"s_cmp_lg_u32 {s(sw)}, 0\ns_cbranch_scc1 {w0}")
    k(f"s_add_u32 s52, {s(p2.sqb)}, {C_O}\ns_add_u32 s53, {s(p2.sqb)}, {G_O}")
    if "3" in DIRECT: arrive_direct(k, "s52")
    else: arrive(k, "s52", 32, "s53")
    if STOP == 2:
        k.label(w0); finish(k); k.label(end); k("s_endpgm"); k.label("CODE_END"); return k
    p345.ids(k)
    k(f"s_lshr_b32 s52, {s(p345.srb)}, 2\ns_add_u32 s52, s52, {C_O if '3' in DIRECT else G_O}")
    poll_setup(k, [("s52", 1, 32 if "3" in DIRECT else 1)]); poll(k, 5, 6)
    k(f"s_branch {rdy}")
    k.label(w0)
    p345.ids(k)
    p345.wo_prefetch(k)
    nv = k.lab("nov3")
    k(f"s_cmp_lg_u32 {s(sw)}, 7\ns_cbranch_scc1 {nv}")
    p345.vec_load(k, [(2, False), (4, True)], p345.VEC3)
    k.label(nv)
    k("s_waitcnt vmcnt(0)")
    k.label(rdy)
    probe(k, "s23", 2)
    k("s_barrier")
    k.stamp(8)
    prod3 = k.lab("prod3")
    k(f"s_cmp_ge_u32 {s(sw)}, 4\ns_cbranch_scc1 {prod3}")
    p345.wo_consumer(k)
    k.stamp(16)
    k("s_waitcnt vmcnt(0)")
    probe(k, "s23", 3)
    k("s_barrier")
    probe(k, "s23", 4)
    nw, n1 = k.lab("s34w"), k.lab("s34w1")
    k(f"s_cmp_lg_u32 {s(sw)}, 1\ns_cbranch_scc1 {n1}")
    k(f"s_and_b32 s52, s2, 15\ns_add_u32 s52, s52, {C_U}")
    arrive(k, "s52", 16, G_U, 1, R_U, 16)
    k.label(n1)
    k(f"s_cmp_lg_u32 {s(sw)}, 0\ns_cbranch_scc1 {nw}")
    k(f"s_lshr_b32 s53, {s(p345.srb)}, 1\ns_add_u32 s52, s53, {C_Y}\ns_add_u32 s53, s53, {G_Y}")
    if "4" in DIRECT: arrive_direct(k, "s52")
    else: arrive(k, "s52", 16, "s53")
    if STOP > 3:
        k(f"s_add_u32 s52, {s(p345.grb)}, {C_Y if '4' in DIRECT else G_Y}")
        poll_setup(k, [("s52", 1, 16 if "4" in DIRECT else 1)]); poll(k, 5, 6)
    k.label(nw)
    if STOP == 3: finish(k)
    else:
        k("s_barrier")
        k.stamp(10)
        p345.gu_consumer(k)
        k.stamp(12)
        k("s_waitcnt vmcnt(0)\ns_barrier")
        nw = k.lab("s45w")
        k(f"s_cmp_lg_u32 {s(sw)}, 0\ns_cbranch_scc1 {nw}")
        k(f"s_add_u32 s52, {s(p345.grb)}, {C_H}\ns_add_u32 s53, {s(p345.grb)}, {G_H}")
        if "5" in DIRECT: arrive_direct(k, "s52")
        else: arrive(k, "s52", 16, "s53")
        if STOP > 4:
            k(f"s_lshr_b32 s52, {s(p345.srb)}, 1\ns_add_u32 s52, s52, {C_H if '5' in DIRECT else G_H}")
            poll_setup(k, [("s52", 1, 16 if "5" in DIRECT else 1)]); poll(k, 5, 6)
        k.label(nw)
        if STOP == 4: finish(k)
        else:
            k("s_barrier")
            k.stamp(13)
            p345.down_consumer(k)
            finish(k)
    k.label(prod3)
    P = p345.Prod(k); vq = P.vq
    if STOP > 3:
        P.gu_setup(); P.gu_issue(0); P.gu_issue(1)
    p345.ub_job(k)
    k("s_barrier")
    if STOP == 3: finish(k)
    else:
        P.gu_setup()
        npre = int(os.environ.get("GPRE", "4"))
        for c in range(2, npre): P.gu_issue(c)
        vq.wait(("g", 0, 5))
        k("s_barrier")
        issued = npre
        for c in range(1, 10):
            while issued < 10 and issued <= c + p345.AH4 and issued - p345.GSLOT <= c - 3:
                P.gu_issue(issued); issued += 1
            vq.wait(("g", c, 5))
            k("s_barrier")
            if c == 5:
                nu = k.lab("noubd")
                k(f"s_cmp_lg_u32 {s(sw)}, 4\ns_cbranch_scc1 {nu}")
                k(f"v_mov_b32 v6, 1\nv_mov_b32 v7, {G_U*256}")
                poll(k, 7, 6, 8)
                k(f"s_mul_i32 s63, {s(p345.gfb)}, 1536\ns_add_u32 s63, s63, {WS['UB']}")
                k(f"s_mov_b32 m0, {p345.UBL}\ns_nop 0\nbuffer_load_dwordx4 v5, {sr(WSR,4)}, s63 offen {HL} lds")
                k(f"s_add_u32 s63, s63, 1024\ns_mov_b32 m0, {p345.UBL + 1024}\ns_nop 0\nbuffer_load_dwordx4 v5, {sr(WSR,4)}, s63 offen {HL} lds")
                k.label(nu)
        if STOP > 4:
            P.d_setup()
            nv = k.lab("nov5")
            k(f"s_cmp_lg_u32 {s(sw)}, 7\ns_cbranch_scc1 {nv}")
            p345.vec_load(k, [(5, False)], p345.VEC5)
            k("v_lshlrev_b32 v5, 4, v1")
            k.label(nv)
            for c in range(4): P.d_issue(c)
        k("s_barrier")
        if STOP == 4: finish(k)
        else:
            late5 = "5" in DIRECT
            if not late5:
                for c in range(4, 7): P.d_issue(c)
            vq.wait(("d", 0, 4))
            k("s_barrier")
            if late5:
                for c in range(4, 7): P.d_issue(c)
            issued = 7
            for c in range(1, 12):
                while issued < 12 and issued - 7 <= c - 3:
                    P.d_issue(issued); issued += 1
                vq.wait(("d", c, 4))
                k("s_barrier")
            finish(k)
    k.label(end)
    k("s_endpgm")
    k.label("CODE_END")
    return k

def generate():
    here = os.path.dirname(os.path.abspath(__file__))
    head = open(os.path.join(here, "header.txt")).read()
    k = build()
    t, n = k.text()
    return head + f"; @launch grid=(256,1,1) block=(512,1,1) lds={LDS}\n" + '.amdgcn_target "amdgcn-amd-amdhsa--gfx950"\n.text\n' + t + '.section .rodata,"a"\n' + k.desc()

if __name__ == "__main__":
    txt = generate()
    open(sys.argv[1], "w").write(txt)
    print("wrote", sys.argv[1], len(txt), "bytes,", txt.count("\n"), "lines")
```

```python
from mcommon import *

XRES = os.environ.get("XRES", "1") == "1"
NTX = os.environ.get("NTX", "nt" if XRES else "")
NT = os.environ.get("NT0", "nt")
QSCALE = LOG2E * 20 ** -0.5
RING = 35
COEF = RING * 4096
STG = COEF + 2560
assert STG + 16384 <= 163840
srb, scb, scq = 15, 4, 5

def tile_ids(k):
    k(f"""s_and_b32 s48, {s(sIDX)}, 3
    s_lshr_b32 s49, {s(sXCD)}, 1
    s_lshl_b32 s49, s49, 2
    s_add_u32 {s(srb)}, s49, s48
    s_lshr_b32 s48, {s(sIDX)}, 2
    s_and_b32 s49, {s(sXCD)}, 1
    s_lshl_b32 s49, s49, 3
    s_add_u32 {s(scb)}, s49, s48""")
    sdiv(k, 48, scb, 5)
    k(f"s_mul_i32 s48, s48, 5\ns_sub_u32 {s(scq)}, {s(scb)}, s48")

def zero_init(k):
    skip = k.lab("noinit")
    k(f"s_cmp_lg_u32 s2, 255\ns_cbranch_scc1 {skip}")
    k("v_mov_b32 v4, 0\nv_mov_b32 v5, 0\nv_mov_b32 v6, 0\nv_mov_b32 v7, 0\nv_lshlrev_b32 v8, 4, v1")
    k(f"s_mul_i32 s48, {s(sw)}, 11264\ns_add_u32 s48, s48, {WS['ZERO']}")
    for i in range(11):
        k(f"buffer_store_dwordx4 v[4:7], v8, {sr(WSR,4)}, s48 offen {HO}\ns_add_u32 s48, s48, 1024")
    k("s_waitcnt vmcnt(0)\ns_barrier")
    k(f"s_cmp_lg_u32 {s(sw)}, 0\ns_cbranch_scc1 {skip}")
    srd(k, RB, P_DBG, 256)
    k("v_mov_b32 v4, 1\nv_mov_b32 v5, 0\ns_mov_b64 exec, 1")
    k(f"buffer_store_dword v4, v5, {sr(RB,4)}, 0 offen offset:4 {HO}")
    k("s_mov_b64 exec, -1")
    k.label(skip)

def wait_ready(k):
    srd(k, RB, P_DBG, 256)
    loop, done = k.lab("rdy"), k.lab("rdyd")
    k("v_mov_b32 v60, 0\ns_mov_b32 s50, 0")
    k.label(loop)
    k(f"buffer_load_dword v61, v60, {sr(RB,4)}, 0 offen offset:4 sc1\ns_waitcnt vmcnt(0)\nv_readfirstlane_b32 s51, v61")
    k(f"s_cmp_lg_u32 s51, 0\ns_cbranch_scc1 {done}\ns_add_u32 s50, s50, 1\ns_cmp_ge_u32 s50, {SPIN_LIMIT}\ns_cbranch_scc1 {done}\ns_sleep 6\ns_branch {loop}")
    k.label(done)

LCNT = 162304 + 320
MACC = 162304
assert MACC + 512 <= 163840

def mod_load(k, R0, scb_, sks, wv):
    srd(k, RA, P_WMOD, 640 * 7680); srd(k, RB, P_C, 1280)
    k("v_lshrrev_b32 v3, 3, v1\nv_and_b32 v4, 7, v1")
    k(f"s_mul_i32 s54, {s(sks)}, 160\ns_mul_i32 s55, {s(wv)}, 40\ns_add_u32 s54, s54, s55")
    k(f"v_add_u32 v5, s54, v3\ns_movk_i32 s55, 7680\nv_mul_u32_u24 v6, s55, v5\ns_lshl_b32 s56, {s(scb_)}, 7")
    k("v_lshlrev_b32 v7, 4, v4\nv_add3_u32 v6, v6, v7, s56\nv_lshlrev_b32 v8, 1, v5")
    for i in range(5):
        k(f"s_mov_b32 s57, {61440*i}\nbuffer_load_dwordx4 {vr(R0+4*i,4)}, v6, {sr(RA,4)}, s57 offen {NT}")
    for i in range(5):
        k(f"buffer_load_ushort {v(R0+20+i)}, v8, {sr(RB,4)}, 0 offen offset:{16*i}")

def mod_compute(k, R0, T, stmp=48):
    C = R0 + 20
    for j in range(8): k(f"v_mov_b32 {v(T+j)}, 0")
    k(f"s_mov_b32 {s(stmp)}, 0xbfb8aa3b")
    E = T + 8
    for i in range(5): k(f"v_lshlrev_b32 {v(C+i)}, 16, {v(C+i)}\nv_mul_f32 {v(E+i)}, {s(stmp)}, {v(C+i)}\nv_exp_f32 {v(E+i)}, {v(E+i)}")
    for i in range(5): k(f"v_add_f32 {v(E+i)}, 1.0, {v(E+i)}")
    for i in range(5): k(f"v_rcp_f32 {v(E+i)}, {v(E+i)}")
    for i in range(5): k(f"v_mul_f32 {v(C+i)}, {v(C+i)}, {v(E+i)}")
    for i in range(5):
        for d in range(4):
            r = R0 + 4 * i + d
            k(f"v_lshlrev_b32 {v(T+16)}, 16, {v(r)}\nv_and_b32 {v(T+17)}, 0xffff0000, {v(r)}\nv_fmac_f32 {v(T+2*d)}, {v(C+i)}, {v(T+16)}\nv_fmac_f32 {v(T+2*d+1)}, {v(C+i)}, {v(T+17)}")
    k(f"v_and_b32 {v(T+16)}, 8, v1\nv_cmp_ne_u32 vcc, 0, {v(T+16)}")
    for j in range(4):
        k(f"v_cndmask_b32 {v(T+8+j)}, {v(T+4+j)}, {v(T+j)}, vcc\nv_cndmask_b32 {v(T+12+j)}, {v(T+j)}, {v(T+4+j)}, vcc")
    for j in range(4):
        k(f"v_add_f32_dpp {v(T+12+j)}, {v(T+8+j)}, {v(T+12+j)} row_ror:8 row_mask:0xf bank_mask:0xf")
    a = T + 12
    k(f"v_permlane16_swap_b32 {v(a)}, {v(a+2)}\nv_permlane16_swap_b32 {v(a+1)}, {v(a+3)}\nv_add_f32 {v(a)}, {v(a)}, {v(a+2)}\nv_add_f32 {v(a+1)}, {v(a+1)}, {v(a+3)}")
    k(f"v_permlane32_swap_b32 {v(a)}, {v(a+1)}\nv_add_f32 {v(a)}, {v(a)}, {v(a+1)}")
    c, t = T + 16, T + 17
    k(f"""v_and_b32 {v(c)}, 7, v1
    v_lshlrev_b32 {v(c)}, 3, {v(c)}
    v_bfe_u32 {v(t)}, v1, 3, 1
    v_lshl_add_u32 {v(c)}, {v(t)}, 2, {v(c)}
    v_bfe_u32 {v(t)}, v1, 4, 1
    v_lshl_add_u32 {v(c)}, {v(t)}, 1, {v(c)}
    v_lshrrev_b32 {v(t)}, 5, v1
    v_add_u32 {v(c)}, {v(c)}, {v(t)}""")

def macc_init(k):
    skip = k.lab("nomacc")
    k(f"s_cmp_lg_u32 {s(sw)}, 0\ns_cbranch_scc1 {skip}")
    k(f"v_mov_b32 v2, 0\nv_lshlrev_b32 v3, 2, v1\nv_add_u32 v3, {MACC}, v3\nds_write_b32 v3, v2\nds_write_b32 v3, v2 offset:256\ns_waitcnt lgkmcnt(0)")
    k.label(skip)
    k("s_barrier")

def mod_job(k):
    skip = k.lab("nomod")
    k(f"s_cmp_ge_u32 s2, 80\ns_cbranch_scc1 {skip}")
    sdiv(k, 52, 2, 20)
    k("s_mul_i32 s53, s52, 20\ns_sub_u32 s53, s2, s53")
    mod_load(k, 16, 53, 52, sw)
    k("s_waitcnt vmcnt(0)")
    probe(k, "p0", 1)
    mod_compute(k, 16, 44)
    k(f"v_lshlrev_b32 v60, 2, v60\nv_add_u32 v60, {MACC}, v60\nds_add_f32 v60, v56\nv_mov_b32 v61, {MACC+256}\nv_mov_b32 v62, 1\ns_waitcnt lgkmcnt(0)")
    k("s_mov_b64 exec, 1\nds_add_rtn_u32 v63, v61, v62\ns_waitcnt lgkmcnt(0)\ns_mov_b64 exec, -1\nv_readfirstlane_b32 s57, v63")
    probe(k, "p0", 2)
    k(f"s_cmp_lg_u32 s57, 3\ns_cbranch_scc1 {skip}")
    k(f"v_lshlrev_b32 v60, 2, v1\nv_add_u32 v61, {MACC}, v60\nds_read_b32 v62, v61")
    k(f"s_mul_i32 s56, s52, 5120\ns_lshl_b32 s57, s53, 8\ns_add_u32 s56, s56, s57\ns_add_u32 s56, s56, {WS['MODP']}\ns_waitcnt lgkmcnt(0)")
    k(f"buffer_store_dword v62, v60, {sr(WSR,4)}, s56 offen {HO}")
    k.label(skip)

MOD0 = os.environ.get("MOD0", "0") == "1"
def mod_rest0(k):
    skip = k.lab("nom0")
    k(f"s_cmp_lt_u32 s2, 80\ns_cbranch_scc1 {skip}\ns_cmp_ge_u32 s2, 240\ns_cbranch_scc1 {skip}")
    k("s_sub_u32 s53, s2, 80")
    sdiv(k, 52, 53, 40)
    k(f"s_mul_i32 s54, s52, 40\ns_sub_u32 s53, s53, s54\ns_add_u32 s53, s53, 20")
    mod_load(k, 16, 53, 52, sw)
    k("s_waitcnt vmcnt(0)")
    mod_compute(k, 16, 44)
    k.label(skip)
def mod_rest0_atomic(k):
    skip = k.lab("nom1")
    k(f"s_cmp_lt_u32 s2, 80\ns_cbranch_scc1 {skip}\ns_cmp_ge_u32 s2, 240\ns_cbranch_scc1 {skip}")
    k("s_sub_u32 s49, s2, 80")
    sdiv(k, 50, 49, 40)
    k(f"s_mul_i32 s50, s50, 40\ns_sub_u32 s49, s49, s50\ns_add_u32 s49, s49, 20\ns_lshl_b32 s49, s49, 8\ns_add_u32 s49, s49, {WS['MOD']}")
    k(f"v_lshlrev_b32 v60, 2, v60\nbuffer_atomic_add_f32 v56, v60, {sr(WSR,4)}, s49 offen")
    k.label(skip)

MR, MT = 60, 28
def mod_rest_load(k):
    if os.environ.get("NOSIDE"): return
    skip = k.lab("nomr")
    k(f"s_cmp_lt_u32 s2, 80\ns_cbranch_scc1 {skip}\ns_cmp_ge_u32 s2, 240\ns_cbranch_scc1 {skip}")
    k("s_sub_u32 s53, s2, 80")
    sdiv(k, 52, 53, 40)
    k(f"s_mul_i32 s54, s52, 40\ns_sub_u32 s53, s53, s54\ns_add_u32 s53, s53, 20\ns_sub_u32 s68, {s(sw)}, 4")
    mod_load(k, MR, 53, 52, 68)
    k.label(skip)
def mod_rest_finish(k):
    if os.environ.get("NOSIDE"): return
    skip = k.lab("nomf")
    k(f"s_cmp_lt_u32 s2, 80\ns_cbranch_scc1 {skip}\ns_cmp_ge_u32 s2, 240\ns_cbranch_scc1 {skip}")
    mod_compute(k, MR, MT)
    k("s_sub_u32 s49, s2, 80")
    sdiv(k, 50, 49, 40)
    k(f"s_mul_i32 s50, s50, 40\ns_sub_u32 s49, s49, s50\ns_add_u32 s49, s49, 20\ns_lshl_b32 s49, s49, 8\ns_add_u32 s49, s49, {WS['MOD']}")
    k(f"v_lshlrev_b32 {v(MT+16)}, 2, {v(MT+16)}")
    k(f"buffer_atomic_add_f32 {v(MT+12)}, {v(MT+16)}, {sr(WSR,4)}, s49 offen")
    k.label(skip)

def red16(k, r):
    red8(k, r)
    k(f"v_add_f32_dpp {v(r)}, {v(r)}, {v(r)} row_mirror row_mask:0xf bank_mask:0xf")

def ln_job(k):
    L, Fq, N = 8, 48, 5
    srd(k, RA, P_X, 2048 * 1280)
    k("v_lshrrev_b32 v3, 4, v1\nv_and_b32 v4, 15, v1")
    k(f"s_lshl_b32 s52, s2, 3\ns_sub_u32 s53, {s(sw)}, 4\ns_lshl_b32 s53, s53, 2\ns_add_u32 s52, s52, s53")
    k("v_add_u32 v6, s52, v3\ns_movk_i32 s54, 1280\nv_mul_u32_u24 v6, s54, v6\nv_lshl_add_u32 v6, v4, 4, v6")
    for i in range(N): k(f"buffer_load_dwordx4 {vr(L+4*i,4)}, v6, {sr(RA,4)}, 0 offen offset:{256*i} {NTX}")
    k("v_mov_b32 v128, 0\nv_mov_b32 v129, 0\nv_mov_b32 v132, 0\nv_mov_b32 v133, 0")
    if STAMPS and PROBE == "p0":
        k("s_waitcnt vmcnt(0)")
        probe(k, "p0", 1)
    for i in range(N):
        k(f"s_waitcnt vmcnt({N-1-i})")
        for d in range(4):
            r = L + 4 * i + d; f = Fq + 8 * i + 2 * d
            k(f"v_lshlrev_b32 {v(f)}, 16, {v(r)}\nv_and_b32 {v(f+1)}, 0xffff0000, {v(r)}")
        for d in range(4):
            f = Fq + 8 * i + 2 * d
            k(f"v_pk_add_f32 v[128:129], v[128:129], {vr(f,2)}")
    k("v_add_f32 v128, v128, v129")
    red16(k, 128)
    k(f"v_mul_f32 v130, {hex(f32bits(-1.0/640))}, v128\nv_mov_b32 v131, v130")
    for j in range(0, 8 * N, 2): k(f"v_pk_add_f32 {vr(Fq+j,2)}, {vr(Fq+j,2)}, v[130:131]")
    for j in range(0, 8 * N, 2): k(f"v_pk_fma_f32 v[132:133], {vr(Fq+j,2)}, {vr(Fq+j,2)}, v[132:133]")
    k("v_add_f32 v132, v132, v133")
    red16(k, 132)
    k(f"v_mov_b32 v134, {hex(f32bits(1e-5))}\nv_mov_b32 v135, {hex(f32bits(1.0/640))}\nv_fmac_f32 v134, v132, v135\nv_mov_b32 v137, v134\nv_rsq_f32 v134, v134\ns_nop 0\nv_mov_b32 v135, v134")
    if XRES:
        k(f"v_mul_f32 v137, v137, v134\nv_sub_f32 v136, 0, v130\nv_add_u32 v138, s52, v3\nv_lshlrev_b32 v138, 3, v138\ns_mov_b32 s53, {WS['LNST']}")
        k("v_cmp_eq_u32 vcc, 0, v4\ns_and_saveexec_b64 s[54:55], vcc")
        k(f"buffer_store_dwordx2 v[136:137], v138, {sr(WSR,4)}, s53 offen {HO}\ns_mov_b64 exec, s[54:55]")
    k(f"s_lshr_b32 s53, s52, 5\ns_mul_i32 s53, s53, 40960\ns_and_b32 s52, s52, 31\ns_lshl_b32 s52, s52, 4\ns_add_u32 s52, s52, s53\ns_add_u32 s52, s52, {WS['XN']}")
    k("v_lshlrev_b32 v6, 9, v4\nv_lshl_add_u32 v6, v3, 4, v6")
    for i in range(N):
        for d in range(4):
            f = Fq + 8 * i + 2 * d
            k(f"v_pk_mul_f32 {vr(f,2)}, {vr(f,2)}, v[134:135]")
        for d in range(4):
            f = Fq + 8 * i + 2 * d
            k(f"v_cvt_pk_f16_f32 {v(L+4*i+d)}, {v(f)}, {v(f+1)}")
        k(f"buffer_store_dwordx4 {vr(L+4*i,4)}, v6, {sr(WSR,4)}, s52 offen {HO}\ns_add_u32 s52, s52, 8192")

def line_prefetch(k, ptr, nbytes, nper, dst, first=0):
    srd(k, RB, ptr, nbytes)
    k("v_lshlrev_b32 v146, 7, v1")
    for j in range(nper):
        k(f"s_add_u32 s50, s2, {first + 256*j}\ns_lshl_b32 s50, s50, 13\nbuffer_load_dword {v(dst+j)}, v146, {sr(RB,4)}, s50 offen")

def code_prefetch(k):
    here, skip = k.lab("pc"), k.lab("nopc")
    k(f"s_cmp_ge_u32 {s(sIDX)}, 8\ns_cbranch_scc1 {skip}")
    k("s_getpc_b64 s[48:49]")
    k.label(here)
    k(f"s_sub_u32 s48, s48, {here}-{k.name}\ns_subb_u32 s49, s49, 0")
    k(f"s_lshl_b32 s50, {s(sIDX)}, 13\nv_lshlrev_b32 v144, 7, v1\nv_add_u32 v144, s50, v144")
    k(f"s_mov_b32 s50, CODE_END-{k.name}-4\nv_min_u32 v144, s50, v144")
    k("global_load_dword v148, v144, s[48:49]")
    k.label(skip)

def wtile_setup(k):
    srd(k, RA, P_WQKV, 640 * 3840)
    k("""v_lshrrev_b32 v141, 4, v1
    v_bfe_u32 v142, v1, 2, 2
    """ + ("v_xor_b32 v142, v142, v141" if not os.environ.get("NOSWZ") else "s_nop 0") + """
    v_lshlrev_b32 v142, 6, v142
    v_and_b32 v143, 3, v1
    v_lshl_add_u32 v142, v143, 4, v142
    s_movk_i32 s52, 3840
    v_mad_u32_u24 v140, v141, s52, v142""")
    k(f"s_lshl_b32 s58, {s(scb)}, 8")

def wtile_issue(k, first, count, stride, wrap=False):
    loop = k.lab("wdma")
    k(f"s_mul_i32 s60, s59, 15360\ns_add_u32 s60, s60, s58\ns_lshl_b32 s61, s59, 10")
    if wrap: k(f"s_sub_u32 s61, s61, {RING*4096}")
    k(f"s_mov_b32 s62, {count}")
    k.label(loop)
    k(f"s_mov_b32 m0, s61\ns_add_u32 s61, s61, {stride*1024}\nbuffer_load_dwordx4 v140, {sr(RA,4)}, s60 offen lds")
    k(f"s_add_u32 s60, s60, {stride*15360}\ns_sub_u32 s62, s62, 1\ns_cmp_lg_u32 s62, 0\ns_cbranch_scc1 {loop}")

def wtile_issue_rot(k, count, stride):
    loop = k.lab("wrot")
    NP = 4 * RING
    k(f"s_mul_i32 s60, {s(srb)}, 9\ns_add_u32 s59, s59, s60\ns_mov_b32 s62, {count}")
    k.label(loop)
    k(f"s_cmp_ge_u32 s59, {NP}\ns_cselect_b32 s60, {NP}, 0\ns_sub_u32 s59, s59, s60")
    k(f"s_lshl_b32 m0, s59, 10\ns_mul_i32 s60, s59, 15360\ns_add_u32 s60, s60, s58\nbuffer_load_dwordx4 v140, {sr(RA,4)}, s60 offen lds")
    k(f"s_waitcnt vmcnt({int(os.environ.get('WINFL', '40'))})")
    k(f"s_add_u32 s59, s59, {stride}\ns_sub_u32 s62, s62, 1\ns_cmp_lg_u32 s62, 0\ns_cbranch_scc1 {loop}")

N_G, N_U, N_O, N_D = 480, 480, 200, 480
sJ = 63
def mini_issue(k, rnd):
    if os.environ.get("NOSIDE"):
        k("s_mov_b32 s69, 0"); return
    p = 52
    nojob, go = k.lab("mjno"), k.lab("mjgo")
    k(f"s_sub_u32 s52, {s(sw)}, 4\ns_lshl_b32 {s(sJ)}, s2, 2\ns_add_u32 {s(sJ)}, {s(sJ)}, s52\ns_add_u32 {s(sJ)}, {s(sJ)}, {1024*rnd}")
    k(f"s_lshl_b32 s53, s52, 12\ns_add_u32 s53, s53, {STG}")
    k(f"s_mov_b32 s69, 0\ns_cmp_ge_u32 {s(sJ)}, {N_G+N_U+N_O+N_D}\ns_cbranch_scc1 {nojob}")
    labs = [k.lab("mj") for _ in range(4)]
    lim = 0
    for n, lab in zip((N_G, N_U, N_O), labs):
        lim += n
        k(f"s_cmp_lt_u32 {s(sJ)}, {lim}\ns_cbranch_scc1 {lab}")
    k(f"s_branch {labs[3]}")
    types = [("g", P_WG, 640 * 3072, 3072, 12, 0, True, 3, 40, 6, 0, "WGU"), ("u", P_WU, 640 * 3072, 3072, 12, N_G, True, 3, 40, 6, 3, "WGU"),
             ("o", P_WO, 640 * 1280, 1280, 10, N_G + N_U, False, 5, 20, 5, 0, "WO"), ("d", P_WD, 1536 * 1280, 1280, 10, N_G + N_U + N_O, False, 5, 48, 5, 0, "WD")]
    for (name, ptr, nbytes, stride, ncb, start, wide, dv, NS, NT, tadd, base), lab in zip(types, labs):
        k.label(lab)
        srd(k, RB, ptr, nbytes)
        k(f"s_sub_u32 s54, {s(sJ)}, {start}")
        sdiv(k, 55, 54, ncb)
        k(f"s_mul_i32 s56, s55, {ncb}\ns_sub_u32 s54, s54, s56")
        for tt in range(4):
            k(f"s_lshl_b32 s56, s54, 2\ns_add_u32 s56, s56, {tt}")
            sdiv(k, 57, 56, dv)
            k(f"s_mul_i32 {s(64+tt)}, s57, {dv}\ns_sub_u32 s56, s56, {s(64+tt)}\ns_mul_i32 s57, s57, {NS}\ns_add_u32 s57, s57, s55")
            k(f"s_mul_i32 s57, s57, {NT}\ns_add_u32 s57, s57, s56\ns_lshl_b32 s57, s57, 10\ns_add_u32 {s(64+tt)}, s57, {WS[base] + tadd*1024}")
        if wide:
            k(f"""s_mov_b32 s69, 1
            s_lshl_b32 s55, s55, 4
            s_lshl_b32 s54, s54, 8
            v_lshrrev_b32 v8, 4, v1
            v_and_b32 v9, 15, v1
            v_lshl_add_u32 v9, v9, 4, s54""")
            for i in range(4): k(f"v_add_u32 {v(10+i)}, s55, v8\nv_add_u32 {v(10+i)}, {4*i}, {v(10+i)}")
        else:
            k(f"""s_mov_b32 s69, 2
            s_lshl_b32 s55, s55, 5
            s_lshl_b32 s54, s54, 7
            v_lshrrev_b32 v8, 3, v1
            v_and_b32 v9, 7, v1
            v_lshl_add_u32 v9, v9, 4, s54""")
            for i in range(4): k(f"v_add_u32 {v(10+i)}, s55, v8\nv_add_u32 {v(10+i)}, {8*i}, {v(10+i)}")
            if name == "o":
                k("s_movk_i32 s56, 1639")
                for i in range(4):
                    r = 10 + i
                    k(f"""v_mul_u32_u24 v14, s56, {v(r)}
                    v_lshrrev_b32 v14, 16, v14
                    v_mul_u32_u24 v14, 40, v14
                    v_sub_u32 v14, {v(r)}, v14
                    v_mov_b32 v15, 0
                    v_cmp_le_u32 vcc, 16, v14
                    v_cndmask_b32_e64 v15, v15, 4, vcc
                    v_cmp_le_u32 vcc, 32, v14
                    v_cndmask_b32_e64 v15, v15, -16, vcc
                    v_cmp_le_u32 vcc, 36, v14
                    v_cndmask_b32_e64 v15, v15, 0, vcc
                    v_add_u32 {v(r)}, {v(r)}, v15""")
        k(f"s_movk_i32 s56, {stride}")
        for i in range(4): k(f"v_mad_u32_u24 {v(10+i)}, {v(10+i)}, s56, v9")
        k(f"s_branch {go}")
    k.label(go)
    for i in range(4):
        k(f"s_add_u32 m0, s53, {1024*i}\ns_nop 0\nbuffer_load_dwordx4 {v(10+i)}, {sr(RB,4)}, 0 offen lds")
    k.label(nojob)

def mini_finish(k, later):
    done, narrow, rd = k.lab("mfd"), k.lab("mfn"), k.lab("mfr")
    k(f"s_cmp_eq_u32 s69, 0\ns_cbranch_scc1 {done}")
    k(f"s_waitcnt vmcnt({later})")
    k("v_and_b32 v8, 15, v1\nv_lshrrev_b32 v8, 2, v8\nv_and_b32 v9, 3, v1")
    k(f"s_cmp_eq_u32 s69, 2\ns_cbranch_scc1 {narrow}")
    k("""v_lshrrev_b32 v16, 5, v1
    v_lshl_add_u32 v16, v16, 3, v8
    v_lshlrev_b32 v16, 8, v16
    v_bfe_u32 v17, v1, 4, 1
    v_lshlrev_b32 v17, 5, v17
    v_lshl_add_u32 v17, v9, 3, v17
    v_add3_u32 v16, v16, v17, s53""")
    for tt in range(4):
        k(f"ds_read_b64_tr_b16 {vr(20+4*tt,2)}, v16 offset:{64*tt}\nds_read_b64_tr_b16 {vr(22+4*tt,2)}, v16 offset:{64*tt+1024}")
    k(f"s_branch {rd}")
    k.label(narrow)
    k("""v_lshrrev_b32 v16, 4, v1
    v_lshl_add_u32 v16, v16, 3, v8
    v_lshlrev_b32 v16, 7, v16
    v_lshl_add_u32 v16, v9, 3, v16
    v_add_u32 v16, s53, v16""")
    for tt in range(4):
        k(f"ds_read_b64_tr_b16 {vr(20+4*tt,2)}, v16 offset:{32*tt}\nds_read_b64_tr_b16 {vr(22+4*tt,2)}, v16 offset:{32*tt+512}")
    k.label(rd)
    k("v_lshlrev_b32 v17, 4, v1")
    for tt in range(4):
        k(f"s_waitcnt lgkmcnt({6-2*tt})\nbuffer_store_dwordx4 {vr(20+4*tt,4)}, v17, {sr(WSR,4)}, {s(64+tt)} offen {HO}")
    k.label(done)

def sync01_consumer(k):
    k("s_waitcnt vmcnt(0)\ns_barrier")
    probe(k, "p0", 4)
    nw, n1 = k.lab("s01w"), k.lab("s01w1")
    k(f"s_cmp_lg_u32 {s(sw)}, 1\ns_cbranch_scc1 {n1}\ns_cmp_ge_u32 s2, 80\ns_cbranch_scc1 {n1}")
    k(f"s_lshr_b32 s53, s2, 4\ns_add_u32 s52, s53, {C_M}")
    arrive(k, "s52", 16, G_M, 8, word="s53")
    k.label(n1)
    k(f"s_cmp_lg_u32 {s(sw)}, 0\ns_cbranch_scc1 {nw}")
    probe(k, "p0", 3)
    k(f"s_lshr_b32 s53, s2, 4\ns_add_u32 s52, s53, {C_X}\ns_add_u32 s53, s53, {G_X}")
    arrive(k, "s52", 16, "s53")
    if os.environ.get("SPARE", "0") == "1":
        nsp = k.lab("nsp0")
        k(f"s_cmp_lg_u32 {s(scb)}, 15\ns_cbranch_scc1 {nsp}")
        spare_prefetch(k)
        k(f"s_branch {nw}")
        k.label(nsp)
    k(f"s_add_u32 s52, {s(sXCD)}, {G_M}\ns_lshl_b32 s52, s52, 8\ns_add_u32 s54, {s(srb)}, {G_X}\ns_lshl_b32 s54, s54, 8")
    k("v_lshlrev_b32 v5, 2, v1\nv_add_u32 v5, s52, v5\nv_mov_b32 v7, s54\nv_cmp_gt_u32 vcc, 5, v1\nv_cndmask_b32 v5, v7, v5, vcc\nv_mov_b32 v6, 1")
    if not os.environ.get("NOPOLL01"): poll(k, 5, 6)
    k.label(nw)
    if MOD0: mod_rest0_atomic(k)
    k("s_barrier")

CL = 224
def coef_load(k):
    k(f"v_lshlrev_b32 v9, 4, v0\nv_and_b32 v15, 15, v1\nv_lshlrev_b32 v15, 4, v15\ns_lshl_b32 s55, {s(sw)}, 8\ns_add_u32 s55, s55, 4096\nv_add_u32 v15, s55, v15")
    for ks in range(4):
        k(f"s_mov_b32 s52, {WS['MODP'] + ks*5120}\nbuffer_load_dwordx4 {vr(CL+4*ks,4)}, v9, {sr(WSR,4)}, s52 offen {HL}\nbuffer_load_dwordx4 {vr(CL+16+4*ks,4)}, v15, {sr(WSR,4)}, s52 offen {HL}")
def coef_prep(k, later):
    k(f"s_waitcnt vmcnt({later})")
    k("v_cmp_le_u32 vcc, 160, v0\nv_mov_b32 v6, 0\nv_cndmask_b32_e64 v6, v6, 1.0, vcc")
    for b in (CL, CL + 16):
        for j in range(4):
            k(f"v_add_f32 {v(b+j)}, {v(b+j)}, {v(b+4+j)}\nv_add_f32 {v(b+8+j)}, {v(b+8+j)}, {v(b+12+j)}")
        for j in range(4):
            k(f"v_add_f32 {v(b+j)}, {v(b+j)}, {v(b+8+j)}")
    for j in range(4): k(f"v_add_f32 {v(CL+j)}, {v(CL+j)}, v6\nv_add_f32 {v(CL+16+j)}, 1.0, {v(CL+16+j)}")
    k(f"v_cvt_pk_f16_f32 {v(CL+4)}, {v(CL)}, {v(CL+1)}\nv_cvt_pk_f16_f32 {v(CL+5)}, {v(CL+2)}, {v(CL+3)}\nv_lshlrev_b32 v7, 3, v0\nv_add_u32 v7, {COEF}, v7\nds_write_b64 v7, {vr(CL+4,2)}")
    k(f"v_cvt_pk_f16_f32 {v(CL+20)}, {v(CL+16)}, {v(CL+17)}\nv_cvt_pk_f16_f32 {v(CL+21)}, {v(CL+18)}, {v(CL+19)}\nv_lshrrev_b32 v7, 1, v15\nv_add_u32 v7, {COEF}, v7\nds_write_b64 v7, {vr(CL+20,2)}")

ACC, TR, WB, CB, HF, HB, AW, OFF = 16, 80, 144, 176, 192, 200, 208, 220
NR, PRE, DEPTH = 16, int(os.environ.get('PRE1', 4)), int(os.environ.get('DEP1', 10))

def qkv_consumer(k, isv):
    k("v_and_b32 v3, 31, v1\nv_lshrrev_b32 v4, 5, v1\nv_lshlrev_b32 v5, 4, v1")
    k(f"s_lshl_b32 s53, {s(srb)}, 2\ns_add_u32 s53, s53, {s(sw)}")
    k(f"s_mul_i32 s54, s53, 40960\ns_add_u32 s54, s54, {WS['XN']}")
    vq = Q(k, "vmcnt"); L = Q(k, "lgkmcnt")
    coef_load(k)
    for j in range(7): vq.add(("coef", j))
    vq.add("coef")
    def tload(st):
        k(f"s_add_u32 s55, s54, {st*1024}\nbuffer_load_dwordx4 {vr(TR+4*(st%NR),4)}, v5, {sr(WSR,4)}, s55 offen {HL}"); vq.add(("t", st))
    for st in range(PRE): tload(st)
    nxt = [PRE]
    for j in range(64): k(f"v_mov_b32 {v(ACC+j)}, 0")
    k("""v_and_b32 v8, 15, v1
    v_lshrrev_b32 v8, 2, v8
    v_lshl_add_u32 v9, v4, 3, v8
    v_lshlrev_b32 v9, 8, v9
    v_bfe_u32 v10, v1, 4, 1
    v_lshl_add_u32 v9, v10, 5, v9
    v_and_b32 v10, 3, v1
    v_lshl_add_u32 v9, v10, 3, v9""")
    for t in range(4):
        k(f"v_xor_b32 v10, {t}, v8\nv_lshl_add_u32 {v(AW+t)}, v10, 6, v9")
        k(f"v_add_u32 {v(AW+4+t)}, 0x10000, {v(AW+t)}\nv_add_u32 {v(AW+8+t)}, 0x20000, {v(AW+t)}")
    k(f"v_lshlrev_b32 v14, 4, v4\nv_add_u32 v14, {COEF}, v14")
    if isv:
        k(f"s_lshl_b32 s56, {s(scq)}, 7\nv_add_u32 v6, s56, v3\ns_movk_i32 s56, 3277\ns_mov_b32 s57, 81920\nv_mul_u32_u24 v7, 0x140, v4")
        for t in range(4):
            k(f"""v_add_u32 v9, {32*t}, v6
            v_mul_u32_u24 v10, s56, v9
            v_lshrrev_b32 v10, 16, v10
            v_mad_i32_i24 v9, v10, -16, v9
            v_mad_i32_i24 v9, v10, -4, v9
            v_lshl_add_u32 v9, v9, 4, v7
            v_mad_u32_u24 {v(OFF+t)}, v10, s57, v9""")
        k(f"s_lshl_b32 s58, s53, 1\ns_mul_i32 s58, s58, 640\ns_add_u32 s58, s58, {WS['V']}")
    else:
        k(f"s_mul_i32 s58, s53, 40960\ns_lshl_b32 s56, {s(scq)}, 13\ns_add_u32 s58, s58, s56\ns_mov_b32 s56, {WS['Q']}\ns_mov_b32 s60, {hex(f32bits(QSCALE))}")
        k(f"s_cmp_lt_u32 {s(scb)}, 5\ns_cselect_b32 s56, s56, {WS['KK']}\ns_cselect_b32 s60, s60, 1.0\ns_add_u32 s58, s58, s56\ns_mov_b32 s61, 0")
    coef_prep(k, vq.after("coef"))
    k("s_waitcnt lgkmcnt(0)\ns_barrier")
    k.stamp(3)
    def wread(st, ts=range(4)):
        for t in ts:
            for u in range(2):
                a_ = (st % RING) * 4096 + u * 1024
                k(f"ds_read_b64_tr_b16 {vr(WB+16*(st%2)+4*t+2*u,2)}, {v(AW+4*(a_>>16)+t)} offset:{a_ & 0xffff}")
                L.add(("w", st, t, u))
    def cread(st, which=(0, 1)):
        for x in which:
            k(f"ds_read_b128 {vr(CB+8*(st%2)+4*x,4)}, v14 offset:{(1280 if x == 0 else 0) + 32*st}"); L.add(("c", st, x))
    def mix(st, j0, j1):
        T = TR + 4 * (st % NR); C1 = CB + 8 * (st % 2); C0 = C1 + 4
        for j in range(j0, j1):
            o = j & 1
            k(f"v_fma_mix_f32 {v(HF+j)}, {v(T+j//2)}, {v(C1+j//2)}, {v(C0+j//2)} op_sel:[{o},{o},{o}] op_sel_hi:[1,1,1]")
    def cvt(st, ds=range(4)):
        for d in ds: k(f"v_cvt_pk_bf16_f32 {v(HB+4*(st%2)+d)}, {v(HF+2*d)}, {v(HF+2*d+1)}")
    def mfma(st, t):
        L.wait(("w", st, t, 1))
        w = vr(WB + 16 * (st % 2) + 4 * t, 4); h = vr(HB + 4 * (st % 2), 4); ac = vr(ACC + 16 * t, 16)
        k(f"v_mfma_f32_32x32x16_bf16 {ac}, {h}, {w}, {ac}" if isv else f"v_mfma_f32_32x32x16_bf16 {ac}, {w}, {h}, {ac}")
    cread(0); wread(0); cread(1)
    L.wait(("c", 0, 1)); vq.wait(("t", 0)); mix(0, 0, 8); cvt(0)
    for st in range(40):
        last = st == 39; more = st + 2 < 40
        if st in (1, 8, 16, 24, 32): probe(k, "p1", (1, 8, 16, 24, 32).index(st))
        mfma(st, 0)
        if st in (5, 34): k("s_barrier")
        if not last:
            wread(st + 1, [0])
            if more: cread(st + 2, [0])
            L.wait(("c", st + 1, 1)); vq.wait(("t", st + 1))
            mix(st + 1, 0, 3)
        mfma(st, 1)
        if not last:
            wread(st + 1, [1])
            if more: cread(st + 2, [1])
            mix(st + 1, 3, 6)
        mfma(st, 2)
        if not last:
            wread(st + 1, [2]); mix(st + 1, 6, 8); cvt(st + 1, [0, 1])
        mfma(st, 3)
        if not last:
            wread(st + 1, [3]); cvt(st + 1, [2, 3])
            n = 0
            while nxt[0] < 40 and nxt[0] <= st + 1 + DEPTH and nxt[0] - NR <= st + 1 and n < 2:
                tload(nxt[0]); nxt[0] += 1; n += 1
    k.stamp(4)
    if not isv:
        for t in range(4):
            r = ACC + 16 * t; d = TR + 8 * t
            for j in range(0, 16, 2): k(f"v_pk_mul_f32 {vr(r+j,2)}, {vr(r+j,2)}, s[60:61] op_sel_hi:[1,0]")
            for j in range(8): k(f"v_cvt_pk_bf16_f32 {v(d+j)}, {v(r+2*j)}, {v(r+2*j+1)}")
            for j in range(2):
                b = d + 4 * j
                k(f"v_permlane32_swap_b32 {v(b)}, {v(b+2)}\nv_permlane32_swap_b32 {v(b+1)}, {v(b+3)}")
                k(f"buffer_store_dwordx4 {vr(b,4)}, v5, {sr(WSR,4)}, s58 offen offset:{1024*j} {HO}")
            k("s_add_u32 s58, s58, 2048")
    else:
        for t in range(4):
            for g in range(2):
                r = ACC + 16 * t + 8 * g; d = TR + 4 * (2 * t + g)
                for j in range(4): k(f"v_cvt_pk_bf16_f32 {v(d+j)}, {v(r+2*j)}, {v(r+2*j+1)}")
                k(f"buffer_store_dwordx4 {vr(d,4)}, {v(OFF+t)}, {sr(WSR,4)}, s58 offen offset:{640*g} {HO}")

def spare_prefetch(k):
    k(f"v_lshlrev_b32 v146, 7, v1")
    dst = 64
    for ptr, nbytes in ((P_WG, 640 * 3072), (P_WU, 640 * 3072), (P_WO, 640 * 1280), (P_WMOD, 640 * 7680), (P_WD, 1536 * 1280)):
        srd(k, RB, ptr, nbytes)
        for j in range((nbytes // 8192 + 15) // 16):
            k(f"s_add_u32 s50, {s(srb)}, {16*j}\ns_lshl_b32 s50, s50, 13\nbuffer_load_dword {v(dst)}, v146, {sr(RB,4)}, s50 offen")
            dst += 1
    assert dst <= 256

def consumer01(k, after):
    mod_job(k)
    if MOD0: mod_rest0(k)
    k.stamp(1)
    sync01_consumer(k)
    k.stamp(2)
    idle, lv = k.lab("qidle"), k.lab("qv")
    k(f"s_cmp_eq_u32 {s(scb)}, 15\ns_cbranch_scc1 {idle}")
    k(f"s_cmp_ge_u32 {s(scb)}, 10\ns_cbranch_scc1 {lv}")
    qkv_consumer(k, False)
    k(f"s_branch {after}")
    k.label(lv)
    qkv_consumer(k, True)
    k(f"s_branch {after}")
    k.label(idle)
    k("s_barrier\ns_barrier\ns_barrier")
    k(f"s_branch {after}")

def producer01(k, after):
    lnw, joined, notile, nt2 = k.lab("lnw"), k.lab("pj"), k.lab("nt"), k.lab("nt2")
    k(f"s_cmp_lt_u32 {s(sw)}, 6\ns_cbranch_scc1 {lnw}")
    w7 = k.lab("w7")
    k(f"s_cmp_eq_u32 {s(sw)}, 7\ns_cbranch_scc1 {w7}")
    line_prefetch(k, P_WQKV, 640 * 3840, 2, 150)
    code_prefetch(k)
    k("s_waitcnt vmcnt(0)")
    wait_ready(k)
    k(f"s_branch {joined}")
    k.label(w7)
    B2 = os.environ.get("BATCH2", "0")
    if B2 in ("1", "2"):
        if B2 == "1":
            line_prefetch(k, P_WO, 640 * 1280, 1, 150)
            k("s_waitcnt vmcnt(0)")
        else:
            k("s_sleep 8")
            line_prefetch(k, P_WO, 640 * 1280, 1, 150)
        line_prefetch(k, P_WG, 640 * 3072, 1, 154)
        line_prefetch(k, P_WU, 640 * 3072, 1, 155)
        line_prefetch(k, P_WMOD, 640 * 7680, 3, 151)
        line_prefetch(k, P_WD, 1536 * 1280, 1, 156)
    k(f"s_branch {joined}")
    k.label(lnw)
    ln_job(k)
    probe(k, "p0", 2)
    k("s_waitcnt vmcnt(0)")
    probe(k, "p0", 3)
    k.label(joined)
    k.stamp(1)
    k("s_barrier")
    k(f"s_cmp_eq_u32 {s(scb)}, 15\ns_cbranch_scc1 {nt2}")
    wtile_setup(k)
    k(f"s_sub_u32 s59, {s(sw)}, 4")
    wtile_issue_rot(k, 35, 4)
    k.label(nt2)
    k("s_waitcnt vmcnt(0)")
    probe(k, "p0", 4)
    k("s_barrier")
    k.stamp(2)
    k("s_barrier")
    k("s_barrier")
    k(f"s_cmp_eq_u32 {s(scb)}, 15\ns_cbranch_scc1 {notile}")
    wtile_setup(k)
    k(f"s_sub_u32 s59, {s(sw)}, 4\ns_mul_i32 s59, s59, 5\ns_add_u32 s59, s59, 140")
    wtile_issue(k, 0, 5, 1, wrap=True)
    k.label(notile)
    k("s_waitcnt vmcnt(0)\ns_barrier")
    k.stamp(4)
    k(f"s_branch {after}")
```

```python
from mcommon import *
import side

SLOT = 22528
R = 4
CONST = R * SLOT
FLAG = CONST + 5120
XCH = 0
shead, sqb, sgrp = 4, 5, 6
sG, sSt, sL, sNext, sLoad, sCh, sIt, sflag = 52, 55, 58, 61, 62, 63, 3, 15

QMA, QRA, QMB, QRB = 16, 20, 22, 26
SA, SB = 28, 60
PA, PB, OA, OB, MNA, MNB = 92, 100, 108, 124, 140, 156
KM, KR, VV = 172, 180, 184
vKm0, vKr0, vV0, vVm, vKm, vKr, vV, vD = 200, 201, 202, 203, 204, 205, 206, 207
MA, MB = 210, 211
FIN = 212
vCD = 15

def ids(k):
    k(f"""s_and_b32 s48, {s(sIDX)}, 3
    s_lshl_b32 {s(shead)}, {s(sXCD)}, 2
    s_add_u32 {s(shead)}, {s(shead)}, s48
    s_lshr_b32 {s(sqb)}, {s(sIDX)}, 2
    s_lshr_b32 {s(sgrp)}, {s(sw)}, 2""")

def setup(k):
    ids(k)
    k(f"s_mul_i32 s48, {s(shead)}, 5\ns_lshr_b32 s48, s48, 1\ns_lshl_b32 s7, s48, 9")
    k("v_lshlrev_b32 v2, 4, v1")
    for i in range(3):
        k(f"s_add_u32 s48, {s(sw)}, {8*i}")
        if i == 2: k("s_cmp_ge_u32 s48, 22\ns_cselect_b32 s49, 2, 0\ns_sub_u32 s48, s48, s49")
        k(f"s_lshl_b32 {s(sL+i)}, s48, 10")
        k(f"""v_add_u32 v3, {s(sL+i)}, v2
        v_lshrrev_b32 v4, 9, v3
        v_mul_u32_u24 v4, 43, v4
        v_lshrrev_b32 v4, 7, v4
        v_mul_u32_u24 v5, 0x600, v4
        v_sub_u32 v5, v3, v5
        s_mov_b32 s49, 40960
        v_mad_u32_u24 v5, v4, s49, v5
        v_subrev_u32 v3, 0x3000, v3
        s_cmp_lt_u32 s48, 12
        s_cselect_b64 vcc, -1, 0
        v_cndmask_b32 {v(vD+i)}, v3, v5, vcc""")
        k(f"s_mul_i32 s49, {s(shead)}, 81920\ns_add_u32 s49, s49, {WS['V']}\ns_add_u32 s50, s7, {WS['KK']}")
        k(f"s_cmp_lt_u32 s48, 12\ns_cselect_b32 {s(sG+i)}, s50, s49\ns_mov_b32 s50, {8*40960}\ns_cselect_b32 {s(sSt+i)}, s50, 10240")
    k(f"""v_and_b32 v3, 31, v1
    v_lshrrev_b32 v4, 5, v1
    s_mul_i32 s48, {s(sgrp)}, 6144
    v_add_u32 {v(vKm0)}, s48, v2
    v_lshlrev_b32 v5, 4, v3
    v_lshl_add_u32 v5, v4, 3, v5
    s_add_u32 s48, s48, 1024
    v_add_u32 {v(vKr0)}, s48, v5
    v_mul_u32_u24 v5, 0x140, v4
    v_lshl_add_u32 v5, v3, 4, v5
    s_mul_i32 s48, {s(sgrp)}, 5120
    v_add_u32 v5, s48, v5
    v_mov_b32 v6, {CONST - 12288}
    v_mov_b32 v7, {CONST + 16 - 12288}
    v_cmp_lt_u32 vcc, 20, v3
    v_cndmask_b32 v6, v6, v7, vcc
    v_cmp_le_u32 vcc, 20, v3
    v_cndmask_b32 {v(vV0)}, v5, v6, vcc
    v_mov_b32 v7, 1
    v_cndmask_b32_e64 {v(vVm)}, v7, 0, vcc""")
    for j in range(16): k(f"v_mov_b32 {v(MNA+j)}, 0\nv_mov_b32 {v(MNB+j)}, 0")
    k(f"s_mov_b32 {s(sflag)}, 0")

def write_consts(k):
    k(f"""v_mov_b32 v8, 0x3f803f80
    v_mov_b32 v9, 0x3f803f80
    v_mov_b32 v10, 0x3f803f80
    v_mov_b32 v11, 0x3f803f80
    v_mov_b32 v12, 0
    v_mov_b32 v13, 0
    v_mov_b32 v14, 0
    v_mov_b32 v15, 0
    v_min_u32 v5, 7, v1
    v_mul_u32_u24 v5, 0x280, v5
    v_add_u32 v5, {CONST}, v5
    ds_write_b128 v5, v[8:11]
    ds_write_b128 v5, v[12:15] offset:16
    v_mov_b32 v5, {FLAG}
    ds_write_b32 v5, v12
    s_waitcnt lgkmcnt(0)""")

def dep_counters(k):
    k(f"""s_lshr_b32 s48, s7, 9
    s_lshr_b32 s49, s48, 4
    s_add_u32 s50, s48, 2
    s_lshr_b32 s50, s50, 4
    s_mul_i32 s51, {s(shead)}, 20
    s_add_u32 s52, s51, 19
    s_lshr_b32 s51, s51, 7
    s_lshr_b32 s52, s52, 7
    v_mov_b32 v5, s49
    v_mov_b32 v6, 1""")
    for lane, (reg, addk) in enumerate([(50, 0), (49, 5), (50, 5), (51, 10), (52, 10)], start=1):
        k(f"s_add_u32 s53, s{reg}, {addk}\nv_mov_b32 v7, s53\nv_cmp_eq_u32 vcc, {lane}, v1\nv_cndmask_b32 v5, v5, v7, vcc")
    k(f"v_add_u32 v5, {G_Q}, v5\nv_lshlrev_b32 v5, 8, v5")

def dma(k, i, sslot):
    if "nodma" in os.environ.get("AV", "") and getattr(k, "inloop", False): return
    k(f"s_add_u32 m0, {s(sL+i)}, {s(sslot)}\ns_nop 0\nbuffer_load_dwordx4 {v(vD+i)}, {sr(WSR,4)}, {s(sG+i)} offen {HL} lds")

def load_q(k):
    k(f"""s_lshl_b32 s48, {s(sqb)}, 3
    s_and_b32 s49, {s(sw)}, 3
    s_lshl_b32 s49, s49, 1
    s_add_u32 s48, s48, s49
    s_mul_i32 s48, s48, 40960
    s_add_u32 s48, s48, s7
    s_add_u32 s48, s48, {WS['Q']}
    s_add_u32 s49, s48, 40960
    v_lshlrev_b32 v2, 4, v1
    v_and_b32 v3, 31, v1
    v_lshrrev_b32 v4, 5, v1
    v_lshlrev_b32 v5, 4, v3
    v_lshl_add_u32 v5, v4, 3, v5""")
    k(f"buffer_load_dwordx4 {vr(QMA,4)}, v2, {sr(WSR,4)}, s48 offen {HL}\nbuffer_load_dwordx2 {vr(QRA,2)}, v5, {sr(WSR,4)}, s48 offen offset:1024 {HL}")
    k(f"buffer_load_dwordx4 {vr(QMB,4)}, v2, {sr(WSR,4)}, s49 offen {HL}\nbuffer_load_dwordx2 {vr(QRB,2)}, v5, {sr(WSR,4)}, s49 offen offset:1024 {HL}")
def mask_q(k):
    odd, done = k.lab("qodd"), k.lab("qdone")
    k(f"s_bitcmp1_b32 {s(shead)}, 0\ns_cbranch_scc1 {odd}")
    k("v_cmp_le_u32 vcc, 32, v1")
    for r in (QRA, QRA + 1, QRB, QRB + 1): k(f"v_cndmask_b32_e64 {v(r)}, {v(r)}, 0, vcc")
    k(f"s_branch {done}")
    k.label(odd)
    k("v_cmp_gt_u32 vcc, 32, v1")
    for r in (QMA, QMA + 1, QMB, QMB + 1): k(f"v_cndmask_b32_e64 {v(r)}, {v(r)}, 0, vcc")
    k.label(done)

def readK(k, tau, buf):
    k(f"ds_read_b128 {vr(KM+4*buf,4)}, {v(vKm)} offset:{1536*tau}\nds_read_b64 {vr(KR+2*buf,2)}, {v(vKr)} offset:{1536*tau}")
def readV(k, tau, buf):
    for g in range(2): k(f"ds_read_b128 {vr(VV+8*buf+4*g,4)}, {v(vV)} offset:{12288 + 640*(2*tau+g)}")
def S1(k, X, b, kb):
    Sx, Qm, MN = (SA, QMA, MNA) if X == 0 else (SB, QMB, MNB)
    k(f"v_mfma_f32_32x32x16_bf16 {vr(Sx+16*b,16)}, {vr(KM+4*kb,4)}, {vr(Qm,4)}, {vr(MN,16)}")
def S2(k, X, b, kb):
    Sx, Qr = (SA, QRA) if X == 0 else (SB, QRB)
    k(f"v_mfma_f32_32x32x8_bf16 {vr(Sx+16*b,16)}, {vr(KR+2*kb,2)}, {vr(Qr,2)}, {vr(Sx+16*b,16)}")
def PV(k, X, g, vb):
    O, P = (OA, PA) if X == 0 else (OB, PB)
    k(f"v_mfma_f32_32x32x16_bf16 {vr(O,16)}, {vr(VV+8*vb+4*g,4)}, {vr(P+4*g,4)}, {vr(O,16)}")
def exps(k, X, b, a0, a1):
    Sx = (SA if X == 0 else SB) + 16 * b
    for j in range(a0, a1): k(f"v_exp_f32 {v(Sx+j)}, {v(Sx+j)}")
def cvts(k, X, b, a0, a1):
    Sx = (SA if X == 0 else SB) + 16 * b; P = PA if X == 0 else PB
    for j in range(a0, a1): k(f"v_cvt_pk_bf16_f32 {v(P+j)}, {v(Sx+2*j)}, {v(Sx+2*j+1)}")

def stream_start(k, with_q=False):
    k(f"s_mul_i32 s48, {s(shead)}, 81920\ns_add_u32 s49, s48, {WS['V']}\ns_add_u32 s50, s7, {WS['KK']}")
    for i in range(3):
        k(f"s_cmp_eq_u32 {s(sSt+i)}, 10240\ns_cselect_b32 {s(sG+i)}, s49, s50")
    k(f"s_mov_b32 {s(sLoad)}, 0")
    for i in range(3): dma(k, i, sLoad)
    if with_q:
        first = k.lab("hasq")
        k(f"s_cmp_lg_u32 {s(sflag)}, 0\ns_cbranch_scc1 {first}")
        load_q(k)
        k.label(first)
    for i in range(3): k(f"s_add_u32 {s(sG+i)}, {s(sG+i)}, {s(sSt+i)}")
    k(f"s_mov_b32 {s(sLoad)}, {SLOT}")
    for i in range(3): dma(k, i, sLoad)
    k("s_waitcnt vmcnt(3)")
    if with_q:
        first = k.lab("hasq")
        k(f"s_cmp_lg_u32 {s(sflag)}, 0\ns_cbranch_scc1 {first}")
        mask_q(k)
        k.label(first)
    k(f"v_mov_b32 {v(vKm)}, {v(vKm0)}\nv_mov_b32 {v(vKr)}, {v(vKr0)}\nv_mov_b32 {v(vV)}, {v(vV0)}")
    k("s_barrier")
    for i in range(3): k(f"s_add_u32 {s(sG+i)}, {s(sG+i)}, {s(sSt+i)}")
    k(f"s_mov_b32 {s(sLoad)}, {2*SLOT}\ns_mov_b32 {s(sNext)}, {SLOT}\ns_mov_b32 {s(sCh)}, 2")
    dma(k, 0, sLoad); dma(k, 1, sLoad)

def switch_k(k):
    k(f"v_add_u32 {v(vKm)}, {s(sNext)}, {v(vKm0)}\nv_add_u32 {v(vKr)}, {s(sNext)}, {v(vKr0)}")
def next_load(k):
    k(f"s_add_u32 {s(sCh)}, {s(sCh)}, 1\ns_cmp_le_u32 {s(sCh)}, 7")
    for i in range(3): k(f"s_cselect_b32 s48, {s(sSt+i)}, 0\ns_add_u32 {s(sG+i)}, {s(sG+i)}, s48\ns_cmp_le_u32 {s(sCh)}, 7")
    k(f"s_add_u32 {s(sLoad)}, {s(sLoad)}, {SLOT}\ns_cmp_ge_u32 {s(sLoad)}, {R*SLOT}\ns_cselect_b32 s48, {R*SLOT}, 0\ns_sub_u32 {s(sLoad)}, {s(sLoad)}, s48")
def advance(k):
    switch_k(k); next_load(k)

def next_slot(k):
    k(f"s_add_u32 {s(sNext)}, {s(sNext)}, {SLOT}\ns_cmp_ge_u32 {s(sNext)}, {R*SLOT}\ns_cselect_b32 s48, {R*SLOT}, 0\ns_sub_u32 {s(sNext)}, {s(sNext)}, s48")

sEv = 98
def cd_step(k, step):
    done = k.lab("cds")
    k(f"s_cmp_lg_u32 {s(sw)}, 0\ns_cbranch_scc1 {done}")
    if step == 1: k("s_waitcnt vmcnt(2)")
    if step == 2: k("s_waitcnt vmcnt(1)")
    if step > 0:
        k(f"v_readfirstlane_b32 s48, {v(vCD)}\ns_cmp_lg_u32 s48, 15\ns_cbranch_scc1 {done + 'n'}")
    if step == 0: k(f"s_and_b32 s48, s2, 15\ns_add_u32 s48, s48, {C_D}\ns_lshl_b32 s48, s48, 8\ns_add_u32 s48, s48, {WS['CNT']}")
    else: k(f"s_mov_b32 s48, {WS['CNT'] + (R_D if step == 1 else G_D)*CSTRIDE}")
    k(f"v_mov_b32 v2, 0\nv_mov_b32 {v(vCD)}, 1\ns_mov_b64 exec, 1")
    if step < 2: k(f"buffer_atomic_add {v(vCD)}, v2, {sr(WSR,4)}, s48 offen sc0 sc1")
    else: k(f"buffer_store_dword {v(vCD)}, v2, {sr(WSR,4)}, s48 offen sc0 sc1")
    k(f"s_mov_b64 exec, -1\ns_branch {done}")
    if step > 0:
        k.label(done + "n")
        k(f"v_mov_b32 {v(vCD)}, 0")
    k.label(done)

def main_pass(k):
    stream_start(k, True)
    for j in range(16): k(f"v_mov_b32 {v(OA+j)}, 0\nv_mov_b32 {v(OB+j)}, 0")
    for j in range(4): k(f"v_mov_b32 {v(PB+4+j)}, 0\nv_mov_b32 {v(VV+12+j)}, 0")
    readK(k, 0, 0); readV(k, 0, 0); readK(k, 1, 1)
    k("s_waitcnt lgkmcnt(4)")
    S1(k, 0, 0, 0); S1(k, 1, 0, 0); S2(k, 0, 0, 0); S2(k, 1, 0, 0)
    k.stamp(6)
    side.keep_src(k)
    k(f"s_mov_b32 {s(sIt)}, 0")
    k(f"s_cmp_eq_u32 {s(sflag)}, 0\ns_cselect_b32 {s(sEv)}, 1, 0")
    loop = k.lab("aloop")
    events = []
    def event(table):
        go, back = k.lab("ev"), k.lab("evb")
        mask = sum(1 << it for it in table)
        k(f"s_and_b32 s48, {s(sEv)}, {mask}\ns_cbranch_scc1 {go}")
        k.label(back)
        def body():
            items = list(table.items())
            for n, (it, fn) in enumerate(items):
                if n < len(items) - 1:
                    nxt = k.lab("evn")
                    k(f"s_cmp_lg_u32 {s(sIt)}, {it}\ns_cbranch_scc1 {nxt}")
                    fn(); k(f"s_branch {back}")
                    k.label(nxt)
                else:
                    fn()
        events.append((go, back, body))
    k.label(loop)
    k.inloop = True
    for j in range(4):
        b, nb = j % 2, (j + 1) % 2
        AV = os.environ.get("AV", "")
        if "noprio" not in AV: k(f"s_setprio {3 - ((j - 2) % 4)}")
        k("s_waitcnt lgkmcnt(0)")
        if j == 2:
            early, wd = k.lab("early"), k.lab("earlyd")
            k(f"s_cmp_lt_u32 {s(sIt)}, 2\ns_cbranch_scc1 {early}\ns_waitcnt vmcnt(0)")
            k.label(wd)
            def early_wait():
                nf = k.lab("nf")
                k(f"s_cmp_eq_u32 {s(sflag)}, 0\ns_cbranch_scc1 {nf}\ns_waitcnt vmcnt(3)\ns_branch {wd}")
                k.label(nf); k(f"s_waitcnt vmcnt({3 + side.NSIDE})")
            events.append((early, wd, early_wait))
            k("s_barrier")
            event({5: lambda: cd_step(k, 0), 6: lambda: cd_step(k, 2)})
            switch_k(k)
            sk = k.lab("sk2")
            k(f"s_cmp_eq_u32 {s(sIt)}, 1\ns_cbranch_scc1 {sk}")
            next_load(k); dma(k, 0, sLoad)
            k.label(sk)
        if j == 3:
            k(f"v_mad_u32_u24 {v(vV)}, {v(vVm)}, {s(sNext)}, {v(vV0)}")
            sk = k.lab("sk3")
            k(f"s_cmp_eq_u32 {s(sIt)}, 1\ns_cbranch_scc1 {sk}")
            dma(k, 1, sLoad)
            k.label(sk)
            next_slot(k)
            event({1: lambda: side.mod_issue(k), 2: lambda: side.issue(k), 3: lambda: side.tr_read(k)})
        if j == 0:
            event({4: lambda: side.stores(k), 6: lambda: cd_step(k, 1)})
            sk = k.lab("sk0")
            k(f"s_cmp_eq_u32 {s(sIt)}, 2\ns_cbranch_scc1 {sk}")
            dma(k, 2, sLoad)
            k.label(sk)
        if j == 1:
            event({0: lambda: side.warm(k), 2: lambda: side.mod_finish(k)})
        S1(k, 0, nb, nb); readK(k, (j + 2) % 4, b); exps(k, 0, b, 0, 4)
        PV(k, 1, 1, nb); exps(k, 0, b, 4, 8); cvts(k, 0, b, 0, 4)
        S2(k, 0, nb, nb); readV(k, (j + 1) % 4, nb); exps(k, 0, b, 8, 12)
        PV(k, 0, 0, b); exps(k, 0, b, 12, 16); cvts(k, 0, b, 4, 8)
        S1(k, 1, nb, nb); exps(k, 1, b, 0, 4)
        PV(k, 0, 1, b); exps(k, 1, b, 4, 8); cvts(k, 1, b, 0, 4)
        S2(k, 1, nb, nb); exps(k, 1, b, 8, 12)
        PV(k, 1, 0, b); exps(k, 1, b, 12, 16); cvts(k, 1, b, 4, 8)
    k.inloop = False
    k(f"s_lshl_b32 {s(sEv)}, {s(sEv)}, 1\ns_add_u32 {s(sIt)}, {s(sIt)}, 1\ns_cmp_lt_u32 {s(sIt)}, 8\ns_cbranch_scc1 {loop}")
    over = k.lab("evover")
    k(f"s_branch {over}")
    for go, back, fn in events:
        k.label(go); fn(); k(f"s_branch {back}")
    k.label(over)
    PV(k, 1, 1, 1)
    k("s_setprio 0\ns_waitcnt vmcnt(0) lgkmcnt(0)\ns_barrier")

def max_pass(k):
    for j in range(16): k(f"v_mov_b32 {v(MNA+j)}, 0\nv_mov_b32 {v(MNB+j)}, 0")
    stream_start(k)
    k(f"v_mov_b32 {v(MA)}, 0xff800000\nv_mov_b32 {v(MB)}, 0xff800000\ns_mov_b32 {s(sIt)}, 0")
    loop = k.lab("mloop")
    k.label(loop)
    dma(k, 2, sLoad)
    for j in range(4):
        readK(k, j, 0)
        k("s_waitcnt lgkmcnt(0)")
        S1(k, 0, 0, 0); S1(k, 1, 0, 0); S2(k, 0, 0, 0); S2(k, 1, 0, 0)
        for a in range(0, 16, 2): k(f"v_max3_f32 {v(MA)}, {v(SA+a)}, {v(SA+a+1)}, {v(MA)}")
        for a in range(0, 16, 2): k(f"v_max3_f32 {v(MB)}, {v(SB+a)}, {v(SB+a+1)}, {v(MB)}")
    k("s_waitcnt vmcnt(3)\ns_barrier")
    advance(k); dma(k, 0, sLoad); dma(k, 1, sLoad); next_slot(k)
    k(f"s_add_u32 {s(sIt)}, {s(sIt)}, 1\ns_cmp_lt_u32 {s(sIt)}, 8\ns_cbranch_scc1 {loop}")
    k("s_waitcnt vmcnt(0) lgkmcnt(0)\ns_barrier")
    for M in (MA, MB):
        k(f"v_mov_b32 v2, {v(M)}\nv_permlane32_swap_b32 v2, {v(M)}\nv_max_f32 {v(M)}, v2, {v(M)}")
    k(f"s_lshl_b32 s48, {s(sw)}, 9\nv_lshlrev_b32 v2, 3, v1\nv_add_u32 v3, s48, v2\nds_write_b64 v3, {vr(MA,2)}\ns_waitcnt lgkmcnt(0)\ns_barrier")
    k(f"s_xor_b32 s48, {s(sw)}, 4\ns_lshl_b32 s48, s48, 9\nv_add_u32 v3, s48, v2\nds_read_b64 v[4:5], v3\ns_waitcnt lgkmcnt(0)")
    k(f"v_max_f32 v4, v4, {v(MA)}\nv_max_f32 v5, v5, {v(MB)}\nv_sub_f32 v4, 0, v4\nv_sub_f32 v5, 0, v5")
    for j in range(16): k(f"v_mov_b32 {v(MNA+j)}, v4\nv_mov_b32 {v(MNB+j)}, v5")
    k("s_barrier")

def merge(k):
    g1, sent, g1b, got = k.lab("mg1"), k.lab("msent"), k.lab("mg1b"), k.lab("mgot")
    k(f"s_mul_i32 s48, {s(sw)}, 3072\nv_lshlrev_b32 v2, 4, v1\nv_add_u32 v3, s48, v2")
    k(f"s_cmp_eq_u32 {s(sgrp)}, 1\ns_cbranch_scc1 {g1}")
    for j in range(3): k(f"ds_write_b128 v3, {vr(OB+4*j,4)} offset:{1024*j}")
    k(f"s_branch {sent}")
    k.label(g1)
    for j in range(3): k(f"ds_write_b128 v3, {vr(OA+4*j,4)} offset:{1024*j}")
    k.label(sent)
    k(f"s_waitcnt lgkmcnt(0)\ns_barrier\ns_xor_b32 s48, {s(sw)}, 4\ns_mul_i32 s48, s48, 3072\nv_add_u32 v3, s48, v2")
    for j in range(3): k(f"ds_read_b128 {vr(FIN+4*j,4)}, v3 offset:{1024*j}")
    k("s_waitcnt lgkmcnt(0)")
    k(f"s_cmp_eq_u32 {s(sgrp)}, 1\ns_cbranch_scc1 {g1b}")
    for j in range(12): k(f"v_add_f32 {v(FIN+j)}, {v(FIN+j)}, {v(OA+j)}")
    k(f"s_branch {got}")
    k.label(g1b)
    for j in range(12): k(f"v_add_f32 {v(FIN+j)}, {v(FIN+j)}, {v(OB+j)}")
    k.label(got)
    k(f"v_mov_b32 v2, {v(FIN+8)}\nv_mov_b32 {v(FIN+12)}, {v(FIN+8)}\nv_permlane32_swap_b32 v2, {v(FIN+12)}")

def attention(k):
    again, fin, good = k.lab("again"), k.lab("fin"), k.lab("good")
    k.label(again)
    main_pass(k)
    k.stamp(7)
    merge(k)
    k(f"s_cmp_lg_u32 {s(sflag)}, 0\ns_cbranch_scc1 {fin}")
    k(f"v_add_f32 v2, |{v(FIN)}|, |{v(FIN+1)}|")
    for j in range(2, 12): k(f"v_add_f32 v2, v2, |{v(FIN+j)}|")
    k(f"""v_mov_b32 v3, {hex(f32bits(2.0**-80))}
    v_mov_b32 v4, {hex(f32bits(2.0**100))}
    v_mov_b32 v5, 0x7f800000
    v_cmp_le_f32 s[48:49], v3, {v(FIN+12)}
    v_cmp_ge_f32 s[50:51], v4, {v(FIN+12)}
    v_cmp_lt_f32 vcc, v2, v5
    s_and_b64 s[48:49], s[48:49], s[50:51]
    s_and_b64 s[48:49], s[48:49], vcc
    s_cmp_eq_u64 s[48:49], exec
    s_cbranch_scc1 {good}""")
    k(f"v_mov_b32 v2, {FLAG}\nv_mov_b32 v3, 1\nds_write_b32 v2, v3")
    k.label(good)
    k(f"s_waitcnt lgkmcnt(0)\ns_barrier\nv_mov_b32 v2, {FLAG}\nds_read_b32 v3, v2\ns_waitcnt lgkmcnt(0)\nv_readfirstlane_b32 s48, v3")
    k(f"s_cmp_eq_u32 s48, 0\ns_cbranch_scc1 {fin}")
    max_pass(k)
    k(f"s_mov_b32 {s(sflag)}, 1\ns_branch {again}")
    k.label(fin)
    k(f"v_rcp_f32 v2, {v(FIN+12)}")
    for j in range(12): k(f"v_mul_f32 {v(FIN+j)}, v2, {v(FIN+j)}")
    for j in range(6): k(f"v_cvt_pk_bf16_f32 {v(PA+j)}, {v(FIN+2*j)}, {v(FIN+2*j+1)}")
    k(f"v_permlane32_swap_b32 {v(PA)}, {v(PA+2)}\nv_permlane32_swap_b32 {v(PA+1)}, {v(PA+3)}")
    k(f"""v_and_b32 v2, 31, v1
    v_lshrrev_b32 v3, 4, v2
    v_mul_u32_u24 v3, 0x5000, v3
    v_and_b32 v4, 15, v2
    v_lshl_add_u32 v3, v4, 4, v3
    v_lshrrev_b32 v5, 5, v1
    v_lshl_add_u32 v5, v5, 8, v3
    s_lshl_b32 s48, {s(sqb)}, 3
    s_and_b32 s49, {s(sw)}, 3
    s_lshl_b32 s49, s49, 1
    s_add_u32 s48, s48, s49
    s_add_u32 s48, s48, {s(sgrp)}
    s_lshl_b32 s48, s48, 1
    s_mul_i32 s48, s48, 0x5000
    s_add_u32 s48, s48, {WS['O']}
    s_lshr_b32 s49, {s(shead)}, 1
    s_mul_i32 s49, s49, 1280
    s_add_u32 s48, s48, s49
    s_and_b32 s50, {s(shead)}, 1
    s_lshl_b32 s51, s50, 9
    s_add_u32 s51, s51, s48
    s_lshl_b32 s50, s50, 3
    s_add_u32 s50, s50, s48
    s_add_u32 s50, s50, 1024""")
    k(f"buffer_store_dwordx4 {vr(PA,4)}, v5, {sr(WSR,4)}, s51 offen {HO}")
    k("v_cmp_gt_u32 vcc, 32, v1\ns_and_saveexec_b64 s[48:49], vcc")
    k(f"buffer_store_dwordx2 {vr(PA+4,2)}, v3, {sr(WSR,4)}, s50 offen {HO}")
    k("s_mov_b64 exec, s[48:49]")
```

```python
from mcommon import *

srb, scb = 4, 5
grb, gfb = 6, 7
WO_L = 49152
VEC3 = WO_L + 102400
GCH, GSLOT = 24576, 6
UBL = GSLOT * GCH
DCH = 20480
DSLOT = [0, 20480, 98304, 118784, 49152, 69632, 139264]
VEC5 = 159744
X1 = 246

def ids(k):
    if os.environ.get("MAP35", "48") == "84":
        k(f"""s_lshr_b32 s48, {s(sXCD)}, 1
        s_lshl_b32 s48, s48, 3
        s_and_b32 s49, {s(sIDX)}, 7
        s_add_u32 {s(srb)}, s48, s49
        s_and_b32 s48, {s(sXCD)}, 1
        s_lshl_b32 s48, s48, 2
        s_lshr_b32 s49, {s(sIDX)}, 3
        s_add_u32 {s(scb)}, s48, s49""")
    else:
        k(f"""s_lshl_b32 s48, {s(sXCD)}, 2
        s_and_b32 s49, {s(sIDX)}, 3
        s_add_u32 {s(srb)}, s48, s49
        s_lshr_b32 {s(scb)}, {s(sIDX)}, 2""")
    k(f"""    s_and_b32 s48, {s(sXCD)}, 1
    s_lshl_b32 s48, s48, 3
    s_and_b32 s49, {s(sIDX)}, 7
    s_add_u32 {s(grb)}, s48, s49
    s_lshr_b32 s48, {s(sXCD)}, 1
    s_lshl_b32 s48, s48, 2
    s_lshr_b32 s49, {s(sIDX)}, 3
    s_add_u32 {s(gfb)}, s48, s49""")

def wo_prefetch(k):
    k(f"s_mul_i32 s52, {s(scb)}, 102400\ns_add_u32 s52, s52, {WS['WO']}\ns_sub_u32 s53, {s(sw)}, 1\ns_lshl_b32 s53, s53, 10\ns_add_u32 s52, s52, s53\ns_add_u32 s53, s53, {WO_L}")
    k(f"v_lshlrev_b32 v9, 4, v1\ns_sub_u32 s54, {s(sw)}, 1")
    loop = k.lab("wop")
    k.label(loop)
    k(f"s_mov_b32 m0, s53\ns_add_u32 s53, s53, 7168\nbuffer_load_dwordx4 v9, {sr(WSR,4)}, s52 offen {HL} lds")
    k(f"s_add_u32 s52, s52, 7168\ns_add_u32 s54, s54, 7\ns_cmp_lt_u32 s54, 100\ns_cbranch_scc1 {loop}")

def vec_load(k, chunks, dst):
    n = len(chunks)
    k("s_movk_i32 s52, 3277\nv_mul_u32_u24 v6, s52, v1\nv_lshrrev_b32 v6, 16, v6\nv_mad_i32_i24 v7, v6, -16, v1\nv_mad_i32_i24 v7, v6, -4, v7")
    k(f"v_mov_b32 v8, {chunks[0][0]*2560}\nv_mov_b32 v10, {'1.0' if chunks[0][1] else '0'}")
    for j in range(1, n):
        k(f"v_cmp_eq_u32 vcc, {j}, v6\nv_mov_b32 v9, {chunks[j][0]*2560}\nv_cndmask_b32 v8, v8, v9, vcc\nv_mov_b32 v9, {'1.0' if chunks[j][1] else '0'}\nv_cndmask_b32 v10, v10, v9, vcc")
    k(f"s_mul_i32 s52, {s(scb)}, 320\ns_add_u32 s52, s52, {WS['MOD']}\nv_lshl_add_u32 v8, v7, 4, v8")
    k(f"buffer_load_dwordx4 v[12:15], v8, {sr(WSR,4)}, s52 offen {HL}\ns_waitcnt vmcnt(0)")
    for j in range(4): k(f"v_add_f32 {v(12+j)}, {v(12+j)}, v10")
    k(f"v_lshlrev_b32 v9, 4, v1\nv_add_u32 v9, {dst}, v9\nv_cmp_gt_u32 vcc, {20*n}, v1\ns_and_saveexec_b64 s[52:53], vcc\nds_write_b128 v9, v[12:15]\ns_mov_b64 exec, s[52:53]\ns_waitcnt lgkmcnt(0)")

UBS = 152576
def ub_job(k):
    skip = k.lab("noub")
    k(f"s_cmp_ge_u32 s2, 240\ns_cbranch_scc1 {skip}")
    k(f"s_sub_u32 s54, {s(sw)}, 4\ns_lshl_b32 s52, s2, 2\ns_add_u32 s52, s52, s54")
    sdiv(k, 53, 52, 10)
    k("s_mul_i32 s55, s53, 10\ns_sub_u32 s52, s52, s55")
    sdiv(k, 55, 53, 6)
    k("s_mul_i32 s56, s55, 6\ns_sub_u32 s56, s53, s56")
    k(f"s_mul_i32 s57, s55, {40*6144}\ns_mul_i32 s58, s52, {4*6144}\ns_add_u32 s57, s57, s58\ns_lshl_b32 s58, s56, 10\ns_add_u32 s57, s57, s58\ns_add_u32 s57, s57, {WS['WGU']}")
    k("v_lshlrev_b32 v9, 4, v1")
    for st in range(4): k(f"buffer_load_dwordx4 {vr(32+4*st,4)}, v9, {sr(WSR,4)}, s57 offen {HL}\ns_add_u32 s57, s57, 6144")
    k(f"""v_and_b32 v3, 31, v1
    v_lshrrev_b32 v4, 5, v1
    v_cmp_eq_u32 vcc, 0, v3
    v_mov_b32 v10, {3*2560}
    v_mov_b32 v6, {4*2560}
    v_cndmask_b32 v10, v10, v6, vcc
    v_lshl_add_u32 v10, v4, 5, v10
    v_mov_b32 v6, 0
    v_cndmask_b32_e64 v6, v6, 1.0, vcc
    s_lshl_b32 s58, s52, 8
    s_add_u32 s58, s58, {WS['MOD']}""")
    for st in range(4):
        k(f"buffer_load_dwordx4 {vr(72+8*st,4)}, v10, {sr(WSR,4)}, s58 offen offset:{64*st} {HL}\nbuffer_load_dwordx4 {vr(76+8*st,4)}, v10, {sr(WSR,4)}, s58 offen offset:{64*st+16} {HL}")
    for j in range(16): k(f"v_mov_b32 {v(16+j)}, 0")
    k("s_waitcnt vmcnt(0)")
    for st in range(4):
        b = 72 + 8 * st
        for j in range(8): k(f"v_add_f32 {v(b+j)}, {v(b+j)}, v6")
        for j in range(4): k(f"v_cvt_pk_bf16_f32 {v(b+j)}, {v(b+2*j)}, {v(b+2*j+1)}")
        k(f"v_mfma_f32_32x32x16_bf16 v[16:31], {vr(32+4*st,4)}, {vr(b,4)}, v[16:31]")
    k(f"s_lshl_b32 s58, s54, 8\ns_add_u32 s58, s58, {UBS}\nv_lshlrev_b32 v8, 4, v4\nv_lshl_add_u32 v8, v3, 7, v8\nv_add_u32 v8, s58, v8")
    k("v_cmp_gt_u32 vcc, 2, v3\ns_and_saveexec_b64 s[60:61], vcc")
    for a_ in range(4): k(f"ds_write_b128 v8, {vr(16+4*a_,4)} offset:{32*a_}")
    k("s_mov_b64 exec, s[60:61]\ns_waitcnt lgkmcnt(0)")
    k("v_lshlrev_b32 v8, 2, v1\nv_add_u32 v9, s58, v8\nds_read_b32 v10, v9")
    k(f"s_mov_b32 s57, {hex(f32bits(-LOG2E))}\ns_cmp_lt_u32 s56, 3\ns_cselect_b32 s57, s57, 1.0\ns_lshl_b32 s58, s53, 8\ns_add_u32 s58, s58, {WS['UB']}")
    k("s_waitcnt lgkmcnt(0)\nv_mul_f32 v10, s57, v10")
    k(f"buffer_atomic_add_f32 v10, v8, {sr(WSR,4)}, s58 offen\ns_waitcnt vmcnt(0)")
    k.label(skip)

ACC, TR, WB = 16, 40, 104
NR, PRE, DEPTH = 16, 6, 10
E = lambda n, d: int(os.environ.get(n, d))
PRE5, DEP5, PRE4, DEP4, AH4 = E('PRE5', 6), E('DEP5', 10), E('PRE4', 6), E('DEP4', 10), E('AH4', 3)

def n640_addr(k):
    k("v_and_b32 v3, 15, v1\nv_lshrrev_b32 v4, 4, v1\nv_lshlrev_b32 v5, 4, v1")
    k(f"s_lshl_b32 s15, {s(srb)}, 2\ns_add_u32 s15, s15, {s(sw)}")
    k(f"s_lshl_b32 s52, s15, 4\nv_add_u32 v6, s52, v3\ns_movk_i32 s52, 1280\nv_mul_u32_u24 v6, s52, v6")
    k(f"s_mul_i32 s52, {s(scb)}, 160\nv_lshl_add_u32 v6, v4, 3, v6\nv_add_u32 v6, s52, v6")
    k("v_add_u32 v8, 0x10000, v5\nv_add_u32 v9, 0x20000, v5")

ROT5 = int(os.environ.get("ROT5", "0"))
def rot5(k, dst):
    k(f"s_lshr_b32 {s(dst)}, {s(sIDX)}, 3\ns_mul_i32 {s(dst)}, {s(dst)}, {ROT5}")

def n640_loop(k, NS, tbase, waddr, barrier_steps, pre_hook=None, PRE=PRE, rot=False, DEPTH=DEPTH):
    vq = Q(k, "vmcnt"); L = Q(k, "lgkmcnt")
    k(f"s_mul_i32 s53, s15, {NS*1024}\ns_add_u32 s53, s53, {WS[tbase]}")
    R = Rot(k, 55, 56, 57, NS, 1024)
    if rot:
        rot5(k, 58); R.setup(53, 58)
    def tload(st):
        if rot: R.addr(54, st)
        else: k(f"s_add_u32 s54, s53, {st*1024}")
        k(f"buffer_load_dwordx4 {vr(TR+4*(st%NR),4)}, v5, {sr(WSR,4)}, s54 offen {HL}"); vq.add(("t", st))
    for st in range(PRE): tload(st)
    if pre_hook: pre_hook(vq)
    nxt = [PRE]
    for j in range(20): k(f"v_mov_b32 {v(ACC+j)}, 0")
    def wread(st, ts=range(5)):
        for t in ts:
            a_ = waddr(st) + 1024 * t
            k(f"ds_read_b128 {vr(WB+20*(st%2)+4*t,4)}, {v([5,8,9][a_ >> 16])} offset:{a_ & 0xffff}"); L.add((st, t))
    wread(0)
    for st in range(NS):
        last = st == NS - 1
        if NS == 48 and st in (1, 8, 20, 32, 40): probe(k, "p5", (1, 8, 20, 32, 40).index(st))
        vq.wait(("t", st))
        for t in range(5):
            L.wait((st, t))
            ac = vr(ACC + 4 * t, 4)
            k(f"v_mfma_f32_16x16x32_bf16 {ac}, {vr(WB+20*(st%2)+4*t,4)}, {vr(TR+4*(st%NR),4)}, {ac}")
            if not last:
                if t == 0 and (st + 1) in barrier_steps: k("s_barrier")
                wread(st + 1, [t])
        n = 0
        while nxt[0] < NS and nxt[0] <= st + DEPTH and nxt[0] - NR <= st and n < 2:
            tload(nxt[0]); nxt[0] += 1; n += 1
    return vq

def wo_consumer(k):
    n640_addr(k)
    XR, XS = 144, 154
    XRES = os.environ.get("XRES", "1") == "1"
    if XRES:
        k(f"""s_lshr_b32 s56, s15, 1
        s_mul_i32 s56, s56, 40960
        s_mul_i32 s57, {s(scb)}, 5120
        s_add_u32 s56, s56, s57
        s_and_b32 s57, s15, 1
        s_lshl_b32 s57, s57, 8
        s_add_u32 s56, s56, s57
        s_add_u32 s59, s56, {WS['XN']}
        v_lshrrev_b32 v11, 1, v4
        v_lshlrev_b32 v11, 9, v11
        v_lshl_add_u32 v11, v3, 4, v11
        v_and_b32 v12, 1, v4
        v_lshl_add_u32 v11, v12, 3, v11
        s_lshl_b32 s60, s15, 7
        s_add_u32 s60, s60, {WS['LNST']}
        v_lshlrev_b32 v12, 3, v3""")
        def xload(vq):
            for t in range(5):
                k(f"s_add_u32 s56, s59, {1024*t}\nbuffer_load_dwordx2 {vr(XR+2*t,2)}, v11, {sr(WSR,4)}, s56 offen {HL}"); vq.add(("x", t))
            k(f"buffer_load_dwordx2 {vr(XS,2)}, v12, {sr(WSR,4)}, s60 offen {HL}"); vq.add(("x", 5))
    else:
        srd(k, RA, P_X, 2048 * 1280)
        def xload(vq):
            for t in range(5):
                k(f"buffer_load_dwordx2 {vr(XR+2*t,2)}, v6, {sr(RA,4)}, 0 offen offset:{32*t}"); vq.add(("x", t))
    vq = n640_loop(k, 20, "O", lambda st: WO_L + st * 5120, (), xload, PRE=14, DEPTH=15)
    k.stamp(9)
    if "3" in os.environ.get("EARLY", ""): k("s_barrier")
    k(f"v_lshlrev_b32 v10, 4, v4\nv_add_u32 v10, {VEC3}, v10")
    G, C1, T = 48, 68, 160
    for t in range(5): k(f"ds_read_b128 {vr(G+4*t,4)}, v10 offset:{64*t}")
    for t in range(5): k(f"ds_read_b128 {vr(C1+4*t,4)}, v10 offset:{320+64*t}")
    for t in range(5):
        for d in range(2):
            if XRES:
                for o in range(2):
                    k(f"v_fma_mix_f32 {v(T+4*t+2*d+o)}, {v(XR+2*t+d)}, {v(XS+1)}, {v(XS)} op_sel:[{o},0,0] op_sel_hi:[1,0,0]")
            else:
                k(f"v_lshlrev_b32 {v(T+4*t+2*d)}, 16, {v(XR+2*t+d)}\nv_and_b32 {v(T+4*t+2*d+1)}, 0xffff0000, {v(XR+2*t+d)}")
    k("s_waitcnt lgkmcnt(5)")
    for j in range(20): k(f"v_fmac_f32 {v(T+j)}, {v(G+j)}, {v(ACC+j)}")
    k("s_waitcnt lgkmcnt(0)")
    for j in range(20): k(f"v_mul_f32 {v(C1+j)}, {v(C1+j)}, {v(T+j)}")
    Yp = 48
    for t in range(5): k(f"v_cvt_pk_bf16_f32 {v(Yp+2*t)}, {v(C1+4*t)}, {v(C1+4*t+1)}\nv_cvt_pk_bf16_f32 {v(Yp+2*t+1)}, {v(C1+4*t+2)}, {v(C1+4*t+3)}")
    k(f"v_mov_b32 {v(Yp+10)}, {v(Yp+8)}\nv_mov_b32 {v(Yp+11)}, {v(Yp+9)}")
    k(f"""s_lshr_b32 s52, s15, 1
    s_mul_i32 s52, s52, 40960
    s_mul_i32 s53, {s(scb)}, 5120
    s_add_u32 s52, s52, s53
    s_and_b32 s53, s15, 1
    s_lshl_b32 s53, s53, 8
    s_add_u32 s52, s52, s53
    s_add_u32 s52, s52, {WS['Y']}
    v_and_b32 v11, 1, v4
    v_lshlrev_b32 v11, 10, v11
    v_lshrrev_b32 v12, 1, v4
    v_lshl_add_u32 v11, v12, 9, v11
    v_lshl_add_u32 v11, v3, 4, v11""")
    for pr in range(3):
        b = Yp + 4 * pr
        k(f"v_permlane16_swap_b32 {v(b)}, {v(b+2)}\nv_permlane16_swap_b32 {v(b+1)}, {v(b+3)}")
    for pr in range(2):
        k(f"buffer_store_dwordx4 {vr(Yp+4*pr,4)}, v11, {sr(WSR,4)}, s52 offen offset:{2048*pr} {HO}")
    k("s_add_u32 s52, s52, 4096\nv_and_b32 v12, 1, v4\nv_cmp_eq_u32 vcc, 0, v12\ns_and_saveexec_b64 s[54:55], vcc")
    k(f"buffer_store_dwordx4 {vr(Yp+8,4)}, v11, {sr(WSR,4)}, s52 offen {HO}")
    k("s_mov_b64 exec, s[54:55]")
    for t in range(5): k(f"v_cvt_pk_bf16_f32 {v(X1+2*t)}, {v(T+4*t)}, {v(T+4*t+1)}\nv_cvt_pk_bf16_f32 {v(X1+2*t+1)}, {v(T+4*t+2)}, {v(T+4*t+3)}")
    k(f"v_add_f32 v12, {v(T)}, {v(T+1)}")
    for j in range(2, 20): k(f"v_add_f32 v12, v12, {v(T+j)}")
    red_q(k, 12, 14, 15)
    k(f"v_mul_f32 v14, {hex(f32bits(-1.0/80))}, v12\nv_mov_b32 v13, 0")
    for j in range(20): k(f"v_add_f32 {v(T+j)}, v14, {v(T+j)}\nv_fmac_f32 v13, {v(T+j)}, {v(T+j)}")
    red_q(k, 13, 14, 15)
    k(f"s_lshl_b32 s52, s15, 10\ns_lshl_b32 s53, {s(scb)}, 3\ns_add_u32 s52, s52, s53\ns_add_u32 s52, s52, {WS['STATS']}\nv_lshlrev_b32 v14, 6, v3")
    k("v_cmp_gt_u32 vcc, 16, v1\ns_and_saveexec_b64 s[54:55], vcc")
    k(f"buffer_store_dwordx2 v[12:13], v14, {sr(WSR,4)}, s52 offen {HO}")
    k("s_mov_b64 exec, s[54:55]")

def down_consumer(k):
    n640_addr(k)
    waddr = lambda st: DSLOT[(st // 4) % 7] + (st % 4) * 5120
    n640_loop(k, 48, "HH", waddr, set(range(4, 48, 4)), rot=ROT5 > 0, PRE=PRE5, DEPTH=DEP5)
    k.stamp(17)
    k(f"v_lshlrev_b32 v10, 4, v4\nv_add_u32 v10, {VEC5}, v10")
    G, T = 48, 160
    for t in range(5): k(f"ds_read_b128 {vr(G+4*t,4)}, v10 offset:{64*t}")
    for t in range(5):
        for d in range(2):
            k(f"v_lshlrev_b32 {v(T+4*t+2*d)}, 16, {v(X1+2*t+d)}\nv_and_b32 {v(T+4*t+2*d+1)}, 0xffff0000, {v(X1+2*t+d)}")
    k("s_waitcnt lgkmcnt(0)")
    for j in range(20): k(f"v_fmac_f32 {v(T+j)}, {v(G+j)}, {v(ACC+j)}")
    srd(k, RA, P_OUT, 2048 * 1280)
    for t in range(5):
        k(f"v_cvt_pk_bf16_f32 {v(G+2*t)}, {v(T+4*t)}, {v(T+4*t+1)}\nv_cvt_pk_bf16_f32 {v(G+2*t+1)}, {v(T+4*t+2)}, {v(T+4*t+3)}")
        k(f"buffer_store_dwordx2 {vr(G+2*t,2)}, v6, {sr(RA,4)}, 0 offen offset:{32*t} {os.environ.get('NTO', '')}")

GACC, GTR, GWB, ST = 16, 112, 176, 224
def gu_consumer(k):
    k("v_and_b32 v3, 31, v1\nv_lshrrev_b32 v4, 5, v1\nv_lshlrev_b32 v5, 4, v1")
    k(f"s_lshl_b32 s15, {s(grb)}, 2\ns_add_u32 s15, s15, {s(sw)}")
    k(f"s_mul_i32 s52, s15, 40960\ns_add_u32 s52, s52, {WS['Y']}")
    vq = Q(k, "vmcnt"); L = Q(k, "lgkmcnt")
    def tload(st):
        k(f"s_add_u32 s53, s52, {st*1024}\nbuffer_load_dwordx4 {vr(GTR+4*(st%16),4)}, v5, {sr(WSR,4)}, s53 offen {HL}"); vq.add(("t", st))
    k(f"s_lshl_b32 s54, s15, 11\ns_add_u32 s54, s54, {WS['STATS']}\nv_lshlrev_b32 v6, 6, v3\nv_lshl_add_u32 v6, v4, 5, v6")
    for st in range(2): tload(st)
    k(f"buffer_load_dwordx4 {vr(ST,4)}, v6, {sr(WSR,4)}, s54 offen {HL}\nbuffer_load_dwordx4 {vr(ST+4,4)}, v6, {sr(WSR,4)}, s54 offen offset:16 {HL}")
    vq.add(("s", 0)); vq.add(("s", 1))
    for st in range(2, PRE4): tload(st)
    nxt = [PRE4]
    for j in range(96): k(f"v_mov_b32 {v(GACC+j)}, 0")
    k("v_add_u32 v8, 0x10000, v5\nv_add_u32 v9, 0x20000, v5")
    def wread(st, ts=range(6)):
        base = ((st // 4) % GSLOT) * GCH + (st % 4) * 6144
        for t in ts:
            a_ = base + 1024 * t
            k(f"ds_read_b128 {vr(GWB+24*(st%2)+4*t,4)}, {v([5,8,9][a_ >> 16])} offset:{a_ & 0xffff}"); L.add((st, t))
    wread(0)
    def stats():
        a = ST
        vq.wait(("s", 1))
        k(f"""v_add_f32 {v(a+8)}, {v(a)}, {v(a+2)}
        v_add_f32 {v(a+9)}, {v(a+4)}, {v(a+6)}
        v_add_f32 {v(a+8)}, {v(a+8)}, {v(a+9)}
        v_mov_b32 {v(a+9)}, {v(a+8)}
        v_mov_b32 {v(a+10)}, {v(a+8)}
        v_permlane32_swap_b32 {v(a+9)}, {v(a+10)}
        v_add_f32 {v(a+8)}, {v(a+9)}, {v(a+10)}
        v_mul_f32 {v(a+8)}, {hex(f32bits(1.0/640))}, {v(a+8)}
        s_mov_b32 s55, {hex(f32bits(1.0/80))}
        v_add_f32 {v(a+9)}, {v(a+1)}, {v(a+3)}
        v_add_f32 {v(a+10)}, {v(a+5)}, {v(a+7)}
        v_add_f32 {v(a+9)}, {v(a+9)}, {v(a+10)}
        v_mov_b32 {v(a+10)}, 0""")
        for r in (a, a + 2, a + 4, a + 6):
            k(f"v_fma_f32 {v(r)}, {v(r)}, s55, -{v(a+8)}\nv_fmac_f32 {v(a+10)}, {v(r)}, {v(r)}")
        k(f"""v_mov_b32 {v(a+11)}, 0x42a00000
        v_fmac_f32 {v(a+9)}, {v(a+10)}, {v(a+11)}
        v_mov_b32 {v(a+10)}, {v(a+9)}
        v_mov_b32 {v(a+11)}, {v(a+9)}
        v_permlane32_swap_b32 {v(a+10)}, {v(a+11)}
        v_add_f32 {v(a+9)}, {v(a+10)}, {v(a+11)}
        v_mov_b32 {v(a+10)}, {hex(f32bits(1e-5))}
        v_mov_b32 {v(a+11)}, {hex(f32bits(1.0/640))}
        v_fmac_f32 {v(a+10)}, {v(a+9)}, {v(a+11)}
        v_rsq_f32 {v(a+10)}, {v(a+10)}
        s_nop 0
        v_mov_b32 {v(a+12)}, {v(a+10)}
        v_mov_b32 {v(a+13)}, {v(a+10)}
        v_mul_f32 {v(a+14)}, {hex(f32bits(-LOG2E))}, {v(a+10)}
        v_mov_b32 {v(a+15)}, {v(a+14)}
        v_mul_f32 {v(a+16)}, {v(a+8)}, {v(a+10)}
        v_sub_f32 {v(a+16)}, 0, {v(a+16)}
        v_mov_b32 {v(a+17)}, {v(a+16)}""")
    RS, RG, NM = vr(ST + 12, 2), vr(ST + 14, 2), vr(ST + 16, 2)
    for st in range(40):
        last = st == 39
        if st in (1, 8, 16, 24, 32): probe(k, "p4", (1, 8, 16, 24, 32).index(st))
        vq.wait(("t", st))
        for t in range(6):
            L.wait((st, t))
            ac = vr(GACC + 16 * t, 16)
            k(f"v_mfma_f32_32x32x16_bf16 {ac}, {vr(GWB+24*(st%2)+4*t,4)}, {vr(GTR+4*(st%16),4)}, {ac}")
            if not last:
                if t == 0 and (st + 1) % 4 == 0: k("s_barrier")
                wread(st + 1, [t])
        if st == 3: stats()
        n = 0
        while nxt[0] < 40 and nxt[0] <= st + DEP4 and nxt[0] - 16 <= st and n < 2:
            tload(nxt[0]); nxt[0] += 1; n += 1
    k.stamp(11)
    if "4" in os.environ.get("EARLY", ""): k("s_barrier")
    k(f"v_lshlrev_b32 v10, 4, v4\nv_add_u32 v10, {UBL}, v10")
    k(f"""s_lshl_b32 s52, s15, 1
    s_mul_i32 s52, s52, {48*1024}
    s_mul_i32 s53, {s(gfb)}, 3072
    s_add_u32 s52, s52, s53
    s_add_u32 s52, s52, {WS['HH']}
    v_lshrrev_b32 v11, 4, v3
    v_mul_u32_u24 v11, 0xc000, v11
    v_and_b32 v12, 15, v3
    v_lshl_add_u32 v11, v12, 4, v11
    v_lshl_add_u32 v11, v4, 8, v11""")
    ONE = ST + 18
    k(f"v_mov_b32 {v(ONE)}, 1.0\nv_mov_b32 {v(ONE+1)}, 1.0")
    LQ = Q(k, "lgkmcnt")
    def uread(tt, part):
        t = tt + 3 * part
        r = vec(tt, part)
        for a_ in range(4):
            k(f"ds_read_b128 {vr(r+4*a_,4)}, v10 offset:{t*256 + 32*a_}"); LQ.add((tt, part, 0, a_))
        for a_ in range(4):
            k(f"ds_read_b128 {vr(r+16+4*a_,4)}, v10 offset:{t*256 + 128 + 32*a_}"); LQ.add((tt, part, 1, a_))
    slots = {(0, 0): GTR, (0, 1): GTR + 32, (1, 0): GWB + 16, (1, 1): GTR, (2, 0): GTR + 32, (2, 1): GWB + 16}
    vec = lambda tt, part: slots[(tt, part)]
    uread(0, 0); uread(0, 1)
    for tt in range(3):
        g = GACC + 16 * tt; u = GACC + 16 * (tt + 3)
        G0, U0 = vec(tt, 0), vec(tt, 1)
        LQ.wait((tt, 0, 1, 3))
        for j in range(0, 16, 2):
            k(f"v_pk_fma_f32 {vr(G0+16+j,2)}, {vr(G0+j,2)}, {NM}, {vr(G0+16+j,2)}\nv_pk_fma_f32 {vr(g+j,2)}, {vr(g+j,2)}, {RG}, {vr(G0+16+j,2)}")
        if tt == 0: uread(1, 0)
        for j in range(16): k(f"v_exp_f32 {v(g+j)}, {v(g+j)}")
        LQ.wait((tt, 1, 1, 3))
        for j in range(0, 16, 2):
            k(f"v_pk_fma_f32 {vr(U0+16+j,2)}, {vr(U0+j,2)}, {NM}, {vr(U0+16+j,2)}\nv_pk_fma_f32 {vr(u+j,2)}, {vr(u+j,2)}, {RS}, {vr(U0+16+j,2)}")
        for j in range(0, 16, 2): k(f"v_pk_add_f32 {vr(g+j,2)}, {vr(g+j,2)}, {vr(ONE,2)}")
        if tt == 0: uread(1, 1)
        if tt == 1: uread(2, 0); uread(2, 1)
        for j in range(16): k(f"v_rcp_f32 {v(g+j)}, {v(g+j)}")
        for j in range(0, 16, 2): k(f"v_pk_mul_f32 {vr(g+j,2)}, {vr(g+j,2)}, {vr(u+j,2)}")
        Pk = GWB + 8 * (tt % 2)
        for j in range(8): k(f"v_cvt_pk_bf16_f32 {v(Pk+j)}, {v(g+2*j)}, {v(g+2*j+1)}")
        for jj in range(2):
            b = Pk + 4 * jj
            k(f"v_permlane32_swap_b32 {v(b)}, {v(b+2)}\nv_permlane32_swap_b32 {v(b+1)}, {v(b+3)}")
            k(f"buffer_store_dwordx4 {vr(b,4)}, v11, {sr(WSR,4)}, s52 offen offset:{512*jj} {HO}")
        k("s_add_u32 s52, s52, 1024")

class Prod:
    def __init__(self, k): self.k = k; self.vq = Q(k, "vmcnt")
    def gu_setup(self):
        self.k(f"v_lshlrev_b32 v5, 4, v1\ns_sub_u32 s60, {s(sw)}, 4\ns_mul_i32 s61, s60, 6144\ns_mul_i32 s62, {s(gfb)}, {40*6144}\ns_add_u32 s62, s62, s61\ns_add_u32 s62, s62, {WS['WGU']}")
    def gu_issue(self, c):
        k = self.k
        for t in range(6):
            k(f"s_add_u32 m0, s61, {(c % GSLOT)*GCH + t*1024}\ns_add_u32 s63, s62, {c*GCH + t*1024}\nbuffer_load_dwordx4 v5, {sr(WSR,4)}, s63 offen {HL} lds")
            self.vq.add(("g", c, t))
    def d_setup(self):
        self.k(f"s_mul_i32 s64, s60, 5120\ns_mul_i32 s65, {s(scb)}, {48*5120}\ns_add_u32 s65, s65, s64\ns_add_u32 s65, s65, {WS['WD']}")
        rot5(self.k, 66); self.k("s_lshr_b32 s66, s66, 2")
        self.RD = Rot(self.k, 67, 68, 69, 12, DCH); self.RD.setup(65, 66)
    def d_issue(self, c):
        k = self.k
        for t in range(5):
            self.RD.addr(63, c, t*1024)
            k(f"s_add_u32 m0, s64, {DSLOT[c % 7] + t*1024}\ns_nop 0\nbuffer_load_dwordx4 v5, {sr(WSR,4)}, s63 offen {HL} lds")
            self.vq.add(("d", c, t))
    def ub_dma(self):
        k = self.k
        skip = k.lab("noubd")
        k(f"s_cmp_ge_u32 s60, 2\ns_cbranch_scc1 {skip}")
        k(f"s_mul_i32 s63, {s(gfb)}, 1536\ns_lshl_b32 s66, s60, 10\ns_add_u32 s63, s63, s66\ns_add_u32 s63, s63, {WS['UB']}\ns_add_u32 m0, s66, {UBL}\ns_nop 0")
        k(f"buffer_load_dwordx4 v5, {sr(WSR,4)}, s63 offen {HL} lds\ns_waitcnt vmcnt(0)")
        k.label(skip)
```

```python
from mcommon import *
import p01

N_G, N_U, N_O, N_D = 480, 480, 200, 480
NJOB = N_G + N_U + N_O + N_D
STG = 97280
SRC = 226
TRV = 212
MR, MT = 230, 212
vWO, vCO = 13, 14
RC = 20
sKind, sStg, sMod, sModDst = 69, 68, 100, 101
NSIDE = 2
vPM, vPW = 10, 11

def decode(k):
    nojob, go = k.lab("sjno"), k.lab("sjgo")
    if os.environ.get("BAL", "1") == "1" and SIDE == "attn":
        big, jd = k.lab("sjb"), k.lab("sjd")
        k(f"s_cmp_ge_u32 s2, 96\ns_cbranch_scc1 {big}\ns_lshl_b32 s63, s2, 3\ns_add_u32 s63, s63, {s(sw)}\ns_branch {jd}")
        k.label(big)
        k(f"s_sub_u32 s63, s2, 96\ns_mul_i32 s63, s63, 6\ns_add_u32 s63, s63, {s(sw)}\ns_add_u32 s63, s63, {768 - 2}\ns_cmp_lt_u32 {s(sw)}, 2\ns_cselect_b32 s63, 0xffff, s63")
        k.label(jd)
    else:
        k(f"s_lshl_b32 s63, s2, 3\ns_add_u32 s63, s63, {s(sw)}")
    k(f"s_lshl_b32 {s(sStg)}, {s(sw)}, 12\ns_add_u32 {s(sStg)}, {s(sStg)}, {STG}")
    k(f"s_mov_b32 {s(sKind)}, 0\ns_cmp_ge_u32 s63, {NJOB}\ns_cbranch_scc1 {nojob}")
    labs = [k.lab("sj") for _ in range(4)]
    lim = 0
    for n, lab in zip((N_G, N_U, N_O), labs):
        lim += n
        k(f"s_cmp_lt_u32 s63, {lim}\ns_cbranch_scc1 {lab}")
    k(f"s_branch {labs[3]}")
    types = [("g", P_WG, 640 * 3072, 3072, 12, 0, True, 3, 40, 6, 0, "WGU"), ("u", P_WU, 640 * 3072, 3072, 12, N_G, True, 3, 40, 6, 3, "WGU"),
             ("o", P_WO, 640 * 1280, 1280, 10, N_G + N_U, False, 5, 20, 5, 0, "WO"), ("d", P_WD, 1536 * 1280, 1280, 10, N_G + N_U + N_O, False, 5, 48, 5, 0, "WD")]
    for (name, ptr, nbytes, stride, ncb, start, wide, dv, NS, NT, tadd, base), lab in zip(types, labs):
        k.label(lab)
        srd(k, RB, ptr, nbytes)
        k(f"s_sub_u32 s54, s63, {start}")
        sdiv(k, 55, 54, ncb)
        k(f"s_mul_i32 s56, s55, {ncb}\ns_sub_u32 s54, s54, s56")
        for tt in range(4):
            k(f"s_lshl_b32 s56, s54, 2\ns_add_u32 s56, s56, {tt}")
            sdiv(k, 57, 56, dv)
            k(f"s_mul_i32 {s(64+tt)}, s57, {dv}\ns_sub_u32 s56, s56, {s(64+tt)}\ns_mul_i32 s57, s57, {NS}\ns_add_u32 s57, s57, s55")
            k(f"s_mul_i32 s57, s57, {NT}\ns_add_u32 s57, s57, s56\ns_lshl_b32 s57, s57, 10\ns_add_u32 {s(64+tt)}, s57, {WS[base] + tadd*1024}")
        sh, rows = (4, 4) if wide else (3, 8)
        k(f"""s_mov_b32 {s(sKind)}, {1 if wide else 2}
        s_lshl_b32 s55, s55, {4 if wide else 5}
        s_lshl_b32 s54, s54, {8 if wide else 7}
        v_lshrrev_b32 v8, {sh}, v1
        v_and_b32 v9, {(1 << sh) - 1}, v1
        v_lshl_add_u32 v9, v9, 4, s54""")
        for i in range(4): k(f"v_add_u32 {v(SRC+i)}, s55, v8\nv_add_u32 {v(SRC+i)}, {rows*i}, {v(SRC+i)}")
        if name == "o":
            k("s_movk_i32 s56, 1639")
            for i in range(4):
                r = SRC + i
                k(f"""v_mul_u32_u24 v10, s56, {v(r)}
                v_lshrrev_b32 v10, 16, v10
                v_mul_u32_u24 v10, 40, v10
                v_sub_u32 v10, {v(r)}, v10
                v_mov_b32 v11, 0
                v_cmp_le_u32 vcc, 16, v10
                v_cndmask_b32_e64 v11, v11, 4, vcc
                v_cmp_le_u32 vcc, 32, v10
                v_cndmask_b32_e64 v11, v11, -16, vcc
                v_cmp_le_u32 vcc, 36, v10
                v_cndmask_b32_e64 v11, v11, 0, vcc
                v_add_u32 {v(r)}, {v(r)}, v11""")
        k(f"s_movk_i32 s56, {stride}")
        for i in range(4): k(f"v_mad_u32_u24 {v(SRC+i)}, {v(SRC+i)}, s56, v9")
        if wide:
            k(f"v_and_b32 v8, 31, v1\nv_lshrrev_b32 v9, 1, v8\nv_add_u32 v9, s55, v9\nv_and_b32 v8, 1, v8\nv_lshlrev_b32 v8, 7, v8\nv_add_u32 v8, s54, v8\nv_mad_u32_u24 {v(vPM)}, v9, s56, v8")
        else:
            k(f"v_and_b32 v9, 31, v1\nv_add_u32 v9, s55, v9")
            if name == "o":
                k(f"""s_movk_i32 s57, 1639
                v_mul_u32_u24 v10, s57, v9
                v_lshrrev_b32 v10, 16, v10
                v_mul_u32_u24 v10, 40, v10
                v_sub_u32 v10, v9, v10
                v_mov_b32 v11, 0
                v_cmp_le_u32 vcc, 16, v10
                v_cndmask_b32_e64 v11, v11, 4, vcc
                v_cmp_le_u32 vcc, 32, v10
                v_cndmask_b32_e64 v11, v11, -16, vcc
                v_cmp_le_u32 vcc, 36, v10
                v_cndmask_b32_e64 v11, v11, 0, vcc
                v_add_u32 v9, v9, v11""")
            k(f"v_mov_b32 v8, s54\nv_mad_u32_u24 {v(vPM)}, v9, s56, v8")
        k(f"s_branch {go}")
    k.label(nojob)
    srd(k, RB, P_WS, 4096)
    for i in range(4): k(f"v_mov_b32 {v(SRC+i)}, 0")
    k(f"v_mov_b32 {v(vPM)}, 0")
    k.label(go)
    nomod = k.lab("sjnm")
    srd(k, RA, P_WMOD, 640 * 7680); srd(k, RC, P_C, 1280)
    k(f"s_mov_b32 {s(sMod)}, 0\nv_mov_b32 {v(vWO)}, 0\nv_mov_b32 {v(vCO)}, 0\nv_mov_b32 {v(vPW)}, 0")
    if p01.MOD0 or SIDE == "hyb": k(f"s_branch {nomod}")
    k(f"s_cmp_lt_u32 s2, 96\ns_cbranch_scc1 {nomod}\ns_cmp_ge_u32 {s(sw)}, 4\ns_cbranch_scc1 {nomod}")
    k("s_sub_u32 s53, s2, 96")
    sdiv(k, 52, 53, 40)
    k(f"""s_mul_i32 s54, s52, 40
    s_sub_u32 s53, s53, s54
    s_add_u32 s53, s53, 20
    s_mov_b32 {s(sMod)}, 1
    s_lshl_b32 {s(sModDst)}, s53, 8
    s_add_u32 {s(sModDst)}, {s(sModDst)}, {WS['MOD']}
    s_mul_i32 s54, s52, 160
    s_mul_i32 s55, {s(sw)}, 40
    s_add_u32 s54, s54, s55
    v_lshrrev_b32 v8, 3, v1
    v_and_b32 v9, 7, v1
    v_add_u32 v8, s54, v8
    s_movk_i32 s55, 7680
    v_mul_u32_u24 {v(vWO)}, s55, v8
    s_lshl_b32 s56, s53, 7
    v_lshlrev_b32 v9, 4, v9
    v_add3_u32 {v(vWO)}, {v(vWO)}, v9, s56
    v_lshlrev_b32 {v(vCO)}, 1, v8
    v_min_u32 v8, 39, v1
    v_add_u32 v8, s54, v8
    v_mov_b32 v9, s56
    v_mad_u32_u24 {v(vPW)}, v8, s55, v9""")
    k.label(nomod)

def warm(k):
    if 'warm' in os.environ.get('SKIP', '').split(','): return
    k(f"buffer_load_dword v12, {v(vPM)}, {sr(RB,4)}, 0 offen {os.environ.get('NTW', 'nt')}\nbuffer_load_dword v12, {v(vPW)}, {sr(RA,4)}, 0 offen {os.environ.get('NTW', 'nt')}")

def issue(k):
    if 'issue' in os.environ.get('SKIP', '').split(','): return
    nj = k.lab("snj")
    k(f"s_cmp_eq_u32 {s(sKind)}, 0\ns_cbranch_scc1 {nj}")
    for i in range(4): k(f"s_add_u32 m0, {s(sStg)}, {1024*i}\ns_nop 0\nbuffer_load_dwordx4 {v(4+i)}, {sr(RB,4)}, 0 offen {os.environ.get('NTS', 'nt')} lds")
    k.label(nj)

def keep_src(k):
    for i in range(4): k(f"v_mov_b32 {v(4+i)}, {v(SRC+i)}")

def mod_issue(k):
    if 'mod_issue' in os.environ.get('SKIP', '').split(','): return
    nm = k.lab("snm")
    k(f"s_cmp_eq_u32 {s(sMod)}, 0\ns_cbranch_scc1 {nm}")
    for i in range(5): k(f"s_mov_b32 s48, {61440*i}\nbuffer_load_dwordx4 {vr(MR+4*i,4)}, {v(vWO)}, {sr(RA,4)}, s48 offen {os.environ.get('NTS', 'nt')}")
    for i in range(5): k(f"buffer_load_ushort {v(MR+20+i)}, {v(vCO)}, {sr(RC,4)}, 0 offen offset:{16*i}")
    k.label(nm)

def tr_read(k):
    if 'tr_read' in os.environ.get('SKIP', '').split(','): return
    done, narrow = k.lab("std"), k.lab("stn")
    k(f"s_cmp_eq_u32 {s(sKind)}, 0\ns_cbranch_scc1 {done}")
    if SIDE == "hyb": k("s_waitcnt vmcnt(3)")
    k("v_and_b32 v8, 15, v1\nv_lshrrev_b32 v8, 2, v8\nv_and_b32 v9, 3, v1")
    k(f"s_cmp_eq_u32 {s(sKind)}, 2\ns_cbranch_scc1 {narrow}")
    k(f"""v_lshrrev_b32 v10, 5, v1
    v_lshl_add_u32 v10, v10, 3, v8
    v_lshlrev_b32 v10, 8, v10
    v_bfe_u32 v11, v1, 4, 1
    v_lshlrev_b32 v11, 5, v11
    v_lshl_add_u32 v11, v9, 3, v11
    v_add3_u32 v10, v10, v11, {s(sStg)}""")
    for tt in range(4):
        k(f"ds_read_b64_tr_b16 {vr(TRV+4*tt,2)}, v10 offset:{64*tt}\nds_read_b64_tr_b16 {vr(TRV+2+4*tt,2)}, v10 offset:{64*tt+1024}")
    k(f"s_branch {done}")
    k.label(narrow)
    k(f"""v_lshrrev_b32 v10, 4, v1
    v_lshl_add_u32 v10, v10, 3, v8
    v_lshlrev_b32 v10, 7, v10
    v_lshl_add_u32 v10, v9, 3, v10
    v_add_u32 v10, {s(sStg)}, v10""")
    for tt in range(4):
        k(f"ds_read_b64_tr_b16 {vr(TRV+4*tt,2)}, v10 offset:{32*tt}\nds_read_b64_tr_b16 {vr(TRV+2+4*tt,2)}, v10 offset:{32*tt+512}")
    k.label(done)

def stores(k):
    if 'stores' in os.environ.get('SKIP', '').split(','): return
    done = k.lab("ssd")
    k(f"s_cmp_eq_u32 {s(sKind)}, 0\ns_cbranch_scc1 {done}")
    k("v_lshlrev_b32 v11, 4, v1")
    for tt in range(4): k(f"buffer_store_dwordx4 {vr(TRV+4*tt,4)}, v11, {sr(WSR,4)}, {s(64+tt)} offen {HO}")
    k.label(done)


def mod_finish(k):
    if 'mod_finish' in os.environ.get('SKIP', '').split(','): return
    done = k.lab("smd")
    k(f"s_cmp_eq_u32 {s(sMod)}, 0\ns_cbranch_scc1 {done}")
    k("s_waitcnt vmcnt(0)")
    p01.mod_compute(k, MR, MT)
    k(f"v_lshlrev_b32 {v(MT+16)}, 2, {v(MT+16)}")
    k(f"buffer_atomic_add_f32 {v(MT+12)}, {v(MT+16)}, {sr(WSR,4)}, {s(sModDst)} offen")
    k.label(done)
```

```python
import sys, os
sys.path.insert(0, os.path.dirname(os.path.abspath(__file__)))
from mcommon import *
import p01, p2, p345, side

NAME = "adaLN_cond__mha_block__glu_gated_glu__prompt_kernel"
STOP = int(os.environ.get("STOP", "9"))
DIRECT = os.environ.get("DIRECT", "")
EARLY = os.environ.get("EARLY", "")
LDS = 163840

def finish(k):
    k.stamp(23)
    k.stamp_flush(WSR, sw)
    k("s_endpgm")

def build():
    k = K(NAME, 256)
    k.name_short = "m"
    end = k.lab("end")
    k(f"s_cmp_ge_u32 s2, 256\ns_cbranch_scc1 {end}")
    if STAMPS:
        for i in range(24): k(f"s_mov_b32 s{70+i}, 0")
    k.stamp(0)
    k("s_load_dwordx16 s[16:31], s[0:1], 0\ns_load_dwordx8 s[32:39], s[0:1], 64")
    k(f"v_and_b32 v1, 63, v0\nv_lshrrev_b32 v2, 6, v0\nv_readfirstlane_b32 {s(sw)}, v2")
    k(f"s_and_b32 {s(sXCD)}, s2, 7\ns_lshr_b32 {s(sIDX)}, s2, 3")
    p01.tile_ids(k)
    k("s_waitcnt lgkmcnt(0)")
    probe(k, "p0", 0)
    srd(k, WSR, P_WS, (64 << 20) if STAMPS else WS["END"])
    p01.zero_init(k)
    p01.macc_init(k)
    prod01, p1done = k.lab("prod01"), k.lab("p1done")
    k(f"s_cmp_ge_u32 {s(sw)}, 4\ns_cbranch_scc1 {prod01}")
    p01.consumer01(k, p1done)
    k.label(prod01)
    p01.producer01(k, p1done)
    k.label(p1done)
    k.stamp(14)
    nw = k.lab("s12w")
    k(f"s_cmp_ge_u32 {s(sw)}, 4\ns_cbranch_scc1 {nw}")
    k("s_waitcnt vmcnt(0)")
    probe(k, "s12", 0)
    k(f"v_mov_b32 v2, {p01.LCNT}\nv_mov_b32 v3, 1")
    k("s_mov_b64 exec, 1\nds_add_rtn_u32 v4, v2, v3\ns_waitcnt lgkmcnt(0)\ns_mov_b64 exec, -1\nv_readfirstlane_b32 s53, v4")
    k(f"s_cmp_lg_u32 s53, 3\ns_cbranch_scc1 {nw}")
    p2.write_consts(k)
    k(f"s_cmp_eq_u32 {s(p01.scb)}, 15\ns_cbranch_scc1 {nw}")
    k(f"s_add_u32 s52, {s(p01.scb)}, {C_Q}\ns_add_u32 s53, {s(p01.scb)}, {G_Q}")
    arrive(k, "s52", 16, "s53")
    k.label(nw)
    probe(k, "s12", 1)
    if STOP == 1: finish(k); k.label(end); k("s_endpgm"); k.label("CODE_END"); return k
    side.decode(k)
    p2.setup(k)
    probe(k, "s12", 2)
    nw = k.lab("s12p")
    k(f"s_cmp_lg_u32 {s(sw)}, 0\ns_cbranch_scc1 {nw}")
    p2.dep_counters(k)
    poll(k, 5, 6)
    probe(k, "s12", 3)
    k.label(nw)
    k("s_barrier")
    k.stamp(5)
    p2.attention(k)
    k.stamp(15)
    nd = k.lab("nogd")
    k(f"s_cmp_lg_u32 {s(sw)}, 0\ns_cbranch_scc1 {nd}")
    k(f"v_mov_b32 v7, {G_D*256}\nv_mov_b32 v6, 1")
    poll(k, 7, 6, 8)
    k.label(nd)
    k("s_waitcnt vmcnt(0)")
    probe(k, "s23", 0)
    k("s_barrier")
    probe(k, "s23", 1)
    w0, rdy = k.lab("s23w0"), k.lab("s23r")
    k(f"s_cmp_lg_u32 {s(sw)}, 0\ns_cbranch_scc1 {w0}")
    k(f"s_add_u32 s52, {s(p2.sqb)}, {C_O}\ns_add_u32 s53, {s(p2.sqb)}, {G_O}")
    if "3" in DIRECT: arrive_direct(k, "s52")
    else: arrive(k, "s52", 32, "s53")
    if STOP == 2:
        k.label(w0); finish(k); k.label(end); k("s_endpgm"); k.label("CODE_END"); return k
    p345.ids(k)
    k(f"s_lshr_b32 s52, {s(p345.srb)}, 2\ns_add_u32 s52, s52, {C_O if '3' in DIRECT else G_O}")
    poll_setup(k, [("s52", 1, 32 if "3" in DIRECT else 1)]); poll(k, 5, 6)
    k(f"s_branch {rdy}")
    k.label(w0)
    p345.ids(k)
    p345.wo_prefetch(k)
    nv = k.lab("nov3")
    k(f"s_cmp_lg_u32 {s(sw)}, 7\ns_cbranch_scc1 {nv}")
    p345.vec_load(k, [(2, False), (4, True)], p345.VEC3)
    k.label(nv)
    k("s_waitcnt vmcnt(0)")
    k.label(rdy)
    probe(k, "s23", 2)
    k("s_barrier")
    k.stamp(8)
    prod3 = k.lab("prod3")
    k(f"s_cmp_ge_u32 {s(sw)}, 4\ns_cbranch_scc1 {prod3}")
    p345.wo_consumer(k)
    k.stamp(16)
    k("s_waitcnt vmcnt(0)")
    probe(k, "s23", 3)
    k("s_barrier")
    probe(k, "s23", 4)
    nw, n1 = k.lab("s34w"), k.lab("s34w1")
    k(f"s_cmp_lg_u32 {s(sw)}, 1\ns_cbranch_scc1 {n1}")
    k(f"s_and_b32 s52, s2, 15\ns_add_u32 s52, s52, {C_U}")
    arrive(k, "s52", 16, G_U, 1, R_U, 16)
    k.label(n1)
    k(f"s_cmp_lg_u32 {s(sw)}, 0\ns_cbranch_scc1 {nw}")
    k(f"s_lshr_b32 s53, {s(p345.srb)}, 1\ns_add_u32 s52, s53, {C_Y}\ns_add_u32 s53, s53, {G_Y}")
    if "4" in DIRECT: arrive_direct(k, "s52")
    else: arrive(k, "s52", 16, "s53")
    if STOP > 3:
        k(f"s_add_u32 s52, {s(p345.grb)}, {C_Y if '4' in DIRECT else G_Y}")
        poll_setup(k, [("s52", 1, 16 if "4" in DIRECT else 1)]); poll(k, 5, 6)
    k.label(nw)
    if STOP == 3: finish(k)
    else:
        k("s_barrier")
        k.stamp(10)
        p345.gu_consumer(k)
        k.stamp(12)
        k("s_waitcnt vmcnt(0)\ns_barrier")
        nw = k.lab("s45w")
        k(f"s_cmp_lg_u32 {s(sw)}, 0\ns_cbranch_scc1 {nw}")
        k(f"s_add_u32 s52, {s(p345.grb)}, {C_H}\ns_add_u32 s53, {s(p345.grb)}, {G_H}")
        if "5" in DIRECT: arrive_direct(k, "s52")
        else: arrive(k, "s52", 16, "s53")
        if STOP > 4:
            k(f"s_lshr_b32 s52, {s(p345.srb)}, 1\ns_add_u32 s52, s52, {C_H if '5' in DIRECT else G_H}")
            poll_setup(k, [("s52", 1, 16 if "5" in DIRECT else 1)]); poll(k, 5, 6)
        k.label(nw)
        if STOP == 4: finish(k)
        else:
            k("s_barrier")
            k.stamp(13)
            p345.down_consumer(k)
            finish(k)
    k.label(prod3)
    P = p345.Prod(k); vq = P.vq
    if STOP > 3:
        P.gu_setup(); P.gu_issue(0); P.gu_issue(1)
    p345.ub_job(k)
    npre = int(os.environ.get("GPRE", "4"))
    if "3" in EARLY:
        k("s_barrier")
        P.gu_setup()
        if STOP > 3:
            for c in range(2, npre): P.gu_issue(c)
    k("s_barrier")
    if STOP == 3: finish(k)
    else:
        if "3" not in EARLY:
            P.gu_setup()
            for c in range(2, npre): P.gu_issue(c)
        vq.wait(("g", 0, 5))
        k("s_barrier")
        issued = npre
        for c in range(1, 10):
            while issued < 10 and issued <= c + p345.AH4 and issued - p345.GSLOT <= c - 3:
                P.gu_issue(issued); issued += 1
            vq.wait(("g", c, 5))
            k("s_barrier")
            if c == 5:
                nu = k.lab("noubd")
                k(f"s_cmp_lg_u32 {s(sw)}, 4\ns_cbranch_scc1 {nu}")
                k(f"v_mov_b32 v6, 1\nv_mov_b32 v7, {G_U*256}")
                poll(k, 7, 6, 8)
                k(f"s_mul_i32 s63, {s(p345.gfb)}, 1536\ns_add_u32 s63, s63, {WS['UB']}")
                k(f"s_mov_b32 m0, {p345.UBL}\ns_nop 0\nbuffer_load_dwordx4 v5, {sr(WSR,4)}, s63 offen {HL} lds")
                k(f"s_add_u32 s63, s63, 1024\ns_mov_b32 m0, {p345.UBL + 1024}\ns_nop 0\nbuffer_load_dwordx4 v5, {sr(WSR,4)}, s63 offen {HL} lds")
                k.label(nu)
        if STOP > 4:
            P.d_setup()
            nv = k.lab("nov5")
            k(f"s_cmp_lg_u32 {s(sw)}, 7\ns_cbranch_scc1 {nv}")
            p345.vec_load(k, [(5, False)], p345.VEC5)
            k("v_lshlrev_b32 v5, 4, v1")
            k.label(nv)
            for c in range(4): P.d_issue(c)
        first5 = 4
        if "4" in EARLY:
            k("s_barrier")
            if STOP > 4:
                for c in range(4, 6): P.d_issue(c)
            first5 = 6
        k("s_barrier")
        if STOP == 4: finish(k)
        else:
            late5 = "5" in DIRECT
            if not late5:
                for c in range(first5, 7): P.d_issue(c)
            vq.wait(("d", 0, 4))
            k("s_barrier")
            if late5:
                for c in range(first5, 7): P.d_issue(c)
            issued = 7
            for c in range(1, 12):
                while issued < 12 and issued - 7 <= c - 3:
                    P.d_issue(issued); issued += 1
                vq.wait(("d", c, 4))
                k("s_barrier")
            finish(k)
    k.label(end)
    k("s_endpgm")
    k.label("CODE_END")
    return k

def generate():
    here = os.path.dirname(os.path.abspath(__file__))
    head = open(os.path.join(here, "header.txt")).read()
    k = build()
    t, n = k.text()
    return head + f"; @launch grid=(256,1,1) block=(512,1,1) lds={LDS}\n" + '.amdgcn_target "amdgcn-amd-amdhsa--gfx950"\n.text\n' + t + '.section .rodata,"a"\n' + k.desc()

if __name__ == "__main__":
    txt = generate()
    open(sys.argv[1], "w").write(txt)
    print("wrote", sys.argv[1], len(txt), "bytes,", txt.count("\n"), "lines")
```

```python
from mcommon import *

XRES = os.environ.get("XRES", "1") == "1"
NTX = os.environ.get("NTX", "nt" if XRES else "")
NT = os.environ.get("NT0", "nt")
QSCALE = LOG2E * 20 ** -0.5
RING = 35
COEF = RING * 4096
STG = COEF + 2560
assert STG + 16384 <= 163840
srb, scb, scq = 15, 4, 5

def tile_ids(k):
    k(f"""s_and_b32 s48, {s(sIDX)}, 3
    s_lshr_b32 s49, {s(sXCD)}, 1
    s_lshl_b32 s49, s49, 2
    s_add_u32 {s(srb)}, s49, s48
    s_lshr_b32 s48, {s(sIDX)}, 2
    s_and_b32 s49, {s(sXCD)}, 1
    s_lshl_b32 s49, s49, 3
    s_add_u32 {s(scb)}, s49, s48""")
    sdiv(k, 48, scb, 5)
    k(f"s_mul_i32 s48, s48, 5\ns_sub_u32 {s(scq)}, {s(scb)}, s48")

def zero_init(k):
    skip = k.lab("noinit")
    k(f"s_cmp_lg_u32 s2, 255\ns_cbranch_scc1 {skip}")
    k("v_mov_b32 v4, 0\nv_mov_b32 v5, 0\nv_mov_b32 v6, 0\nv_mov_b32 v7, 0\nv_lshlrev_b32 v8, 4, v1")
    k(f"s_mul_i32 s48, {s(sw)}, 11264\ns_add_u32 s48, s48, {WS['ZERO']}")
    for i in range(11):
        k(f"buffer_store_dwordx4 v[4:7], v8, {sr(WSR,4)}, s48 offen {HO}\ns_add_u32 s48, s48, 1024")
    k("s_waitcnt vmcnt(0)\ns_barrier")
    k(f"s_cmp_lg_u32 {s(sw)}, 0\ns_cbranch_scc1 {skip}")
    srd(k, RB, P_DBG, 256)
    k("v_mov_b32 v4, 1\nv_mov_b32 v5, 0\ns_mov_b64 exec, 1")
    k(f"buffer_store_dword v4, v5, {sr(RB,4)}, 0 offen offset:4 {HO}")
    k("s_mov_b64 exec, -1")
    k.label(skip)

def wait_ready(k):
    srd(k, RB, P_DBG, 256)
    loop, done = k.lab("rdy"), k.lab("rdyd")
    k("v_mov_b32 v60, 0\ns_mov_b32 s50, 0")
    k.label(loop)
    k(f"buffer_load_dword v61, v60, {sr(RB,4)}, 0 offen offset:4 sc1\ns_waitcnt vmcnt(0)\nv_readfirstlane_b32 s51, v61")
    k(f"s_cmp_lg_u32 s51, 0\ns_cbranch_scc1 {done}\ns_add_u32 s50, s50, 1\ns_cmp_ge_u32 s50, {SPIN_LIMIT}\ns_cbranch_scc1 {done}\ns_sleep 6\ns_branch {loop}")
    k.label(done)

LCNT = 162304 + 320
MACC = 162304
assert MACC + 512 <= 163840

def mod_load(k, R0, scb_, sks, wv):
    srd(k, RA, P_WMOD, 640 * 7680); srd(k, RB, P_C, 1280)
    k("v_lshrrev_b32 v3, 3, v1\nv_and_b32 v4, 7, v1")
    k(f"s_mul_i32 s54, {s(sks)}, 160\ns_mul_i32 s55, {s(wv)}, 40\ns_add_u32 s54, s54, s55")
    k(f"v_add_u32 v5, s54, v3\ns_movk_i32 s55, 7680\nv_mul_u32_u24 v6, s55, v5\ns_lshl_b32 s56, {s(scb_)}, 7")
    k("v_lshlrev_b32 v7, 4, v4\nv_add3_u32 v6, v6, v7, s56\nv_lshlrev_b32 v8, 1, v5")
    for i in range(5):
        k(f"s_mov_b32 s57, {61440*i}\nbuffer_load_dwordx4 {vr(R0+4*i,4)}, v6, {sr(RA,4)}, s57 offen {NT}")
    for i in range(5):
        k(f"buffer_load_ushort {v(R0+20+i)}, v8, {sr(RB,4)}, 0 offen offset:{16*i}")

def mod_compute(k, R0, T, stmp=48):
    C = R0 + 20
    for j in range(8): k(f"v_mov_b32 {v(T+j)}, 0")
    k(f"s_mov_b32 {s(stmp)}, 0xbfb8aa3b")
    E = T + 8
    for i in range(5): k(f"v_lshlrev_b32 {v(C+i)}, 16, {v(C+i)}\nv_mul_f32 {v(E+i)}, {s(stmp)}, {v(C+i)}\nv_exp_f32 {v(E+i)}, {v(E+i)}")
    for i in range(5): k(f"v_add_f32 {v(E+i)}, 1.0, {v(E+i)}")
    for i in range(5): k(f"v_rcp_f32 {v(E+i)}, {v(E+i)}")
    for i in range(5): k(f"v_mul_f32 {v(C+i)}, {v(C+i)}, {v(E+i)}")
    for i in range(5):
        for d in range(4):
            r = R0 + 4 * i + d
            k(f"v_lshlrev_b32 {v(T+16)}, 16, {v(r)}\nv_and_b32 {v(T+17)}, 0xffff0000, {v(r)}\nv_fmac_f32 {v(T+2*d)}, {v(C+i)}, {v(T+16)}\nv_fmac_f32 {v(T+2*d+1)}, {v(C+i)}, {v(T+17)}")
    k(f"v_and_b32 {v(T+16)}, 8, v1\nv_cmp_ne_u32 vcc, 0, {v(T+16)}")
    for j in range(4):
        k(f"v_cndmask_b32 {v(T+8+j)}, {v(T+4+j)}, {v(T+j)}, vcc\nv_cndmask_b32 {v(T+12+j)}, {v(T+j)}, {v(T+4+j)}, vcc")
    for j in range(4):
        k(f"v_add_f32_dpp {v(T+12+j)}, {v(T+8+j)}, {v(T+12+j)} row_ror:8 row_mask:0xf bank_mask:0xf")
    a = T + 12
    k(f"v_permlane16_swap_b32 {v(a)}, {v(a+2)}\nv_permlane16_swap_b32 {v(a+1)}, {v(a+3)}\nv_add_f32 {v(a)}, {v(a)}, {v(a+2)}\nv_add_f32 {v(a+1)}, {v(a+1)}, {v(a+3)}")
    k(f"v_permlane32_swap_b32 {v(a)}, {v(a+1)}\nv_add_f32 {v(a)}, {v(a)}, {v(a+1)}")
    c, t = T + 16, T + 17
    k(f"""v_and_b32 {v(c)}, 7, v1
    v_lshlrev_b32 {v(c)}, 3, {v(c)}
    v_bfe_u32 {v(t)}, v1, 3, 1
    v_lshl_add_u32 {v(c)}, {v(t)}, 2, {v(c)}
    v_bfe_u32 {v(t)}, v1, 4, 1
    v_lshl_add_u32 {v(c)}, {v(t)}, 1, {v(c)}
    v_lshrrev_b32 {v(t)}, 5, v1
    v_add_u32 {v(c)}, {v(c)}, {v(t)}""")

def macc_init(k):
    skip = k.lab("nomacc")
    k(f"s_cmp_lg_u32 {s(sw)}, 0\ns_cbranch_scc1 {skip}")
    k(f"v_mov_b32 v2, 0\nv_lshlrev_b32 v3, 2, v1\nv_add_u32 v3, {MACC}, v3\nds_write_b32 v3, v2\nds_write_b32 v3, v2 offset:256\ns_waitcnt lgkmcnt(0)")
    k.label(skip)
    k("s_barrier")

def mod_job(k):
    skip = k.lab("nomod")
    k(f"s_cmp_ge_u32 s2, 80\ns_cbranch_scc1 {skip}")
    sdiv(k, 52, 2, 20)
    k("s_mul_i32 s53, s52, 20\ns_sub_u32 s53, s2, s53")
    mod_load(k, 16, 53, 52, sw)
    k("s_waitcnt vmcnt(0)")
    probe(k, "p0", 1)
    mod_compute(k, 16, 44)
    k(f"v_lshlrev_b32 v60, 2, v60\nv_add_u32 v60, {MACC}, v60\nds_add_f32 v60, v56\nv_mov_b32 v61, {MACC+256}\nv_mov_b32 v62, 1\ns_waitcnt lgkmcnt(0)")
    k("s_mov_b64 exec, 1\nds_add_rtn_u32 v63, v61, v62\ns_waitcnt lgkmcnt(0)\ns_mov_b64 exec, -1\nv_readfirstlane_b32 s57, v63")
    probe(k, "p0", 2)
    k(f"s_cmp_lg_u32 s57, 3\ns_cbranch_scc1 {skip}")
    k(f"v_lshlrev_b32 v60, 2, v1\nv_add_u32 v61, {MACC}, v60\nds_read_b32 v62, v61")
    k(f"s_mul_i32 s56, s52, 5120\ns_lshl_b32 s57, s53, 8\ns_add_u32 s56, s56, s57\ns_add_u32 s56, s56, {WS['MODP']}\ns_waitcnt lgkmcnt(0)")
    k(f"buffer_store_dword v62, v60, {sr(WSR,4)}, s56 offen {HO}")
    k.label(skip)

MOD0 = os.environ.get("MOD0", "0") == "1"
def mod_rest0(k):
    skip = k.lab("nom0")
    k(f"s_cmp_lt_u32 s2, 80\ns_cbranch_scc1 {skip}\ns_cmp_ge_u32 s2, 240\ns_cbranch_scc1 {skip}")
    k("s_sub_u32 s53, s2, 80")
    sdiv(k, 52, 53, 40)
    k(f"s_mul_i32 s54, s52, 40\ns_sub_u32 s53, s53, s54\ns_add_u32 s53, s53, 20")
    mod_load(k, 16, 53, 52, sw)
    k("s_waitcnt vmcnt(0)")
    mod_compute(k, 16, 44)
    k.label(skip)
def mod_rest0_atomic(k):
    skip = k.lab("nom1")
    k(f"s_cmp_lt_u32 s2, 80\ns_cbranch_scc1 {skip}\ns_cmp_ge_u32 s2, 240\ns_cbranch_scc1 {skip}")
    k("s_sub_u32 s49, s2, 80")
    sdiv(k, 50, 49, 40)
    k(f"s_mul_i32 s50, s50, 40\ns_sub_u32 s49, s49, s50\ns_add_u32 s49, s49, 20\ns_lshl_b32 s49, s49, 8\ns_add_u32 s49, s49, {WS['MOD']}")
    k(f"v_lshlrev_b32 v60, 2, v60\nbuffer_atomic_add_f32 v56, v60, {sr(WSR,4)}, s49 offen")
    k.label(skip)

MR, MT = 60, 28
def mod_rest_load(k):
    if os.environ.get("NOSIDE"): return
    skip = k.lab("nomr")
    k(f"s_cmp_lt_u32 s2, 80\ns_cbranch_scc1 {skip}\ns_cmp_ge_u32 s2, 240\ns_cbranch_scc1 {skip}")
    k("s_sub_u32 s53, s2, 80")
    sdiv(k, 52, 53, 40)
    k(f"s_mul_i32 s54, s52, 40\ns_sub_u32 s53, s53, s54\ns_add_u32 s53, s53, 20\ns_sub_u32 s68, {s(sw)}, 4")
    mod_load(k, MR, 53, 52, 68)
    k.label(skip)
def mod_rest_finish(k):
    if os.environ.get("NOSIDE"): return
    skip = k.lab("nomf")
    k(f"s_cmp_lt_u32 s2, 80\ns_cbranch_scc1 {skip}\ns_cmp_ge_u32 s2, 240\ns_cbranch_scc1 {skip}")
    mod_compute(k, MR, MT)
    k("s_sub_u32 s49, s2, 80")
    sdiv(k, 50, 49, 40)
    k(f"s_mul_i32 s50, s50, 40\ns_sub_u32 s49, s49, s50\ns_add_u32 s49, s49, 20\ns_lshl_b32 s49, s49, 8\ns_add_u32 s49, s49, {WS['MOD']}")
    k(f"v_lshlrev_b32 {v(MT+16)}, 2, {v(MT+16)}")
    k(f"buffer_atomic_add_f32 {v(MT+12)}, {v(MT+16)}, {sr(WSR,4)}, s49 offen")
    k.label(skip)

def red16(k, r):
    red8(k, r)
    k(f"v_add_f32_dpp {v(r)}, {v(r)}, {v(r)} row_mirror row_mask:0xf bank_mask:0xf")

def ln_job(k):
    L, Fq, N = 8, 48, 5
    srd(k, RA, P_X, 2048 * 1280)
    k("v_lshrrev_b32 v3, 4, v1\nv_and_b32 v4, 15, v1")
    k(f"s_lshl_b32 s52, s2, 3\ns_sub_u32 s53, {s(sw)}, 4\ns_lshl_b32 s53, s53, 2\ns_add_u32 s52, s52, s53")
    k("v_add_u32 v6, s52, v3\ns_movk_i32 s54, 1280\nv_mul_u32_u24 v6, s54, v6\nv_lshl_add_u32 v6, v4, 4, v6")
    for i in range(N): k(f"buffer_load_dwordx4 {vr(L+4*i,4)}, v6, {sr(RA,4)}, 0 offen offset:{256*i} {NTX}")
    k("v_mov_b32 v128, 0\nv_mov_b32 v129, 0\nv_mov_b32 v132, 0\nv_mov_b32 v133, 0")
    if STAMPS and PROBE == "p0":
        k("s_waitcnt vmcnt(0)")
        probe(k, "p0", 1)
    for i in range(N):
        k(f"s_waitcnt vmcnt({N-1-i})")
        for d in range(4):
            r = L + 4 * i + d; f = Fq + 8 * i + 2 * d
            k(f"v_lshlrev_b32 {v(f)}, 16, {v(r)}\nv_and_b32 {v(f+1)}, 0xffff0000, {v(r)}")
        for d in range(4):
            f = Fq + 8 * i + 2 * d
            k(f"v_pk_add_f32 v[128:129], v[128:129], {vr(f,2)}")
    k("v_add_f32 v128, v128, v129")
    red16(k, 128)
    k(f"v_mul_f32 v130, {hex(f32bits(-1.0/640))}, v128\nv_mov_b32 v131, v130")
    for j in range(0, 8 * N, 2): k(f"v_pk_add_f32 {vr(Fq+j,2)}, {vr(Fq+j,2)}, v[130:131]")
    for j in range(0, 8 * N, 2): k(f"v_pk_fma_f32 v[132:133], {vr(Fq+j,2)}, {vr(Fq+j,2)}, v[132:133]")
    k("v_add_f32 v132, v132, v133")
    red16(k, 132)
    k(f"v_mov_b32 v134, {hex(f32bits(1e-5))}\nv_mov_b32 v135, {hex(f32bits(1.0/640))}\nv_fmac_f32 v134, v132, v135\nv_mov_b32 v137, v134\nv_rsq_f32 v134, v134\ns_nop 0\nv_mov_b32 v135, v134")
    if XRES:
        k(f"v_mul_f32 v137, v137, v134\nv_sub_f32 v136, 0, v130\nv_add_u32 v138, s52, v3\nv_lshlrev_b32 v138, 3, v138\ns_mov_b32 s53, {WS['LNST']}")
        k("v_cmp_eq_u32 vcc, 0, v4\ns_and_saveexec_b64 s[54:55], vcc")
        k(f"buffer_store_dwordx2 v[136:137], v138, {sr(WSR,4)}, s53 offen {HO}\ns_mov_b64 exec, s[54:55]")
    k(f"s_lshr_b32 s53, s52, 5\ns_mul_i32 s53, s53, 40960\ns_and_b32 s52, s52, 31\ns_lshl_b32 s52, s52, 4\ns_add_u32 s52, s52, s53\ns_add_u32 s52, s52, {WS['XN']}")
    k("v_lshlrev_b32 v6, 9, v4\nv_lshl_add_u32 v6, v3, 4, v6")
    for i in range(N):
        for d in range(4):
            f = Fq + 8 * i + 2 * d
            k(f"v_pk_mul_f32 {vr(f,2)}, {vr(f,2)}, v[134:135]")
        for d in range(4):
            f = Fq + 8 * i + 2 * d
            k(f"v_cvt_pk_f16_f32 {v(L+4*i+d)}, {v(f)}, {v(f+1)}")
        k(f"buffer_store_dwordx4 {vr(L+4*i,4)}, v6, {sr(WSR,4)}, s52 offen {HO}\ns_add_u32 s52, s52, 8192")

def line_prefetch(k, ptr, nbytes, nper, dst, first=0):
    srd(k, RB, ptr, nbytes)
    k("v_lshlrev_b32 v146, 7, v1")
    for j in range(nper):
        k(f"s_add_u32 s50, s2, {first + 256*j}\ns_lshl_b32 s50, s50, 13\nbuffer_load_dword {v(dst+j)}, v146, {sr(RB,4)}, s50 offen")

def code_prefetch(k):
    here, skip = k.lab("pc"), k.lab("nopc")
    k(f"s_cmp_ge_u32 {s(sIDX)}, 8\ns_cbranch_scc1 {skip}")
    k("s_getpc_b64 s[48:49]")
    k.label(here)
    k(f"s_sub_u32 s48, s48, {here}-{k.name}\ns_subb_u32 s49, s49, 0")
    k(f"s_lshl_b32 s50, {s(sIDX)}, 13\nv_lshlrev_b32 v144, 7, v1\nv_add_u32 v144, s50, v144")
    k(f"s_mov_b32 s50, CODE_END-{k.name}-4\nv_min_u32 v144, s50, v144")
    k("global_load_dword v148, v144, s[48:49]")
    k.label(skip)

def wtile_setup(k):
    srd(k, RA, P_WQKV, 640 * 3840)
    k("""v_lshrrev_b32 v141, 4, v1
    v_bfe_u32 v142, v1, 2, 2
    """ + ("v_xor_b32 v142, v142, v141" if not os.environ.get("NOSWZ") else "s_nop 0") + """
    v_lshlrev_b32 v142, 6, v142
    v_and_b32 v143, 3, v1
    v_lshl_add_u32 v142, v143, 4, v142
    s_movk_i32 s52, 3840
    v_mad_u32_u24 v140, v141, s52, v142""")
    k(f"s_lshl_b32 s58, {s(scb)}, 8")

def wtile_issue(k, first, count, stride, wrap=False):
    loop = k.lab("wdma")
    k(f"s_mul_i32 s60, s59, 15360\ns_add_u32 s60, s60, s58\ns_lshl_b32 s61, s59, 10")
    if wrap: k(f"s_sub_u32 s61, s61, {RING*4096}")
    k(f"s_mov_b32 s62, {count}")
    k.label(loop)
    k(f"s_mov_b32 m0, s61\ns_add_u32 s61, s61, {stride*1024}\nbuffer_load_dwordx4 v140, {sr(RA,4)}, s60 offen lds")
    k(f"s_add_u32 s60, s60, {stride*15360}\ns_sub_u32 s62, s62, 1\ns_cmp_lg_u32 s62, 0\ns_cbranch_scc1 {loop}")

def wtile_issue_rot(k, count, stride):
    loop = k.lab("wrot")
    NP = 4 * RING
    k(f"s_mul_i32 s60, {s(srb)}, 9\ns_add_u32 s59, s59, s60\ns_mov_b32 s62, {count}")
    k.label(loop)
    k(f"s_cmp_ge_u32 s59, {NP}\ns_cselect_b32 s60, {NP}, 0\ns_sub_u32 s59, s59, s60")
    k(f"s_lshl_b32 m0, s59, 10\ns_mul_i32 s60, s59, 15360\ns_add_u32 s60, s60, s58\nbuffer_load_dwordx4 v140, {sr(RA,4)}, s60 offen lds")
    k(f"s_waitcnt vmcnt({int(os.environ.get('WINFL', '40'))})")
    k(f"s_add_u32 s59, s59, {stride}\ns_sub_u32 s62, s62, 1\ns_cmp_lg_u32 s62, 0\ns_cbranch_scc1 {loop}")

N_G, N_U, N_O, N_D = 480, 480, 200, 480
sJ = 63
def mini_issue(k, rnd):
    if os.environ.get("NOSIDE"):
        k("s_mov_b32 s69, 0"); return
    p = 52
    nojob, go = k.lab("mjno"), k.lab("mjgo")
    k(f"s_sub_u32 s52, {s(sw)}, 4\ns_lshl_b32 {s(sJ)}, s2, 2\ns_add_u32 {s(sJ)}, {s(sJ)}, s52\ns_add_u32 {s(sJ)}, {s(sJ)}, {1024*rnd}")
    k(f"s_lshl_b32 s53, s52, 12\ns_add_u32 s53, s53, {STG}")
    k(f"s_mov_b32 s69, 0\ns_cmp_ge_u32 {s(sJ)}, {N_G+N_U+N_O+N_D}\ns_cbranch_scc1 {nojob}")
    labs = [k.lab("mj") for _ in range(4)]
    lim = 0
    for n, lab in zip((N_G, N_U, N_O), labs):
        lim += n
        k(f"s_cmp_lt_u32 {s(sJ)}, {lim}\ns_cbranch_scc1 {lab}")
    k(f"s_branch {labs[3]}")
    types = [("g", P_WG, 640 * 3072, 3072, 12, 0, True, 3, 40, 6, 0, "WGU"), ("u", P_WU, 640 * 3072, 3072, 12, N_G, True, 3, 40, 6, 3, "WGU"),
             ("o", P_WO, 640 * 1280, 1280, 10, N_G + N_U, False, 5, 20, 5, 0, "WO"), ("d", P_WD, 1536 * 1280, 1280, 10, N_G + N_U + N_O, False, 5, 48, 5, 0, "WD")]
    for (name, ptr, nbytes, stride, ncb, start, wide, dv, NS, NT, tadd, base), lab in zip(types, labs):
        k.label(lab)
        srd(k, RB, ptr, nbytes)
        k(f"s_sub_u32 s54, {s(sJ)}, {start}")
        sdiv(k, 55, 54, ncb)
        k(f"s_mul_i32 s56, s55, {ncb}\ns_sub_u32 s54, s54, s56")
        for tt in range(4):
            k(f"s_lshl_b32 s56, s54, 2\ns_add_u32 s56, s56, {tt}")
            sdiv(k, 57, 56, dv)
            k(f"s_mul_i32 {s(64+tt)}, s57, {dv}\ns_sub_u32 s56, s56, {s(64+tt)}\ns_mul_i32 s57, s57, {NS}\ns_add_u32 s57, s57, s55")
            k(f"s_mul_i32 s57, s57, {NT}\ns_add_u32 s57, s57, s56\ns_lshl_b32 s57, s57, 10\ns_add_u32 {s(64+tt)}, s57, {WS[base] + tadd*1024}")
        if wide:
            k(f"""s_mov_b32 s69, 1
            s_lshl_b32 s55, s55, 4
            s_lshl_b32 s54, s54, 8
            v_lshrrev_b32 v8, 4, v1
            v_and_b32 v9, 15, v1
            v_lshl_add_u32 v9, v9, 4, s54""")
            for i in range(4): k(f"v_add_u32 {v(10+i)}, s55, v8\nv_add_u32 {v(10+i)}, {4*i}, {v(10+i)}")
        else:
            k(f"""s_mov_b32 s69, 2
            s_lshl_b32 s55, s55, 5
            s_lshl_b32 s54, s54, 7
            v_lshrrev_b32 v8, 3, v1
            v_and_b32 v9, 7, v1
            v_lshl_add_u32 v9, v9, 4, s54""")
            for i in range(4): k(f"v_add_u32 {v(10+i)}, s55, v8\nv_add_u32 {v(10+i)}, {8*i}, {v(10+i)}")
            if name == "o":
                k("s_movk_i32 s56, 1639")
                for i in range(4):
                    r = 10 + i
                    k(f"""v_mul_u32_u24 v14, s56, {v(r)}
                    v_lshrrev_b32 v14, 16, v14
                    v_mul_u32_u24 v14, 40, v14
                    v_sub_u32 v14, {v(r)}, v14
                    v_mov_b32 v15, 0
                    v_cmp_le_u32 vcc, 16, v14
                    v_cndmask_b32_e64 v15, v15, 4, vcc
                    v_cmp_le_u32 vcc, 32, v14
                    v_cndmask_b32_e64 v15, v15, -16, vcc
                    v_cmp_le_u32 vcc, 36, v14
                    v_cndmask_b32_e64 v15, v15, 0, vcc
                    v_add_u32 {v(r)}, {v(r)}, v15""")
        k(f"s_movk_i32 s56, {stride}")
        for i in range(4): k(f"v_mad_u32_u24 {v(10+i)}, {v(10+i)}, s56, v9")
        k(f"s_branch {go}")
    k.label(go)
    for i in range(4):
        k(f"s_add_u32 m0, s53, {1024*i}\ns_nop 0\nbuffer_load_dwordx4 {v(10+i)}, {sr(RB,4)}, 0 offen lds")
    k.label(nojob)

def mini_finish(k, later):
    done, narrow, rd = k.lab("mfd"), k.lab("mfn"), k.lab("mfr")
    k(f"s_cmp_eq_u32 s69, 0\ns_cbranch_scc1 {done}")
    k(f"s_waitcnt vmcnt({later})")
    k("v_and_b32 v8, 15, v1\nv_lshrrev_b32 v8, 2, v8\nv_and_b32 v9, 3, v1")
    k(f"s_cmp_eq_u32 s69, 2\ns_cbranch_scc1 {narrow}")
    k("""v_lshrrev_b32 v16, 5, v1
    v_lshl_add_u32 v16, v16, 3, v8
    v_lshlrev_b32 v16, 8, v16
    v_bfe_u32 v17, v1, 4, 1
    v_lshlrev_b32 v17, 5, v17
    v_lshl_add_u32 v17, v9, 3, v17
    v_add3_u32 v16, v16, v17, s53""")
    for tt in range(4):
        k(f"ds_read_b64_tr_b16 {vr(20+4*tt,2)}, v16 offset:{64*tt}\nds_read_b64_tr_b16 {vr(22+4*tt,2)}, v16 offset:{64*tt+1024}")
    k(f"s_branch {rd}")
    k.label(narrow)
    k("""v_lshrrev_b32 v16, 4, v1
    v_lshl_add_u32 v16, v16, 3, v8
    v_lshlrev_b32 v16, 7, v16
    v_lshl_add_u32 v16, v9, 3, v16
    v_add_u32 v16, s53, v16""")
    for tt in range(4):
        k(f"ds_read_b64_tr_b16 {vr(20+4*tt,2)}, v16 offset:{32*tt}\nds_read_b64_tr_b16 {vr(22+4*tt,2)}, v16 offset:{32*tt+512}")
    k.label(rd)
    k("v_lshlrev_b32 v17, 4, v1")
    for tt in range(4):
        k(f"s_waitcnt lgkmcnt({6-2*tt})\nbuffer_store_dwordx4 {vr(20+4*tt,4)}, v17, {sr(WSR,4)}, {s(64+tt)} offen {HO}")
    k.label(done)

def sync01_consumer(k):
    k("s_waitcnt vmcnt(0)\ns_barrier")
    probe(k, "p0", 4)
    nw, n1 = k.lab("s01w"), k.lab("s01w1")
    k(f"s_cmp_lg_u32 {s(sw)}, 1\ns_cbranch_scc1 {n1}\ns_cmp_ge_u32 s2, 80\ns_cbranch_scc1 {n1}")
    k(f"s_lshr_b32 s53, s2, 4\ns_add_u32 s52, s53, {C_M}")
    arrive(k, "s52", 16, G_M, 8, word="s53")
    k.label(n1)
    k(f"s_cmp_lg_u32 {s(sw)}, 0\ns_cbranch_scc1 {nw}")
    probe(k, "p0", 3)
    k(f"s_lshr_b32 s53, s2, 4\ns_add_u32 s52, s53, {C_X}\ns_add_u32 s53, s53, {G_X}")
    arrive(k, "s52", 16, "s53")
    if os.environ.get("SPARE", "0") == "1":
        nsp = k.lab("nsp0")
        k(f"s_cmp_lg_u32 {s(scb)}, 15\ns_cbranch_scc1 {nsp}")
        spare_prefetch(k)
        k(f"s_branch {nw}")
        k.label(nsp)
    k(f"s_add_u32 s52, {s(sXCD)}, {G_M}\ns_lshl_b32 s52, s52, 8\ns_add_u32 s54, {s(srb)}, {G_X}\ns_lshl_b32 s54, s54, 8")
    k("v_lshlrev_b32 v5, 2, v1\nv_add_u32 v5, s52, v5\nv_mov_b32 v7, s54\nv_cmp_gt_u32 vcc, 5, v1\nv_cndmask_b32 v5, v7, v5, vcc\nv_mov_b32 v6, 1")
    if not os.environ.get("NOPOLL01"): poll(k, 5, 6)
    k.label(nw)
    if MOD0: mod_rest0_atomic(k)
    k("s_barrier")

CL = 224
def coef_load(k):
    k(f"v_lshlrev_b32 v9, 4, v0\nv_and_b32 v15, 15, v1\nv_lshlrev_b32 v15, 4, v15\ns_lshl_b32 s55, {s(sw)}, 8\ns_add_u32 s55, s55, 4096\nv_add_u32 v15, s55, v15")
    for ks in range(4):
        k(f"s_mov_b32 s52, {WS['MODP'] + ks*5120}\nbuffer_load_dwordx4 {vr(CL+4*ks,4)}, v9, {sr(WSR,4)}, s52 offen {HL}\nbuffer_load_dwordx4 {vr(CL+16+4*ks,4)}, v15, {sr(WSR,4)}, s52 offen {HL}")
def coef_prep(k, later):
    k(f"s_waitcnt vmcnt({later})")
    k("v_cmp_le_u32 vcc, 160, v0\nv_mov_b32 v6, 0\nv_cndmask_b32_e64 v6, v6, 1.0, vcc")
    for b in (CL, CL + 16):
        for j in range(4):
            k(f"v_add_f32 {v(b+j)}, {v(b+j)}, {v(b+4+j)}\nv_add_f32 {v(b+8+j)}, {v(b+8+j)}, {v(b+12+j)}")
        for j in range(4):
            k(f"v_add_f32 {v(b+j)}, {v(b+j)}, {v(b+8+j)}")
    for j in range(4): k(f"v_add_f32 {v(CL+j)}, {v(CL+j)}, v6\nv_add_f32 {v(CL+16+j)}, 1.0, {v(CL+16+j)}")
    k(f"v_cvt_pk_f16_f32 {v(CL+4)}, {v(CL)}, {v(CL+1)}\nv_cvt_pk_f16_f32 {v(CL+5)}, {v(CL+2)}, {v(CL+3)}\nv_lshlrev_b32 v7, 3, v0\nv_add_u32 v7, {COEF}, v7\nds_write_b64 v7, {vr(CL+4,2)}")
    k(f"v_cvt_pk_f16_f32 {v(CL+20)}, {v(CL+16)}, {v(CL+17)}\nv_cvt_pk_f16_f32 {v(CL+21)}, {v(CL+18)}, {v(CL+19)}\nv_lshrrev_b32 v7, 1, v15\nv_add_u32 v7, {COEF}, v7\nds_write_b64 v7, {vr(CL+20,2)}")

ACC, TR, WB, CB, HF, HB, AW, OFF = 16, 80, 144, 176, 192, 200, 208, 220
NR, PRE, DEPTH = 16, int(os.environ.get('PRE1', 4)), int(os.environ.get('DEP1', 10))

def qkv_consumer(k, isv):
    k("v_and_b32 v3, 31, v1\nv_lshrrev_b32 v4, 5, v1\nv_lshlrev_b32 v5, 4, v1")
    k(f"s_lshl_b32 s53, {s(srb)}, 2\ns_add_u32 s53, s53, {s(sw)}")
    k(f"s_mul_i32 s54, s53, 40960\ns_add_u32 s54, s54, {WS['XN']}")
    vq = Q(k, "vmcnt"); L = Q(k, "lgkmcnt")
    coef_load(k)
    for j in range(7): vq.add(("coef", j))
    vq.add("coef")
    def tload(st):
        k(f"s_add_u32 s55, s54, {st*1024}\nbuffer_load_dwordx4 {vr(TR+4*(st%NR),4)}, v5, {sr(WSR,4)}, s55 offen {HL}"); vq.add(("t", st))
    for st in range(PRE): tload(st)
    nxt = [PRE]
    for j in range(64): k(f"v_mov_b32 {v(ACC+j)}, 0")
    k("""v_and_b32 v8, 15, v1
    v_lshrrev_b32 v8, 2, v8
    v_lshl_add_u32 v9, v4, 3, v8
    v_lshlrev_b32 v9, 8, v9
    v_bfe_u32 v10, v1, 4, 1
    v_lshl_add_u32 v9, v10, 5, v9
    v_and_b32 v10, 3, v1
    v_lshl_add_u32 v9, v10, 3, v9""")
    for t in range(4):
        k(f"v_xor_b32 v10, {t}, v8\nv_lshl_add_u32 {v(AW+t)}, v10, 6, v9")
        k(f"v_add_u32 {v(AW+4+t)}, 0x10000, {v(AW+t)}\nv_add_u32 {v(AW+8+t)}, 0x20000, {v(AW+t)}")
    k(f"v_lshlrev_b32 v14, 4, v4\nv_add_u32 v14, {COEF}, v14")
    if isv:
        k(f"s_lshl_b32 s56, {s(scq)}, 7\nv_add_u32 v6, s56, v3\ns_movk_i32 s56, 3277\ns_mov_b32 s57, 81920\nv_mul_u32_u24 v7, 0x140, v4")
        for t in range(4):
            k(f"""v_add_u32 v9, {32*t}, v6
            v_mul_u32_u24 v10, s56, v9
            v_lshrrev_b32 v10, 16, v10
            v_mad_i32_i24 v9, v10, -16, v9
            v_mad_i32_i24 v9, v10, -4, v9
            v_lshl_add_u32 v9, v9, 4, v7
            v_mad_u32_u24 {v(OFF+t)}, v10, s57, v9""")
        k(f"s_lshl_b32 s58, s53, 1\ns_mul_i32 s58, s58, 640\ns_add_u32 s58, s58, {WS['V']}")
    else:
        k(f"s_mul_i32 s58, s53, 40960\ns_lshl_b32 s56, {s(scq)}, 13\ns_add_u32 s58, s58, s56\ns_mov_b32 s56, {WS['Q']}\ns_mov_b32 s60, {hex(f32bits(QSCALE))}")
        k(f"s_cmp_lt_u32 {s(scb)}, 5\ns_cselect_b32 s56, s56, {WS['KK']}\ns_cselect_b32 s60, s60, 1.0\ns_add_u32 s58, s58, s56\ns_mov_b32 s61, 0")
    coef_prep(k, vq.after("coef"))
    k("s_waitcnt lgkmcnt(0)\ns_barrier")
    k.stamp(3)
    def wread(st, ts=range(4)):
        for t in ts:
            for u in range(2):
                a_ = (st % RING) * 4096 + u * 1024
                k(f"ds_read_b64_tr_b16 {vr(WB+16*(st%2)+4*t+2*u,2)}, {v(AW+4*(a_>>16)+t)} offset:{a_ & 0xffff}")
                L.add(("w", st, t, u))
    def cread(st, which=(0, 1)):
        for x in which:
            k(f"ds_read_b128 {vr(CB+8*(st%2)+4*x,4)}, v14 offset:{(1280 if x == 0 else 0) + 32*st}"); L.add(("c", st, x))
    def mix(st, j0, j1):
        T = TR + 4 * (st % NR); C1 = CB + 8 * (st % 2); C0 = C1 + 4
        for j in range(j0, j1):
            o = j & 1
            k(f"v_fma_mix_f32 {v(HF+j)}, {v(T+j//2)}, {v(C1+j//2)}, {v(C0+j//2)} op_sel:[{o},{o},{o}] op_sel_hi:[1,1,1]")
    def cvt(st, ds=range(4)):
        for d in ds: k(f"v_cvt_pk_bf16_f32 {v(HB+4*(st%2)+d)}, {v(HF+2*d)}, {v(HF+2*d+1)}")
    def mfma(st, t):
        L.wait(("w", st, t, 1))
        w = vr(WB + 16 * (st % 2) + 4 * t, 4); h = vr(HB + 4 * (st % 2), 4); ac = vr(ACC + 16 * t, 16)
        k(f"v_mfma_f32_32x32x16_bf16 {ac}, {h}, {w}, {ac}" if isv else f"v_mfma_f32_32x32x16_bf16 {ac}, {w}, {h}, {ac}")
    cread(0); wread(0); cread(1)
    L.wait(("c", 0, 1)); vq.wait(("t", 0)); mix(0, 0, 8); cvt(0)
    for st in range(40):
        last = st == 39; more = st + 2 < 40
        if st in (1, 8, 16, 24, 32): probe(k, "p1", (1, 8, 16, 24, 32).index(st))
        mfma(st, 0)
        if st in (5, 34): k("s_barrier")
        if not last:
            wread(st + 1, [0])
            if more: cread(st + 2, [0])
            L.wait(("c", st + 1, 1)); vq.wait(("t", st + 1))
            mix(st + 1, 0, 3)
        mfma(st, 1)
        if not last:
            wread(st + 1, [1])
            if more: cread(st + 2, [1])
            mix(st + 1, 3, 6)
        mfma(st, 2)
        if not last:
            wread(st + 1, [2]); mix(st + 1, 6, 8); cvt(st + 1, [0, 1])
        mfma(st, 3)
        if not last:
            wread(st + 1, [3]); cvt(st + 1, [2, 3])
            n = 0
            while nxt[0] < 40 and nxt[0] <= st + 1 + DEPTH and nxt[0] - NR <= st + 1 and n < 2:
                tload(nxt[0]); nxt[0] += 1; n += 1
    k.stamp(4)
    if not isv:
        for t in range(4):
            r = ACC + 16 * t; d = TR + 8 * t
            for j in range(0, 16, 2): k(f"v_pk_mul_f32 {vr(r+j,2)}, {vr(r+j,2)}, s[60:61] op_sel_hi:[1,0]")
            for j in range(8): k(f"v_cvt_pk_bf16_f32 {v(d+j)}, {v(r+2*j)}, {v(r+2*j+1)}")
            for j in range(2):
                b = d + 4 * j
                k(f"v_permlane32_swap_b32 {v(b)}, {v(b+2)}\nv_permlane32_swap_b32 {v(b+1)}, {v(b+3)}")
                k(f"buffer_store_dwordx4 {vr(b,4)}, v5, {sr(WSR,4)}, s58 offen offset:{1024*j} {HO}")
            k("s_add_u32 s58, s58, 2048")
    else:
        for t in range(4):
            for g in range(2):
                r = ACC + 16 * t + 8 * g; d = TR + 4 * (2 * t + g)
                for j in range(4): k(f"v_cvt_pk_bf16_f32 {v(d+j)}, {v(r+2*j)}, {v(r+2*j+1)}")
                k(f"buffer_store_dwordx4 {vr(d,4)}, {v(OFF+t)}, {sr(WSR,4)}, s58 offen offset:{640*g} {HO}")

def spare_prefetch(k):
    k(f"v_lshlrev_b32 v146, 7, v1")
    dst = 64
    for ptr, nbytes in ((P_WG, 640 * 3072), (P_WU, 640 * 3072), (P_WO, 640 * 1280), (P_WMOD, 640 * 7680), (P_WD, 1536 * 1280)):
        srd(k, RB, ptr, nbytes)
        for j in range((nbytes // 8192 + 15) // 16):
            k(f"s_add_u32 s50, {s(srb)}, {16*j}\ns_lshl_b32 s50, s50, 13\nbuffer_load_dword {v(dst)}, v146, {sr(RB,4)}, s50 offen")
            dst += 1
    assert dst <= 256

def consumer01(k, after):
    mod_job(k)
    if MOD0: mod_rest0(k)
    k.stamp(1)
    sync01_consumer(k)
    k.stamp(2)
    idle, lv = k.lab("qidle"), k.lab("qv")
    k(f"s_cmp_eq_u32 {s(scb)}, 15\ns_cbranch_scc1 {idle}")
    k(f"s_cmp_ge_u32 {s(scb)}, 10\ns_cbranch_scc1 {lv}")
    qkv_consumer(k, False)
    k(f"s_branch {after}")
    k.label(lv)
    qkv_consumer(k, True)
    k(f"s_branch {after}")
    k.label(idle)
    k("s_barrier\ns_barrier\ns_barrier")
    k(f"s_branch {after}")

def producer01(k, after):
    lnw, joined, notile, nt2 = k.lab("lnw"), k.lab("pj"), k.lab("nt"), k.lab("nt2")
    k(f"s_cmp_lt_u32 {s(sw)}, 6\ns_cbranch_scc1 {lnw}")
    w7 = k.lab("w7")
    k(f"s_cmp_eq_u32 {s(sw)}, 7\ns_cbranch_scc1 {w7}")
    line_prefetch(k, P_WQKV, 640 * 3840, 2, 150)
    code_prefetch(k)
    k("s_waitcnt vmcnt(0)")
    wait_ready(k)
    k(f"s_branch {joined}")
    k.label(w7)
    B2 = os.environ.get("BATCH2", "0")
    if B2 in ("1", "2"):
        if B2 == "1":
            line_prefetch(k, P_WO, 640 * 1280, 1, 150)
            k("s_waitcnt vmcnt(0)")
        else:
            k("s_sleep 8")
            line_prefetch(k, P_WO, 640 * 1280, 1, 150)
        line_prefetch(k, P_WG, 640 * 3072, 1, 154)
        line_prefetch(k, P_WU, 640 * 3072, 1, 155)
        line_prefetch(k, P_WMOD, 640 * 7680, 3, 151)
        line_prefetch(k, P_WD, 1536 * 1280, 1, 156)
    k(f"s_branch {joined}")
    k.label(lnw)
    ln_job(k)
    probe(k, "p0", 2)
    k("s_waitcnt vmcnt(0)")
    probe(k, "p0", 3)
    k.label(joined)
    k.stamp(1)
    k("s_barrier")
    k(f"s_cmp_eq_u32 {s(scb)}, 15\ns_cbranch_scc1 {nt2}")
    wtile_setup(k)
    k(f"s_sub_u32 s59, {s(sw)}, 4")
    wtile_issue_rot(k, 35, 4)
    k.label(nt2)
    if SIDE == "p1":
        mini_issue(k, 0)
        k("s_waitcnt vmcnt(4)")
    else:
        k("s_waitcnt vmcnt(0)")
    probe(k, "p0", 4)
    k("s_barrier")
    k.stamp(2)
    k("s_barrier")
    k("s_barrier")
    k(f"s_cmp_eq_u32 {s(scb)}, 15\ns_cbranch_scc1 {notile}")
    wtile_setup(k)
    k(f"s_sub_u32 s59, {s(sw)}, 4\ns_mul_i32 s59, s59, 5\ns_add_u32 s59, s59, 140")
    wtile_issue(k, 0, 5, 1, wrap=True)
    k.label(notile)
    if SIDE == "p1":
        k("s_waitcnt vmcnt(0)")
        mini_finish(k, 0)
        mod_rest_load(k)
        mini_issue(k, 1)
        k("s_barrier")
        k("s_waitcnt vmcnt(0)")
        mini_finish(k, 0)
        mod_rest_finish(k)
    else:
        k("s_waitcnt vmcnt(0)\ns_barrier")
    k.stamp(4)
    k(f"s_branch {after}")
```

```python
from mcommon import *
import side

SLOT = 22528
R = 4
CONST = R * SLOT
FLAG = CONST + 5120
XCH = 0
shead, sqb, sgrp = 4, 5, 6
sG, sSt, sL, sNext, sLoad, sCh, sIt, sflag = 52, 55, 58, 61, 62, 63, 3, 15

QMA, QRA, QMB, QRB = 16, 20, 22, 26
SA, SB = 28, 60
PA, PB, OA, OB, MNA, MNB = 92, 100, 108, 124, 140, 156
KM, KR, VV = 172, 180, 184
vKm0, vKr0, vV0, vVm, vKm, vKr, vV, vD = 200, 201, 202, 203, 204, 205, 206, 207
MA, MB = 210, 211
FIN = 212
vCD = 15

def ids(k):
    k(f"""s_and_b32 s48, {s(sIDX)}, 3
    s_lshl_b32 {s(shead)}, {s(sXCD)}, 2
    s_add_u32 {s(shead)}, {s(shead)}, s48
    s_lshr_b32 {s(sqb)}, {s(sIDX)}, 2
    s_lshr_b32 {s(sgrp)}, {s(sw)}, 2""")

def setup(k):
    ids(k)
    k(f"s_mul_i32 s48, {s(shead)}, 5\ns_lshr_b32 s48, s48, 1\ns_lshl_b32 s7, s48, 9")
    k("v_lshlrev_b32 v2, 4, v1")
    for i in range(3):
        k(f"s_add_u32 s48, {s(sw)}, {8*i}")
        if i == 2: k("s_cmp_ge_u32 s48, 22\ns_cselect_b32 s49, 2, 0\ns_sub_u32 s48, s48, s49")
        k(f"s_lshl_b32 {s(sL+i)}, s48, 10")
        k(f"""v_add_u32 v3, {s(sL+i)}, v2
        v_lshrrev_b32 v4, 9, v3
        v_mul_u32_u24 v4, 43, v4
        v_lshrrev_b32 v4, 7, v4
        v_mul_u32_u24 v5, 0x600, v4
        v_sub_u32 v5, v3, v5
        s_mov_b32 s49, 40960
        v_mad_u32_u24 v5, v4, s49, v5
        v_subrev_u32 v3, 0x3000, v3
        s_cmp_lt_u32 s48, 12
        s_cselect_b64 vcc, -1, 0
        v_cndmask_b32 {v(vD+i)}, v3, v5, vcc""")
        k(f"s_mul_i32 s49, {s(shead)}, 81920\ns_add_u32 s49, s49, {WS['V']}\ns_add_u32 s50, s7, {WS['KK']}")
        k(f"s_cmp_lt_u32 s48, 12\ns_cselect_b32 {s(sG+i)}, s50, s49\ns_mov_b32 s50, {8*40960}\ns_cselect_b32 {s(sSt+i)}, s50, 10240")
    k(f"""v_and_b32 v3, 31, v1
    v_lshrrev_b32 v4, 5, v1
    s_mul_i32 s48, {s(sgrp)}, 6144
    v_add_u32 {v(vKm0)}, s48, v2
    v_lshlrev_b32 v5, 4, v3
    v_lshl_add_u32 v5, v4, 3, v5
    s_add_u32 s48, s48, 1024
    v_add_u32 {v(vKr0)}, s48, v5
    v_mul_u32_u24 v5, 0x140, v4
    v_lshl_add_u32 v5, v3, 4, v5
    s_mul_i32 s48, {s(sgrp)}, 5120
    v_add_u32 v5, s48, v5
    v_mov_b32 v6, {CONST - 12288}
    v_mov_b32 v7, {CONST + 16 - 12288}
    v_cmp_lt_u32 vcc, 20, v3
    v_cndmask_b32 v6, v6, v7, vcc
    v_cmp_le_u32 vcc, 20, v3
    v_cndmask_b32 {v(vV0)}, v5, v6, vcc
    v_mov_b32 v7, 1
    v_cndmask_b32_e64 {v(vVm)}, v7, 0, vcc""")
    for j in range(16): k(f"v_mov_b32 {v(MNA+j)}, 0\nv_mov_b32 {v(MNB+j)}, 0")
    k(f"s_mov_b32 {s(sflag)}, 0")

def write_consts(k):
    k(f"""v_mov_b32 v8, 0x3f803f80
    v_mov_b32 v9, 0x3f803f80
    v_mov_b32 v10, 0x3f803f80
    v_mov_b32 v11, 0x3f803f80
    v_mov_b32 v12, 0
    v_mov_b32 v13, 0
    v_mov_b32 v14, 0
    v_mov_b32 v15, 0
    v_min_u32 v5, 7, v1
    v_mul_u32_u24 v5, 0x280, v5
    v_add_u32 v5, {CONST}, v5
    ds_write_b128 v5, v[8:11]
    ds_write_b128 v5, v[12:15] offset:16
    v_mov_b32 v5, {FLAG}
    ds_write_b32 v5, v12
    s_waitcnt lgkmcnt(0)""")

def dep_counters(k):
    k(f"""s_lshr_b32 s48, s7, 9
    s_lshr_b32 s49, s48, 4
    s_add_u32 s50, s48, 2
    s_lshr_b32 s50, s50, 4
    s_mul_i32 s51, {s(shead)}, 20
    s_add_u32 s52, s51, 19
    s_lshr_b32 s51, s51, 7
    s_lshr_b32 s52, s52, 7
    v_mov_b32 v5, s49
    v_mov_b32 v6, 1""")
    for lane, (reg, addk) in enumerate([(50, 0), (49, 5), (50, 5), (51, 10), (52, 10)], start=1):
        k(f"s_add_u32 s53, s{reg}, {addk}\nv_mov_b32 v7, s53\nv_cmp_eq_u32 vcc, {lane}, v1\nv_cndmask_b32 v5, v5, v7, vcc")
    k(f"v_add_u32 v5, {G_Q}, v5\nv_lshlrev_b32 v5, 8, v5")

def dma(k, i, sslot):
    if "nodma" in os.environ.get("AV", "") and getattr(k, "inloop", False): return
    k(f"s_add_u32 m0, {s(sL+i)}, {s(sslot)}\ns_nop 0\nbuffer_load_dwordx4 {v(vD+i)}, {sr(WSR,4)}, {s(sG+i)} offen {HL} lds")

def load_q(k):
    k(f"""s_lshl_b32 s48, {s(sqb)}, 3
    s_and_b32 s49, {s(sw)}, 3
    s_lshl_b32 s49, s49, 1
    s_add_u32 s48, s48, s49
    s_mul_i32 s48, s48, 40960
    s_add_u32 s48, s48, s7
    s_add_u32 s48, s48, {WS['Q']}
    s_add_u32 s49, s48, 40960
    v_lshlrev_b32 v2, 4, v1
    v_and_b32 v3, 31, v1
    v_lshrrev_b32 v4, 5, v1
    v_lshlrev_b32 v5, 4, v3
    v_lshl_add_u32 v5, v4, 3, v5""")
    k(f"buffer_load_dwordx4 {vr(QMA,4)}, v2, {sr(WSR,4)}, s48 offen {HL}\nbuffer_load_dwordx2 {vr(QRA,2)}, v5, {sr(WSR,4)}, s48 offen offset:1024 {HL}")
    k(f"buffer_load_dwordx4 {vr(QMB,4)}, v2, {sr(WSR,4)}, s49 offen {HL}\nbuffer_load_dwordx2 {vr(QRB,2)}, v5, {sr(WSR,4)}, s49 offen offset:1024 {HL}")
def mask_q(k):
    odd, done = k.lab("qodd"), k.lab("qdone")
    k(f"s_bitcmp1_b32 {s(shead)}, 0\ns_cbranch_scc1 {odd}")
    k("v_cmp_le_u32 vcc, 32, v1")
    for r in (QRA, QRA + 1, QRB, QRB + 1): k(f"v_cndmask_b32_e64 {v(r)}, {v(r)}, 0, vcc")
    k(f"s_branch {done}")
    k.label(odd)
    k("v_cmp_gt_u32 vcc, 32, v1")
    for r in (QMA, QMA + 1, QMB, QMB + 1): k(f"v_cndmask_b32_e64 {v(r)}, {v(r)}, 0, vcc")
    k.label(done)

def readK(k, tau, buf):
    k(f"ds_read_b128 {vr(KM+4*buf,4)}, {v(vKm)} offset:{1536*tau}\nds_read_b64 {vr(KR+2*buf,2)}, {v(vKr)} offset:{1536*tau}")
def readV(k, tau, buf):
    for g in range(2): k(f"ds_read_b128 {vr(VV+8*buf+4*g,4)}, {v(vV)} offset:{12288 + 640*(2*tau+g)}")
def S1(k, X, b, kb):
    Sx, Qm, MN = (SA, QMA, MNA) if X == 0 else (SB, QMB, MNB)
    k(f"v_mfma_f32_32x32x16_bf16 {vr(Sx+16*b,16)}, {vr(KM+4*kb,4)}, {vr(Qm,4)}, {vr(MN,16)}")
def S2(k, X, b, kb):
    Sx, Qr = (SA, QRA) if X == 0 else (SB, QRB)
    k(f"v_mfma_f32_32x32x8_bf16 {vr(Sx+16*b,16)}, {vr(KR+2*kb,2)}, {vr(Qr,2)}, {vr(Sx+16*b,16)}")
def PV(k, X, g, vb):
    O, P = (OA, PA) if X == 0 else (OB, PB)
    k(f"v_mfma_f32_32x32x16_bf16 {vr(O,16)}, {vr(VV+8*vb+4*g,4)}, {vr(P+4*g,4)}, {vr(O,16)}")
def exps(k, X, b, a0, a1):
    Sx = (SA if X == 0 else SB) + 16 * b
    for j in range(a0, a1): k(f"v_exp_f32 {v(Sx+j)}, {v(Sx+j)}")
def cvts(k, X, b, a0, a1):
    Sx = (SA if X == 0 else SB) + 16 * b; P = PA if X == 0 else PB
    for j in range(a0, a1): k(f"v_cvt_pk_bf16_f32 {v(P+j)}, {v(Sx+2*j)}, {v(Sx+2*j+1)}")

def stream_start(k, with_q=False):
    k(f"s_mul_i32 s48, {s(shead)}, 81920\ns_add_u32 s49, s48, {WS['V']}\ns_add_u32 s50, s7, {WS['KK']}")
    for i in range(3):
        k(f"s_cmp_eq_u32 {s(sSt+i)}, 10240\ns_cselect_b32 {s(sG+i)}, s49, s50")
    k(f"s_mov_b32 {s(sLoad)}, 0")
    for i in range(3): dma(k, i, sLoad)
    if with_q:
        first = k.lab("hasq")
        k(f"s_cmp_lg_u32 {s(sflag)}, 0\ns_cbranch_scc1 {first}")
        load_q(k)
        k.label(first)
    for i in range(3): k(f"s_add_u32 {s(sG+i)}, {s(sG+i)}, {s(sSt+i)}")
    k(f"s_mov_b32 {s(sLoad)}, {SLOT}")
    for i in range(3): dma(k, i, sLoad)
    k("s_waitcnt vmcnt(3)")
    if with_q:
        first = k.lab("hasq")
        k(f"s_cmp_lg_u32 {s(sflag)}, 0\ns_cbranch_scc1 {first}")
        mask_q(k)
        k.label(first)
    k(f"v_mov_b32 {v(vKm)}, {v(vKm0)}\nv_mov_b32 {v(vKr)}, {v(vKr0)}\nv_mov_b32 {v(vV)}, {v(vV0)}")
    k("s_barrier")
    for i in range(3): k(f"s_add_u32 {s(sG+i)}, {s(sG+i)}, {s(sSt+i)}")
    k(f"s_mov_b32 {s(sLoad)}, {2*SLOT}\ns_mov_b32 {s(sNext)}, {SLOT}\ns_mov_b32 {s(sCh)}, 2")
    dma(k, 0, sLoad); dma(k, 1, sLoad)

def switch_k(k):
    k(f"v_add_u32 {v(vKm)}, {s(sNext)}, {v(vKm0)}\nv_add_u32 {v(vKr)}, {s(sNext)}, {v(vKr0)}")
def next_load(k):
    k(f"s_add_u32 {s(sCh)}, {s(sCh)}, 1\ns_cmp_le_u32 {s(sCh)}, 7")
    for i in range(3): k(f"s_cselect_b32 s48, {s(sSt+i)}, 0\ns_add_u32 {s(sG+i)}, {s(sG+i)}, s48\ns_cmp_le_u32 {s(sCh)}, 7")
    k(f"s_add_u32 {s(sLoad)}, {s(sLoad)}, {SLOT}\ns_cmp_ge_u32 {s(sLoad)}, {R*SLOT}\ns_cselect_b32 s48, {R*SLOT}, 0\ns_sub_u32 {s(sLoad)}, {s(sLoad)}, s48")
def advance(k):
    switch_k(k); next_load(k)

def next_load_lines(skip_it):
    L = [f"s_cmp_lg_u32 {s(sIt)}, {skip_it}", "s_cselect_b32 s50, 1, 0", f"s_add_u32 {s(sCh)}, {s(sCh)}, s50",
         f"s_cmp_le_u32 {s(sCh)}, 7", "s_cselect_b32 s51, s50, 0"]
    for i in range(3): L += [f"s_mul_i32 s48, s51, {s(sSt+i)}", f"s_add_u32 {s(sG+i)}, {s(sG+i)}, s48"]
    L += [f"s_mul_i32 s48, s50, {SLOT}", f"s_add_u32 {s(sLoad)}, {s(sLoad)}, s48", f"s_cmp_ge_u32 {s(sLoad)}, {R*SLOT}",
          f"s_cselect_b32 s48, {R*SLOT}, 0", f"s_sub_u32 {s(sLoad)}, {s(sLoad)}, s48"]
    return L
def next_slot_lines():
    return [f"s_add_u32 {s(sNext)}, {s(sNext)}, {SLOT}", f"s_cmp_ge_u32 {s(sNext)}, {R*SLOT}", f"s_cselect_b32 s48, {R*SLOT}, 0", f"s_sub_u32 {s(sNext)}, {s(sNext)}, s48"]
def sprinkle(k, start, lines):
    out, todo = [], list(lines)
    for ln in k.lines[start:]:
        out.append(ln)
        if todo and ln.startswith("v_exp"): out.append(todo.pop(0))
    assert not todo
    k.lines[start:] = out

def next_slot(k):
    k(f"s_add_u32 {s(sNext)}, {s(sNext)}, {SLOT}\ns_cmp_ge_u32 {s(sNext)}, {R*SLOT}\ns_cselect_b32 s48, {R*SLOT}, 0\ns_sub_u32 {s(sNext)}, {s(sNext)}, s48")

sEv = 98
SPR = os.environ.get('SPR', '1') == '1'
def cd_step(k, step):
    done = k.lab("cds")
    k(f"s_cmp_lg_u32 {s(sw)}, 0\ns_cbranch_scc1 {done}")
    if step == 1: k("s_waitcnt vmcnt(2)")
    if step == 2: k("s_waitcnt vmcnt(1)")
    if step > 0:
        k(f"v_readfirstlane_b32 s48, {v(vCD)}\ns_cmp_lg_u32 s48, 15\ns_cbranch_scc1 {done + 'n'}")
    if step == 0: k(f"s_and_b32 s48, s2, 15\ns_add_u32 s48, s48, {C_D}\ns_lshl_b32 s48, s48, 8\ns_add_u32 s48, s48, {WS['CNT']}")
    else: k(f"s_mov_b32 s48, {WS['CNT'] + (R_D if step == 1 else G_D)*CSTRIDE}")
    k(f"v_mov_b32 v2, 0\nv_mov_b32 {v(vCD)}, 1\ns_mov_b64 exec, 1")
    if step < 2: k(f"buffer_atomic_add {v(vCD)}, v2, {sr(WSR,4)}, s48 offen sc0 sc1")
    else: k(f"buffer_store_dword {v(vCD)}, v2, {sr(WSR,4)}, s48 offen sc0 sc1")
    k(f"s_mov_b64 exec, -1\ns_branch {done}")
    if step > 0:
        k.label(done + "n")
        k(f"v_mov_b32 {v(vCD)}, 0")
    k.label(done)

def main_pass(k):
    stream_start(k, True)
    for j in range(16): k(f"v_mov_b32 {v(OA+j)}, 0\nv_mov_b32 {v(OB+j)}, 0")
    for j in range(4): k(f"v_mov_b32 {v(PB+4+j)}, 0\nv_mov_b32 {v(VV+12+j)}, 0")
    readK(k, 0, 0); readV(k, 0, 0); readK(k, 1, 1)
    k("s_waitcnt lgkmcnt(4)")
    S1(k, 0, 0, 0); S1(k, 1, 0, 0); S2(k, 0, 0, 0); S2(k, 1, 0, 0)
    k.stamp(6)
    if SIDE == "attn": side.keep_src(k)
    k(f"s_mov_b32 {s(sIt)}, 0")
    k(f"s_cmp_eq_u32 {s(sflag)}, 0\ns_cselect_b32 {s(sEv)}, 1, 0")
    loop = k.lab("aloop")
    events = []
    def event(table):
        if SIDE != "attn": return
        go, back = k.lab("ev"), k.lab("evb")
        mask = sum(1 << it for it in table)
        k(f"s_and_b32 s48, {s(sEv)}, {mask}\ns_cbranch_scc1 {go}")
        k.label(back)
        def body():
            items = list(table.items())
            for n, (it, fn) in enumerate(items):
                if n < len(items) - 1:
                    nxt = k.lab("evn")
                    k(f"s_cmp_lg_u32 {s(sIt)}, {it}\ns_cbranch_scc1 {nxt}")
                    fn(); k(f"s_branch {back}")
                    k.label(nxt)
                else:
                    fn()
        events.append((go, back, body))
    k.label(loop)
    k.inloop = True
    for j in range(4):
        b, nb = j % 2, (j + 1) % 2
        AV = os.environ.get("AV", "")
        if "noprio" not in AV: k(f"s_setprio {3 - ((j - 2) % 4)}")
        k("s_waitcnt lgkmcnt(0)")
        if j == 2:
            if SIDE == "attn":
                early, wd = k.lab("early"), k.lab("earlyd")
                k(f"s_cmp_lt_u32 {s(sIt)}, 2\ns_cbranch_scc1 {early}\ns_waitcnt vmcnt(0)")
                k.label(wd)
                def early_wait():
                    nf = k.lab("nf")
                    k(f"s_cmp_eq_u32 {s(sflag)}, 0\ns_cbranch_scc1 {nf}\ns_waitcnt vmcnt(3)\ns_branch {wd}")
                    k.label(nf); k(f"s_waitcnt vmcnt({3 + side.NSIDE})")
                events.append((early, wd, early_wait))
            else:
                k("s_waitcnt vmcnt(3)")
            k("s_barrier")
            event({5: lambda: cd_step(k, 0), 6: lambda: cd_step(k, 2)})
            switch_k(k)
            sk = k.lab("sk2")
            if SIDE == "attn": k(f"s_cmp_eq_u32 {s(sIt)}, 1\ns_cbranch_scc1 {sk}")
            if not SPR: next_load(k)
            dma(k, 0, sLoad)
            k.label(sk)
        if j == 3:
            k(f"v_mad_u32_u24 {v(vV)}, {v(vVm)}, {s(sNext)}, {v(vV0)}")
            sk = k.lab("sk3")
            if SIDE == "attn": k(f"s_cmp_eq_u32 {s(sIt)}, 1\ns_cbranch_scc1 {sk}")
            dma(k, 1, sLoad)
            k.label(sk)
            if not SPR: next_slot(k)
            event({1: lambda: side.mod_issue(k), 2: lambda: side.issue(k), 3: lambda: side.tr_read(k)})
        if j == 0:
            event({4: lambda: side.stores(k), 6: lambda: cd_step(k, 1)})
            sk = k.lab("sk0")
            if SIDE == "attn": k(f"s_cmp_eq_u32 {s(sIt)}, 2\ns_cbranch_scc1 {sk}")
            dma(k, 2, sLoad)
            k.label(sk)
        if j == 1:
            event({0: lambda: side.warm(k), 2: lambda: side.mod_finish(k)})
        start = len(k.lines)
        S1(k, 0, nb, nb); readK(k, (j + 2) % 4, b); exps(k, 0, b, 0, 4)
        PV(k, 1, 1, nb); exps(k, 0, b, 4, 8); cvts(k, 0, b, 0, 4)
        S2(k, 0, nb, nb); readV(k, (j + 1) % 4, nb); exps(k, 0, b, 8, 12)
        PV(k, 0, 0, b); exps(k, 0, b, 12, 16); cvts(k, 0, b, 4, 8)
        S1(k, 1, nb, nb); exps(k, 1, b, 0, 4)
        PV(k, 0, 1, b); exps(k, 1, b, 4, 8); cvts(k, 1, b, 0, 4)
        S2(k, 1, nb, nb); exps(k, 1, b, 8, 12)
        PV(k, 1, 0, b); exps(k, 1, b, 12, 16); cvts(k, 1, b, 4, 8)
        if SPR and j == 1: sprinkle(k, start, next_load_lines(1 if SIDE == 'attn' else 99))
        if SPR and j == 3: sprinkle(k, start, next_slot_lines())
    k.inloop = False
    k(f"s_lshl_b32 {s(sEv)}, {s(sEv)}, 1\ns_add_u32 {s(sIt)}, {s(sIt)}, 1\ns_cmp_lt_u32 {s(sIt)}, 8\ns_cbranch_scc1 {loop}")
    over = k.lab("evover")
    k(f"s_branch {over}")
    for go, back, fn in events:
        k.label(go); fn(); k(f"s_branch {back}")
    k.label(over)
    PV(k, 1, 1, 1)
    k("s_setprio 0\ns_waitcnt vmcnt(0) lgkmcnt(0)\ns_barrier")

def max_pass(k):
    for j in range(16): k(f"v_mov_b32 {v(MNA+j)}, 0\nv_mov_b32 {v(MNB+j)}, 0")
    stream_start(k)
    k(f"v_mov_b32 {v(MA)}, 0xff800000\nv_mov_b32 {v(MB)}, 0xff800000\ns_mov_b32 {s(sIt)}, 0")
    loop = k.lab("mloop")
    k.label(loop)
    dma(k, 2, sLoad)
    for j in range(4):
        readK(k, j, 0)
        k("s_waitcnt lgkmcnt(0)")
        S1(k, 0, 0, 0); S1(k, 1, 0, 0); S2(k, 0, 0, 0); S2(k, 1, 0, 0)
        for a in range(0, 16, 2): k(f"v_max3_f32 {v(MA)}, {v(SA+a)}, {v(SA+a+1)}, {v(MA)}")
        for a in range(0, 16, 2): k(f"v_max3_f32 {v(MB)}, {v(SB+a)}, {v(SB+a+1)}, {v(MB)}")
    k("s_waitcnt vmcnt(3)\ns_barrier")
    advance(k); dma(k, 0, sLoad); dma(k, 1, sLoad); next_slot(k)
    k(f"s_add_u32 {s(sIt)}, {s(sIt)}, 1\ns_cmp_lt_u32 {s(sIt)}, 8\ns_cbranch_scc1 {loop}")
    k("s_waitcnt vmcnt(0) lgkmcnt(0)\ns_barrier")
    for M in (MA, MB):
        k(f"v_mov_b32 v2, {v(M)}\nv_permlane32_swap_b32 v2, {v(M)}\nv_max_f32 {v(M)}, v2, {v(M)}")
    k(f"s_lshl_b32 s48, {s(sw)}, 9\nv_lshlrev_b32 v2, 3, v1\nv_add_u32 v3, s48, v2\nds_write_b64 v3, {vr(MA,2)}\ns_waitcnt lgkmcnt(0)\ns_barrier")
    k(f"s_xor_b32 s48, {s(sw)}, 4\ns_lshl_b32 s48, s48, 9\nv_add_u32 v3, s48, v2\nds_read_b64 v[4:5], v3\ns_waitcnt lgkmcnt(0)")
    k(f"v_max_f32 v4, v4, {v(MA)}\nv_max_f32 v5, v5, {v(MB)}\nv_sub_f32 v4, 0, v4\nv_sub_f32 v5, 0, v5")
    for j in range(16): k(f"v_mov_b32 {v(MNA+j)}, v4\nv_mov_b32 {v(MNB+j)}, v5")
    k("s_barrier")

def merge(k):
    g1, sent, g1b, got = k.lab("mg1"), k.lab("msent"), k.lab("mg1b"), k.lab("mgot")
    k(f"s_mul_i32 s48, {s(sw)}, 3072\nv_lshlrev_b32 v2, 4, v1\nv_add_u32 v3, s48, v2")
    k(f"s_cmp_eq_u32 {s(sgrp)}, 1\ns_cbranch_scc1 {g1}")
    for j in range(3): k(f"ds_write_b128 v3, {vr(OB+4*j,4)} offset:{1024*j}")
    k(f"s_branch {sent}")
    k.label(g1)
    for j in range(3): k(f"ds_write_b128 v3, {vr(OA+4*j,4)} offset:{1024*j}")
    k.label(sent)
    k(f"s_waitcnt lgkmcnt(0)\ns_barrier\ns_xor_b32 s48, {s(sw)}, 4\ns_mul_i32 s48, s48, 3072\nv_add_u32 v3, s48, v2")
    for j in range(3): k(f"ds_read_b128 {vr(FIN+4*j,4)}, v3 offset:{1024*j}")
    k("s_waitcnt lgkmcnt(0)")
    k(f"s_cmp_eq_u32 {s(sgrp)}, 1\ns_cbranch_scc1 {g1b}")
    for j in range(12): k(f"v_add_f32 {v(FIN+j)}, {v(FIN+j)}, {v(OA+j)}")
    k(f"s_branch {got}")
    k.label(g1b)
    for j in range(12): k(f"v_add_f32 {v(FIN+j)}, {v(FIN+j)}, {v(OB+j)}")
    k.label(got)
    k(f"v_mov_b32 v2, {v(FIN+8)}\nv_mov_b32 {v(FIN+12)}, {v(FIN+8)}\nv_permlane32_swap_b32 v2, {v(FIN+12)}")

def attention(k):
    again, fin, good = k.lab("again"), k.lab("fin"), k.lab("good")
    k.label(again)
    main_pass(k)
    k.stamp(7)
    merge(k)
    k(f"s_cmp_lg_u32 {s(sflag)}, 0\ns_cbranch_scc1 {fin}")
    k(f"v_add_f32 v2, |{v(FIN)}|, |{v(FIN+1)}|")
    for j in range(2, 12): k(f"v_add_f32 v2, v2, |{v(FIN+j)}|")
    k(f"""v_mov_b32 v3, {hex(f32bits(2.0**-80))}
    v_mov_b32 v4, {hex(f32bits(2.0**100))}
    v_mov_b32 v5, 0x7f800000
    v_cmp_le_f32 s[48:49], v3, {v(FIN+12)}
    v_cmp_ge_f32 s[50:51], v4, {v(FIN+12)}
    v_cmp_lt_f32 vcc, v2, v5
    s_and_b64 s[48:49], s[48:49], s[50:51]
    s_and_b64 s[48:49], s[48:49], vcc
    s_cmp_eq_u64 s[48:49], exec
    s_cbranch_scc1 {good}""")
    k(f"v_mov_b32 v2, {FLAG}\nv_mov_b32 v3, 1\nds_write_b32 v2, v3")
    k.label(good)
    k(f"s_waitcnt lgkmcnt(0)\ns_barrier\nv_mov_b32 v2, {FLAG}\nds_read_b32 v3, v2\ns_waitcnt lgkmcnt(0)\nv_readfirstlane_b32 s48, v3")
    k(f"s_cmp_eq_u32 s48, 0\ns_cbranch_scc1 {fin}")
    max_pass(k)
    k(f"s_mov_b32 {s(sflag)}, 1\ns_branch {again}")
    k.label(fin)
    k(f"v_rcp_f32 v2, {v(FIN+12)}")
    for j in range(12): k(f"v_mul_f32 {v(FIN+j)}, v2, {v(FIN+j)}")
    for j in range(6): k(f"v_cvt_pk_bf16_f32 {v(PA+j)}, {v(FIN+2*j)}, {v(FIN+2*j+1)}")
    k(f"v_permlane32_swap_b32 {v(PA)}, {v(PA+2)}\nv_permlane32_swap_b32 {v(PA+1)}, {v(PA+3)}")
    k(f"""v_and_b32 v2, 31, v1
    v_lshrrev_b32 v3, 4, v2
    v_mul_u32_u24 v3, 0x5000, v3
    v_and_b32 v4, 15, v2
    v_lshl_add_u32 v3, v4, 4, v3
    v_lshrrev_b32 v5, 5, v1
    v_lshl_add_u32 v5, v5, 8, v3
    s_lshl_b32 s48, {s(sqb)}, 3
    s_and_b32 s49, {s(sw)}, 3
    s_lshl_b32 s49, s49, 1
    s_add_u32 s48, s48, s49
    s_add_u32 s48, s48, {s(sgrp)}
    s_lshl_b32 s48, s48, 1
    s_mul_i32 s48, s48, 0x5000
    s_add_u32 s48, s48, {WS['O']}
    s_lshr_b32 s49, {s(shead)}, 1
    s_mul_i32 s49, s49, 1280
    s_add_u32 s48, s48, s49
    s_and_b32 s50, {s(shead)}, 1
    s_lshl_b32 s51, s50, 9
    s_add_u32 s51, s51, s48
    s_lshl_b32 s50, s50, 3
    s_add_u32 s50, s50, s48
    s_add_u32 s50, s50, 1024""")
    k(f"buffer_store_dwordx4 {vr(PA,4)}, v5, {sr(WSR,4)}, s51 offen {HO}")
    k("v_cmp_gt_u32 vcc, 32, v1\ns_and_saveexec_b64 s[48:49], vcc")
    k(f"buffer_store_dwordx2 {vr(PA+4,2)}, v3, {sr(WSR,4)}, s50 offen {HO}")
    k("s_mov_b64 exec, s[48:49]")
```

```python
import sys, os
sys.path.insert(0, os.path.dirname(os.path.abspath(__file__)))
from mcommon import *
import p01, p2, p345, side

NAME = "adaLN_cond__mha_block__glu_gated_glu__prompt_kernel"
STOP = int(os.environ.get("STOP", "9"))
DIRECT = os.environ.get("DIRECT", "5")
EARLY = os.environ.get("EARLY", "")
LDS = 163840

def finish(k):
    k.stamp(23)
    k.stamp_flush(WSR, sw)
    k("s_endpgm")

def build():
    k = K(NAME, 256)
    k.name_short = "m"
    end = k.lab("end")
    k(f"s_cmp_ge_u32 s2, 256\ns_cbranch_scc1 {end}")
    if STAMPS:
        for i in range(24): k(f"s_mov_b32 s{70+i}, 0")
    k.stamp(0)
    k("s_load_dwordx16 s[16:31], s[0:1], 0\ns_load_dwordx8 s[32:39], s[0:1], 64")
    k(f"v_and_b32 v1, 63, v0\nv_lshrrev_b32 v2, 6, v0\nv_readfirstlane_b32 {s(sw)}, v2")
    k(f"s_and_b32 {s(sXCD)}, s2, 7\ns_lshr_b32 {s(sIDX)}, s2, 3")
    p01.tile_ids(k)
    k("s_waitcnt lgkmcnt(0)")
    probe(k, "p0", 0)
    srd(k, WSR, P_WS, (64 << 20) if STAMPS else WS["END"])
    p01.zero_init(k)
    p01.macc_init(k)
    prod01, p1done = k.lab("prod01"), k.lab("p1done")
    k(f"s_cmp_ge_u32 {s(sw)}, 4\ns_cbranch_scc1 {prod01}")
    p01.consumer01(k, p1done)
    k.label(prod01)
    p01.producer01(k, p1done)
    k.label(p1done)
    k.stamp(14)
    nw, pr = k.lab("s12w"), k.lab("s12pr")
    k(f"s_cmp_ge_u32 {s(sw)}, 4\ns_cbranch_scc1 {pr if SIDE == 'p1' else nw}")
    k("s_waitcnt vmcnt(0)")
    probe(k, "s12", 0)
    k(f"v_mov_b32 v2, {p01.LCNT}\nv_mov_b32 v3, 1")
    k("s_mov_b64 exec, 1\nds_add_rtn_u32 v4, v2, v3\ns_waitcnt lgkmcnt(0)\ns_mov_b64 exec, -1\nv_readfirstlane_b32 s53, v4")
    k(f"s_cmp_lg_u32 s53, 3\ns_cbranch_scc1 {nw}")
    p2.write_consts(k)
    k(f"s_cmp_eq_u32 {s(p01.scb)}, 15\ns_cbranch_scc1 {nw}")
    k(f"s_add_u32 s52, {s(p01.scb)}, {C_Q}\ns_add_u32 s53, {s(p01.scb)}, {G_Q}")
    arrive(k, "s52", 16, "s53")
    if SIDE == "p1":
        k(f"s_branch {nw}")
        k.label(pr)
        k("s_waitcnt vmcnt(0)")
        k(f"v_mov_b32 v2, {p01.LCNT + 4}\nv_mov_b32 v3, 1")
        k("s_mov_b64 exec, 1\nds_add_rtn_u32 v4, v2, v3\ns_waitcnt lgkmcnt(0)\ns_mov_b64 exec, -1\nv_readfirstlane_b32 s53, v4")
        k(f"s_cmp_lg_u32 s53, 3\ns_cbranch_scc1 {nw}")
        k(f"s_and_b32 s52, s2, 15\ns_add_u32 s52, s52, {C_D}")
        arrive(k, "s52", 16, G_D, 1, R_D, 16)
    k.label(nw)
    probe(k, "s12", 1)
    if STOP == 1: finish(k); k.label(end); k("s_endpgm"); k.label("CODE_END"); return k
    if SIDE != "p1": side.decode(k)
    p2.setup(k)
    probe(k, "s12", 2)
    nw = k.lab("s12p")
    k(f"s_cmp_lg_u32 {s(sw)}, 0\ns_cbranch_scc1 {nw}")
    p2.dep_counters(k)
    poll(k, 5, 6)
    probe(k, "s12", 3)
    k.label(nw)
    k("s_barrier")
    k.stamp(5)
    p2.attention(k)
    k.stamp(15)
    nd = k.lab("nogd")
    k(f"s_cmp_lg_u32 {s(sw)}, 0\ns_cbranch_scc1 {nd}")
    k(f"v_mov_b32 v7, {G_D*256}\nv_mov_b32 v6, 1")
    poll(k, 7, 6, 8)
    k.label(nd)
    k("s_waitcnt vmcnt(0)")
    probe(k, "s23", 0)
    k("s_barrier")
    probe(k, "s23", 1)
    w0, rdy = k.lab("s23w0"), k.lab("s23r")
    k(f"s_cmp_lg_u32 {s(sw)}, 0\ns_cbranch_scc1 {w0}")
    k(f"s_add_u32 s52, {s(p2.sqb)}, {C_O}\ns_add_u32 s53, {s(p2.sqb)}, {G_O}")
    if "3" in DIRECT: arrive_direct(k, "s52")
    else: arrive(k, "s52", 32, "s53")
    if STOP == 2:
        k.label(w0); finish(k); k.label(end); k("s_endpgm"); k.label("CODE_END"); return k
    p345.ids(k)
    k(f"s_lshr_b32 s52, {s(p345.srb)}, 2\ns_add_u32 s52, s52, {C_O if '3' in DIRECT else G_O}")
    poll_setup(k, [("s52", 1, 32 if "3" in DIRECT else 1)]); poll(k, 5, 6)
    k(f"s_branch {rdy}")
    k.label(w0)
    p345.ids(k)
    p345.wo_prefetch(k)
    nv = k.lab("nov3")
    k(f"s_cmp_lg_u32 {s(sw)}, 7\ns_cbranch_scc1 {nv}")
    p345.vec_load(k, [(2, False), (4, True)], p345.VEC3)
    k.label(nv)
    k("s_waitcnt vmcnt(0)")
    k.label(rdy)
    probe(k, "s23", 2)
    k("s_barrier")
    k.stamp(8)
    prod3 = k.lab("prod3")
    k(f"s_cmp_ge_u32 {s(sw)}, 4\ns_cbranch_scc1 {prod3}")
    p345.wo_consumer(k)
    k.stamp(16)
    k("s_waitcnt vmcnt(0)")
    probe(k, "s23", 3)
    k("s_barrier")
    probe(k, "s23", 4)
    nw, n1 = k.lab("s34w"), k.lab("s34w1")
    k(f"s_cmp_lg_u32 {s(sw)}, 1\ns_cbranch_scc1 {n1}")
    k(f"s_and_b32 s52, s2, 15\ns_add_u32 s52, s52, {C_U}")
    arrive(k, "s52", 16, G_U, 1, R_U, 16)
    k.label(n1)
    k(f"s_cmp_lg_u32 {s(sw)}, 0\ns_cbranch_scc1 {nw}")
    k(f"s_lshr_b32 s53, {s(p345.srb)}, 1\ns_add_u32 s52, s53, {C_Y}\ns_add_u32 s53, s53, {G_Y}")
    if "4" in DIRECT: arrive_direct(k, "s52")
    else: arrive(k, "s52", 16, "s53")
    if STOP > 3:
        k(f"s_add_u32 s52, {s(p345.grb)}, {C_Y if '4' in DIRECT else G_Y}")
        poll_setup(k, [("s52", 1, 16 if "4" in DIRECT else 1)]); poll(k, 5, 6)
    k.label(nw)
    if STOP == 3: finish(k)
    else:
        k("s_barrier")
        k.stamp(10)
        p345.gu_consumer(k)
        k.stamp(12)
        k("s_waitcnt vmcnt(0)\ns_barrier")
        nw = k.lab("s45w")
        k(f"s_cmp_lg_u32 {s(sw)}, 0\ns_cbranch_scc1 {nw}")
        k(f"s_add_u32 s52, {s(p345.grb)}, {C_H}\ns_add_u32 s53, {s(p345.grb)}, {G_H}")
        if "5" in DIRECT: arrive_direct(k, "s52")
        else: arrive(k, "s52", 16, "s53")
        if STOP > 4:
            k(f"s_lshr_b32 s52, {s(p345.srb)}, 1\ns_add_u32 s52, s52, {C_H if '5' in DIRECT else G_H}")
            poll_setup(k, [("s52", 1, 16 if "5" in DIRECT else 1)]); poll(k, 5, 6)
        k.label(nw)
        if STOP == 4: finish(k)
        else:
            k("s_barrier")
            k.stamp(13)
            p345.down_consumer(k)
            finish(k)
    k.label(prod3)
    P = p345.Prod(k); vq = P.vq
    if STOP > 3:
        P.gu_setup(); P.gu_issue(0); P.gu_issue(1)
    p345.ub_job(k)
    npre = int(os.environ.get("GPRE", "6"))
    if "3" in EARLY:
        k("s_barrier")
        P.gu_setup()
        if STOP > 3:
            for c in range(2, npre): P.gu_issue(c)
    k("s_barrier")
    if STOP == 3: finish(k)
    else:
        if "3" not in EARLY:
            P.gu_setup()
            for c in range(2, npre): P.gu_issue(c)
        vq.wait(("g", 0, 5))
        k("s_barrier")
        issued = npre
        for c in range(1, 10):
            while issued < 10 and issued <= c + p345.AH4 and issued - p345.GSLOT <= c - 3:
                P.gu_issue(issued); issued += 1
            vq.wait(("g", c, 5))
            k("s_barrier")
            if c == 5:
                nu = k.lab("noubd")
                k(f"s_cmp_lg_u32 {s(sw)}, 4\ns_cbranch_scc1 {nu}")
                k(f"v_mov_b32 v6, 1\nv_mov_b32 v7, {G_U*256}")
                poll(k, 7, 6, 8)
                k(f"s_mul_i32 s63, {s(p345.gfb)}, 1536\ns_add_u32 s63, s63, {WS['UB']}")
                k(f"s_mov_b32 m0, {p345.UBL}\ns_nop 0\nbuffer_load_dwordx4 v5, {sr(WSR,4)}, s63 offen {HL} lds")
                k(f"s_add_u32 s63, s63, 1024\ns_mov_b32 m0, {p345.UBL + 1024}\ns_nop 0\nbuffer_load_dwordx4 v5, {sr(WSR,4)}, s63 offen {HL} lds")
                k.label(nu)
        if STOP > 4:
            P.d_setup()
            nv = k.lab("nov5")
            k(f"s_cmp_lg_u32 {s(sw)}, 7\ns_cbranch_scc1 {nv}")
            p345.vec_load(k, [(5, False)], p345.VEC5)
            k("v_lshlrev_b32 v5, 4, v1")
            k.label(nv)
            for c in range(4): P.d_issue(c)
        first5 = 4
        if "4" in EARLY:
            k("s_barrier")
            if STOP > 4:
                for c in range(4, 6): P.d_issue(c)
            first5 = 6
        k("s_barrier")
        if STOP == 4: finish(k)
        else:
            late5 = "5" in DIRECT and os.environ.get("LATE5", "0") == "1"
            if not late5:
                for c in range(first5, 7): P.d_issue(c)
            vq.wait(("d", 0, 4))
            k("s_barrier")
            if late5:
                for c in range(first5, 7): P.d_issue(c)
            issued = 7
            for c in range(1, 12):
                while issued < 12 and issued - 7 <= c - 3:
                    P.d_issue(issued); issued += 1
                vq.wait(("d", c, 4))
                k("s_barrier")
            finish(k)
    k.label(end)
    k("s_endpgm")
    k.label("CODE_END")
    return k

def generate():
    here = os.path.dirname(os.path.abspath(__file__))
    head = open(os.path.join(here, "header.txt")).read()
    k = build()
    t, n = k.text()
    return head + f"; @launch grid=(256,1,1) block=(512,1,1) lds={LDS}\n" + '.amdgcn_target "amdgcn-amd-amdhsa--gfx950"\n.text\n' + t + '.section .rodata,"a"\n' + k.desc()

if __name__ == "__main__":
    txt = generate()
    open(sys.argv[1], "w").write(txt)
    print("wrote", sys.argv[1], len(txt), "bytes,", txt.count("\n"), "lines")
```

```python
import os, struct
from asmlib import *
from asmlib import STAMPS
from mlayout import *

def f32bits(x): return struct.unpack("<I", struct.pack("<f", x))[0]
LOG2E = 1.4426950408889634

WSR = 8
sw = 12
P_X, P_WQKV, P_WO, P_BX, P_WG, P_WU, P_WD, P_C = 16, 18, 20, 22, 24, 26, 28, 30
P_WMOD, P_OUT, P_DBG, P_WS = 32, 34, 36, 38
RA, RB = 40, 44
sXCD, sIDX = 13, 14
SPIN_LIMIT = 200000
HO = os.environ.get("HO", "sc0 sc1")
HL = os.environ.get("HL", "sc1")

SIDE = os.environ.get("SIDE", "hyb")
PROBE = os.environ.get("PROBE", "s23")
def probe(k, group, i):
    if PROBE == group: k.stamp(18 + i)

def srd(k, sd, sp, nbytes):
    k(f"s_mov_b32 {s(sd)}, {s(sp)}\ns_mov_b32 {s(sd+1)}, {s(sp+1)}\ns_mov_b32 {s(sd+2)}, {hex(nbytes)}\ns_mov_b32 {s(sd+3)}, {hex(SRD3)}")

def sdiv(k, sq, sx, d):
    m = ((1 << 20) + d - 1) // d
    for x in range(1 << 12): assert (x * m) >> 20 == x // d, (d, x)
    k(f"s_mul_i32 {s(sq)}, {s(sx)}, {m}\ns_lshr_b32 {s(sq)}, {s(sq)}, 20")

def arrive_direct(k, cnt):
    k(f"s_lshl_b32 s48, {cnt}, 8\ns_add_u32 s48, s48, {WS['CNT']}\nv_mov_b32 v2, 0\nv_mov_b32 v3, 1\ns_mov_b64 exec, 1")
    k(f"buffer_atomic_add v3, v2, {sr(WSR,4)}, s48 offen sc1\ns_mov_b64 exec, -1")

def arrive(k, cnt, n, go, ngo=1, root=None, nroot=0, word=None):
    done = k.lab("arr")
    def idx(x, dst):
        if isinstance(x, int): k(f"s_mov_b32 {dst}, {WS['CNT'] + x*CSTRIDE}")
        else: k(f"s_lshl_b32 {dst}, {x}, 8\ns_add_u32 {dst}, {dst}, {WS['CNT']}")
    def bump(x, target):
        idx(x, "s48")
        k(f"v_mov_b32 v2, 0\nv_mov_b32 v3, 1\ns_mov_b64 exec, 1\nbuffer_atomic_add v3, v2, {sr(WSR,4)}, s48 offen sc0 sc1\ns_waitcnt vmcnt(0)\ns_mov_b64 exec, -1")
        k(f"v_readfirstlane_b32 s49, v3\ns_cmp_lg_u32 s49, {target-1}\ns_cbranch_scc1 {done}")
    bump(cnt, n)
    if root is not None: bump(root, nroot)
    idx(go, "s48")
    if word: k(f"s_lshl_b32 s49, {word}, 2\ns_add_u32 s48, s48, s49")
    k(f"v_lshlrev_b32 v2, 8, v1\nv_mov_b32 v3, 1\ns_mov_b32 exec_lo, {hex((1 << ngo) - 1)}\ns_mov_b32 exec_hi, 0")
    k(f"buffer_store_dword v3, v2, {sr(WSR,4)}, s48 offen sc0 sc1\ns_mov_b64 exec, -1")
    k.label(done)

def poll(k, voff, target, vt=4):
    loop, done = k.lab("poll"), k.lab("polled")
    k(f"s_mov_b32 s49, {WS['CNT']}\ns_mov_b32 s50, 0")
    k.label(loop)
    k(f"buffer_load_dword {v(vt)}, {v(voff)}, {sr(WSR,4)}, s49 offen sc1")
    k("s_waitcnt vmcnt(0)")
    k(f"v_cmp_lt_u32 vcc, {v(vt)}, {v(target)}\ns_cmp_eq_u64 vcc, 0\ns_cbranch_scc1 {done}")
    k(f"s_add_u32 s50, s50, 1\ns_cmp_ge_u32 s50, {SPIN_LIMIT}\ns_cbranch_scc1 {done}\ns_sleep {os.environ.get('PSLEEP', '2')}\ns_branch {loop}")
    k.label(done)

def poll_setup(k, specs, voff=5, vtg=6, lane=1):
    k(f"v_mov_b32 {v(voff)}, 0\nv_mov_b32 {v(vtg)}, 0")
    first = 0
    for base, n, target in specs:
        if isinstance(base, int): k(f"s_mov_b32 s51, {base - first}")
        else: k(f"s_sub_u32 s51, {base}, {first}" if first else f"s_mov_b32 s51, {base}")
        k(f"v_add_u32 v7, s51, {v(lane)}\nv_lshlrev_b32 v7, 8, v7")
        k(f"v_subrev_u32 v8, {first}, {v(lane)}\nv_cmp_gt_u32 vcc, {n}, v8")
        k(f"v_cndmask_b32 {v(voff)}, {v(voff)}, v7, vcc\nv_mov_b32 v7, {target}\nv_cndmask_b32 {v(vtg)}, {v(vtg)}, v7, vcc")
        first += n

class Rot:
    def __init__(self, k, sA, sB, sLim, n, unit): self.k, self.sA, self.sB, self.sLim, self.n, self.unit = k, sA, sB, sLim, n, unit
    def setup(self, sbase, srot):
        k = self.k
        k(f"s_mul_i32 {s(self.sA)}, {s(srot)}, {self.unit}\ns_add_u32 {s(self.sA)}, {s(self.sA)}, {s(sbase)}")
        k(f"s_sub_u32 {s(self.sB)}, {s(self.sA)}, {self.n*self.unit}\ns_sub_u32 {s(self.sLim)}, {self.n}, {s(srot)}")
    def addr(self, dst, i, extra=0):
        k = self.k
        k(f"s_cmp_le_u32 {s(self.sLim)}, {i}\ns_cselect_b32 {s(dst)}, {s(self.sB)}, {s(self.sA)}\ns_add_u32 {s(dst)}, {s(dst)}, {i*self.unit + extra}")

def red8(k, r):
    k(f"v_add_f32_dpp {v(r)}, {v(r)}, {v(r)} quad_perm:[1,0,3,2] row_mask:0xf bank_mask:0xf")
    k(f"v_add_f32_dpp {v(r)}, {v(r)}, {v(r)} quad_perm:[2,3,0,1] row_mask:0xf bank_mask:0xf")
    k(f"v_add_f32_dpp {v(r)}, {v(r)}, {v(r)} row_half_mirror row_mask:0xf bank_mask:0xf")

def red_q(k, r, t0, t1):
    k(f"v_mov_b32 {v(t0)}, {v(r)}\nv_mov_b32 {v(t1)}, {v(r)}\nv_permlane16_swap_b32 {v(t0)}, {v(t1)}\nv_add_f32 {v(r)}, {v(t0)}, {v(t1)}")
    k(f"v_mov_b32 {v(t0)}, {v(r)}\nv_mov_b32 {v(t1)}, {v(r)}\nv_permlane32_swap_b32 {v(t0)}, {v(t1)}\nv_add_f32 {v(r)}, {v(t0)}, {v(t1)}")

class Q:
    def __init__(self, k, name): self.k, self.name, self.q, self.done = k, name, [], -1
    def add(self, tag): self.q.append(tag)
    def after(self, tag): return len(self.q) - 1 - self.q.index(tag)
    def wait(self, tag):
        idx = self.q.index(tag)
        if idx <= self.done and os.environ.get("QSKIP", "1") == "1": return
        n = len(self.q) - 1 - idx
        lim = 63 if self.name == "vmcnt" else 15
        self.k(f"s_waitcnt {self.name}({min(n, lim)})")
        self.done = max(self.done, len(self.q) - 1 - min(n, lim))
```

```python
from mcommon import *

XRES = os.environ.get("XRES", "1") == "1"
NTX = os.environ.get("NTX", "nt" if XRES else "")
NT = os.environ.get("NT0", "nt")
QSCALE = LOG2E * 20 ** -0.5
RING = 35
COEF = RING * 4096
STG = COEF + 2560
assert STG + 16384 <= 163840
srb, scb, scq = 15, 4, 5

def tile_ids(k):
    k(f"""s_and_b32 s48, {s(sIDX)}, 3
    s_lshr_b32 s49, {s(sXCD)}, 1
    s_lshl_b32 s49, s49, 2
    s_add_u32 {s(srb)}, s49, s48
    s_lshr_b32 s48, {s(sIDX)}, 2
    s_and_b32 s49, {s(sXCD)}, 1
    s_lshl_b32 s49, s49, 3
    s_add_u32 {s(scb)}, s49, s48""")
    sdiv(k, 48, scb, 5)
    k(f"s_mul_i32 s48, s48, 5\ns_sub_u32 {s(scq)}, {s(scb)}, s48")

def zero_init(k):
    skip = k.lab("noinit")
    k(f"s_cmp_lg_u32 s2, 255\ns_cbranch_scc1 {skip}")
    k("v_mov_b32 v4, 0\nv_mov_b32 v5, 0\nv_mov_b32 v6, 0\nv_mov_b32 v7, 0\nv_lshlrev_b32 v8, 4, v1")
    k(f"s_mul_i32 s48, {s(sw)}, 11264\ns_add_u32 s48, s48, {WS['ZERO']}")
    for i in range(11):
        k(f"buffer_store_dwordx4 v[4:7], v8, {sr(WSR,4)}, s48 offen {HO}\ns_add_u32 s48, s48, 1024")
    k("s_waitcnt vmcnt(0)\ns_barrier")
    k(f"s_cmp_lg_u32 {s(sw)}, 0\ns_cbranch_scc1 {skip}")
    srd(k, RB, P_DBG, 256)
    k("v_mov_b32 v4, 1\nv_mov_b32 v5, 0\ns_mov_b64 exec, 1")
    k(f"buffer_store_dword v4, v5, {sr(RB,4)}, 0 offen offset:4 {HO}")
    k("s_mov_b64 exec, -1")
    k.label(skip)

def wait_ready(k):
    srd(k, RB, P_DBG, 256)
    loop, done = k.lab("rdy"), k.lab("rdyd")
    k("v_mov_b32 v60, 0\ns_mov_b32 s50, 0")
    k.label(loop)
    k(f"buffer_load_dword v61, v60, {sr(RB,4)}, 0 offen offset:4 sc1\ns_waitcnt vmcnt(0)\nv_readfirstlane_b32 s51, v61")
    k(f"s_cmp_lg_u32 s51, 0\ns_cbranch_scc1 {done}\ns_add_u32 s50, s50, 1\ns_cmp_ge_u32 s50, {SPIN_LIMIT}\ns_cbranch_scc1 {done}\ns_sleep 6\ns_branch {loop}")
    k.label(done)

LCNT = 162304 + 320
MACC = 162304
assert MACC + 512 <= 163840

def mod_load(k, R0, scb_, sks, wv):
    srd(k, RA, P_WMOD, 640 * 7680); srd(k, RB, P_C, 1280)
    k("v_lshrrev_b32 v3, 3, v1\nv_and_b32 v4, 7, v1")
    k(f"s_mul_i32 s54, {s(sks)}, 160\ns_mul_i32 s55, {s(wv)}, 40\ns_add_u32 s54, s54, s55")
    k(f"v_add_u32 v5, s54, v3\ns_movk_i32 s55, 7680\nv_mul_u32_u24 v6, s55, v5\ns_lshl_b32 s56, {s(scb_)}, 7")
    k("v_lshlrev_b32 v7, 4, v4\nv_add3_u32 v6, v6, v7, s56\nv_lshlrev_b32 v8, 1, v5")
    for i in range(5):
        k(f"s_mov_b32 s57, {61440*i}\nbuffer_load_dwordx4 {vr(R0+4*i,4)}, v6, {sr(RA,4)}, s57 offen {NT}")
    for i in range(5):
        k(f"buffer_load_ushort {v(R0+20+i)}, v8, {sr(RB,4)}, 0 offen offset:{16*i}")

def mod_compute(k, R0, T, stmp=48):
    C = R0 + 20
    for j in range(8): k(f"v_mov_b32 {v(T+j)}, 0")
    k(f"s_mov_b32 {s(stmp)}, 0xbfb8aa3b")
    E = T + 8
    for i in range(5): k(f"v_lshlrev_b32 {v(C+i)}, 16, {v(C+i)}\nv_mul_f32 {v(E+i)}, {s(stmp)}, {v(C+i)}\nv_exp_f32 {v(E+i)}, {v(E+i)}")
    for i in range(5): k(f"v_add_f32 {v(E+i)}, 1.0, {v(E+i)}")
    for i in range(5): k(f"v_rcp_f32 {v(E+i)}, {v(E+i)}")
    for i in range(5): k(f"v_mul_f32 {v(C+i)}, {v(C+i)}, {v(E+i)}")
    for i in range(5):
        for d in range(4):
            r = R0 + 4 * i + d
            k(f"v_lshlrev_b32 {v(T+16)}, 16, {v(r)}\nv_and_b32 {v(T+17)}, 0xffff0000, {v(r)}\nv_fmac_f32 {v(T+2*d)}, {v(C+i)}, {v(T+16)}\nv_fmac_f32 {v(T+2*d+1)}, {v(C+i)}, {v(T+17)}")
    k(f"v_and_b32 {v(T+16)}, 8, v1\nv_cmp_ne_u32 vcc, 0, {v(T+16)}")
    for j in range(4):
        k(f"v_cndmask_b32 {v(T+8+j)}, {v(T+4+j)}, {v(T+j)}, vcc\nv_cndmask_b32 {v(T+12+j)}, {v(T+j)}, {v(T+4+j)}, vcc")
    for j in range(4):
        k(f"v_add_f32_dpp {v(T+12+j)}, {v(T+8+j)}, {v(T+12+j)} row_ror:8 row_mask:0xf bank_mask:0xf")
    a = T + 12
    k(f"v_permlane16_swap_b32 {v(a)}, {v(a+2)}\nv_permlane16_swap_b32 {v(a+1)}, {v(a+3)}\nv_add_f32 {v(a)}, {v(a)}, {v(a+2)}\nv_add_f32 {v(a+1)}, {v(a+1)}, {v(a+3)}")
    k(f"v_permlane32_swap_b32 {v(a)}, {v(a+1)}\nv_add_f32 {v(a)}, {v(a)}, {v(a+1)}")
    c, t = T + 16, T + 17
    k(f"""v_and_b32 {v(c)}, 7, v1
    v_lshlrev_b32 {v(c)}, 3, {v(c)}
    v_bfe_u32 {v(t)}, v1, 3, 1
    v_lshl_add_u32 {v(c)}, {v(t)}, 2, {v(c)}
    v_bfe_u32 {v(t)}, v1, 4, 1
    v_lshl_add_u32 {v(c)}, {v(t)}, 1, {v(c)}
    v_lshrrev_b32 {v(t)}, 5, v1
    v_add_u32 {v(c)}, {v(c)}, {v(t)}""")

def macc_init(k):
    skip = k.lab("nomacc")
    k(f"s_cmp_lg_u32 {s(sw)}, 0\ns_cbranch_scc1 {skip}")
    k(f"v_mov_b32 v2, 0\nv_lshlrev_b32 v3, 2, v1\nv_add_u32 v3, {MACC}, v3\nds_write_b32 v3, v2\nds_write_b32 v3, v2 offset:256\ns_waitcnt lgkmcnt(0)")
    k.label(skip)
    k("s_barrier")

def mod_job(k):
    skip = k.lab("nomod")
    k(f"s_cmp_ge_u32 s2, 80\ns_cbranch_scc1 {skip}")
    sdiv(k, 52, 2, 20)
    k("s_mul_i32 s53, s52, 20\ns_sub_u32 s53, s2, s53")
    mod_load(k, 16, 53, 52, sw)
    k("s_waitcnt vmcnt(0)")
    probe(k, "p0", 1)
    mod_compute(k, 16, 44)
    k(f"v_lshlrev_b32 v60, 2, v60\nv_add_u32 v60, {MACC}, v60\nds_add_f32 v60, v56\nv_mov_b32 v61, {MACC+256}\nv_mov_b32 v62, 1\ns_waitcnt lgkmcnt(0)")
    k("s_mov_b64 exec, 1\nds_add_rtn_u32 v63, v61, v62\ns_waitcnt lgkmcnt(0)\ns_mov_b64 exec, -1\nv_readfirstlane_b32 s57, v63")
    probe(k, "p0", 2)
    k(f"s_cmp_lg_u32 s57, 3\ns_cbranch_scc1 {skip}")
    k(f"v_lshlrev_b32 v60, 2, v1\nv_add_u32 v61, {MACC}, v60\nds_read_b32 v62, v61")
    k(f"s_mul_i32 s56, s52, 5120\ns_lshl_b32 s57, s53, 8\ns_add_u32 s56, s56, s57\ns_add_u32 s56, s56, {WS['MODP']}\ns_waitcnt lgkmcnt(0)")
    k(f"buffer_store_dword v62, v60, {sr(WSR,4)}, s56 offen {HO}")
    k.label(skip)

MOD0 = os.environ.get("MOD0", "0") == "1"
def mod_rest0(k):
    skip = k.lab("nom0")
    k(f"s_cmp_lt_u32 s2, 80\ns_cbranch_scc1 {skip}\ns_cmp_ge_u32 s2, 240\ns_cbranch_scc1 {skip}")
    k("s_sub_u32 s53, s2, 80")
    sdiv(k, 52, 53, 40)
    k(f"s_mul_i32 s54, s52, 40\ns_sub_u32 s53, s53, s54\ns_add_u32 s53, s53, 20")
    mod_load(k, 16, 53, 52, sw)
    k("s_waitcnt vmcnt(0)")
    mod_compute(k, 16, 44)
    k.label(skip)
def mod_rest0_atomic(k):
    skip = k.lab("nom1")
    k(f"s_cmp_lt_u32 s2, 80\ns_cbranch_scc1 {skip}\ns_cmp_ge_u32 s2, 240\ns_cbranch_scc1 {skip}")
    k("s_sub_u32 s49, s2, 80")
    sdiv(k, 50, 49, 40)
    k(f"s_mul_i32 s50, s50, 40\ns_sub_u32 s49, s49, s50\ns_add_u32 s49, s49, 20\ns_lshl_b32 s49, s49, 8\ns_add_u32 s49, s49, {WS['MOD']}")
    k(f"v_lshlrev_b32 v60, 2, v60\nbuffer_atomic_add_f32 v56, v60, {sr(WSR,4)}, s49 offen")
    k.label(skip)

MR, MT = 60, 28
def mod_rest_load(k):
    if os.environ.get("NOSIDE"): return
    skip = k.lab("nomr")
    k(f"s_cmp_lt_u32 s2, 80\ns_cbranch_scc1 {skip}\ns_cmp_ge_u32 s2, 240\ns_cbranch_scc1 {skip}")
    k("s_sub_u32 s53, s2, 80")
    sdiv(k, 52, 53, 40)
    k(f"s_mul_i32 s54, s52, 40\ns_sub_u32 s53, s53, s54\ns_add_u32 s53, s53, 20\ns_sub_u32 s68, {s(sw)}, 4")
    mod_load(k, MR, 53, 52, 68)
    k.label(skip)
def mod_rest_finish(k):
    if os.environ.get("NOSIDE"): return
    skip = k.lab("nomf")
    k(f"s_cmp_lt_u32 s2, 80\ns_cbranch_scc1 {skip}\ns_cmp_ge_u32 s2, 240\ns_cbranch_scc1 {skip}")
    mod_compute(k, MR, MT)
    k("s_sub_u32 s49, s2, 80")
    sdiv(k, 50, 49, 40)
    k(f"s_mul_i32 s50, s50, 40\ns_sub_u32 s49, s49, s50\ns_add_u32 s49, s49, 20\ns_lshl_b32 s49, s49, 8\ns_add_u32 s49, s49, {WS['MOD']}")
    k(f"v_lshlrev_b32 {v(MT+16)}, 2, {v(MT+16)}")
    k(f"buffer_atomic_add_f32 {v(MT+12)}, {v(MT+16)}, {sr(WSR,4)}, s49 offen")
    k.label(skip)

def red16(k, r):
    red8(k, r)
    k(f"v_add_f32_dpp {v(r)}, {v(r)}, {v(r)} row_mirror row_mask:0xf bank_mask:0xf")

def ln_job(k):
    L, Fq, N = 8, 48, 5
    srd(k, RA, P_X, 2048 * 1280)
    k("v_lshrrev_b32 v3, 4, v1\nv_and_b32 v4, 15, v1")
    k(f"s_lshl_b32 s52, s2, 3\ns_sub_u32 s53, {s(sw)}, 4\ns_lshl_b32 s53, s53, 2\ns_add_u32 s52, s52, s53")
    k("v_add_u32 v6, s52, v3\ns_movk_i32 s54, 1280\nv_mul_u32_u24 v6, s54, v6\nv_lshl_add_u32 v6, v4, 4, v6")
    for i in range(N): k(f"buffer_load_dwordx4 {vr(L+4*i,4)}, v6, {sr(RA,4)}, 0 offen offset:{256*i} {NTX}")
    k("v_mov_b32 v128, 0\nv_mov_b32 v129, 0\nv_mov_b32 v132, 0\nv_mov_b32 v133, 0")
    if STAMPS and PROBE == "p0":
        k("s_waitcnt vmcnt(0)")
        probe(k, "p0", 1)
    for i in range(N):
        k(f"s_waitcnt vmcnt({N-1-i})")
        for d in range(4):
            r = L + 4 * i + d; f = Fq + 8 * i + 2 * d
            k(f"v_lshlrev_b32 {v(f)}, 16, {v(r)}\nv_and_b32 {v(f+1)}, 0xffff0000, {v(r)}")
        for d in range(4):
            f = Fq + 8 * i + 2 * d
            k(f"v_pk_add_f32 v[128:129], v[128:129], {vr(f,2)}")
    k("v_add_f32 v128, v128, v129")
    red16(k, 128)
    k(f"v_mul_f32 v130, {hex(f32bits(-1.0/640))}, v128\nv_mov_b32 v131, v130")
    for j in range(0, 8 * N, 2): k(f"v_pk_add_f32 {vr(Fq+j,2)}, {vr(Fq+j,2)}, v[130:131]")
    for j in range(0, 8 * N, 2): k(f"v_pk_fma_f32 v[132:133], {vr(Fq+j,2)}, {vr(Fq+j,2)}, v[132:133]")
    k("v_add_f32 v132, v132, v133")
    red16(k, 132)
    k(f"v_mov_b32 v134, {hex(f32bits(1e-5))}\nv_mov_b32 v135, {hex(f32bits(1.0/640))}\nv_fmac_f32 v134, v132, v135\nv_mov_b32 v137, v134\nv_rsq_f32 v134, v134\ns_nop 0\nv_mov_b32 v135, v134")
    if XRES:
        k(f"v_mul_f32 v137, v137, v134\nv_sub_f32 v136, 0, v130\nv_add_u32 v138, s52, v3\nv_lshlrev_b32 v138, 3, v138\ns_mov_b32 s53, {WS['LNST']}")
        k("v_cmp_eq_u32 vcc, 0, v4\ns_and_saveexec_b64 s[54:55], vcc")
        k(f"buffer_store_dwordx2 v[136:137], v138, {sr(WSR,4)}, s53 offen {HO}\ns_mov_b64 exec, s[54:55]")
    k(f"s_lshr_b32 s53, s52, 5\ns_mul_i32 s53, s53, 40960\ns_and_b32 s52, s52, 31\ns_lshl_b32 s52, s52, 4\ns_add_u32 s52, s52, s53\ns_add_u32 s52, s52, {WS['XN']}")
    k("v_lshlrev_b32 v6, 9, v4\nv_lshl_add_u32 v6, v3, 4, v6")
    for i in range(N):
        for d in range(4):
            f = Fq + 8 * i + 2 * d
            k(f"v_pk_mul_f32 {vr(f,2)}, {vr(f,2)}, v[134:135]")
        for d in range(4):
            f = Fq + 8 * i + 2 * d
            k(f"v_cvt_pk_f16_f32 {v(L+4*i+d)}, {v(f)}, {v(f+1)}")
        k(f"buffer_store_dwordx4 {vr(L+4*i,4)}, v6, {sr(WSR,4)}, s52 offen {HO}\ns_add_u32 s52, s52, 8192")

def line_prefetch(k, ptr, nbytes, nper, dst, first=0):
    srd(k, RB, ptr, nbytes)
    k("v_lshlrev_b32 v146, 7, v1")
    for j in range(nper):
        k(f"s_add_u32 s50, s2, {first + 256*j}\ns_lshl_b32 s50, s50, 13\nbuffer_load_dword {v(dst+j)}, v146, {sr(RB,4)}, s50 offen")

def code_prefetch(k):
    here, skip = k.lab("pc"), k.lab("nopc")
    k(f"s_cmp_ge_u32 {s(sIDX)}, 8\ns_cbranch_scc1 {skip}")
    k("s_getpc_b64 s[48:49]")
    k.label(here)
    k(f"s_sub_u32 s48, s48, {here}-{k.name}\ns_subb_u32 s49, s49, 0")
    k(f"s_lshl_b32 s50, {s(sIDX)}, 13\nv_lshlrev_b32 v144, 7, v1\nv_add_u32 v144, s50, v144")
    k(f"s_mov_b32 s50, CODE_END-{k.name}-4\nv_min_u32 v144, s50, v144")
    k("global_load_dword v148, v144, s[48:49]")
    k.label(skip)

def wtile_setup(k):
    srd(k, RA, P_WQKV, 640 * 3840)
    k("""v_lshrrev_b32 v141, 4, v1
    v_bfe_u32 v142, v1, 2, 2
    """ + ("v_xor_b32 v142, v142, v141" if not os.environ.get("NOSWZ") else "s_nop 0") + """
    v_lshlrev_b32 v142, 6, v142
    v_and_b32 v143, 3, v1
    v_lshl_add_u32 v142, v143, 4, v142
    s_movk_i32 s52, 3840
    v_mad_u32_u24 v140, v141, s52, v142""")
    k(f"s_lshl_b32 s58, {s(scb)}, 8")

def wtile_issue(k, first, count, stride, wrap=False):
    loop = k.lab("wdma")
    k(f"s_mul_i32 s60, s59, 15360\ns_add_u32 s60, s60, s58\ns_lshl_b32 s61, s59, 10")
    if wrap: k(f"s_sub_u32 s61, s61, {RING*4096}")
    k(f"s_mov_b32 s62, {count}")
    k.label(loop)
    k(f"s_mov_b32 m0, s61\ns_add_u32 s61, s61, {stride*1024}\nbuffer_load_dwordx4 v140, {sr(RA,4)}, s60 offen lds")
    k(f"s_add_u32 s60, s60, {stride*15360}\ns_sub_u32 s62, s62, 1\ns_cmp_lg_u32 s62, 0\ns_cbranch_scc1 {loop}")

def wtile_issue_rot(k, count, stride):
    loop = k.lab("wrot")
    NP = 4 * RING
    k(f"s_mul_i32 s60, {s(srb)}, {int(os.environ.get('ROTW', '9'))}\ns_add_u32 s59, s59, s60\ns_mov_b32 s62, {count}")
    k.label(loop)
    k(f"s_cmp_ge_u32 s59, {NP}\ns_cselect_b32 s60, {NP}, 0\ns_sub_u32 s59, s59, s60")
    k(f"s_lshl_b32 m0, s59, 10\ns_mul_i32 s60, s59, 15360\ns_add_u32 s60, s60, s58\nbuffer_load_dwordx4 v140, {sr(RA,4)}, s60 offen lds")
    k(f"s_waitcnt vmcnt({int(os.environ.get('WINFL', '40'))})")
    k(f"s_add_u32 s59, s59, {stride}\ns_sub_u32 s62, s62, 1\ns_cmp_lg_u32 s62, 0\ns_cbranch_scc1 {loop}")

N_G, N_U, N_O, N_D = 480, 480, 200, 480
sJ = 63
def mini_issue(k, rnd):
    if os.environ.get("NOSIDE"):
        k("s_mov_b32 s69, 0"); return
    p = 52
    nojob, go = k.lab("mjno"), k.lab("mjgo")
    k(f"s_sub_u32 s52, {s(sw)}, 4\ns_lshl_b32 {s(sJ)}, s2, 2\ns_add_u32 {s(sJ)}, {s(sJ)}, s52\ns_add_u32 {s(sJ)}, {s(sJ)}, {1024*rnd}")
    k(f"s_lshl_b32 s53, s52, 12\ns_add_u32 s53, s53, {STG}")
    k(f"s_mov_b32 s69, 0\ns_cmp_ge_u32 {s(sJ)}, {N_G+N_U+N_O+N_D}\ns_cbranch_scc1 {nojob}")
    labs = [k.lab("mj") for _ in range(4)]
    lim = 0
    for n, lab in zip((N_G, N_U, N_O), labs):
        lim += n
        k(f"s_cmp_lt_u32 {s(sJ)}, {lim}\ns_cbranch_scc1 {lab}")
    k(f"s_branch {labs[3]}")
    types = [("g", P_WG, 640 * 3072, 3072, 12, 0, True, 3, 40, 6, 0, "WGU"), ("u", P_WU, 640 * 3072, 3072, 12, N_G, True, 3, 40, 6, 3, "WGU"),
             ("o", P_WO, 640 * 1280, 1280, 10, N_G + N_U, False, 5, 20, 5, 0, "WO"), ("d", P_WD, 1536 * 1280, 1280, 10, N_G + N_U + N_O, False, 5, 48, 5, 0, "WD")]
    for (name, ptr, nbytes, stride, ncb, start, wide, dv, NS, NT, tadd, base), lab in zip(types, labs):
        k.label(lab)
        srd(k, RB, ptr, nbytes)
        k(f"s_sub_u32 s54, {s(sJ)}, {start}")
        sdiv(k, 55, 54, ncb)
        k(f"s_mul_i32 s56, s55, {ncb}\ns_sub_u32 s54, s54, s56")
        for tt in range(4):
            k(f"s_lshl_b32 s56, s54, 2\ns_add_u32 s56, s56, {tt}")
            sdiv(k, 57, 56, dv)
            k(f"s_mul_i32 {s(64+tt)}, s57, {dv}\ns_sub_u32 s56, s56, {s(64+tt)}\ns_mul_i32 s57, s57, {NS}\ns_add_u32 s57, s57, s55")
            k(f"s_mul_i32 s57, s57, {NT}\ns_add_u32 s57, s57, s56\ns_lshl_b32 s57, s57, 10\ns_add_u32 {s(64+tt)}, s57, {WS[base] + tadd*1024}")
        if wide:
            k(f"""s_mov_b32 s69, 1
            s_lshl_b32 s55, s55, 4
            s_lshl_b32 s54, s54, 8
            v_lshrrev_b32 v8, 4, v1
            v_and_b32 v9, 15, v1
            v_lshl_add_u32 v9, v9, 4, s54""")
            for i in range(4): k(f"v_add_u32 {v(10+i)}, s55, v8\nv_add_u32 {v(10+i)}, {4*i}, {v(10+i)}")
        else:
            k(f"""s_mov_b32 s69, 2
            s_lshl_b32 s55, s55, 5
            s_lshl_b32 s54, s54, 7
            v_lshrrev_b32 v8, 3, v1
            v_and_b32 v9, 7, v1
            v_lshl_add_u32 v9, v9, 4, s54""")
            for i in range(4): k(f"v_add_u32 {v(10+i)}, s55, v8\nv_add_u32 {v(10+i)}, {8*i}, {v(10+i)}")
            if name == "o":
                k("s_movk_i32 s56, 1639")
                for i in range(4):
                    r = 10 + i
                    k(f"""v_mul_u32_u24 v14, s56, {v(r)}
                    v_lshrrev_b32 v14, 16, v14
                    v_mul_u32_u24 v14, 40, v14
                    v_sub_u32 v14, {v(r)}, v14
                    v_mov_b32 v15, 0
                    v_cmp_le_u32 vcc, 16, v14
                    v_cndmask_b32_e64 v15, v15, 4, vcc
                    v_cmp_le_u32 vcc, 32, v14
                    v_cndmask_b32_e64 v15, v15, -16, vcc
                    v_cmp_le_u32 vcc, 36, v14
                    v_cndmask_b32_e64 v15, v15, 0, vcc
                    v_add_u32 {v(r)}, {v(r)}, v15""")
        k(f"s_movk_i32 s56, {stride}")
        for i in range(4): k(f"v_mad_u32_u24 {v(10+i)}, {v(10+i)}, s56, v9")
        k(f"s_branch {go}")
    k.label(go)
    for i in range(4):
        k(f"s_add_u32 m0, s53, {1024*i}\ns_nop 0\nbuffer_load_dwordx4 {v(10+i)}, {sr(RB,4)}, 0 offen lds")
    k.label(nojob)

def mini_finish(k, later):
    done, narrow, rd = k.lab("mfd"), k.lab("mfn"), k.lab("mfr")
    k(f"s_cmp_eq_u32 s69, 0\ns_cbranch_scc1 {done}")
    k(f"s_waitcnt vmcnt({later})")
    k("v_and_b32 v8, 15, v1\nv_lshrrev_b32 v8, 2, v8\nv_and_b32 v9, 3, v1")
    k(f"s_cmp_eq_u32 s69, 2\ns_cbranch_scc1 {narrow}")
    k("""v_lshrrev_b32 v16, 5, v1
    v_lshl_add_u32 v16, v16, 3, v8
    v_lshlrev_b32 v16, 8, v16
    v_bfe_u32 v17, v1, 4, 1
    v_lshlrev_b32 v17, 5, v17
    v_lshl_add_u32 v17, v9, 3, v17
    v_add3_u32 v16, v16, v17, s53""")
    for tt in range(4):
        k(f"ds_read_b64_tr_b16 {vr(20+4*tt,2)}, v16 offset:{64*tt}\nds_read_b64_tr_b16 {vr(22+4*tt,2)}, v16 offset:{64*tt+1024}")
    k(f"s_branch {rd}")
    k.label(narrow)
    k("""v_lshrrev_b32 v16, 4, v1
    v_lshl_add_u32 v16, v16, 3, v8
    v_lshlrev_b32 v16, 7, v16
    v_lshl_add_u32 v16, v9, 3, v16
    v_add_u32 v16, s53, v16""")
    for tt in range(4):
        k(f"ds_read_b64_tr_b16 {vr(20+4*tt,2)}, v16 offset:{32*tt}\nds_read_b64_tr_b16 {vr(22+4*tt,2)}, v16 offset:{32*tt+512}")
    k.label(rd)
    k("v_lshlrev_b32 v17, 4, v1")
    for tt in range(4):
        k(f"s_waitcnt lgkmcnt({6-2*tt})\nbuffer_store_dwordx4 {vr(20+4*tt,4)}, v17, {sr(WSR,4)}, {s(64+tt)} offen {HO}")
    k.label(done)

def sync01_consumer(k):
    k("s_waitcnt vmcnt(0)\ns_barrier")
    probe(k, "p0", 4)
    nw, n1 = k.lab("s01w"), k.lab("s01w1")
    k(f"s_cmp_lg_u32 {s(sw)}, 1\ns_cbranch_scc1 {n1}\ns_cmp_ge_u32 s2, 80\ns_cbranch_scc1 {n1}")
    k(f"s_lshr_b32 s53, s2, 4\ns_add_u32 s52, s53, {C_M}")
    arrive(k, "s52", 16, G_M, 8, word="s53")
    k.label(n1)
    k(f"s_cmp_lg_u32 {s(sw)}, 0\ns_cbranch_scc1 {nw}")
    probe(k, "p0", 3)
    k(f"s_lshr_b32 s53, s2, 4\ns_add_u32 s52, s53, {C_X}\ns_add_u32 s53, s53, {G_X}")
    arrive(k, "s52", 16, "s53")
    if os.environ.get("SPARE", "0") == "1":
        nsp = k.lab("nsp0")
        k(f"s_cmp_lg_u32 {s(scb)}, 15\ns_cbranch_scc1 {nsp}")
        spare_prefetch(k)
        k(f"s_branch {nw}")
        k.label(nsp)
    k(f"s_add_u32 s52, {s(sXCD)}, {G_M}\ns_lshl_b32 s52, s52, 8\ns_add_u32 s54, {s(srb)}, {G_X}\ns_lshl_b32 s54, s54, 8")
    k("v_lshlrev_b32 v5, 2, v1\nv_add_u32 v5, s52, v5\nv_mov_b32 v7, s54\nv_cmp_gt_u32 vcc, 5, v1\nv_cndmask_b32 v5, v7, v5, vcc\nv_mov_b32 v6, 1")
    if not os.environ.get("NOPOLL01"): poll(k, 5, 6)
    k.label(nw)
    if MOD0: mod_rest0_atomic(k)
    k("s_barrier")

CL = 224
def coef_load(k):
    k(f"v_lshlrev_b32 v9, 4, v0\nv_and_b32 v15, 15, v1\nv_lshlrev_b32 v15, 4, v15\ns_lshl_b32 s55, {s(sw)}, 8\ns_add_u32 s55, s55, 4096\nv_add_u32 v15, s55, v15")
    for ks in range(4):
        k(f"s_mov_b32 s52, {WS['MODP'] + ks*5120}\nbuffer_load_dwordx4 {vr(CL+4*ks,4)}, v9, {sr(WSR,4)}, s52 offen {HL}\nbuffer_load_dwordx4 {vr(CL+16+4*ks,4)}, v15, {sr(WSR,4)}, s52 offen {HL}")
def coef_prep(k, later):
    k(f"s_waitcnt vmcnt({later})")
    k("v_cmp_le_u32 vcc, 160, v0\nv_mov_b32 v6, 0\nv_cndmask_b32_e64 v6, v6, 1.0, vcc")
    for b in (CL, CL + 16):
        for j in range(4):
            k(f"v_add_f32 {v(b+j)}, {v(b+j)}, {v(b+4+j)}\nv_add_f32 {v(b+8+j)}, {v(b+8+j)}, {v(b+12+j)}")
        for j in range(4):
            k(f"v_add_f32 {v(b+j)}, {v(b+j)}, {v(b+8+j)}")
    for j in range(4): k(f"v_add_f32 {v(CL+j)}, {v(CL+j)}, v6\nv_add_f32 {v(CL+16+j)}, 1.0, {v(CL+16+j)}")
    k(f"v_cvt_pk_f16_f32 {v(CL+4)}, {v(CL)}, {v(CL+1)}\nv_cvt_pk_f16_f32 {v(CL+5)}, {v(CL+2)}, {v(CL+3)}\nv_lshlrev_b32 v7, 3, v0\nv_add_u32 v7, {COEF}, v7\nds_write_b64 v7, {vr(CL+4,2)}")
    k(f"v_cvt_pk_f16_f32 {v(CL+20)}, {v(CL+16)}, {v(CL+17)}\nv_cvt_pk_f16_f32 {v(CL+21)}, {v(CL+18)}, {v(CL+19)}\nv_lshrrev_b32 v7, 1, v15\nv_add_u32 v7, {COEF}, v7\nds_write_b64 v7, {vr(CL+20,2)}")

ACC, TR, WB, CB, HF, HB, AW, OFF = 16, 80, 144, 176, 192, 200, 208, 220
NR, PRE, DEPTH = 16, int(os.environ.get('PRE1', 4)), int(os.environ.get('DEP1', 10))

def qkv_consumer(k, isv):
    k("v_and_b32 v3, 31, v1\nv_lshrrev_b32 v4, 5, v1\nv_lshlrev_b32 v5, 4, v1")
    k(f"s_lshl_b32 s53, {s(srb)}, 2\ns_add_u32 s53, s53, {s(sw)}")
    k(f"s_mul_i32 s54, s53, 40960\ns_add_u32 s54, s54, {WS['XN']}")
    vq = Q(k, "vmcnt"); L = Q(k, "lgkmcnt")
    coef_load(k)
    for j in range(7): vq.add(("coef", j))
    vq.add("coef")
    def tload(st):
        if st % 4 == 0: k(f"s_add_u32 s55, s54, {st*1024}")
        k(f"buffer_load_dwordx4 {vr(TR+4*(st%NR),4)}, v5, {sr(WSR,4)}, s55 offen offset:{1024*(st%4)} {HL}"); vq.add(("t", st))
    for st in range(PRE): tload(st)
    nxt = [PRE]
    for j in range(64): k(f"v_mov_b32 {v(ACC+j)}, 0")
    k("""v_and_b32 v8, 15, v1
    v_lshrrev_b32 v8, 2, v8
    v_lshl_add_u32 v9, v4, 3, v8
    v_lshlrev_b32 v9, 8, v9
    v_bfe_u32 v10, v1, 4, 1
    v_lshl_add_u32 v9, v10, 5, v9
    v_and_b32 v10, 3, v1
    v_lshl_add_u32 v9, v10, 3, v9""")
    for t in range(4):
        k(f"v_xor_b32 v10, {t}, v8\nv_lshl_add_u32 {v(AW+t)}, v10, 6, v9")
        k(f"v_add_u32 {v(AW+4+t)}, 0x10000, {v(AW+t)}\nv_add_u32 {v(AW+8+t)}, 0x20000, {v(AW+t)}")
    k(f"v_lshlrev_b32 v14, 4, v4\nv_add_u32 v14, {COEF}, v14")
    if isv:
        k(f"s_lshl_b32 s56, {s(scq)}, 7\nv_add_u32 v6, s56, v3\ns_movk_i32 s56, 3277\ns_mov_b32 s57, 81920\nv_mul_u32_u24 v7, 0x140, v4")
        for t in range(4):
            k(f"""v_add_u32 v9, {32*t}, v6
            v_mul_u32_u24 v10, s56, v9
            v_lshrrev_b32 v10, 16, v10
            v_mad_i32_i24 v9, v10, -16, v9
            v_mad_i32_i24 v9, v10, -4, v9
            v_lshl_add_u32 v9, v9, 4, v7
            v_mad_u32_u24 {v(OFF+t)}, v10, s57, v9""")
        k(f"s_lshl_b32 s58, s53, 1\ns_mul_i32 s58, s58, 640\ns_add_u32 s58, s58, {WS['V']}")
    else:
        k(f"s_mul_i32 s58, s53, 40960\ns_lshl_b32 s56, {s(scq)}, 13\ns_add_u32 s58, s58, s56\ns_mov_b32 s56, {WS['Q']}\ns_mov_b32 s60, {hex(f32bits(QSCALE))}")
        k(f"s_cmp_lt_u32 {s(scb)}, 5\ns_cselect_b32 s56, s56, {WS['KK']}\ns_cselect_b32 s60, s60, 1.0\ns_add_u32 s58, s58, s56\ns_mov_b32 s61, 0")
    coef_prep(k, vq.after("coef"))
    k("s_waitcnt lgkmcnt(0)\ns_barrier")
    k.stamp(3)
    def wread(st, ts=range(4)):
        for t in ts:
            for u in range(2):
                a_ = (st % RING) * 4096 + u * 1024
                k(f"ds_read_b64_tr_b16 {vr(WB+16*(st%2)+4*t+2*u,2)}, {v(AW+4*(a_>>16)+t)} offset:{a_ & 0xffff}")
                L.add(("w", st, t, u))
    def cread(st, which=(0, 1)):
        for x in which:
            k(f"ds_read_b128 {vr(CB+8*(st%2)+4*x,4)}, v14 offset:{(1280 if x == 0 else 0) + 32*st}"); L.add(("c", st, x))
    def mix(st, j0, j1):
        T = TR + 4 * (st % NR); C1 = CB + 8 * (st % 2); C0 = C1 + 4
        for j in range(j0, j1):
            o = j & 1
            k(f"v_fma_mix_f32 {v(HF+j)}, {v(T+j//2)}, {v(C1+j//2)}, {v(C0+j//2)} op_sel:[{o},{o},{o}] op_sel_hi:[1,1,1]")
    def cvt(st, ds=range(4)):
        for d in ds: k(f"v_cvt_pk_bf16_f32 {v(HB+4*(st%2)+d)}, {v(HF+2*d)}, {v(HF+2*d+1)}")
    def mfma(st, t):
        L.wait(("w", st, t, 1))
        w = vr(WB + 16 * (st % 2) + 4 * t, 4); h = vr(HB + 4 * (st % 2), 4); ac = vr(ACC + 16 * t, 16)
        k(f"v_mfma_f32_32x32x16_bf16 {ac}, {h}, {w}, {ac}" if isv else f"v_mfma_f32_32x32x16_bf16 {ac}, {w}, {h}, {ac}")
    cread(0); wread(0); cread(1)
    L.wait(("c", 0, 1)); vq.wait(("t", 0)); mix(0, 0, 8); cvt(0)
    for st in range(40):
        last = st == 39; more = st + 2 < 40
        if st in (1, 8, 16, 24, 32): probe(k, "p1", (1, 8, 16, 24, 32).index(st))
        mfma(st, 0)
        if st in (5, 34): k("s_barrier")
        if not last:
            wread(st + 1, [0])
            if more: cread(st + 2, [0])
            L.wait(("c", st + 1, 1)); vq.wait(("t", st + 1))
            mix(st + 1, 0, 3)
        mfma(st, 1)
        if not last:
            wread(st + 1, [1])
            if more: cread(st + 2, [1])
            mix(st + 1, 3, 6)
        mfma(st, 2)
        if not last:
            wread(st + 1, [2]); mix(st + 1, 6, 8); cvt(st + 1, [0, 1])
        mfma(st, 3)
        if not last:
            wread(st + 1, [3]); cvt(st + 1, [2, 3])
            n = 0
            while nxt[0] < 40 and nxt[0] <= st + 1 + DEPTH and nxt[0] - NR <= st + 1 and n < 2:
                tload(nxt[0]); nxt[0] += 1; n += 1
    k.stamp(4)
    if not isv:
        for t in range(4):
            r = ACC + 16 * t; d = TR + 8 * t
            for j in range(0, 16, 2): k(f"v_pk_mul_f32 {vr(r+j,2)}, {vr(r+j,2)}, s[60:61] op_sel_hi:[1,0]")
            for j in range(8): k(f"v_cvt_pk_bf16_f32 {v(d+j)}, {v(r+2*j)}, {v(r+2*j+1)}")
            for j in range(2):
                b = d + 4 * j
                k(f"v_permlane32_swap_b32 {v(b)}, {v(b+2)}\nv_permlane32_swap_b32 {v(b+1)}, {v(b+3)}")
                k(f"buffer_store_dwordx4 {vr(b,4)}, v5, {sr(WSR,4)}, s58 offen offset:{1024*j} {HO}")
            k("s_add_u32 s58, s58, 2048")
    else:
        for t in range(4):
            for g in range(2):
                r = ACC + 16 * t + 8 * g; d = TR + 4 * (2 * t + g)
                for j in range(4): k(f"v_cvt_pk_bf16_f32 {v(d+j)}, {v(r+2*j)}, {v(r+2*j+1)}")
                k(f"buffer_store_dwordx4 {vr(d,4)}, {v(OFF+t)}, {sr(WSR,4)}, s58 offen offset:{640*g} {HO}")

def spare_prefetch(k):
    k(f"v_lshlrev_b32 v146, 7, v1")
    dst = 64
    for ptr, nbytes in ((P_WG, 640 * 3072), (P_WU, 640 * 3072), (P_WO, 640 * 1280), (P_WMOD, 640 * 7680), (P_WD, 1536 * 1280)):
        srd(k, RB, ptr, nbytes)
        for j in range((nbytes // 8192 + 15) // 16):
            k(f"s_add_u32 s50, {s(srb)}, {16*j}\ns_lshl_b32 s50, s50, 13\nbuffer_load_dword {v(dst)}, v146, {sr(RB,4)}, s50 offen")
            dst += 1
    assert dst <= 256

def consumer01(k, after):
    mod_job(k)
    if MOD0: mod_rest0(k)
    k.stamp(1)
    sync01_consumer(k)
    k.stamp(2)
    idle, lv = k.lab("qidle"), k.lab("qv")
    k(f"s_cmp_eq_u32 {s(scb)}, 15\ns_cbranch_scc1 {idle}")
    k(f"s_cmp_ge_u32 {s(scb)}, 10\ns_cbranch_scc1 {lv}")
    qkv_consumer(k, False)
    k(f"s_branch {after}")
    k.label(lv)
    qkv_consumer(k, True)
    k(f"s_branch {after}")
    k.label(idle)
    k("s_barrier\ns_barrier\ns_barrier")
    k(f"s_branch {after}")

WEARLY = int(os.environ.get("WEARLY", "0"))
def early_w(k):
    skip = k.lab("new")
    k(f"s_cmp_eq_u32 {s(scb)}, 15\ns_cbranch_scc1 {skip}")
    wtile_setup(k)
    k(f"s_sub_u32 s59, {s(sw)}, 6")
    wtile_issue_rot(k, WEARLY, 2)
    k.label(skip)

def producer01(k, after):
    lnw, joined, notile, nt2 = k.lab("lnw"), k.lab("pj"), k.lab("nt"), k.lab("nt2")
    k(f"s_cmp_lt_u32 {s(sw)}, 6\ns_cbranch_scc1 {lnw}")
    w7 = k.lab("w7")
    k(f"s_cmp_eq_u32 {s(sw)}, 7\ns_cbranch_scc1 {w7}")
    if WEARLY:
        code_prefetch(k)
        early_w(k)
    else:
        line_prefetch(k, P_WQKV, 640 * 3840, 2, 150)
        code_prefetch(k)
        k("s_waitcnt vmcnt(0)")
    wait_ready(k)
    k(f"s_branch {joined}")
    k.label(w7)
    if WEARLY: early_w(k)
    B2 = os.environ.get("BATCH2", "0")
    if B2 in ("1", "2"):
        if B2 == "1":
            line_prefetch(k, P_WO, 640 * 1280, 1, 150)
            k("s_waitcnt vmcnt(0)")
        else:
            k("s_sleep 8")
            line_prefetch(k, P_WO, 640 * 1280, 1, 150)
        line_prefetch(k, P_WG, 640 * 3072, 1, 154)
        line_prefetch(k, P_WU, 640 * 3072, 1, 155)
        line_prefetch(k, P_WMOD, 640 * 7680, 3, 151)
        line_prefetch(k, P_WD, 1536 * 1280, 1, 156)
    k(f"s_branch {joined}")
    k.label(lnw)
    ln_job(k)
    probe(k, "p0", 2)
    k("s_waitcnt vmcnt(0)")
    probe(k, "p0", 3)
    k.label(joined)
    k.stamp(1)
    k("s_barrier")
    k(f"s_cmp_eq_u32 {s(scb)}, 15\ns_cbranch_scc1 {nt2}")
    wtile_setup(k)
    if WEARLY < 70:
        assert (140 - 2 * WEARLY) % 4 == 0
        k(f"s_sub_u32 s59, {s(sw)}, 4\ns_add_u32 s59, s59, {2*WEARLY}")
        wtile_issue_rot(k, (140 - 2 * WEARLY) // 4, 4)
    k.label(nt2)
    if SIDE == "p1":
        mini_issue(k, 0)
        k("s_waitcnt vmcnt(4)")
    else:
        k("s_waitcnt vmcnt(0)")
    probe(k, "p0", 4)
    k("s_barrier")
    k.stamp(2)
    k("s_barrier")
    k("s_barrier")
    k(f"s_cmp_eq_u32 {s(scb)}, 15\ns_cbranch_scc1 {notile}")
    wtile_setup(k)
    k(f"s_sub_u32 s59, {s(sw)}, 4\ns_mul_i32 s59, s59, 5\ns_add_u32 s59, s59, 140")
    wtile_issue(k, 0, 5, 1, wrap=True)
    k.label(notile)
    if SIDE == "hyb":
        k("s_waitcnt vmcnt(0)")
        mod_rest_load(k)
        k("s_barrier")
        k("s_waitcnt vmcnt(0)")
        mod_rest_finish(k)
    elif SIDE == "p1":
        k("s_waitcnt vmcnt(0)")
        mini_finish(k, 0)
        mod_rest_load(k)
        mini_issue(k, 1)
        k("s_barrier")
        k("s_waitcnt vmcnt(0)")
        mini_finish(k, 0)
        mod_rest_finish(k)
    else:
        k("s_waitcnt vmcnt(0)\ns_barrier")
    k.stamp(4)
    k(f"s_branch {after}")
```

```python
from mcommon import *
import side

SLOT = 22528
R = 4
CONST = R * SLOT
FLAG = CONST + 5120
XCH = 0
shead, sqb, sgrp = 4, 5, 6
sG, sSt, sL, sNext, sLoad, sCh, sIt, sflag = 52, 55, 58, 61, 62, 63, 3, 15

QMA, QRA, QMB, QRB = 16, 20, 22, 26
SA, SB = 28, 60
PA, PB, OA, OB, MNA, MNB = 92, 100, 108, 124, 140, 156
KM, KR, VV = 172, 180, 184
vKm0, vKr0, vV0, vVm, vKm, vKr, vV, vD = 200, 201, 202, 203, 204, 205, 206, 207
MA, MB = 210, 211
FIN = 212
vCD = 15

def ids(k):
    k(f"""s_and_b32 s48, {s(sIDX)}, 3
    s_lshl_b32 {s(shead)}, {s(sXCD)}, 2
    s_add_u32 {s(shead)}, {s(shead)}, s48
    s_lshr_b32 {s(sqb)}, {s(sIDX)}, 2
    s_lshr_b32 {s(sgrp)}, {s(sw)}, 2""")

def setup(k):
    ids(k)
    k(f"s_mul_i32 s48, {s(shead)}, 5\ns_lshr_b32 s48, s48, 1\ns_lshl_b32 s7, s48, 9")
    k("v_lshlrev_b32 v2, 4, v1")
    for i in range(3):
        k(f"s_add_u32 s48, {s(sw)}, {8*i}")
        if i == 2: k("s_cmp_ge_u32 s48, 22\ns_cselect_b32 s49, 2, 0\ns_sub_u32 s48, s48, s49")
        k(f"s_lshl_b32 {s(sL+i)}, s48, 10")
        k(f"""v_add_u32 v3, {s(sL+i)}, v2
        v_lshrrev_b32 v4, 9, v3
        v_mul_u32_u24 v4, 43, v4
        v_lshrrev_b32 v4, 7, v4
        v_mul_u32_u24 v5, 0x600, v4
        v_sub_u32 v5, v3, v5
        s_mov_b32 s49, 40960
        v_mad_u32_u24 v5, v4, s49, v5
        v_subrev_u32 v3, 0x3000, v3
        s_cmp_lt_u32 s48, 12
        s_cselect_b64 vcc, -1, 0
        v_cndmask_b32 {v(vD+i)}, v3, v5, vcc""")
        k(f"s_mul_i32 s49, {s(shead)}, 81920\ns_add_u32 s49, s49, {WS['V']}\ns_add_u32 s50, s7, {WS['KK']}")
        k(f"s_cmp_lt_u32 s48, 12\ns_cselect_b32 {s(sG+i)}, s50, s49\ns_mov_b32 s50, {8*40960}\ns_cselect_b32 {s(sSt+i)}, s50, 10240")
    k(f"""v_and_b32 v3, 31, v1
    v_lshrrev_b32 v4, 5, v1
    s_mul_i32 s48, {s(sgrp)}, 6144
    v_add_u32 {v(vKm0)}, s48, v2
    v_lshlrev_b32 v5, 4, v3
    v_lshl_add_u32 v5, v4, 3, v5
    s_add_u32 s48, s48, 1024
    v_add_u32 {v(vKr0)}, s48, v5
    v_mul_u32_u24 v5, 0x140, v4
    v_lshl_add_u32 v5, v3, 4, v5
    s_mul_i32 s48, {s(sgrp)}, 5120
    v_add_u32 v5, s48, v5
    v_mov_b32 v6, {CONST - 12288}
    v_mov_b32 v7, {CONST + 16 - 12288}
    v_cmp_lt_u32 vcc, 20, v3
    v_cndmask_b32 v6, v6, v7, vcc
    v_cmp_le_u32 vcc, 20, v3
    v_cndmask_b32 {v(vV0)}, v5, v6, vcc
    v_mov_b32 v7, 1
    v_cndmask_b32_e64 {v(vVm)}, v7, 0, vcc""")
    for j in range(16): k(f"v_mov_b32 {v(MNA+j)}, 0\nv_mov_b32 {v(MNB+j)}, 0")
    k(f"s_mov_b32 {s(sflag)}, 0")
    init_acc(k)

def write_consts(k):
    k(f"""v_mov_b32 v8, 0x3f803f80
    v_mov_b32 v9, 0x3f803f80
    v_mov_b32 v10, 0x3f803f80
    v_mov_b32 v11, 0x3f803f80
    v_mov_b32 v12, 0
    v_mov_b32 v13, 0
    v_mov_b32 v14, 0
    v_mov_b32 v15, 0
    v_min_u32 v5, 7, v1
    v_mul_u32_u24 v5, 0x280, v5
    v_add_u32 v5, {CONST}, v5
    ds_write_b128 v5, v[8:11]
    ds_write_b128 v5, v[12:15] offset:16
    v_mov_b32 v5, {FLAG}
    ds_write_b32 v5, v12
    s_waitcnt lgkmcnt(0)""")

def dep_counters(k):
    k(f"""s_lshr_b32 s48, s7, 9
    s_lshr_b32 s49, s48, 4
    s_add_u32 s50, s48, 2
    s_lshr_b32 s50, s50, 4
    s_mul_i32 s51, {s(shead)}, 20
    s_add_u32 s52, s51, 19
    s_lshr_b32 s51, s51, 7
    s_lshr_b32 s52, s52, 7
    v_mov_b32 v5, s49
    v_mov_b32 v6, 1""")
    for lane, (reg, addk) in enumerate([(50, 0), (49, 5), (50, 5), (51, 10), (52, 10)], start=1):
        k(f"s_add_u32 s53, s{reg}, {addk}\nv_mov_b32 v7, s53\nv_cmp_eq_u32 vcc, {lane}, v1\nv_cndmask_b32 v5, v5, v7, vcc")
    k(f"v_add_u32 v5, {G_Q}, v5\nv_lshlrev_b32 v5, 8, v5")

def dma(k, i, sslot):
    if "nodma" in os.environ.get("AV", "") and getattr(k, "inloop", False): return
    k(f"s_add_u32 m0, {s(sL+i)}, {s(sslot)}\ns_nop 0\nbuffer_load_dwordx4 {v(vD+i)}, {sr(WSR,4)}, {s(sG+i)} offen {HL} lds")

def load_q(k):
    k(f"""s_lshl_b32 s48, {s(sqb)}, 3
    s_and_b32 s49, {s(sw)}, 3
    s_lshl_b32 s49, s49, 1
    s_add_u32 s48, s48, s49
    s_mul_i32 s48, s48, 40960
    s_add_u32 s48, s48, s7
    s_add_u32 s48, s48, {WS['Q']}
    s_add_u32 s49, s48, 40960
    v_lshlrev_b32 v2, 4, v1
    v_and_b32 v3, 31, v1
    v_lshrrev_b32 v4, 5, v1
    v_lshlrev_b32 v5, 4, v3
    v_lshl_add_u32 v5, v4, 3, v5""")
    k(f"buffer_load_dwordx4 {vr(QMA,4)}, v2, {sr(WSR,4)}, s48 offen {HL}\nbuffer_load_dwordx2 {vr(QRA,2)}, v5, {sr(WSR,4)}, s48 offen offset:1024 {HL}")
    k(f"buffer_load_dwordx4 {vr(QMB,4)}, v2, {sr(WSR,4)}, s49 offen {HL}\nbuffer_load_dwordx2 {vr(QRB,2)}, v5, {sr(WSR,4)}, s49 offen offset:1024 {HL}")
def mask_q(k):
    odd, done = k.lab("qodd"), k.lab("qdone")
    k(f"s_bitcmp1_b32 {s(shead)}, 0\ns_cbranch_scc1 {odd}")
    k("v_cmp_le_u32 vcc, 32, v1")
    for r in (QRA, QRA + 1, QRB, QRB + 1): k(f"v_cndmask_b32_e64 {v(r)}, {v(r)}, 0, vcc")
    k(f"s_branch {done}")
    k.label(odd)
    k("v_cmp_gt_u32 vcc, 32, v1")
    for r in (QMA, QMA + 1, QMB, QMB + 1): k(f"v_cndmask_b32_e64 {v(r)}, {v(r)}, 0, vcc")
    k.label(done)

def readK(k, tau, buf):
    k(f"ds_read_b128 {vr(KM+4*buf,4)}, {v(vKm)} offset:{1536*tau}\nds_read_b64 {vr(KR+2*buf,2)}, {v(vKr)} offset:{1536*tau}")
def readV(k, tau, buf):
    for g in range(2): k(f"ds_read_b128 {vr(VV+8*buf+4*g,4)}, {v(vV)} offset:{12288 + 640*(2*tau+g)}")
def S1(k, X, b, kb):
    Sx, Qm, MN = (SA, QMA, MNA) if X == 0 else (SB, QMB, MNB)
    k(f"v_mfma_f32_32x32x16_bf16 {vr(Sx+16*b,16)}, {vr(KM+4*kb,4)}, {vr(Qm,4)}, {vr(MN,16)}")
def S2(k, X, b, kb):
    Sx, Qr = (SA, QRA) if X == 0 else (SB, QRB)
    k(f"v_mfma_f32_32x32x8_bf16 {vr(Sx+16*b,16)}, {vr(KR+2*kb,2)}, {vr(Qr,2)}, {vr(Sx+16*b,16)}")
def PV(k, X, g, vb):
    O, P = (OA, PA) if X == 0 else (OB, PB)
    k(f"v_mfma_f32_32x32x16_bf16 {vr(O,16)}, {vr(VV+8*vb+4*g,4)}, {vr(P+4*g,4)}, {vr(O,16)}")
def exps(k, X, b, a0, a1):
    Sx = (SA if X == 0 else SB) + 16 * b
    for j in range(a0, a1): k(f"v_exp_f32 {v(Sx+j)}, {v(Sx+j)}")
def cvts(k, X, b, a0, a1):
    Sx = (SA if X == 0 else SB) + 16 * b; P = PA if X == 0 else PB
    for j in range(a0, a1): k(f"v_cvt_pk_bf16_f32 {v(P+j)}, {v(Sx+2*j)}, {v(Sx+2*j+1)}")

def stream_start(k, with_q=False):
    k(f"s_mul_i32 s48, {s(shead)}, 81920\ns_add_u32 s49, s48, {WS['V']}\ns_add_u32 s50, s7, {WS['KK']}")
    for i in range(3):
        k(f"s_cmp_eq_u32 {s(sSt+i)}, 10240\ns_cselect_b32 {s(sG+i)}, s49, s50")
    k(f"s_mov_b32 {s(sLoad)}, 0")
    for i in range(3): dma(k, i, sLoad)
    if with_q:
        first = k.lab("hasq")
        k(f"s_cmp_lg_u32 {s(sflag)}, 0\ns_cbranch_scc1 {first}")
        load_q(k)
        k.label(first)
    for i in range(3): k(f"s_add_u32 {s(sG+i)}, {s(sG+i)}, {s(sSt+i)}")
    k(f"s_mov_b32 {s(sLoad)}, {SLOT}")
    for i in range(3): dma(k, i, sLoad)
    k("s_waitcnt vmcnt(3)")
    if with_q:
        first = k.lab("hasq")
        k(f"s_cmp_lg_u32 {s(sflag)}, 0\ns_cbranch_scc1 {first}")
        mask_q(k)
        k.label(first)
    k(f"v_mov_b32 {v(vKm)}, {v(vKm0)}\nv_mov_b32 {v(vKr)}, {v(vKr0)}\nv_mov_b32 {v(vV)}, {v(vV0)}")
    k("s_barrier")
    for i in range(3): k(f"s_add_u32 {s(sG+i)}, {s(sG+i)}, {s(sSt+i)}")
    k(f"s_mov_b32 {s(sLoad)}, {2*SLOT}\ns_mov_b32 {s(sNext)}, {SLOT}\ns_mov_b32 {s(sCh)}, 2")
    dma(k, 0, sLoad); dma(k, 1, sLoad)

def switch_k(k):
    k(f"v_add_u32 {v(vKm)}, {s(sNext)}, {v(vKm0)}\nv_add_u32 {v(vKr)}, {s(sNext)}, {v(vKr0)}")
def next_load(k):
    k(f"s_add_u32 {s(sCh)}, {s(sCh)}, 1\ns_cmp_le_u32 {s(sCh)}, 7")
    for i in range(3): k(f"s_cselect_b32 s48, {s(sSt+i)}, 0\ns_add_u32 {s(sG+i)}, {s(sG+i)}, s48\ns_cmp_le_u32 {s(sCh)}, 7")
    k(f"s_add_u32 {s(sLoad)}, {s(sLoad)}, {SLOT}\ns_cmp_ge_u32 {s(sLoad)}, {R*SLOT}\ns_cselect_b32 s48, {R*SLOT}, 0\ns_sub_u32 {s(sLoad)}, {s(sLoad)}, s48")
def advance(k):
    switch_k(k); next_load(k)

def next_load_lines(skip_it):
    L = [f"s_cmp_lg_u32 {s(sIt)}, {skip_it}", "s_cselect_b32 s50, 1, 0", f"s_add_u32 {s(sCh)}, {s(sCh)}, s50",
         f"s_cmp_le_u32 {s(sCh)}, 7", "s_cselect_b32 s51, s50, 0"]
    for i in range(3): L += [f"s_mul_i32 s48, s51, {s(sSt+i)}", f"s_add_u32 {s(sG+i)}, {s(sG+i)}, s48"]
    L += [f"s_mul_i32 s48, s50, {SLOT}", f"s_add_u32 {s(sLoad)}, {s(sLoad)}, s48", f"s_cmp_ge_u32 {s(sLoad)}, {R*SLOT}",
          f"s_cselect_b32 s48, {R*SLOT}, 0", f"s_sub_u32 {s(sLoad)}, {s(sLoad)}, s48"]
    return L
def next_slot_lines():
    return [f"s_add_u32 {s(sNext)}, {s(sNext)}, {SLOT}", f"s_cmp_ge_u32 {s(sNext)}, {R*SLOT}", f"s_cselect_b32 s48, {R*SLOT}, 0", f"s_sub_u32 {s(sNext)}, {s(sNext)}, s48"]
def sprinkle(k, start, lines):
    out, todo = [], list(lines)
    for ln in k.lines[start:]:
        out.append(ln)
        if todo and ln.startswith("v_exp"): out.append(todo.pop(0))
    assert not todo
    k.lines[start:] = out

def next_slot(k):
    k(f"s_add_u32 {s(sNext)}, {s(sNext)}, {SLOT}\ns_cmp_ge_u32 {s(sNext)}, {R*SLOT}\ns_cselect_b32 s48, {R*SLOT}, 0\ns_sub_u32 {s(sNext)}, {s(sNext)}, s48")

sEv = 98
SPR = os.environ.get('SPR', '1') == '1'
def cd_step(k, step):
    done = k.lab("cds")
    k(f"s_cmp_lg_u32 {s(sw)}, 0\ns_cbranch_scc1 {done}")
    if step == 1: k("s_waitcnt vmcnt(2)")
    if step == 2: k("s_waitcnt vmcnt(1)")
    if step > 0:
        k(f"v_readfirstlane_b32 s48, {v(vCD)}\ns_cmp_lg_u32 s48, 15\ns_cbranch_scc1 {done + 'n'}")
    if step == 0: k(f"s_and_b32 s48, s2, 15\ns_add_u32 s48, s48, {C_D}\ns_lshl_b32 s48, s48, 8\ns_add_u32 s48, s48, {WS['CNT']}")
    else: k(f"s_mov_b32 s48, {WS['CNT'] + (R_D if step == 1 else G_D)*CSTRIDE}")
    k(f"v_mov_b32 v2, 0\nv_mov_b32 {v(vCD)}, 1\ns_mov_b64 exec, 1")
    if step < 2: k(f"buffer_atomic_add {v(vCD)}, v2, {sr(WSR,4)}, s48 offen sc0 sc1")
    else: k(f"buffer_store_dword {v(vCD)}, v2, {sr(WSR,4)}, s48 offen sc0 sc1")
    k(f"s_mov_b64 exec, -1\ns_branch {done}")
    if step > 0:
        k.label(done + "n")
        k(f"v_mov_b32 {v(vCD)}, 0")
    k.label(done)

def init_acc(k):
    for j in range(16): k(f"v_mov_b32 {v(OA+j)}, 0\nv_mov_b32 {v(OB+j)}, 0")
    for j in range(4): k(f"v_mov_b32 {v(PB+4+j)}, 0\nv_mov_b32 {v(VV+12+j)}, 0")

def main_pass(k):
    stream_start(k, True)
    readK(k, 0, 0); readV(k, 0, 0); readK(k, 1, 1)
    k("s_waitcnt lgkmcnt(4)")
    S1(k, 0, 0, 0); S1(k, 1, 0, 0); S2(k, 0, 0, 0); S2(k, 1, 0, 0)
    k.stamp(6)
    if SIDE != "p1": side.keep_src(k)
    k(f"s_mov_b32 {s(sIt)}, 0")
    k(f"s_cmp_eq_u32 {s(sflag)}, 0\ns_cselect_b32 {s(sEv)}, 1, 0")
    loop = k.lab("aloop")
    events = []
    def event(table):
        if SIDE == "p1" or not table: return
        go, back = k.lab("ev"), k.lab("evb")
        mask = sum(1 << it for it in table)
        k(f"s_and_b32 s48, {s(sEv)}, {mask}\ns_cbranch_scc1 {go}")
        k.label(back)
        def body():
            items = list(table.items())
            for n, (it, fn) in enumerate(items):
                if n < len(items) - 1:
                    nxt = k.lab("evn")
                    k(f"s_cmp_lg_u32 {s(sIt)}, {it}\ns_cbranch_scc1 {nxt}")
                    fn(); k(f"s_branch {back}")
                    k.label(nxt)
                else:
                    fn()
        events.append((go, back, body))
    k.label(loop)
    k.inloop = True
    for j in range(4):
        b, nb = j % 2, (j + 1) % 2
        AV = os.environ.get("AV", "")
        if "noprio" not in AV: k(f"s_setprio {3 - ((j - 2) % 4)}")
        k("s_waitcnt lgkmcnt(0)")
        if j == 2:
            if SIDE == "attn":
                early, wd = k.lab("early"), k.lab("earlyd")
                k(f"s_cmp_lt_u32 {s(sIt)}, 2\ns_cbranch_scc1 {early}\ns_waitcnt vmcnt(0)")
                k.label(wd)
                def early_wait():
                    nf = k.lab("nf")
                    k(f"s_cmp_eq_u32 {s(sflag)}, 0\ns_cbranch_scc1 {nf}\ns_waitcnt vmcnt(3)\ns_branch {wd}")
                    k.label(nf); k(f"s_waitcnt vmcnt({3 + side.NSIDE})")
                events.append((early, wd, early_wait))
            else:
                k("s_waitcnt vmcnt(3)")
            k("s_barrier")
            event({5: lambda: cd_step(k, 0), 6: lambda: cd_step(k, 2)} if SIDE == "attn" else {3: lambda: cd_step(k, 0), 4: lambda: cd_step(k, 2)})
            switch_k(k)
            sk = k.lab("sk2")
            if SIDE == "attn": k(f"s_cmp_eq_u32 {s(sIt)}, 1\ns_cbranch_scc1 {sk}")
            if not SPR: next_load(k)
            dma(k, 0, sLoad)
            k.label(sk)
        if j == 3:
            k(f"v_mad_u32_u24 {v(vV)}, {v(vVm)}, {s(sNext)}, {v(vV0)}")
            sk = k.lab("sk3")
            if SIDE == "attn": k(f"s_cmp_eq_u32 {s(sIt)}, 1\ns_cbranch_scc1 {sk}")
            dma(k, 1, sLoad)
            k.label(sk)
            if not SPR: next_slot(k)
            event({1: lambda: side.mod_issue(k), 2: lambda: side.issue(k), 3: lambda: side.tr_read(k)} if SIDE == "attn" else {0: lambda: side.issue(k), 1: lambda: side.tr_read(k)})
        if j == 0:
            event({4: lambda: side.stores(k), 6: lambda: cd_step(k, 1)} if SIDE == "attn" else {2: lambda: side.stores(k), 4: lambda: cd_step(k, 1)})
            sk = k.lab("sk0")
            if SIDE == "attn": k(f"s_cmp_eq_u32 {s(sIt)}, 2\ns_cbranch_scc1 {sk}")
            dma(k, 2, sLoad)
            k.label(sk)
        if j == 1:
            event({0: lambda: side.warm(k), 2: lambda: side.mod_finish(k)} if SIDE == "attn" else {})
        start = len(k.lines)
        S1(k, 0, nb, nb); readK(k, (j + 2) % 4, b); exps(k, 0, b, 0, 4)
        PV(k, 1, 1, nb); exps(k, 0, b, 4, 8); cvts(k, 0, b, 0, 4)
        S2(k, 0, nb, nb); readV(k, (j + 1) % 4, nb); exps(k, 0, b, 8, 12)
        PV(k, 0, 0, b); exps(k, 0, b, 12, 16); cvts(k, 0, b, 4, 8)
        S1(k, 1, nb, nb); exps(k, 1, b, 0, 4)
        PV(k, 0, 1, b); exps(k, 1, b, 4, 8); cvts(k, 1, b, 0, 4)
        S2(k, 1, nb, nb); exps(k, 1, b, 8, 12)
        PV(k, 1, 0, b); exps(k, 1, b, 12, 16); cvts(k, 1, b, 4, 8)
        if SPR and j == 1: sprinkle(k, start, next_load_lines(1 if SIDE == 'attn' else 99))
        if SPR and j == 3: sprinkle(k, start, next_slot_lines())
    k.inloop = False
    k(f"s_lshl_b32 {s(sEv)}, {s(sEv)}, 1\ns_add_u32 {s(sIt)}, {s(sIt)}, 1\ns_cmp_lt_u32 {s(sIt)}, 8\ns_cbranch_scc1 {loop}")
    over = k.lab("evover")
    k(f"s_branch {over}")
    for go, back, fn in events:
        k.label(go); fn(); k(f"s_branch {back}")
    k.label(over)
    PV(k, 1, 1, 1)
    k("s_setprio 0\ns_waitcnt vmcnt(0) lgkmcnt(0)\ns_barrier")

def max_pass(k):
    for j in range(16): k(f"v_mov_b32 {v(MNA+j)}, 0\nv_mov_b32 {v(MNB+j)}, 0")
    stream_start(k)
    k(f"v_mov_b32 {v(MA)}, 0xff800000\nv_mov_b32 {v(MB)}, 0xff800000\ns_mov_b32 {s(sIt)}, 0")
    loop = k.lab("mloop")
    k.label(loop)
    dma(k, 2, sLoad)
    for j in range(4):
        readK(k, j, 0)
        k("s_waitcnt lgkmcnt(0)")
        S1(k, 0, 0, 0); S1(k, 1, 0, 0); S2(k, 0, 0, 0); S2(k, 1, 0, 0)
        for a in range(0, 16, 2): k(f"v_max3_f32 {v(MA)}, {v(SA+a)}, {v(SA+a+1)}, {v(MA)}")
        for a in range(0, 16, 2): k(f"v_max3_f32 {v(MB)}, {v(SB+a)}, {v(SB+a+1)}, {v(MB)}")
    k("s_waitcnt vmcnt(3)\ns_barrier")
    advance(k); dma(k, 0, sLoad); dma(k, 1, sLoad); next_slot(k)
    k(f"s_add_u32 {s(sIt)}, {s(sIt)}, 1\ns_cmp_lt_u32 {s(sIt)}, 8\ns_cbranch_scc1 {loop}")
    k("s_waitcnt vmcnt(0) lgkmcnt(0)\ns_barrier")
    for M in (MA, MB):
        k(f"v_mov_b32 v2, {v(M)}\nv_permlane32_swap_b32 v2, {v(M)}\nv_max_f32 {v(M)}, v2, {v(M)}")
    k(f"s_lshl_b32 s48, {s(sw)}, 9\nv_lshlrev_b32 v2, 3, v1\nv_add_u32 v3, s48, v2\nds_write_b64 v3, {vr(MA,2)}\ns_waitcnt lgkmcnt(0)\ns_barrier")
    k(f"s_xor_b32 s48, {s(sw)}, 4\ns_lshl_b32 s48, s48, 9\nv_add_u32 v3, s48, v2\nds_read_b64 v[4:5], v3\ns_waitcnt lgkmcnt(0)")
    k(f"v_max_f32 v4, v4, {v(MA)}\nv_max_f32 v5, v5, {v(MB)}\nv_sub_f32 v4, 0, v4\nv_sub_f32 v5, 0, v5")
    for j in range(16): k(f"v_mov_b32 {v(MNA+j)}, v4\nv_mov_b32 {v(MNB+j)}, v5")
    k("s_barrier")

def merge(k):
    g1, sent, g1b, got = k.lab("mg1"), k.lab("msent"), k.lab("mg1b"), k.lab("mgot")
    k(f"s_mul_i32 s48, {s(sw)}, 3072\nv_lshlrev_b32 v2, 4, v1\nv_add_u32 v3, s48, v2")
    k(f"s_cmp_eq_u32 {s(sgrp)}, 1\ns_cbranch_scc1 {g1}")
    for j in range(3): k(f"ds_write_b128 v3, {vr(OB+4*j,4)} offset:{1024*j}")
    k(f"s_branch {sent}")
    k.label(g1)
    for j in range(3): k(f"ds_write_b128 v3, {vr(OA+4*j,4)} offset:{1024*j}")
    k.label(sent)
    k(f"s_waitcnt lgkmcnt(0)\ns_barrier\ns_xor_b32 s48, {s(sw)}, 4\ns_mul_i32 s48, s48, 3072\nv_add_u32 v3, s48, v2")
    for j in range(3): k(f"ds_read_b128 {vr(FIN+4*j,4)}, v3 offset:{1024*j}")
    k("s_waitcnt lgkmcnt(0)")
    k(f"s_cmp_eq_u32 {s(sgrp)}, 1\ns_cbranch_scc1 {g1b}")
    for j in range(12): k(f"v_add_f32 {v(FIN+j)}, {v(FIN+j)}, {v(OA+j)}")
    k(f"s_branch {got}")
    k.label(g1b)
    for j in range(12): k(f"v_add_f32 {v(FIN+j)}, {v(FIN+j)}, {v(OB+j)}")
    k.label(got)
    k(f"v_mov_b32 v2, {v(FIN+8)}\nv_mov_b32 {v(FIN+12)}, {v(FIN+8)}\nv_permlane32_swap_b32 v2, {v(FIN+12)}")

def attention(k):
    again, fin, good = k.lab("again"), k.lab("fin"), k.lab("good")
    k.label(again)
    main_pass(k)
    k.stamp(7)
    merge(k)
    k(f"s_cmp_lg_u32 {s(sflag)}, 0\ns_cbranch_scc1 {fin}")
    k(f"v_add_f32 v2, |{v(FIN)}|, |{v(FIN+1)}|")
    for j in range(2, 12): k(f"v_add_f32 v2, v2, |{v(FIN+j)}|")
    k(f"""v_mov_b32 v3, {hex(f32bits(2.0**-80))}
    v_mov_b32 v4, {hex(f32bits(2.0**100))}
    v_mov_b32 v5, 0x7f800000
    v_cmp_le_f32 s[48:49], v3, {v(FIN+12)}
    v_cmp_ge_f32 s[50:51], v4, {v(FIN+12)}
    v_cmp_lt_f32 vcc, v2, v5
    s_and_b64 s[48:49], s[48:49], s[50:51]
    s_and_b64 s[48:49], s[48:49], vcc
    s_cmp_eq_u64 s[48:49], exec
    s_cbranch_scc1 {good}""")
    k(f"v_mov_b32 v2, {FLAG}\nv_mov_b32 v3, 1\nds_write_b32 v2, v3")
    k.label(good)
    k(f"s_waitcnt lgkmcnt(0)\ns_barrier\nv_mov_b32 v2, {FLAG}\nds_read_b32 v3, v2\ns_waitcnt lgkmcnt(0)\nv_readfirstlane_b32 s48, v3")
    k(f"s_cmp_eq_u32 s48, 0\ns_cbranch_scc1 {fin}")
    max_pass(k)
    init_acc(k)
    k(f"s_mov_b32 {s(sflag)}, 1\ns_branch {again}")
    k.label(fin)
    k(f"v_rcp_f32 v2, {v(FIN+12)}")
    for j in range(12): k(f"v_mul_f32 {v(FIN+j)}, v2, {v(FIN+j)}")
    for j in range(6): k(f"v_cvt_pk_bf16_f32 {v(PA+j)}, {v(FIN+2*j)}, {v(FIN+2*j+1)}")
    k(f"v_permlane32_swap_b32 {v(PA)}, {v(PA+2)}\nv_permlane32_swap_b32 {v(PA+1)}, {v(PA+3)}")
    k(f"""v_and_b32 v2, 31, v1
    v_lshrrev_b32 v3, 4, v2
    v_mul_u32_u24 v3, 0x5000, v3
    v_and_b32 v4, 15, v2
    v_lshl_add_u32 v3, v4, 4, v3
    v_lshrrev_b32 v5, 5, v1
    v_lshl_add_u32 v5, v5, 8, v3
    s_lshl_b32 s48, {s(sqb)}, 3
    s_and_b32 s49, {s(sw)}, 3
    s_lshl_b32 s49, s49, 1
    s_add_u32 s48, s48, s49
    s_add_u32 s48, s48, {s(sgrp)}
    s_lshl_b32 s48, s48, 1
    s_mul_i32 s48, s48, 0x5000
    s_add_u32 s48, s48, {WS['O']}
    s_lshr_b32 s49, {s(shead)}, 1
    s_mul_i32 s49, s49, 1280
    s_add_u32 s48, s48, s49
    s_and_b32 s50, {s(shead)}, 1
    s_lshl_b32 s51, s50, 9
    s_add_u32 s51, s51, s48
    s_lshl_b32 s50, s50, 3
    s_add_u32 s50, s50, s48
    s_add_u32 s50, s50, 1024""")
    k(f"buffer_store_dwordx4 {vr(PA,4)}, v5, {sr(WSR,4)}, s51 offen {HO}")
    k("v_cmp_gt_u32 vcc, 32, v1\ns_and_saveexec_b64 s[48:49], vcc")
    k(f"buffer_store_dwordx2 {vr(PA+4,2)}, v3, {sr(WSR,4)}, s50 offen {HO}")
    k("s_mov_b64 exec, s[48:49]")
```

```python
from mcommon import *

srb, scb = 4, 5
grb, gfb = 6, 7
WO_L = 49152
VEC3 = WO_L + 102400
GCH, GSLOT = 24576, 6
UBL = GSLOT * GCH
DCH = 20480
DSLOT = [0, 20480, 98304, 118784, 49152, 69632, 139264]
VEC5 = 159744
X1 = 246

def ids(k):
    if os.environ.get("MAP35", "48") == "84":
        k(f"""s_lshr_b32 s48, {s(sXCD)}, 1
        s_lshl_b32 s48, s48, 3
        s_and_b32 s49, {s(sIDX)}, 7
        s_add_u32 {s(srb)}, s48, s49
        s_and_b32 s48, {s(sXCD)}, 1
        s_lshl_b32 s48, s48, 2
        s_lshr_b32 s49, {s(sIDX)}, 3
        s_add_u32 {s(scb)}, s48, s49""")
    else:
        k(f"""s_lshl_b32 s48, {s(sXCD)}, 2
        s_and_b32 s49, {s(sIDX)}, 3
        s_add_u32 {s(srb)}, s48, s49
        s_lshr_b32 {s(scb)}, {s(sIDX)}, 2""")
    k(f"""    s_and_b32 s48, {s(sXCD)}, 1
    s_lshl_b32 s48, s48, 3
    s_and_b32 s49, {s(sIDX)}, 7
    s_add_u32 {s(grb)}, s48, s49
    s_lshr_b32 s48, {s(sXCD)}, 1
    s_lshl_b32 s48, s48, 2
    s_lshr_b32 s49, {s(sIDX)}, 3
    s_add_u32 {s(gfb)}, s48, s49""")

def wo_prefetch(k):
    k(f"s_mul_i32 s52, {s(scb)}, 102400\ns_add_u32 s52, s52, {WS['WO']}\ns_sub_u32 s53, {s(sw)}, 1\ns_lshl_b32 s53, s53, 10\ns_add_u32 s52, s52, s53\ns_add_u32 s53, s53, {WO_L}")
    k(f"v_lshlrev_b32 v9, 4, v1\ns_sub_u32 s54, {s(sw)}, 1")
    loop = k.lab("wop")
    k.label(loop)
    k(f"s_mov_b32 m0, s53\ns_add_u32 s53, s53, 7168\nbuffer_load_dwordx4 v9, {sr(WSR,4)}, s52 offen {HL} lds")
    k(f"s_add_u32 s52, s52, 7168\ns_add_u32 s54, s54, 7\ns_cmp_lt_u32 s54, 100\ns_cbranch_scc1 {loop}")

def vec_load(k, chunks, dst):
    n = len(chunks)
    k("s_movk_i32 s52, 3277\nv_mul_u32_u24 v6, s52, v1\nv_lshrrev_b32 v6, 16, v6\nv_mad_i32_i24 v7, v6, -16, v1\nv_mad_i32_i24 v7, v6, -4, v7")
    k(f"v_mov_b32 v8, {chunks[0][0]*2560}\nv_mov_b32 v10, {'1.0' if chunks[0][1] else '0'}")
    for j in range(1, n):
        k(f"v_cmp_eq_u32 vcc, {j}, v6\nv_mov_b32 v9, {chunks[j][0]*2560}\nv_cndmask_b32 v8, v8, v9, vcc\nv_mov_b32 v9, {'1.0' if chunks[j][1] else '0'}\nv_cndmask_b32 v10, v10, v9, vcc")
    k(f"s_mul_i32 s52, {s(scb)}, 320\ns_add_u32 s52, s52, {WS['MOD']}\nv_lshl_add_u32 v8, v7, 4, v8")
    k(f"buffer_load_dwordx4 v[12:15], v8, {sr(WSR,4)}, s52 offen {HL}\ns_waitcnt vmcnt(0)")
    for j in range(4): k(f"v_add_f32 {v(12+j)}, {v(12+j)}, v10")
    k(f"v_lshlrev_b32 v9, 4, v1\nv_add_u32 v9, {dst}, v9\nv_cmp_gt_u32 vcc, {20*n}, v1\ns_and_saveexec_b64 s[52:53], vcc\nds_write_b128 v9, v[12:15]\ns_mov_b64 exec, s[52:53]\ns_waitcnt lgkmcnt(0)")

UBS = 152576
def ub_job(k):
    skip = k.lab("noub")
    k(f"s_cmp_ge_u32 s2, 240\ns_cbranch_scc1 {skip}")
    k(f"s_sub_u32 s54, {s(sw)}, 4\ns_lshl_b32 s52, s2, 2\ns_add_u32 s52, s52, s54")
    sdiv(k, 53, 52, 10)
    k("s_mul_i32 s55, s53, 10\ns_sub_u32 s52, s52, s55")
    sdiv(k, 55, 53, 6)
    k("s_mul_i32 s56, s55, 6\ns_sub_u32 s56, s53, s56")
    k(f"s_mul_i32 s57, s55, {40*6144}\ns_mul_i32 s58, s52, {4*6144}\ns_add_u32 s57, s57, s58\ns_lshl_b32 s58, s56, 10\ns_add_u32 s57, s57, s58\ns_add_u32 s57, s57, {WS['WGU']}")
    k("v_lshlrev_b32 v9, 4, v1")
    for st in range(4): k(f"buffer_load_dwordx4 {vr(32+4*st,4)}, v9, {sr(WSR,4)}, s57 offen {HL}\ns_add_u32 s57, s57, 6144")
    k(f"""v_and_b32 v3, 31, v1
    v_lshrrev_b32 v4, 5, v1
    v_cmp_eq_u32 vcc, 0, v3
    v_mov_b32 v10, {3*2560}
    v_mov_b32 v6, {4*2560}
    v_cndmask_b32 v10, v10, v6, vcc
    v_lshl_add_u32 v10, v4, 5, v10
    v_mov_b32 v6, 0
    v_cndmask_b32_e64 v6, v6, 1.0, vcc
    s_lshl_b32 s58, s52, 8
    s_add_u32 s58, s58, {WS['MOD']}""")
    for st in range(4):
        k(f"buffer_load_dwordx4 {vr(72+8*st,4)}, v10, {sr(WSR,4)}, s58 offen offset:{64*st} {HL}\nbuffer_load_dwordx4 {vr(76+8*st,4)}, v10, {sr(WSR,4)}, s58 offen offset:{64*st+16} {HL}")
    for j in range(16): k(f"v_mov_b32 {v(16+j)}, 0")
    k("s_waitcnt vmcnt(0)")
    for st in range(4):
        b = 72 + 8 * st
        for j in range(8): k(f"v_add_f32 {v(b+j)}, {v(b+j)}, v6")
        for j in range(4): k(f"v_cvt_pk_bf16_f32 {v(b+j)}, {v(b+2*j)}, {v(b+2*j+1)}")
        k(f"v_mfma_f32_32x32x16_bf16 v[16:31], {vr(32+4*st,4)}, {vr(b,4)}, v[16:31]")
    k(f"s_lshl_b32 s58, s54, 8\ns_add_u32 s58, s58, {UBS}\nv_lshlrev_b32 v8, 4, v4\nv_lshl_add_u32 v8, v3, 7, v8\nv_add_u32 v8, s58, v8")
    k("v_cmp_gt_u32 vcc, 2, v3\ns_and_saveexec_b64 s[60:61], vcc")
    for a_ in range(4): k(f"ds_write_b128 v8, {vr(16+4*a_,4)} offset:{32*a_}")
    k("s_mov_b64 exec, s[60:61]\ns_waitcnt lgkmcnt(0)")
    k("v_lshlrev_b32 v8, 2, v1\nv_add_u32 v9, s58, v8\nds_read_b32 v10, v9")
    k(f"s_mov_b32 s57, {hex(f32bits(-LOG2E))}\ns_cmp_lt_u32 s56, 3\ns_cselect_b32 s57, s57, 1.0\ns_lshl_b32 s58, s53, 8\ns_add_u32 s58, s58, {WS['UB']}")
    k("s_waitcnt lgkmcnt(0)\nv_mul_f32 v10, s57, v10")
    k(f"buffer_atomic_add_f32 v10, v8, {sr(WSR,4)}, s58 offen\ns_waitcnt vmcnt(0)")
    k.label(skip)

ACC, TR, WB = 16, 40, 104
NR, PRE, DEPTH = 16, 6, 10
E = lambda n, d: int(os.environ.get(n, d))
PRE5, DEP5, PRE4, DEP4, AH4 = E('PRE5', 6), E('DEP5', 10), E('PRE4', 6), E('DEP4', 10), E('AH4', 5)

def n640_addr(k):
    k("v_and_b32 v3, 15, v1\nv_lshrrev_b32 v4, 4, v1\nv_lshlrev_b32 v5, 4, v1")
    k(f"s_lshl_b32 s15, {s(srb)}, 2\ns_add_u32 s15, s15, {s(sw)}")
    k(f"s_lshl_b32 s52, s15, 4\nv_add_u32 v6, s52, v3\ns_movk_i32 s52, 1280\nv_mul_u32_u24 v6, s52, v6")
    k(f"s_mul_i32 s52, {s(scb)}, 160\nv_lshl_add_u32 v6, v4, 3, v6\nv_add_u32 v6, s52, v6")
    k("v_add_u32 v8, 0x10000, v5\nv_add_u32 v9, 0x20000, v5")

ROT5 = int(os.environ.get("ROT5", "0"))
def rot5(k, dst):
    k(f"s_lshr_b32 {s(dst)}, {s(sIDX)}, 3\ns_mul_i32 {s(dst)}, {s(dst)}, {ROT5}")

def n640_loop(k, NS, tbase, waddr, barrier_steps, pre_hook=None, PRE=PRE, rot=False, DEPTH=DEPTH):
    vq = Q(k, "vmcnt"); L = Q(k, "lgkmcnt")
    k(f"s_mul_i32 s53, s15, {NS*1024}\ns_add_u32 s53, s53, {WS[tbase]}")
    R = Rot(k, 55, 56, 57, NS, 1024)
    if rot:
        rot5(k, 58); R.setup(53, 58)
    def tload(st):
        if rot: R.addr(54, st)
        elif st % 4 == 0: k(f"s_add_u32 s54, s53, {st*1024}")
        k(f"buffer_load_dwordx4 {vr(TR+4*(st%NR),4)}, v5, {sr(WSR,4)}, s54 offen offset:{0 if rot else 1024*(st%4)} {HL}"); vq.add(("t", st))
    for st in range(PRE): tload(st)
    if pre_hook: pre_hook(vq)
    nxt = [PRE]
    for j in range(20): k(f"v_mov_b32 {v(ACC+j)}, 0")
    def wread(st, ts=range(5)):
        for t in ts:
            a_ = waddr(st) + 1024 * t
            k(f"ds_read_b128 {vr(WB+20*(st%2)+4*t,4)}, {v([5,8,9][a_ >> 16])} offset:{a_ & 0xffff}"); L.add((st, t))
    wread(0)
    for st in range(NS):
        last = st == NS - 1
        if NS == 48 and st in (1, 8, 20, 32, 40): probe(k, "p5", (1, 8, 20, 32, 40).index(st))
        vq.wait(("t", st))
        for t in range(5):
            L.wait((st, t))
            ac = vr(ACC + 4 * t, 4)
            k(f"v_mfma_f32_16x16x32_bf16 {ac}, {vr(WB+20*(st%2)+4*t,4)}, {vr(TR+4*(st%NR),4)}, {ac}")
            if not last:
                if t == 0 and (st + 1) in barrier_steps: k("s_barrier")
                wread(st + 1, [t])
        n = 0
        while nxt[0] < NS and nxt[0] <= st + DEPTH and nxt[0] - NR <= st and n < 2:
            tload(nxt[0]); nxt[0] += 1; n += 1
    return vq

def wo_consumer(k):
    n640_addr(k)
    XR, XS = 144, 154
    XRES = os.environ.get("XRES", "1") == "1"
    if XRES:
        k(f"""s_lshr_b32 s56, s15, 1
        s_mul_i32 s56, s56, 40960
        s_mul_i32 s57, {s(scb)}, 5120
        s_add_u32 s56, s56, s57
        s_and_b32 s57, s15, 1
        s_lshl_b32 s57, s57, 8
        s_add_u32 s56, s56, s57
        s_add_u32 s59, s56, {WS['XN']}
        v_lshrrev_b32 v11, 1, v4
        v_lshlrev_b32 v11, 9, v11
        v_lshl_add_u32 v11, v3, 4, v11
        v_and_b32 v12, 1, v4
        v_lshl_add_u32 v11, v12, 3, v11
        s_lshl_b32 s60, s15, 7
        s_add_u32 s60, s60, {WS['LNST']}
        v_lshlrev_b32 v12, 3, v3""")
        def xload(vq):
            for t in range(5):
                k(f"s_add_u32 s56, s59, {1024*t}\nbuffer_load_dwordx2 {vr(XR+2*t,2)}, v11, {sr(WSR,4)}, s56 offen {HL}"); vq.add(("x", t))
            k(f"buffer_load_dwordx2 {vr(XS,2)}, v12, {sr(WSR,4)}, s60 offen {HL}"); vq.add(("x", 5))
    else:
        srd(k, RA, P_X, 2048 * 1280)
        def xload(vq):
            for t in range(5):
                k(f"buffer_load_dwordx2 {vr(XR+2*t,2)}, v6, {sr(RA,4)}, 0 offen offset:{32*t}"); vq.add(("x", t))
    vq = n640_loop(k, 20, "O", lambda st: WO_L + st * 5120, (), xload, PRE=14, DEPTH=15)
    k.stamp(9)
    if "3" in os.environ.get("EARLY", ""): k("s_barrier")
    k(f"v_lshlrev_b32 v10, 4, v4\nv_add_u32 v10, {VEC3}, v10")
    G, C1, T = 48, 68, 160
    for t in range(5): k(f"ds_read_b128 {vr(G+4*t,4)}, v10 offset:{64*t}")
    for t in range(5): k(f"ds_read_b128 {vr(C1+4*t,4)}, v10 offset:{320+64*t}")
    for t in range(5):
        for d in range(2):
            if XRES:
                for o in range(2):
                    k(f"v_fma_mix_f32 {v(T+4*t+2*d+o)}, {v(XR+2*t+d)}, {v(XS+1)}, {v(XS)} op_sel:[{o},0,0] op_sel_hi:[1,0,0]")
            else:
                k(f"v_lshlrev_b32 {v(T+4*t+2*d)}, 16, {v(XR+2*t+d)}\nv_and_b32 {v(T+4*t+2*d+1)}, 0xffff0000, {v(XR+2*t+d)}")
    k("s_waitcnt lgkmcnt(5)")
    for j in range(20): k(f"v_fmac_f32 {v(T+j)}, {v(G+j)}, {v(ACC+j)}")
    k("s_waitcnt lgkmcnt(0)")
    for j in range(20): k(f"v_mul_f32 {v(C1+j)}, {v(C1+j)}, {v(T+j)}")
    Yp = 48
    for t in range(5): k(f"v_cvt_pk_bf16_f32 {v(Yp+2*t)}, {v(C1+4*t)}, {v(C1+4*t+1)}\nv_cvt_pk_bf16_f32 {v(Yp+2*t+1)}, {v(C1+4*t+2)}, {v(C1+4*t+3)}")
    k(f"v_mov_b32 {v(Yp+10)}, {v(Yp+8)}\nv_mov_b32 {v(Yp+11)}, {v(Yp+9)}")
    k(f"""s_lshr_b32 s52, s15, 1
    s_mul_i32 s52, s52, 40960
    s_mul_i32 s53, {s(scb)}, 5120
    s_add_u32 s52, s52, s53
    s_and_b32 s53, s15, 1
    s_lshl_b32 s53, s53, 8
    s_add_u32 s52, s52, s53
    s_add_u32 s52, s52, {WS['Y']}
    v_and_b32 v11, 1, v4
    v_lshlrev_b32 v11, 10, v11
    v_lshrrev_b32 v12, 1, v4
    v_lshl_add_u32 v11, v12, 9, v11
    v_lshl_add_u32 v11, v3, 4, v11""")
    for pr in range(3):
        b = Yp + 4 * pr
        k(f"v_permlane16_swap_b32 {v(b)}, {v(b+2)}\nv_permlane16_swap_b32 {v(b+1)}, {v(b+3)}")
    for pr in range(2):
        k(f"buffer_store_dwordx4 {vr(Yp+4*pr,4)}, v11, {sr(WSR,4)}, s52 offen offset:{2048*pr} {HO}")
    k("s_add_u32 s52, s52, 4096\nv_and_b32 v12, 1, v4\nv_cmp_eq_u32 vcc, 0, v12\ns_and_saveexec_b64 s[54:55], vcc")
    k(f"buffer_store_dwordx4 {vr(Yp+8,4)}, v11, {sr(WSR,4)}, s52 offen {HO}")
    k("s_mov_b64 exec, s[54:55]")
    for t in range(5): k(f"v_cvt_pk_bf16_f32 {v(X1+2*t)}, {v(T+4*t)}, {v(T+4*t+1)}\nv_cvt_pk_bf16_f32 {v(X1+2*t+1)}, {v(T+4*t+2)}, {v(T+4*t+3)}")
    k(f"v_add_f32 v12, {v(T)}, {v(T+1)}")
    for j in range(2, 20): k(f"v_add_f32 v12, v12, {v(T+j)}")
    red_q(k, 12, 14, 15)
    k(f"v_mul_f32 v14, {hex(f32bits(-1.0/80))}, v12\nv_mov_b32 v13, 0")
    for j in range(20): k(f"v_add_f32 {v(T+j)}, v14, {v(T+j)}\nv_fmac_f32 v13, {v(T+j)}, {v(T+j)}")
    red_q(k, 13, 14, 15)
    k(f"s_lshl_b32 s52, s15, 10\ns_lshl_b32 s53, {s(scb)}, 3\ns_add_u32 s52, s52, s53\ns_add_u32 s52, s52, {WS['STATS']}\nv_lshlrev_b32 v14, 6, v3")
    k("v_cmp_gt_u32 vcc, 16, v1\ns_and_saveexec_b64 s[54:55], vcc")
    k(f"buffer_store_dwordx2 v[12:13], v14, {sr(WSR,4)}, s52 offen {HO}")
    k("s_mov_b64 exec, s[54:55]")

def down_consumer(k):
    n640_addr(k)
    waddr = lambda st: DSLOT[(st // 4) % 7] + (st % 4) * 5120
    n640_loop(k, 48, "HH", waddr, set(range(4, 48, 4)), rot=ROT5 > 0, PRE=PRE5, DEPTH=DEP5)
    k.stamp(17)
    k(f"v_lshlrev_b32 v10, 4, v4\nv_add_u32 v10, {VEC5}, v10")
    G, T = 48, 160
    for t in range(5): k(f"ds_read_b128 {vr(G+4*t,4)}, v10 offset:{64*t}")
    for t in range(5):
        for d in range(2):
            k(f"v_lshlrev_b32 {v(T+4*t+2*d)}, 16, {v(X1+2*t+d)}\nv_and_b32 {v(T+4*t+2*d+1)}, 0xffff0000, {v(X1+2*t+d)}")
    k("s_waitcnt lgkmcnt(0)")
    for j in range(20): k(f"v_fmac_f32 {v(T+j)}, {v(G+j)}, {v(ACC+j)}")
    srd(k, RA, P_OUT, 2048 * 1280)
    for t in range(5):
        k(f"v_cvt_pk_bf16_f32 {v(G+2*t)}, {v(T+4*t)}, {v(T+4*t+1)}\nv_cvt_pk_bf16_f32 {v(G+2*t+1)}, {v(T+4*t+2)}, {v(T+4*t+3)}")
        k(f"buffer_store_dwordx2 {vr(G+2*t,2)}, v6, {sr(RA,4)}, 0 offen offset:{32*t} {os.environ.get('NTO', '')}")

GACC, GTR, GWB, ST = 16, 112, 176, 224
def gu_consumer(k):
    k("v_and_b32 v3, 31, v1\nv_lshrrev_b32 v4, 5, v1\nv_lshlrev_b32 v5, 4, v1")
    k(f"s_lshl_b32 s15, {s(grb)}, 2\ns_add_u32 s15, s15, {s(sw)}")
    k(f"s_mul_i32 s52, s15, 40960\ns_add_u32 s52, s52, {WS['Y']}")
    vq = Q(k, "vmcnt"); L = Q(k, "lgkmcnt")
    def tload(st):
        if st % 4 == 0: k(f"s_add_u32 s53, s52, {st*1024}")
        k(f"buffer_load_dwordx4 {vr(GTR+4*(st%16),4)}, v5, {sr(WSR,4)}, s53 offen offset:{1024*(st%4)} {HL}"); vq.add(("t", st))
    k(f"s_lshl_b32 s54, s15, 11\ns_add_u32 s54, s54, {WS['STATS']}\nv_lshlrev_b32 v6, 6, v3\nv_lshl_add_u32 v6, v4, 5, v6")
    for st in range(2): tload(st)
    k(f"buffer_load_dwordx4 {vr(ST,4)}, v6, {sr(WSR,4)}, s54 offen {HL}\nbuffer_load_dwordx4 {vr(ST+4,4)}, v6, {sr(WSR,4)}, s54 offen offset:16 {HL}")
    vq.add(("s", 0)); vq.add(("s", 1))
    for st in range(2, PRE4): tload(st)
    nxt = [PRE4]
    for j in range(96): k(f"v_mov_b32 {v(GACC+j)}, 0")
    k("v_add_u32 v8, 0x10000, v5\nv_add_u32 v9, 0x20000, v5")
    def wread(st, ts=range(6)):
        base = ((st // 4) % GSLOT) * GCH + (st % 4) * 6144
        for t in ts:
            a_ = base + 1024 * t
            k(f"ds_read_b128 {vr(GWB+24*(st%2)+4*t,4)}, {v([5,8,9][a_ >> 16])} offset:{a_ & 0xffff}"); L.add((st, t))
    wread(0)
    def stats():
        a = ST
        k(f"""v_add_f32 {v(a+8)}, {v(a)}, {v(a+2)}
        v_add_f32 {v(a+9)}, {v(a+4)}, {v(a+6)}
        v_add_f32 {v(a+8)}, {v(a+8)}, {v(a+9)}
        v_mov_b32 {v(a+9)}, {v(a+8)}
        v_mov_b32 {v(a+10)}, {v(a+8)}
        v_permlane32_swap_b32 {v(a+9)}, {v(a+10)}
        v_add_f32 {v(a+8)}, {v(a+9)}, {v(a+10)}
        v_mul_f32 {v(a+8)}, {hex(f32bits(1.0/640))}, {v(a+8)}
        s_mov_b32 s55, {hex(f32bits(1.0/80))}
        v_add_f32 {v(a+9)}, {v(a+1)}, {v(a+3)}
        v_add_f32 {v(a+10)}, {v(a+5)}, {v(a+7)}
        v_add_f32 {v(a+9)}, {v(a+9)}, {v(a+10)}
        v_mov_b32 {v(a+10)}, 0""")
        for r in (a, a + 2, a + 4, a + 6):
            k(f"v_fma_f32 {v(r)}, {v(r)}, s55, -{v(a+8)}\nv_fmac_f32 {v(a+10)}, {v(r)}, {v(r)}")
        k(f"""v_mov_b32 {v(a+11)}, 0x42a00000
        v_fmac_f32 {v(a+9)}, {v(a+10)}, {v(a+11)}
        v_mov_b32 {v(a+10)}, {v(a+9)}
        v_mov_b32 {v(a+11)}, {v(a+9)}
        v_permlane32_swap_b32 {v(a+10)}, {v(a+11)}
        v_add_f32 {v(a+9)}, {v(a+10)}, {v(a+11)}
        v_mov_b32 {v(a+10)}, {hex(f32bits(1e-5))}
        v_mov_b32 {v(a+11)}, {hex(f32bits(1.0/640))}
        v_fmac_f32 {v(a+10)}, {v(a+9)}, {v(a+11)}
        v_rsq_f32 {v(a+10)}, {v(a+10)}
        s_nop 0
        v_mov_b32 {v(a+12)}, {v(a+10)}
        v_mov_b32 {v(a+13)}, {v(a+10)}
        v_mul_f32 {v(a+14)}, {hex(f32bits(-LOG2E))}, {v(a+10)}
        v_mov_b32 {v(a+15)}, {v(a+14)}
        v_mul_f32 {v(a+16)}, {v(a+8)}, {v(a+10)}
        v_sub_f32 {v(a+16)}, 0, {v(a+16)}
        v_mov_b32 {v(a+17)}, {v(a+16)}""")
    RS, RG, NM = vr(ST + 12, 2), vr(ST + 14, 2), vr(ST + 16, 2)
    mark = len(k.lines)
    stats()
    stat_lines = k.lines[mark:]; del k.lines[mark:]
    for st in range(40):
        last = st == 39
        if st in (1, 8, 16, 24, 32): probe(k, "p4", (1, 8, 16, 24, 32).index(st))
        vq.wait(("t", st))
        for t in range(6):
            L.wait((st, t))
            ac = vr(GACC + 16 * t, 16)
            k(f"v_mfma_f32_32x32x16_bf16 {ac}, {vr(GWB+24*(st%2)+4*t,4)}, {vr(GTR+4*(st%16),4)}, {ac}")
            if not last:
                if t == 0 and (st + 1) % 4 == 0: k("s_barrier")
                wread(st + 1, [t])
            if st >= 3 and stat_lines:
                k.lines.extend(stat_lines[:3]); del stat_lines[:3]
        n = 0
        while nxt[0] < 40 and nxt[0] <= st + DEP4 and nxt[0] - 16 <= st and n < 2:
            tload(nxt[0]); nxt[0] += 1; n += 1
    k.stamp(11)
    if "4" in os.environ.get("EARLY", ""): k("s_barrier")
    k(f"v_lshlrev_b32 v10, 4, v4\nv_add_u32 v10, {UBL}, v10")
    k(f"""s_lshl_b32 s52, s15, 1
    s_mul_i32 s52, s52, {48*1024}
    s_mul_i32 s53, {s(gfb)}, 3072
    s_add_u32 s52, s52, s53
    s_add_u32 s52, s52, {WS['HH']}
    v_lshrrev_b32 v11, 4, v3
    v_mul_u32_u24 v11, 0xc000, v11
    v_and_b32 v12, 15, v3
    v_lshl_add_u32 v11, v12, 4, v11
    v_lshl_add_u32 v11, v4, 8, v11""")
    ONE = ST + 18
    k(f"v_mov_b32 {v(ONE)}, 1.0\nv_mov_b32 {v(ONE+1)}, 1.0")
    LQ = Q(k, "lgkmcnt")
    def uread(tt, part):
        t = tt + 3 * part
        r = vec(tt, part)
        for a_ in range(4):
            k(f"ds_read_b128 {vr(r+4*a_,4)}, v10 offset:{t*256 + 32*a_}"); LQ.add((tt, part, 0, a_))
        for a_ in range(4):
            k(f"ds_read_b128 {vr(r+16+4*a_,4)}, v10 offset:{t*256 + 128 + 32*a_}"); LQ.add((tt, part, 1, a_))
    slots = {(0, 0): GTR, (0, 1): GTR + 32, (1, 0): GWB + 16, (1, 1): GTR, (2, 0): GTR + 32, (2, 1): GWB + 16}
    vec = lambda tt, part: slots[(tt, part)]
    uread(0, 0); uread(0, 1)
    for tt in range(3):
        g = GACC + 16 * tt; u = GACC + 16 * (tt + 3)
        G0, U0 = vec(tt, 0), vec(tt, 1)
        LQ.wait((tt, 0, 1, 3))
        for j in range(0, 16, 2):
            k(f"v_pk_fma_f32 {vr(G0+16+j,2)}, {vr(G0+j,2)}, {NM}, {vr(G0+16+j,2)}\nv_pk_fma_f32 {vr(g+j,2)}, {vr(g+j,2)}, {RG}, {vr(G0+16+j,2)}")
        if tt == 0: uread(1, 0)
        for j in range(16): k(f"v_exp_f32 {v(g+j)}, {v(g+j)}")
        LQ.wait((tt, 1, 1, 3))
        for j in range(0, 16, 2):
            k(f"v_pk_fma_f32 {vr(U0+16+j,2)}, {vr(U0+j,2)}, {NM}, {vr(U0+16+j,2)}\nv_pk_fma_f32 {vr(u+j,2)}, {vr(u+j,2)}, {RS}, {vr(U0+16+j,2)}")
        for j in range(0, 16, 2): k(f"v_pk_add_f32 {vr(g+j,2)}, {vr(g+j,2)}, {vr(ONE,2)}")
        if tt == 0: uread(1, 1)
        if tt == 1: uread(2, 0); uread(2, 1)
        for j in range(16): k(f"v_rcp_f32 {v(g+j)}, {v(g+j)}")
        for j in range(0, 16, 2): k(f"v_pk_mul_f32 {vr(g+j,2)}, {vr(g+j,2)}, {vr(u+j,2)}")
        Pk = GWB + 8 * (tt % 2)
        for j in range(8): k(f"v_cvt_pk_bf16_f32 {v(Pk+j)}, {v(g+2*j)}, {v(g+2*j+1)}")
        for jj in range(2):
            b = Pk + 4 * jj
            k(f"v_permlane32_swap_b32 {v(b)}, {v(b+2)}\nv_permlane32_swap_b32 {v(b+1)}, {v(b+3)}")
            k(f"buffer_store_dwordx4 {vr(b,4)}, v11, {sr(WSR,4)}, s52 offen offset:{512*jj} {HO}")
        k("s_add_u32 s52, s52, 1024")

class Prod:
    def __init__(self, k): self.k = k; self.vq = Q(k, "vmcnt")
    def gu_setup(self):
        self.k(f"v_lshlrev_b32 v5, 4, v1\ns_sub_u32 s60, {s(sw)}, 4\ns_mul_i32 s61, s60, 6144\ns_mul_i32 s62, {s(gfb)}, {40*6144}\ns_add_u32 s62, s62, s61\ns_add_u32 s62, s62, {WS['WGU']}")
    def gu_issue(self, c):
        k = self.k
        for t in range(6):
            k(f"s_add_u32 m0, s61, {(c % GSLOT)*GCH + t*1024}\ns_add_u32 s63, s62, {c*GCH + t*1024}\nbuffer_load_dwordx4 v5, {sr(WSR,4)}, s63 offen {HL} lds")
            self.vq.add(("g", c, t))
    def d_setup(self):
        self.k(f"s_mul_i32 s64, s60, 5120\ns_mul_i32 s65, {s(scb)}, {48*5120}\ns_add_u32 s65, s65, s64\ns_add_u32 s65, s65, {WS['WD']}")
        rot5(self.k, 66); self.k("s_lshr_b32 s66, s66, 2")
        self.RD = Rot(self.k, 67, 68, 69, 12, DCH); self.RD.setup(65, 66)
    def d_issue(self, c):
        k = self.k
        for t in range(5):
            self.RD.addr(63, c, t*1024)
            k(f"s_add_u32 m0, s64, {DSLOT[c % 7] + t*1024}\ns_nop 0\nbuffer_load_dwordx4 v5, {sr(WSR,4)}, s63 offen {HL} lds")
            self.vq.add(("d", c, t))
    def ub_dma(self):
        k = self.k
        skip = k.lab("noubd")
        k(f"s_cmp_ge_u32 s60, 2\ns_cbranch_scc1 {skip}")
        k(f"s_mul_i32 s63, {s(gfb)}, 1536\ns_lshl_b32 s66, s60, 10\ns_add_u32 s63, s63, s66\ns_add_u32 s63, s63, {WS['UB']}\ns_add_u32 m0, s66, {UBL}\ns_nop 0")
        k(f"buffer_load_dwordx4 v5, {sr(WSR,4)}, s63 offen {HL} lds\ns_waitcnt vmcnt(0)")
        k.label(skip)
```

```python
from mcommon import *

XRES = os.environ.get("XRES", "1") == "1"
NTX = os.environ.get("NTX", "nt" if XRES else "")
NT = os.environ.get("NT0", "nt")
QSCALE = LOG2E * 20 ** -0.5
RING = 35
COEF = RING * 4096
STG = COEF + 2560
assert STG + 16384 <= 163840
srb, scb, scq = 15, 4, 5

def tile_ids(k):
    k(f"""s_and_b32 s48, {s(sIDX)}, 3
    s_lshr_b32 s49, {s(sXCD)}, 1
    s_lshl_b32 s49, s49, 2
    s_add_u32 {s(srb)}, s49, s48
    s_lshr_b32 s48, {s(sIDX)}, 2
    s_and_b32 s49, {s(sXCD)}, 1
    s_lshl_b32 s49, s49, 3
    s_add_u32 {s(scb)}, s49, s48""")
    sdiv(k, 48, scb, 5)
    k(f"s_mul_i32 s48, s48, 5\ns_sub_u32 {s(scq)}, {s(scb)}, s48")

def zero_init(k):
    skip = k.lab("noinit")
    k(f"s_cmp_lg_u32 s2, 255\ns_cbranch_scc1 {skip}")
    k("v_mov_b32 v4, 0\nv_mov_b32 v5, 0\nv_mov_b32 v6, 0\nv_mov_b32 v7, 0\nv_lshlrev_b32 v8, 4, v1")
    k(f"s_mul_i32 s48, {s(sw)}, 11264\ns_add_u32 s48, s48, {WS['ZERO']}")
    for i in range(11):
        k(f"buffer_store_dwordx4 v[4:7], v8, {sr(WSR,4)}, s48 offen {HO}\ns_add_u32 s48, s48, 1024")
    k("s_waitcnt vmcnt(0)\ns_barrier")
    k(f"s_cmp_lg_u32 {s(sw)}, 0\ns_cbranch_scc1 {skip}")
    srd(k, RB, P_DBG, 256)
    k("v_mov_b32 v4, 1\nv_mov_b32 v5, 0\ns_mov_b64 exec, 1")
    k(f"buffer_store_dword v4, v5, {sr(RB,4)}, 0 offen offset:4 {HO}")
    k("s_mov_b64 exec, -1")
    k.label(skip)

def wait_ready(k):
    srd(k, RB, P_DBG, 256)
    loop, done = k.lab("rdy"), k.lab("rdyd")
    k("v_mov_b32 v60, 0\ns_mov_b32 s50, 0")
    k.label(loop)
    k(f"buffer_load_dword v61, v60, {sr(RB,4)}, 0 offen offset:4 sc1\ns_waitcnt vmcnt(0)\nv_readfirstlane_b32 s51, v61")
    k(f"s_cmp_lg_u32 s51, 0\ns_cbranch_scc1 {done}\ns_add_u32 s50, s50, 1\ns_cmp_ge_u32 s50, {SPIN_LIMIT}\ns_cbranch_scc1 {done}\ns_sleep 6\ns_branch {loop}")
    k.label(done)

LCNT = 162304 + 320
MACC = 162304
assert MACC + 512 <= 163840

def mod_load(k, R0, scb_, sks, wv):
    srd(k, RA, P_WMOD, 640 * 7680); srd(k, RB, P_C, 1280)
    k("v_lshrrev_b32 v3, 3, v1\nv_and_b32 v4, 7, v1")
    k(f"s_mul_i32 s54, {s(sks)}, 160\ns_mul_i32 s55, {s(wv)}, 40\ns_add_u32 s54, s54, s55")
    k(f"v_add_u32 v5, s54, v3\ns_movk_i32 s55, 7680\nv_mul_u32_u24 v6, s55, v5\ns_lshl_b32 s56, {s(scb_)}, 7")
    k("v_lshlrev_b32 v7, 4, v4\nv_add3_u32 v6, v6, v7, s56\nv_lshlrev_b32 v8, 1, v5")
    for i in range(5):
        k(f"s_mov_b32 s57, {61440*i}\nbuffer_load_dwordx4 {vr(R0+4*i,4)}, v6, {sr(RA,4)}, s57 offen {NT}")
    for i in range(5):
        k(f"buffer_load_ushort {v(R0+20+i)}, v8, {sr(RB,4)}, 0 offen offset:{16*i}")

def mod_compute(k, R0, T, stmp=48):
    C = R0 + 20
    for j in range(8): k(f"v_mov_b32 {v(T+j)}, 0")
    k(f"s_mov_b32 {s(stmp)}, 0xbfb8aa3b")
    E = T + 8
    for i in range(5): k(f"v_lshlrev_b32 {v(C+i)}, 16, {v(C+i)}\nv_mul_f32 {v(E+i)}, {s(stmp)}, {v(C+i)}\nv_exp_f32 {v(E+i)}, {v(E+i)}")
    for i in range(5): k(f"v_add_f32 {v(E+i)}, 1.0, {v(E+i)}")
    for i in range(5): k(f"v_rcp_f32 {v(E+i)}, {v(E+i)}")
    for i in range(5): k(f"v_mul_f32 {v(C+i)}, {v(C+i)}, {v(E+i)}")
    for i in range(5):
        for d in range(4):
            r = R0 + 4 * i + d
            k(f"v_lshlrev_b32 {v(T+16)}, 16, {v(r)}\nv_and_b32 {v(T+17)}, 0xffff0000, {v(r)}\nv_fmac_f32 {v(T+2*d)}, {v(C+i)}, {v(T+16)}\nv_fmac_f32 {v(T+2*d+1)}, {v(C+i)}, {v(T+17)}")
    k(f"v_and_b32 {v(T+16)}, 8, v1\nv_cmp_ne_u32 vcc, 0, {v(T+16)}")
    for j in range(4):
        k(f"v_cndmask_b32 {v(T+8+j)}, {v(T+4+j)}, {v(T+j)}, vcc\nv_cndmask_b32 {v(T+12+j)}, {v(T+j)}, {v(T+4+j)}, vcc")
    for j in range(4):
        k(f"v_add_f32_dpp {v(T+12+j)}, {v(T+8+j)}, {v(T+12+j)} row_ror:8 row_mask:0xf bank_mask:0xf")
    a = T + 12
    k(f"v_permlane16_swap_b32 {v(a)}, {v(a+2)}\nv_permlane16_swap_b32 {v(a+1)}, {v(a+3)}\nv_add_f32 {v(a)}, {v(a)}, {v(a+2)}\nv_add_f32 {v(a+1)}, {v(a+1)}, {v(a+3)}")
    k(f"v_permlane32_swap_b32 {v(a)}, {v(a+1)}\nv_add_f32 {v(a)}, {v(a)}, {v(a+1)}")
    c, t = T + 16, T + 17
    k(f"""v_and_b32 {v(c)}, 7, v1
    v_lshlrev_b32 {v(c)}, 3, {v(c)}
    v_bfe_u32 {v(t)}, v1, 3, 1
    v_lshl_add_u32 {v(c)}, {v(t)}, 2, {v(c)}
    v_bfe_u32 {v(t)}, v1, 4, 1
    v_lshl_add_u32 {v(c)}, {v(t)}, 1, {v(c)}
    v_lshrrev_b32 {v(t)}, 5, v1
    v_add_u32 {v(c)}, {v(c)}, {v(t)}""")

def macc_init(k):
    skip = k.lab("nomacc")
    k(f"s_cmp_lg_u32 {s(sw)}, 0\ns_cbranch_scc1 {skip}")
    k(f"v_mov_b32 v2, 0\nv_lshlrev_b32 v3, 2, v1\nv_add_u32 v3, {MACC}, v3\nds_write_b32 v3, v2\nds_write_b32 v3, v2 offset:256\ns_waitcnt lgkmcnt(0)")
    k.label(skip)
    k("s_barrier")

def mod_job(k):
    skip = k.lab("nomod")
    k(f"s_cmp_ge_u32 s2, 80\ns_cbranch_scc1 {skip}")
    sdiv(k, 52, 2, 20)
    k("s_mul_i32 s53, s52, 20\ns_sub_u32 s53, s2, s53")
    mod_load(k, 16, 53, 52, sw)
    k("s_waitcnt vmcnt(0)")
    probe(k, "p0", 1)
    mod_compute(k, 16, 44)
    k(f"v_lshlrev_b32 v60, 2, v60\nv_add_u32 v60, {MACC}, v60\nds_add_f32 v60, v56\nv_mov_b32 v61, {MACC+256}\nv_mov_b32 v62, 1\ns_waitcnt lgkmcnt(0)")
    k("s_mov_b64 exec, 1\nds_add_rtn_u32 v63, v61, v62\ns_waitcnt lgkmcnt(0)\ns_mov_b64 exec, -1\nv_readfirstlane_b32 s57, v63")
    probe(k, "p0", 2)
    k(f"s_cmp_lg_u32 s57, 3\ns_cbranch_scc1 {skip}")
    k(f"v_lshlrev_b32 v60, 2, v1\nv_add_u32 v61, {MACC}, v60\nds_read_b32 v62, v61")
    k(f"s_mul_i32 s56, s52, 5120\ns_lshl_b32 s57, s53, 8\ns_add_u32 s56, s56, s57\ns_add_u32 s56, s56, {WS['MODP']}\ns_waitcnt lgkmcnt(0)")
    k(f"buffer_store_dword v62, v60, {sr(WSR,4)}, s56 offen {HO}")
    k.label(skip)

MOD0 = os.environ.get("MOD0", "0") == "1"
def mod_rest0(k):
    skip = k.lab("nom0")
    k(f"s_cmp_lt_u32 s2, 80\ns_cbranch_scc1 {skip}\ns_cmp_ge_u32 s2, 240\ns_cbranch_scc1 {skip}")
    k("s_sub_u32 s53, s2, 80")
    sdiv(k, 52, 53, 40)
    k(f"s_mul_i32 s54, s52, 40\ns_sub_u32 s53, s53, s54\ns_add_u32 s53, s53, 20")
    mod_load(k, 16, 53, 52, sw)
    k("s_waitcnt vmcnt(0)")
    mod_compute(k, 16, 44)
    k.label(skip)
def mod_rest0_atomic(k):
    skip = k.lab("nom1")
    k(f"s_cmp_lt_u32 s2, 80\ns_cbranch_scc1 {skip}\ns_cmp_ge_u32 s2, 240\ns_cbranch_scc1 {skip}")
    k("s_sub_u32 s49, s2, 80")
    sdiv(k, 50, 49, 40)
    k(f"s_mul_i32 s50, s50, 40\ns_sub_u32 s49, s49, s50\ns_add_u32 s49, s49, 20\ns_lshl_b32 s49, s49, 8\ns_add_u32 s49, s49, {WS['MOD']}")
    k(f"v_lshlrev_b32 v60, 2, v60\nbuffer_atomic_add_f32 v56, v60, {sr(WSR,4)}, s49 offen")
    k.label(skip)

MR, MT = 60, 28
def mod_rest_load(k):
    if os.environ.get("NOSIDE"): return
    skip = k.lab("nomr")
    k(f"s_cmp_lt_u32 s2, 80\ns_cbranch_scc1 {skip}\ns_cmp_ge_u32 s2, 240\ns_cbranch_scc1 {skip}")
    k("s_sub_u32 s53, s2, 80")
    sdiv(k, 52, 53, 40)
    k(f"s_mul_i32 s54, s52, 40\ns_sub_u32 s53, s53, s54\ns_add_u32 s53, s53, 20\ns_sub_u32 s68, {s(sw)}, 4")
    mod_load(k, MR, 53, 52, 68)
    k.label(skip)
def mod_rest_finish(k):
    if os.environ.get("NOSIDE"): return
    skip = k.lab("nomf")
    k(f"s_cmp_lt_u32 s2, 80\ns_cbranch_scc1 {skip}\ns_cmp_ge_u32 s2, 240\ns_cbranch_scc1 {skip}")
    mod_compute(k, MR, MT)
    k("s_sub_u32 s49, s2, 80")
    sdiv(k, 50, 49, 40)
    k(f"s_mul_i32 s50, s50, 40\ns_sub_u32 s49, s49, s50\ns_add_u32 s49, s49, 20\ns_lshl_b32 s49, s49, 8\ns_add_u32 s49, s49, {WS['MOD']}")
    k(f"v_lshlrev_b32 {v(MT+16)}, 2, {v(MT+16)}")
    k(f"buffer_atomic_add_f32 {v(MT+12)}, {v(MT+16)}, {sr(WSR,4)}, s49 offen")
    k.label(skip)

def red16(k, r):
    red8(k, r)
    k(f"v_add_f32_dpp {v(r)}, {v(r)}, {v(r)} row_mirror row_mask:0xf bank_mask:0xf")

def ln_job(k):
    L, Fq, N = 8, 48, 5
    srd(k, RA, P_X, 2048 * 1280)
    k("v_lshrrev_b32 v3, 4, v1\nv_and_b32 v4, 15, v1")
    k(f"s_lshl_b32 s52, s2, 3\ns_sub_u32 s53, {s(sw)}, 4\ns_lshl_b32 s53, s53, 2\ns_add_u32 s52, s52, s53")
    k("v_add_u32 v6, s52, v3\ns_movk_i32 s54, 1280\nv_mul_u32_u24 v6, s54, v6\nv_lshl_add_u32 v6, v4, 4, v6")
    for i in range(N): k(f"buffer_load_dwordx4 {vr(L+4*i,4)}, v6, {sr(RA,4)}, 0 offen offset:{256*i} {NTX}")
    k("v_mov_b32 v128, 0\nv_mov_b32 v129, 0\nv_mov_b32 v132, 0\nv_mov_b32 v133, 0")
    if STAMPS and PROBE == "p0":
        k("s_waitcnt vmcnt(0)")
        probe(k, "p0", 1)
    for i in range(N):
        k(f"s_waitcnt vmcnt({N-1-i})")
        for d in range(4):
            r = L + 4 * i + d; f = Fq + 8 * i + 2 * d
            k(f"v_lshlrev_b32 {v(f)}, 16, {v(r)}\nv_and_b32 {v(f+1)}, 0xffff0000, {v(r)}")
        for d in range(4):
            f = Fq + 8 * i + 2 * d
            k(f"v_pk_add_f32 v[128:129], v[128:129], {vr(f,2)}")
    k("v_add_f32 v128, v128, v129")
    red16(k, 128)
    k(f"v_mul_f32 v130, {hex(f32bits(-1.0/640))}, v128\nv_mov_b32 v131, v130")
    for j in range(0, 8 * N, 2): k(f"v_pk_add_f32 {vr(Fq+j,2)}, {vr(Fq+j,2)}, v[130:131]")
    for j in range(0, 8 * N, 2): k(f"v_pk_fma_f32 v[132:133], {vr(Fq+j,2)}, {vr(Fq+j,2)}, v[132:133]")
    k("v_add_f32 v132, v132, v133")
    red16(k, 132)
    k(f"v_mov_b32 v134, {hex(f32bits(1e-5))}\nv_mov_b32 v135, {hex(f32bits(1.0/640))}\nv_fmac_f32 v134, v132, v135\nv_mov_b32 v137, v134\nv_rsq_f32 v134, v134\ns_nop 0\nv_mov_b32 v135, v134")
    if XRES:
        k(f"v_mul_f32 v137, v137, v134\nv_sub_f32 v136, 0, v130\nv_add_u32 v138, s52, v3\nv_lshlrev_b32 v138, 3, v138\ns_mov_b32 s53, {WS['LNST']}")
        k("v_cmp_eq_u32 vcc, 0, v4\ns_and_saveexec_b64 s[54:55], vcc")
        k(f"buffer_store_dwordx2 v[136:137], v138, {sr(WSR,4)}, s53 offen {HO}\ns_mov_b64 exec, s[54:55]")
    k(f"s_lshr_b32 s53, s52, 5\ns_mul_i32 s53, s53, 40960\ns_and_b32 s52, s52, 31\ns_lshl_b32 s52, s52, 4\ns_add_u32 s52, s52, s53\ns_add_u32 s52, s52, {WS['XN']}")
    k("v_lshlrev_b32 v6, 9, v4\nv_lshl_add_u32 v6, v3, 4, v6")
    for i in range(N):
        for d in range(4):
            f = Fq + 8 * i + 2 * d
            k(f"v_pk_mul_f32 {vr(f,2)}, {vr(f,2)}, v[134:135]")
        for d in range(4):
            f = Fq + 8 * i + 2 * d
            k(f"v_cvt_pk_f16_f32 {v(L+4*i+d)}, {v(f)}, {v(f+1)}")
        k(f"buffer_store_dwordx4 {vr(L+4*i,4)}, v6, {sr(WSR,4)}, s52 offen {HO}\ns_add_u32 s52, s52, 8192")

def line_prefetch(k, ptr, nbytes, nper, dst, first=0):
    srd(k, RB, ptr, nbytes)
    k("v_lshlrev_b32 v146, 7, v1")
    for j in range(nper):
        k(f"s_add_u32 s50, s2, {first + 256*j}\ns_lshl_b32 s50, s50, 13\nbuffer_load_dword {v(dst+j)}, v146, {sr(RB,4)}, s50 offen")

def code_prefetch(k):
    here, skip = k.lab("pc"), k.lab("nopc")
    k(f"s_cmp_ge_u32 {s(sIDX)}, 8\ns_cbranch_scc1 {skip}")
    k("s_getpc_b64 s[48:49]")
    k.label(here)
    k(f"s_sub_u32 s48, s48, {here}-{k.name}\ns_subb_u32 s49, s49, 0")
    k(f"s_lshl_b32 s50, {s(sIDX)}, 13\nv_lshlrev_b32 v144, 7, v1\nv_add_u32 v144, s50, v144")
    k(f"s_mov_b32 s50, CODE_END-{k.name}-4\nv_min_u32 v144, s50, v144")
    k("global_load_dword v148, v144, s[48:49]")
    k.label(skip)

def wtile_setup(k):
    srd(k, RA, P_WQKV, 640 * 3840)
    k("""v_lshrrev_b32 v141, 4, v1
    v_bfe_u32 v142, v1, 2, 2
    """ + ("v_xor_b32 v142, v142, v141" if not os.environ.get("NOSWZ") else "s_nop 0") + """
    v_lshlrev_b32 v142, 6, v142
    v_and_b32 v143, 3, v1
    v_lshl_add_u32 v142, v143, 4, v142
    s_movk_i32 s52, 3840
    v_mad_u32_u24 v140, v141, s52, v142""")
    k(f"s_lshl_b32 s58, {s(scb)}, 8")

def wtile_issue(k, first, count, stride, wrap=False):
    loop = k.lab("wdma")
    k(f"s_mul_i32 s60, s59, 15360\ns_add_u32 s60, s60, s58\ns_lshl_b32 s61, s59, 10")
    if wrap: k(f"s_sub_u32 s61, s61, {RING*4096}")
    k(f"s_mov_b32 s62, {count}")
    k.label(loop)
    k(f"s_mov_b32 m0, s61\ns_add_u32 s61, s61, {stride*1024}\nbuffer_load_dwordx4 v140, {sr(RA,4)}, s60 offen lds")
    k(f"s_add_u32 s60, s60, {stride*15360}\ns_sub_u32 s62, s62, 1\ns_cmp_lg_u32 s62, 0\ns_cbranch_scc1 {loop}")

def wtile_issue_rot(k, count, stride):
    loop = k.lab("wrot")
    NP = 4 * RING
    k(f"s_mul_i32 s60, {s(srb)}, {int(os.environ.get('ROTW', '9'))}\ns_add_u32 s59, s59, s60\ns_mov_b32 s62, {count}")
    k.label(loop)
    k(f"s_cmp_ge_u32 s59, {NP}\ns_cselect_b32 s60, {NP}, 0\ns_sub_u32 s59, s59, s60")
    k(f"s_lshl_b32 m0, s59, 10\ns_mul_i32 s60, s59, 15360\ns_add_u32 s60, s60, s58\nbuffer_load_dwordx4 v140, {sr(RA,4)}, s60 offen lds")
    k(f"s_waitcnt vmcnt({int(os.environ.get('WINFL', '40'))})")
    k(f"s_add_u32 s59, s59, {stride}\ns_sub_u32 s62, s62, 1\ns_cmp_lg_u32 s62, 0\ns_cbranch_scc1 {loop}")

N_G, N_U, N_O, N_D = 480, 480, 200, 480
sJ = 63
def mini_issue(k, rnd):
    if os.environ.get("NOSIDE"):
        k("s_mov_b32 s69, 0"); return
    p = 52
    nojob, go = k.lab("mjno"), k.lab("mjgo")
    k(f"s_sub_u32 s52, {s(sw)}, 4\ns_lshl_b32 {s(sJ)}, s2, 2\ns_add_u32 {s(sJ)}, {s(sJ)}, s52\ns_add_u32 {s(sJ)}, {s(sJ)}, {1024*rnd}")
    k(f"s_lshl_b32 s53, s52, 12\ns_add_u32 s53, s53, {STG}")
    k(f"s_mov_b32 s69, 0\ns_cmp_ge_u32 {s(sJ)}, {N_G+N_U+N_O+N_D}\ns_cbranch_scc1 {nojob}")
    labs = [k.lab("mj") for _ in range(4)]
    lim = 0
    for n, lab in zip((N_G, N_U, N_O), labs):
        lim += n
        k(f"s_cmp_lt_u32 {s(sJ)}, {lim}\ns_cbranch_scc1 {lab}")
    k(f"s_branch {labs[3]}")
    types = [("g", P_WG, 640 * 3072, 3072, 12, 0, True, 3, 40, 6, 0, "WGU"), ("u", P_WU, 640 * 3072, 3072, 12, N_G, True, 3, 40, 6, 3, "WGU"),
             ("o", P_WO, 640 * 1280, 1280, 10, N_G + N_U, False, 5, 20, 5, 0, "WO"), ("d", P_WD, 1536 * 1280, 1280, 10, N_G + N_U + N_O, False, 5, 48, 5, 0, "WD")]
    for (name, ptr, nbytes, stride, ncb, start, wide, dv, NS, NT, tadd, base), lab in zip(types, labs):
        k.label(lab)
        srd(k, RB, ptr, nbytes)
        k(f"s_sub_u32 s54, {s(sJ)}, {start}")
        sdiv(k, 55, 54, ncb)
        k(f"s_mul_i32 s56, s55, {ncb}\ns_sub_u32 s54, s54, s56")
        for tt in range(4):
            k(f"s_lshl_b32 s56, s54, 2\ns_add_u32 s56, s56, {tt}")
            sdiv(k, 57, 56, dv)
            k(f"s_mul_i32 {s(64+tt)}, s57, {dv}\ns_sub_u32 s56, s56, {s(64+tt)}\ns_mul_i32 s57, s57, {NS}\ns_add_u32 s57, s57, s55")
            k(f"s_mul_i32 s57, s57, {NT}\ns_add_u32 s57, s57, s56\ns_lshl_b32 s57, s57, 10\ns_add_u32 {s(64+tt)}, s57, {WS[base] + tadd*1024}")
        if wide:
            k(f"""s_mov_b32 s69, 1
            s_lshl_b32 s55, s55, 4
            s_lshl_b32 s54, s54, 8
            v_lshrrev_b32 v8, 4, v1
            v_and_b32 v9, 15, v1
            v_lshl_add_u32 v9, v9, 4, s54""")
            for i in range(4): k(f"v_add_u32 {v(10+i)}, s55, v8\nv_add_u32 {v(10+i)}, {4*i}, {v(10+i)}")
        else:
            k(f"""s_mov_b32 s69, 2
            s_lshl_b32 s55, s55, 5
            s_lshl_b32 s54, s54, 7
            v_lshrrev_b32 v8, 3, v1
            v_and_b32 v9, 7, v1
            v_lshl_add_u32 v9, v9, 4, s54""")
            for i in range(4): k(f"v_add_u32 {v(10+i)}, s55, v8\nv_add_u32 {v(10+i)}, {8*i}, {v(10+i)}")
            if name == "o":
                k("s_movk_i32 s56, 1639")
                for i in range(4):
                    r = 10 + i
                    k(f"""v_mul_u32_u24 v14, s56, {v(r)}
                    v_lshrrev_b32 v14, 16, v14
                    v_mul_u32_u24 v14, 40, v14
                    v_sub_u32 v14, {v(r)}, v14
                    v_mov_b32 v15, 0
                    v_cmp_le_u32 vcc, 16, v14
                    v_cndmask_b32_e64 v15, v15, 4, vcc
                    v_cmp_le_u32 vcc, 32, v14
                    v_cndmask_b32_e64 v15, v15, -16, vcc
                    v_cmp_le_u32 vcc, 36, v14
                    v_cndmask_b32_e64 v15, v15, 0, vcc
                    v_add_u32 {v(r)}, {v(r)}, v15""")
        k(f"s_movk_i32 s56, {stride}")
        for i in range(4): k(f"v_mad_u32_u24 {v(10+i)}, {v(10+i)}, s56, v9")
        k(f"s_branch {go}")
    k.label(go)
    for i in range(4):
        k(f"s_add_u32 m0, s53, {1024*i}\ns_nop 0\nbuffer_load_dwordx4 {v(10+i)}, {sr(RB,4)}, 0 offen lds")
    k.label(nojob)

def mini_finish(k, later):
    done, narrow, rd = k.lab("mfd"), k.lab("mfn"), k.lab("mfr")
    k(f"s_cmp_eq_u32 s69, 0\ns_cbranch_scc1 {done}")
    k(f"s_waitcnt vmcnt({later})")
    k("v_and_b32 v8, 15, v1\nv_lshrrev_b32 v8, 2, v8\nv_and_b32 v9, 3, v1")
    k(f"s_cmp_eq_u32 s69, 2\ns_cbranch_scc1 {narrow}")
    k("""v_lshrrev_b32 v16, 5, v1
    v_lshl_add_u32 v16, v16, 3, v8
    v_lshlrev_b32 v16, 8, v16
    v_bfe_u32 v17, v1, 4, 1
    v_lshlrev_b32 v17, 5, v17
    v_lshl_add_u32 v17, v9, 3, v17
    v_add3_u32 v16, v16, v17, s53""")
    for tt in range(4):
        k(f"ds_read_b64_tr_b16 {vr(20+4*tt,2)}, v16 offset:{64*tt}\nds_read_b64_tr_b16 {vr(22+4*tt,2)}, v16 offset:{64*tt+1024}")
    k(f"s_branch {rd}")
    k.label(narrow)
    k("""v_lshrrev_b32 v16, 4, v1
    v_lshl_add_u32 v16, v16, 3, v8
    v_lshlrev_b32 v16, 7, v16
    v_lshl_add_u32 v16, v9, 3, v16
    v_add_u32 v16, s53, v16""")
    for tt in range(4):
        k(f"ds_read_b64_tr_b16 {vr(20+4*tt,2)}, v16 offset:{32*tt}\nds_read_b64_tr_b16 {vr(22+4*tt,2)}, v16 offset:{32*tt+512}")
    k.label(rd)
    k("v_lshlrev_b32 v17, 4, v1")
    for tt in range(4):
        k(f"s_waitcnt lgkmcnt({6-2*tt})\nbuffer_store_dwordx4 {vr(20+4*tt,4)}, v17, {sr(WSR,4)}, {s(64+tt)} offen {HO}")
    k.label(done)

def sync01_consumer(k):
    k("s_waitcnt vmcnt(0)\ns_barrier")
    probe(k, "p0", 4)
    nw, n1 = k.lab("s01w"), k.lab("s01w1")
    k(f"s_cmp_lg_u32 {s(sw)}, 1\ns_cbranch_scc1 {n1}\ns_cmp_ge_u32 s2, 80\ns_cbranch_scc1 {n1}")
    k(f"s_lshr_b32 s53, s2, 4\ns_add_u32 s52, s53, {C_M}")
    arrive(k, "s52", 16, G_M, 8, word="s53")
    k.label(n1)
    k(f"s_cmp_lg_u32 {s(sw)}, 0\ns_cbranch_scc1 {nw}")
    probe(k, "p0", 3)
    k(f"s_lshr_b32 s53, s2, 4\ns_add_u32 s52, s53, {C_X}\ns_add_u32 s53, s53, {G_X}")
    arrive(k, "s52", 16, "s53")
    if os.environ.get("SPARE", "0") == "1":
        nsp = k.lab("nsp0")
        k(f"s_cmp_lg_u32 {s(scb)}, 15\ns_cbranch_scc1 {nsp}")
        spare_prefetch(k)
        k(f"s_branch {nw}")
        k.label(nsp)
    k(f"s_add_u32 s52, {s(sXCD)}, {G_M}\ns_lshl_b32 s52, s52, 8\ns_add_u32 s54, {s(srb)}, {G_X}\ns_lshl_b32 s54, s54, 8")
    k("v_lshlrev_b32 v5, 2, v1\nv_add_u32 v5, s52, v5\nv_mov_b32 v7, s54\nv_cmp_gt_u32 vcc, 5, v1\nv_cndmask_b32 v5, v7, v5, vcc\nv_mov_b32 v6, 1")
    if not os.environ.get("NOPOLL01"): poll(k, 5, 6)
    k.label(nw)
    if MOD0: mod_rest0_atomic(k)
    k("s_barrier")

CL = 224
def coef_load(k):
    k(f"v_lshlrev_b32 v9, 4, v0\nv_and_b32 v15, 15, v1\nv_lshlrev_b32 v15, 4, v15\ns_lshl_b32 s55, {s(sw)}, 8\ns_add_u32 s55, s55, 4096\nv_add_u32 v15, s55, v15")
    for ks in range(4):
        k(f"s_mov_b32 s52, {WS['MODP'] + ks*5120}\nbuffer_load_dwordx4 {vr(CL+4*ks,4)}, v9, {sr(WSR,4)}, s52 offen {HL}\nbuffer_load_dwordx4 {vr(CL+16+4*ks,4)}, v15, {sr(WSR,4)}, s52 offen {HL}")
def coef_prep(k, later):
    k(f"s_waitcnt vmcnt({later})")
    k("v_cmp_le_u32 vcc, 160, v0\nv_mov_b32 v6, 0\nv_cndmask_b32_e64 v6, v6, 1.0, vcc")
    for b in (CL, CL + 16):
        for j in range(4):
            k(f"v_add_f32 {v(b+j)}, {v(b+j)}, {v(b+4+j)}\nv_add_f32 {v(b+8+j)}, {v(b+8+j)}, {v(b+12+j)}")
        for j in range(4):
            k(f"v_add_f32 {v(b+j)}, {v(b+j)}, {v(b+8+j)}")
    for j in range(4): k(f"v_add_f32 {v(CL+j)}, {v(CL+j)}, v6\nv_add_f32 {v(CL+16+j)}, 1.0, {v(CL+16+j)}")
    k(f"v_cvt_pk_f16_f32 {v(CL+4)}, {v(CL)}, {v(CL+1)}\nv_cvt_pk_f16_f32 {v(CL+5)}, {v(CL+2)}, {v(CL+3)}\nv_lshlrev_b32 v7, 3, v0\nv_add_u32 v7, {COEF}, v7\nds_write_b64 v7, {vr(CL+4,2)}")
    k(f"v_cvt_pk_f16_f32 {v(CL+20)}, {v(CL+16)}, {v(CL+17)}\nv_cvt_pk_f16_f32 {v(CL+21)}, {v(CL+18)}, {v(CL+19)}\nv_lshrrev_b32 v7, 1, v15\nv_add_u32 v7, {COEF}, v7\nds_write_b64 v7, {vr(CL+20,2)}")

XPOSE = os.environ.get("XPOSE", "0") == "1"
def xpose_addr(k, dst):
    k(f"""v_and_b32 v8, 15, v1
    v_lshrrev_b32 v8, 2, v8
    v_lshrrev_b32 v9, 5, v1
    v_lshl_add_u32 v9, v9, 3, v8
    v_lshlrev_b32 v9, 8, v9
    v_bfe_u32 v10, v1, 4, 1
    v_lshl_add_u32 v9, v10, 5, v9
    v_and_b32 v10, 3, v1
    v_lshl_add_u32 v9, v10, 3, v9""")
    for t in range(4): k(f"v_xor_b32 v10, {t}, v8\nv_lshl_add_u32 {v(dst+t)}, v10, 6, v9")
def xpose_steps(k, base, data, tmp, sfirst, stride, count, limit):
    def guard(j):
        if limit is None or j < count - 1: return None
        skip = k.lab("xps")
        k(f"s_add_u32 s48, {s(sfirst)}, {stride*j}\ns_cmp_ge_u32 s48, {limit}\ns_cbranch_scc1 {skip}")
        return skip
    for j in range(count):
        skip = guard(j)
        k(f"s_add_u32 s48, {s(sfirst)}, {stride*j}\ns_lshl_b32 s48, s48, 12")
        for t in range(4): k(f"v_add_u32 {v(tmp+t)}, s48, {v(base+t)}")
        for t in range(4):
            k(f"ds_read_b64_tr_b16 {vr(data[j]+4*t,2)}, {v(tmp+t)}\nds_read_b64_tr_b16 {vr(data[j]+4*t+2,2)}, {v(tmp+t)} offset:1024")
        if skip: k.label(skip)
    k("s_waitcnt lgkmcnt(0)")
    for j in range(count):
        skip = guard(j)
        k(f"s_add_u32 s48, {s(sfirst)}, {stride*j}\ns_lshl_b32 s48, s48, 12\nv_lshlrev_b32 {v(tmp+4)}, 4, v1\nv_add_u32 {v(tmp+4)}, s48, {v(tmp+4)}")
        for t in range(4): k(f"ds_write_b128 {v(tmp+4)}, {vr(data[j]+4*t,4)} offset:{1024*t}")
        if skip: k.label(skip)
    k("s_waitcnt lgkmcnt(0)")

ACC, TR, WB, CB, HF, HB, AW, OFF = 16, 80, 144, 176, 192, 200, 208, 220
NR, PRE, DEPTH = 16, int(os.environ.get('PRE1', 4)), int(os.environ.get('DEP1', 10))

def qkv_consumer(k, isv):
    k("v_and_b32 v3, 31, v1\nv_lshrrev_b32 v4, 5, v1\nv_lshlrev_b32 v5, 4, v1")
    k(f"s_lshl_b32 s53, {s(srb)}, 2\ns_add_u32 s53, s53, {s(sw)}")
    k(f"s_mul_i32 s54, s53, 40960\ns_add_u32 s54, s54, {WS['XN']}")
    vq = Q(k, "vmcnt"); L = Q(k, "lgkmcnt")
    coef_load(k)
    for j in range(7): vq.add(("coef", j))
    vq.add("coef")
    def tload(st):
        if st % 4 == 0: k(f"s_add_u32 s55, s54, {st*1024}")
        k(f"buffer_load_dwordx4 {vr(TR+4*(st%NR),4)}, v5, {sr(WSR,4)}, s55 offen offset:{1024*(st%4)} {HL}"); vq.add(("t", st))
    for st in range(PRE): tload(st)
    nxt = [PRE]
    if not XPOSE:
        for j in range(64): k(f"v_mov_b32 {v(ACC+j)}, 0")
    k("""v_and_b32 v8, 15, v1
    v_lshrrev_b32 v8, 2, v8
    v_lshl_add_u32 v9, v4, 3, v8
    v_lshlrev_b32 v9, 8, v9
    v_bfe_u32 v10, v1, 4, 1
    v_lshl_add_u32 v9, v10, 5, v9
    v_and_b32 v10, 3, v1
    v_lshl_add_u32 v9, v10, 3, v9""")
    for t in range(4):
        k(f"v_xor_b32 v10, {t}, v8\nv_lshl_add_u32 {v(AW+t)}, v10, 6, v9")
        k(f"v_add_u32 {v(AW+4+t)}, 0x10000, {v(AW+t)}\nv_add_u32 {v(AW+8+t)}, 0x20000, {v(AW+t)}")
    k(f"v_lshlrev_b32 v14, 4, v4\nv_add_u32 v14, {COEF}, v14")
    if isv:
        k(f"s_lshl_b32 s56, {s(scq)}, 7\nv_add_u32 v6, s56, v3\ns_movk_i32 s56, 3277\ns_mov_b32 s57, 81920\nv_mul_u32_u24 v7, 0x140, v4")
        for t in range(4):
            k(f"""v_add_u32 v9, {32*t}, v6
            v_mul_u32_u24 v10, s56, v9
            v_lshrrev_b32 v10, 16, v10
            v_mad_i32_i24 v9, v10, -16, v9
            v_mad_i32_i24 v9, v10, -4, v9
            v_lshl_add_u32 v9, v9, 4, v7
            v_mad_u32_u24 {v(OFF+t)}, v10, s57, v9""")
        k(f"s_lshl_b32 s58, s53, 1\ns_mul_i32 s58, s58, 640\ns_add_u32 s58, s58, {WS['V']}")
    else:
        k(f"s_mul_i32 s58, s53, 40960\ns_lshl_b32 s56, {s(scq)}, 13\ns_add_u32 s58, s58, s56\ns_mov_b32 s56, {WS['Q']}\ns_mov_b32 s60, {hex(f32bits(QSCALE))}")
        k(f"s_cmp_lt_u32 {s(scb)}, 5\ns_cselect_b32 s56, s56, {WS['KK']}\ns_cselect_b32 s60, s60, 1.0\ns_add_u32 s58, s58, s56\ns_mov_b32 s61, 0")
    if XPOSE:
        xpose_steps(k, AW, [ACC, ACC + 16, ACC + 32, ACC + 48, WB], HF, sw, 8, 5, RING)
        for j in range(64): k(f"v_mov_b32 {v(ACC+j)}, 0")
        k("v_add_u32 v12, 0x10000, v5\nv_add_u32 v13, 0x20000, v5")
    coef_prep(k, vq.after("coef"))
    k("s_waitcnt lgkmcnt(0)\ns_barrier")
    k.stamp(3)
    def wread(st, ts=range(4)):
        for t in ts:
            if XPOSE:
                a_ = (st % RING) * 4096 + t * 1024
                k(f"ds_read_b128 {vr(WB+16*(st%2)+4*t,4)}, {v([5,12,13][a_>>16])} offset:{a_ & 0xffff}")
                L.add(("w", st, t, 1))
                continue
            for u in range(2):
                a_ = (st % RING) * 4096 + u * 1024
                k(f"ds_read_b64_tr_b16 {vr(WB+16*(st%2)+4*t+2*u,2)}, {v(AW+4*(a_>>16)+t)} offset:{a_ & 0xffff}")
                L.add(("w", st, t, u))
    def cread(st, which=(0, 1)):
        for x in which:
            k(f"ds_read_b128 {vr(CB+8*(st%2)+4*x,4)}, v14 offset:{(1280 if x == 0 else 0) + 32*st}"); L.add(("c", st, x))
    def mix(st, j0, j1):
        T = TR + 4 * (st % NR); C1 = CB + 8 * (st % 2); C0 = C1 + 4
        for j in range(j0, j1):
            o = j & 1
            k(f"v_fma_mix_f32 {v(HF+j)}, {v(T+j//2)}, {v(C1+j//2)}, {v(C0+j//2)} op_sel:[{o},{o},{o}] op_sel_hi:[1,1,1]")
    def cvt(st, ds=range(4)):
        for d in ds: k(f"v_cvt_pk_bf16_f32 {v(HB+4*(st%2)+d)}, {v(HF+2*d)}, {v(HF+2*d+1)}")
    def mfma(st, t):
        L.wait(("w", st, t, 1))
        w = vr(WB + 16 * (st % 2) + 4 * t, 4); h = vr(HB + 4 * (st % 2), 4); ac = vr(ACC + 16 * t, 16)
        k(f"v_mfma_f32_32x32x16_bf16 {ac}, {h}, {w}, {ac}" if isv else f"v_mfma_f32_32x32x16_bf16 {ac}, {w}, {h}, {ac}")
    cread(0); wread(0); cread(1)
    L.wait(("c", 0, 1)); vq.wait(("t", 0)); mix(0, 0, 8); cvt(0)
    for st in range(40):
        last = st == 39; more = st + 2 < 40
        if st in (1, 8, 16, 24, 32): probe(k, "p1", (1, 8, 16, 24, 32).index(st))
        mfma(st, 0)
        if st in (5, 34): k("s_barrier")
        if not last:
            wread(st + 1, [0])
            if more: cread(st + 2, [0])
            L.wait(("c", st + 1, 1)); vq.wait(("t", st + 1))
            mix(st + 1, 0, 3)
        mfma(st, 1)
        if not last:
            wread(st + 1, [1])
            if more: cread(st + 2, [1])
            mix(st + 1, 3, 6)
        mfma(st, 2)
        if not last:
            wread(st + 1, [2]); mix(st + 1, 6, 8); cvt(st + 1, [0, 1])
        mfma(st, 3)
        if not last:
            wread(st + 1, [3]); cvt(st + 1, [2, 3])
            n = 0
            while nxt[0] < 40 and nxt[0] <= st + 1 + DEPTH and nxt[0] - NR <= st + 1 and n < 2:
                tload(nxt[0]); nxt[0] += 1; n += 1
    k.stamp(4)
    if not isv:
        for t in range(4):
            r = ACC + 16 * t; d = TR + 8 * t
            for j in range(0, 16, 2): k(f"v_pk_mul_f32 {vr(r+j,2)}, {vr(r+j,2)}, s[60:61] op_sel_hi:[1,0]")
            for j in range(8): k(f"v_cvt_pk_bf16_f32 {v(d+j)}, {v(r+2*j)}, {v(r+2*j+1)}")
            for j in range(2):
                b = d + 4 * j
                k(f"v_permlane32_swap_b32 {v(b)}, {v(b+2)}\nv_permlane32_swap_b32 {v(b+1)}, {v(b+3)}")
                k(f"buffer_store_dwordx4 {vr(b,4)}, v5, {sr(WSR,4)}, s58 offen offset:{1024*j} {HO}")
            k("s_add_u32 s58, s58, 2048")
    else:
        for t in range(4):
            for g in range(2):
                r = ACC + 16 * t + 8 * g; d = TR + 4 * (2 * t + g)
                for j in range(4): k(f"v_cvt_pk_bf16_f32 {v(d+j)}, {v(r+2*j)}, {v(r+2*j+1)}")
                k(f"buffer_store_dwordx4 {vr(d,4)}, {v(OFF+t)}, {sr(WSR,4)}, s58 offen offset:{640*g} {HO}")

def spare_prefetch(k):
    k(f"v_lshlrev_b32 v146, 7, v1")
    dst = 64
    for ptr, nbytes in ((P_WG, 640 * 3072), (P_WU, 640 * 3072), (P_WO, 640 * 1280), (P_WMOD, 640 * 7680), (P_WD, 1536 * 1280)):
        srd(k, RB, ptr, nbytes)
        for j in range((nbytes // 8192 + 15) // 16):
            k(f"s_add_u32 s50, {s(srb)}, {16*j}\ns_lshl_b32 s50, s50, 13\nbuffer_load_dword {v(dst)}, v146, {sr(RB,4)}, s50 offen")
            dst += 1
    assert dst <= 256

def consumer01(k, after):
    mod_job(k)
    if MOD0: mod_rest0(k)
    k.stamp(1)
    sync01_consumer(k)
    k.stamp(2)
    idle, lv = k.lab("qidle"), k.lab("qv")
    k(f"s_cmp_eq_u32 {s(scb)}, 15\ns_cbranch_scc1 {idle}")
    k(f"s_cmp_ge_u32 {s(scb)}, 10\ns_cbranch_scc1 {lv}")
    qkv_consumer(k, False)
    k(f"s_branch {after}")
    k.label(lv)
    qkv_consumer(k, True)
    k(f"s_branch {after}")
    k.label(idle)
    k("s_barrier\ns_barrier\ns_barrier")
    k(f"s_branch {after}")

def xpose_tail(k):
    if not XPOSE: return
    skip = k.lab("nxt")
    k(f"s_cmp_eq_u32 {s(scb)}, 15\ns_cbranch_scc1 {skip}")
    xpose_addr(k, 40)
    k(f"s_sub_u32 s52, {s(sw)}, 4")
    xpose_steps(k, 40, [48, 64], 100, 52, 4, 2, 5)
    k.label(skip)

WEARLY = int(os.environ.get("WEARLY", "0"))
def early_w(k):
    skip = k.lab("new")
    k(f"s_cmp_eq_u32 {s(scb)}, 15\ns_cbranch_scc1 {skip}")
    wtile_setup(k)
    k(f"s_sub_u32 s59, {s(sw)}, 6")
    wtile_issue_rot(k, WEARLY, 2)
    k.label(skip)

def producer01(k, after):
    lnw, joined, notile, nt2 = k.lab("lnw"), k.lab("pj"), k.lab("nt"), k.lab("nt2")
    k(f"s_cmp_lt_u32 {s(sw)}, 6\ns_cbranch_scc1 {lnw}")
    w7 = k.lab("w7")
    k(f"s_cmp_eq_u32 {s(sw)}, 7\ns_cbranch_scc1 {w7}")
    if WEARLY:
        code_prefetch(k)
        early_w(k)
    else:
        line_prefetch(k, P_WQKV, 640 * 3840, 2, 150)
        code_prefetch(k)
        k("s_waitcnt vmcnt(0)")
    wait_ready(k)
    k(f"s_branch {joined}")
    k.label(w7)
    if os.environ.get("TLBW", "1") == "1":
        k("v_lshlrev_b32 v146, 21, v1")
        k(f"buffer_load_dword v150, v146, {sr(WSR,4)}, 0 offen sc1")
        for i, (ptr, nbytes) in enumerate(((P_WO, 640 * 1280), (P_WG, 640 * 3072), (P_WU, 640 * 3072), (P_WD, 1536 * 1280))):
            srd(k, RB, ptr, nbytes)
            k(f"buffer_load_dword {v(151+i)}, v146, {sr(RB,4)}, 0 offen")
    if WEARLY: early_w(k)
    B2 = os.environ.get("BATCH2", "0")
    if B2 in ("1", "2"):
        if B2 == "1":
            line_prefetch(k, P_WO, 640 * 1280, 1, 150)
            k("s_waitcnt vmcnt(0)")
        else:
            k("s_sleep 8")
            line_prefetch(k, P_WO, 640 * 1280, 1, 150)
        line_prefetch(k, P_WG, 640 * 3072, 1, 154)
        line_prefetch(k, P_WU, 640 * 3072, 1, 155)
        line_prefetch(k, P_WMOD, 640 * 7680, 3, 151)
        line_prefetch(k, P_WD, 1536 * 1280, 1, 156)
    k(f"s_branch {joined}")
    k.label(lnw)
    ln_job(k)
    probe(k, "p0", 2)
    k("s_waitcnt vmcnt(0)")
    probe(k, "p0", 3)
    k.label(joined)
    k.stamp(1)
    k("s_barrier")
    k(f"s_cmp_eq_u32 {s(scb)}, 15\ns_cbranch_scc1 {nt2}")
    wtile_setup(k)
    if WEARLY < 70:
        assert (140 - 2 * WEARLY) % 4 == 0
        k(f"s_sub_u32 s59, {s(sw)}, 4\ns_add_u32 s59, s59, {2*WEARLY}")
        wtile_issue_rot(k, (140 - 2 * WEARLY) // 4, 4)
    k.label(nt2)
    if SIDE == "p1":
        mini_issue(k, 0)
        k("s_waitcnt vmcnt(4)")
    else:
        k("s_waitcnt vmcnt(0)")
    probe(k, "p0", 4)
    k("s_barrier")
    k.stamp(2)
    if XPOSE:
        nx = k.lab("nxp")
        k(f"s_cmp_eq_u32 {s(scb)}, 15\ns_cbranch_scc1 {nx}")
        xpose_addr(k, 40)
        xpose_steps(k, 40, [48, 64, 80, 96], 112, sw, 8, 4, None)
        k.label(nx)
    k("s_barrier")
    k("s_barrier")
    k(f"s_cmp_eq_u32 {s(scb)}, 15\ns_cbranch_scc1 {notile}")
    wtile_setup(k)
    if XPOSE:
        k(f"s_sub_u32 s59, {s(sw)}, 4\ns_lshl_b32 s59, s59, 2\ns_add_u32 s59, s59, 140")
        wtile_issue(k, 0, 4, 1, wrap=True)
        n39 = k.lab("n39")
        k(f"s_cmp_lg_u32 {s(sw)}, 4\ns_cbranch_scc1 {n39}\ns_mov_b32 s59, 156")
        wtile_issue(k, 0, 4, 1, wrap=True)
        k.label(n39)
    else:
        k(f"s_sub_u32 s59, {s(sw)}, 4\ns_mul_i32 s59, s59, 5\ns_add_u32 s59, s59, 140")
        wtile_issue(k, 0, 5, 1, wrap=True)
    k.label(notile)
    if SIDE == "hyb":
        k("s_waitcnt vmcnt(0)")
        xpose_tail(k)
        mod_rest_load(k)
        k("s_barrier")
        k("s_waitcnt vmcnt(0)")
        mod_rest_finish(k)
    elif SIDE == "p1":
        k("s_waitcnt vmcnt(0)")
        xpose_tail(k)
        mini_finish(k, 0)
        mod_rest_load(k)
        mini_issue(k, 1)
        k("s_barrier")
        k("s_waitcnt vmcnt(0)")
        mini_finish(k, 0)
        mod_rest_finish(k)
    else:
        k("s_waitcnt vmcnt(0)")
        xpose_tail(k)
        k("s_barrier")
    k.stamp(4)
    k(f"s_branch {after}")
```

```python
from mcommon import *

XRES = os.environ.get("XRES", "1") == "1"
NTX = os.environ.get("NTX", "nt" if XRES else "")
NT = os.environ.get("NT0", "nt")
QSCALE = LOG2E * 20 ** -0.5
RING = 35
COEF = RING * 4096
STG = COEF + 2560
assert STG + 16384 <= 163840
srb, scb, scq = 15, 4, 5

def tile_ids(k):
    k(f"""s_and_b32 s48, {s(sIDX)}, 3
    s_lshr_b32 s49, {s(sXCD)}, 1
    s_lshl_b32 s49, s49, 2
    s_add_u32 {s(srb)}, s49, s48
    s_lshr_b32 s48, {s(sIDX)}, 2
    s_and_b32 s49, {s(sXCD)}, 1
    s_lshl_b32 s49, s49, 3
    s_add_u32 {s(scb)}, s49, s48""")
    sdiv(k, 48, scb, 5)
    k(f"s_mul_i32 s48, s48, 5\ns_sub_u32 {s(scq)}, {s(scb)}, s48")

def zero_init(k):
    skip = k.lab("noinit")
    k(f"s_cmp_lg_u32 s2, 255\ns_cbranch_scc1 {skip}")
    k("v_mov_b32 v4, 0\nv_mov_b32 v5, 0\nv_mov_b32 v6, 0\nv_mov_b32 v7, 0\nv_lshlrev_b32 v8, 4, v1")
    k(f"s_mul_i32 s48, {s(sw)}, 11264\ns_add_u32 s48, s48, {WS['ZERO']}")
    for i in range(11):
        k(f"buffer_store_dwordx4 v[4:7], v8, {sr(WSR,4)}, s48 offen {HO}\ns_add_u32 s48, s48, 1024")
    k("s_waitcnt vmcnt(0)\ns_barrier")
    k(f"s_cmp_lg_u32 {s(sw)}, 0\ns_cbranch_scc1 {skip}")
    srd(k, RB, P_DBG, 256)
    k("v_mov_b32 v4, 1\nv_mov_b32 v5, 0\ns_mov_b64 exec, 1")
    k(f"buffer_store_dword v4, v5, {sr(RB,4)}, 0 offen offset:4 {HO}")
    k("s_mov_b64 exec, -1")
    k.label(skip)

def wait_ready(k):
    srd(k, RB, P_DBG, 256)
    loop, done = k.lab("rdy"), k.lab("rdyd")
    k("v_mov_b32 v60, 0\ns_mov_b32 s50, 0")
    k.label(loop)
    k(f"buffer_load_dword v61, v60, {sr(RB,4)}, 0 offen offset:4 sc1\ns_waitcnt vmcnt(0)\nv_readfirstlane_b32 s51, v61")
    k(f"s_cmp_lg_u32 s51, 0\ns_cbranch_scc1 {done}\ns_add_u32 s50, s50, 1\ns_cmp_ge_u32 s50, {SPIN_LIMIT}\ns_cbranch_scc1 {done}\ns_sleep 6\ns_branch {loop}")
    k.label(done)

LCNT = 162304 + 320
MACC = 162304
assert MACC + 512 <= 163840

def mod_load(k, R0, scb_, sks, wv):
    srd(k, RA, P_WMOD, 640 * 7680); srd(k, RB, P_C, 1280)
    k("v_lshrrev_b32 v3, 3, v1\nv_and_b32 v4, 7, v1")
    k(f"s_mul_i32 s54, {s(sks)}, 160\ns_mul_i32 s55, {s(wv)}, 40\ns_add_u32 s54, s54, s55")
    k(f"v_add_u32 v5, s54, v3\ns_movk_i32 s55, 7680\nv_mul_u32_u24 v6, s55, v5\ns_lshl_b32 s56, {s(scb_)}, 7")
    k("v_lshlrev_b32 v7, 4, v4\nv_add3_u32 v6, v6, v7, s56\nv_lshlrev_b32 v8, 1, v5")
    for i in range(5):
        k(f"s_mov_b32 s57, {61440*i}\nbuffer_load_dwordx4 {vr(R0+4*i,4)}, v6, {sr(RA,4)}, s57 offen {NT}")
    for i in range(5):
        k(f"buffer_load_ushort {v(R0+20+i)}, v8, {sr(RB,4)}, 0 offen offset:{16*i}")

def mod_compute(k, R0, T, stmp=48):
    C = R0 + 20
    for j in range(8): k(f"v_mov_b32 {v(T+j)}, 0")
    k(f"s_mov_b32 {s(stmp)}, 0xbfb8aa3b")
    E = T + 8
    for i in range(5): k(f"v_lshlrev_b32 {v(C+i)}, 16, {v(C+i)}\nv_mul_f32 {v(E+i)}, {s(stmp)}, {v(C+i)}\nv_exp_f32 {v(E+i)}, {v(E+i)}")
    for i in range(5): k(f"v_add_f32 {v(E+i)}, 1.0, {v(E+i)}")
    for i in range(5): k(f"v_rcp_f32 {v(E+i)}, {v(E+i)}")
    for i in range(5): k(f"v_mul_f32 {v(C+i)}, {v(C+i)}, {v(E+i)}")
    for i in range(5):
        for d in range(4):
            r = R0 + 4 * i + d
            k(f"v_lshlrev_b32 {v(T+16)}, 16, {v(r)}\nv_and_b32 {v(T+17)}, 0xffff0000, {v(r)}\nv_fmac_f32 {v(T+2*d)}, {v(C+i)}, {v(T+16)}\nv_fmac_f32 {v(T+2*d+1)}, {v(C+i)}, {v(T+17)}")
    k(f"v_and_b32 {v(T+16)}, 8, v1\nv_cmp_ne_u32 vcc, 0, {v(T+16)}")
    for j in range(4):
        k(f"v_cndmask_b32 {v(T+8+j)}, {v(T+4+j)}, {v(T+j)}, vcc\nv_cndmask_b32 {v(T+12+j)}, {v(T+j)}, {v(T+4+j)}, vcc")
    for j in range(4):
        k(f"v_add_f32_dpp {v(T+12+j)}, {v(T+8+j)}, {v(T+12+j)} row_ror:8 row_mask:0xf bank_mask:0xf")
    a = T + 12
    k(f"v_permlane16_swap_b32 {v(a)}, {v(a+2)}\nv_permlane16_swap_b32 {v(a+1)}, {v(a+3)}\nv_add_f32 {v(a)}, {v(a)}, {v(a+2)}\nv_add_f32 {v(a+1)}, {v(a+1)}, {v(a+3)}")
    k(f"v_permlane32_swap_b32 {v(a)}, {v(a+1)}\nv_add_f32 {v(a)}, {v(a)}, {v(a+1)}")
    c, t = T + 16, T + 17
    k(f"""v_and_b32 {v(c)}, 7, v1
    v_lshlrev_b32 {v(c)}, 3, {v(c)}
    v_bfe_u32 {v(t)}, v1, 3, 1
    v_lshl_add_u32 {v(c)}, {v(t)}, 2, {v(c)}
    v_bfe_u32 {v(t)}, v1, 4, 1
    v_lshl_add_u32 {v(c)}, {v(t)}, 1, {v(c)}
    v_lshrrev_b32 {v(t)}, 5, v1
    v_add_u32 {v(c)}, {v(c)}, {v(t)}""")

def macc_init(k):
    skip = k.lab("nomacc")
    k(f"s_cmp_lg_u32 {s(sw)}, 0\ns_cbranch_scc1 {skip}")
    k(f"v_mov_b32 v2, 0\nv_lshlrev_b32 v3, 2, v1\nv_add_u32 v3, {MACC}, v3\nds_write_b32 v3, v2\nds_write_b32 v3, v2 offset:256\ns_waitcnt lgkmcnt(0)")
    k.label(skip)
    k("s_barrier")

NOB1 = os.environ.get("NOB1", "0") == "1"
LRDY, LLN = MACC + 328, MACC + 332
def lds_wait_ready(k):
    loop, done = k.lab("lrdy"), k.lab("lrdyd")
    k(f"v_mov_b32 v2, {LRDY}\ns_mov_b32 s50, 0")
    k.label(loop)
    k(f"ds_read_b32 v3, v2\ns_waitcnt lgkmcnt(0)\nv_readfirstlane_b32 s51, v3\ns_cmp_lg_u32 s51, 0\ns_cbranch_scc1 {done}")
    k(f"s_add_u32 s50, s50, 1\ns_cmp_ge_u32 s50, {SPIN_LIMIT*20}\ns_cbranch_scc1 {done}\ns_sleep 1\ns_branch {loop}")
    k.label(done)

def mod_job(k):
    skip = k.lab("nomod")
    k(f"s_cmp_ge_u32 s2, 80\ns_cbranch_scc1 {skip}")
    sdiv(k, 52, 2, 20)
    k("s_mul_i32 s53, s52, 20\ns_sub_u32 s53, s2, s53")
    mod_load(k, 16, 53, 52, sw)
    k("s_waitcnt vmcnt(0)")
    probe(k, "p0", 1)
    mod_compute(k, 16, 44)
    k(f"v_lshlrev_b32 v60, 2, v60\nv_add_u32 v60, {MACC}, v60\nds_add_f32 v60, v56\nv_mov_b32 v61, {MACC+256}\nv_mov_b32 v62, 1\ns_waitcnt lgkmcnt(0)")
    k("s_mov_b64 exec, 1\nds_add_rtn_u32 v63, v61, v62\ns_waitcnt lgkmcnt(0)\ns_mov_b64 exec, -1\nv_readfirstlane_b32 s57, v63")
    probe(k, "p0", 2)
    k(f"s_cmp_lg_u32 s57, 3\ns_cbranch_scc1 {skip}")
    k(f"v_lshlrev_b32 v60, 2, v1\nv_add_u32 v61, {MACC}, v60\nds_read_b32 v62, v61")
    k(f"s_mul_i32 s56, s52, 5120\ns_lshl_b32 s57, s53, 8\ns_add_u32 s56, s56, s57\ns_add_u32 s56, s56, {WS['MODP']}\ns_waitcnt lgkmcnt(0)")
    k(f"buffer_store_dword v62, v60, {sr(WSR,4)}, s56 offen {HO}")
    if NOB1:
        k("s_waitcnt vmcnt(0)")
        lds_wait_ready(k)
        k(f"s_lshr_b32 s53, s2, 4\ns_add_u32 s52, s53, {C_M}")
        arrive(k, "s52", 16, G_M, 8, word="s53")
    k.label(skip)

MOD0 = os.environ.get("MOD0", "0") == "1"
def mod_rest0(k):
    skip = k.lab("nom0")
    k(f"s_cmp_lt_u32 s2, 80\ns_cbranch_scc1 {skip}\ns_cmp_ge_u32 s2, 240\ns_cbranch_scc1 {skip}")
    k("s_sub_u32 s53, s2, 80")
    sdiv(k, 52, 53, 40)
    k(f"s_mul_i32 s54, s52, 40\ns_sub_u32 s53, s53, s54\ns_add_u32 s53, s53, 20")
    mod_load(k, 16, 53, 52, sw)
    k("s_waitcnt vmcnt(0)")
    mod_compute(k, 16, 44)
    k.label(skip)
def mod_rest0_atomic(k):
    skip = k.lab("nom1")
    k(f"s_cmp_lt_u32 s2, 80\ns_cbranch_scc1 {skip}\ns_cmp_ge_u32 s2, 240\ns_cbranch_scc1 {skip}")
    k("s_sub_u32 s49, s2, 80")
    sdiv(k, 50, 49, 40)
    k(f"s_mul_i32 s50, s50, 40\ns_sub_u32 s49, s49, s50\ns_add_u32 s49, s49, 20\ns_lshl_b32 s49, s49, 8\ns_add_u32 s49, s49, {WS['MOD']}")
    k(f"v_lshlrev_b32 v60, 2, v60\nbuffer_atomic_add_f32 v56, v60, {sr(WSR,4)}, s49 offen")
    k.label(skip)

MR, MT = 60, 28
def mod_rest_load(k):
    if os.environ.get("NOSIDE"): return
    skip = k.lab("nomr")
    k(f"s_cmp_lt_u32 s2, 80\ns_cbranch_scc1 {skip}\ns_cmp_ge_u32 s2, 240\ns_cbranch_scc1 {skip}")
    k("s_sub_u32 s53, s2, 80")
    sdiv(k, 52, 53, 40)
    k(f"s_mul_i32 s54, s52, 40\ns_sub_u32 s53, s53, s54\ns_add_u32 s53, s53, 20\ns_sub_u32 s68, {s(sw)}, 4")
    mod_load(k, MR, 53, 52, 68)
    k.label(skip)
def mod_rest_finish(k):
    if os.environ.get("NOSIDE"): return
    skip = k.lab("nomf")
    k(f"s_cmp_lt_u32 s2, 80\ns_cbranch_scc1 {skip}\ns_cmp_ge_u32 s2, 240\ns_cbranch_scc1 {skip}")
    mod_compute(k, MR, MT)
    k("s_sub_u32 s49, s2, 80")
    sdiv(k, 50, 49, 40)
    k(f"s_mul_i32 s50, s50, 40\ns_sub_u32 s49, s49, s50\ns_add_u32 s49, s49, 20\ns_lshl_b32 s49, s49, 8\ns_add_u32 s49, s49, {WS['MOD']}")
    k(f"v_lshlrev_b32 {v(MT+16)}, 2, {v(MT+16)}")
    k(f"buffer_atomic_add_f32 {v(MT+12)}, {v(MT+16)}, {sr(WSR,4)}, s49 offen")
    k.label(skip)

def red16(k, r):
    red8(k, r)
    k(f"v_add_f32_dpp {v(r)}, {v(r)}, {v(r)} row_mirror row_mask:0xf bank_mask:0xf")

def ln_job(k):
    L, Fq, N = 8, 48, 5
    srd(k, RA, P_X, 2048 * 1280)
    k("v_lshrrev_b32 v3, 4, v1\nv_and_b32 v4, 15, v1")
    k(f"s_lshl_b32 s52, s2, 3\ns_sub_u32 s53, {s(sw)}, 4\ns_lshl_b32 s53, s53, 2\ns_add_u32 s52, s52, s53")
    k("v_add_u32 v6, s52, v3\ns_movk_i32 s54, 1280\nv_mul_u32_u24 v6, s54, v6\nv_lshl_add_u32 v6, v4, 4, v6")
    for i in range(N): k(f"buffer_load_dwordx4 {vr(L+4*i,4)}, v6, {sr(RA,4)}, 0 offen offset:{256*i} {NTX}")
    k("v_mov_b32 v128, 0\nv_mov_b32 v129, 0\nv_mov_b32 v132, 0\nv_mov_b32 v133, 0")
    if STAMPS and PROBE == "p0":
        k("s_waitcnt vmcnt(0)")
        probe(k, "p0", 1)
    for i in range(N):
        k(f"s_waitcnt vmcnt({N-1-i})")
        for d in range(4):
            r = L + 4 * i + d; f = Fq + 8 * i + 2 * d
            k(f"v_lshlrev_b32 {v(f)}, 16, {v(r)}\nv_and_b32 {v(f+1)}, 0xffff0000, {v(r)}")
        for d in range(4):
            f = Fq + 8 * i + 2 * d
            k(f"v_pk_add_f32 v[128:129], v[128:129], {vr(f,2)}")
    k("v_add_f32 v128, v128, v129")
    red16(k, 128)
    k(f"v_mul_f32 v130, {hex(f32bits(-1.0/640))}, v128\nv_mov_b32 v131, v130")
    for j in range(0, 8 * N, 2): k(f"v_pk_add_f32 {vr(Fq+j,2)}, {vr(Fq+j,2)}, v[130:131]")
    for j in range(0, 8 * N, 2): k(f"v_pk_fma_f32 v[132:133], {vr(Fq+j,2)}, {vr(Fq+j,2)}, v[132:133]")
    k("v_add_f32 v132, v132, v133")
    red16(k, 132)
    k(f"v_mov_b32 v134, {hex(f32bits(1e-5))}\nv_mov_b32 v135, {hex(f32bits(1.0/640))}\nv_fmac_f32 v134, v132, v135\nv_mov_b32 v137, v134\nv_rsq_f32 v134, v134\ns_nop 0\nv_mov_b32 v135, v134")
    if XRES:
        k(f"v_mul_f32 v137, v137, v134\nv_sub_f32 v136, 0, v130\nv_add_u32 v138, s52, v3\nv_lshlrev_b32 v138, 3, v138\ns_mov_b32 s53, {WS['LNST']}")
        k("v_cmp_eq_u32 vcc, 0, v4\ns_and_saveexec_b64 s[54:55], vcc")
        k(f"buffer_store_dwordx2 v[136:137], v138, {sr(WSR,4)}, s53 offen {HO}\ns_mov_b64 exec, s[54:55]")
    k(f"s_lshr_b32 s53, s52, 5\ns_mul_i32 s53, s53, 40960\ns_and_b32 s52, s52, 31\ns_lshl_b32 s52, s52, 4\ns_add_u32 s52, s52, s53\ns_add_u32 s52, s52, {WS['XN']}")
    k("v_lshlrev_b32 v6, 9, v4\nv_lshl_add_u32 v6, v3, 4, v6")
    for i in range(N):
        for d in range(4):
            f = Fq + 8 * i + 2 * d
            k(f"v_pk_mul_f32 {vr(f,2)}, {vr(f,2)}, v[134:135]")
        for d in range(4):
            f = Fq + 8 * i + 2 * d
            k(f"v_cvt_pk_f16_f32 {v(L+4*i+d)}, {v(f)}, {v(f+1)}")
        k(f"buffer_store_dwordx4 {vr(L+4*i,4)}, v6, {sr(WSR,4)}, s52 offen {HO}\ns_add_u32 s52, s52, 8192")

def line_prefetch(k, ptr, nbytes, nper, dst, first=0):
    srd(k, RB, ptr, nbytes)
    k("v_lshlrev_b32 v146, 7, v1")
    for j in range(nper):
        k(f"s_add_u32 s50, s2, {first + 256*j}\ns_lshl_b32 s50, s50, 13\nbuffer_load_dword {v(dst+j)}, v146, {sr(RB,4)}, s50 offen")

def code_prefetch(k):
    here, skip = k.lab("pc"), k.lab("nopc")
    k(f"s_cmp_ge_u32 {s(sIDX)}, 8\ns_cbranch_scc1 {skip}")
    k("s_getpc_b64 s[48:49]")
    k.label(here)
    k(f"s_sub_u32 s48, s48, {here}-{k.name}\ns_subb_u32 s49, s49, 0")
    k(f"s_lshl_b32 s50, {s(sIDX)}, 13\nv_lshlrev_b32 v144, 7, v1\nv_add_u32 v144, s50, v144")
    k(f"s_mov_b32 s50, CODE_END-{k.name}-4\nv_min_u32 v144, s50, v144")
    k("global_load_dword v148, v144, s[48:49]")
    k.label(skip)

def wtile_setup(k):
    srd(k, RA, P_WQKV, 640 * 3840)
    k("""v_lshrrev_b32 v141, 4, v1
    v_bfe_u32 v142, v1, 2, 2
    """ + ("v_xor_b32 v142, v142, v141" if not os.environ.get("NOSWZ") else "s_nop 0") + """
    v_lshlrev_b32 v142, 6, v142
    v_and_b32 v143, 3, v1
    v_lshl_add_u32 v142, v143, 4, v142
    s_movk_i32 s52, 3840
    v_mad_u32_u24 v140, v141, s52, v142""")
    k(f"s_lshl_b32 s58, {s(scb)}, 8")

def wtile_issue(k, first, count, stride, wrap=False):
    loop = k.lab("wdma")
    k(f"s_mul_i32 s60, s59, 15360\ns_add_u32 s60, s60, s58\ns_lshl_b32 s61, s59, 10")
    if wrap: k(f"s_sub_u32 s61, s61, {RING*4096}")
    k(f"s_mov_b32 s62, {count}")
    k.label(loop)
    k(f"s_mov_b32 m0, s61\ns_add_u32 s61, s61, {stride*1024}\nbuffer_load_dwordx4 v140, {sr(RA,4)}, s60 offen lds")
    k(f"s_add_u32 s60, s60, {stride*15360}\ns_sub_u32 s62, s62, 1\ns_cmp_lg_u32 s62, 0\ns_cbranch_scc1 {loop}")

def wtile_issue_rot(k, count, stride):
    loop = k.lab("wrot")
    NP = 4 * RING
    k(f"s_mul_i32 s60, {s(srb)}, {int(os.environ.get('ROTW', '9'))}\ns_add_u32 s59, s59, s60\ns_mov_b32 s62, {count}")
    k.label(loop)
    k(f"s_cmp_ge_u32 s59, {NP}\ns_cselect_b32 s60, {NP}, 0\ns_sub_u32 s59, s59, s60")
    k(f"s_lshl_b32 m0, s59, 10\ns_mul_i32 s60, s59, 15360\ns_add_u32 s60, s60, s58\nbuffer_load_dwordx4 v140, {sr(RA,4)}, s60 offen lds")
    k(f"s_waitcnt vmcnt({int(os.environ.get('WINFL', '40'))})")
    k(f"s_add_u32 s59, s59, {stride}\ns_sub_u32 s62, s62, 1\ns_cmp_lg_u32 s62, 0\ns_cbranch_scc1 {loop}")

N_G, N_U, N_O, N_D = 480, 480, 200, 480
sJ = 63
def mini_issue(k, rnd):
    if os.environ.get("NOSIDE"):
        k("s_mov_b32 s69, 0"); return
    p = 52
    nojob, go = k.lab("mjno"), k.lab("mjgo")
    k(f"s_sub_u32 s52, {s(sw)}, 4\ns_lshl_b32 {s(sJ)}, s2, 2\ns_add_u32 {s(sJ)}, {s(sJ)}, s52\ns_add_u32 {s(sJ)}, {s(sJ)}, {1024*rnd}")
    k(f"s_lshl_b32 s53, s52, 12\ns_add_u32 s53, s53, {STG}")
    k(f"s_mov_b32 s69, 0\ns_cmp_ge_u32 {s(sJ)}, {N_G+N_U+N_O+N_D}\ns_cbranch_scc1 {nojob}")
    labs = [k.lab("mj") for _ in range(4)]
    lim = 0
    for n, lab in zip((N_G, N_U, N_O), labs):
        lim += n
        k(f"s_cmp_lt_u32 {s(sJ)}, {lim}\ns_cbranch_scc1 {lab}")
    k(f"s_branch {labs[3]}")
    types = [("g", P_WG, 640 * 3072, 3072, 12, 0, True, 3, 40, 6, 0, "WGU"), ("u", P_WU, 640 * 3072, 3072, 12, N_G, True, 3, 40, 6, 3, "WGU"),
             ("o", P_WO, 640 * 1280, 1280, 10, N_G + N_U, False, 5, 20, 5, 0, "WO"), ("d", P_WD, 1536 * 1280, 1280, 10, N_G + N_U + N_O, False, 5, 48, 5, 0, "WD")]
    for (name, ptr, nbytes, stride, ncb, start, wide, dv, NS, NT, tadd, base), lab in zip(types, labs):
        k.label(lab)
        srd(k, RB, ptr, nbytes)
        k(f"s_sub_u32 s54, {s(sJ)}, {start}")
        sdiv(k, 55, 54, ncb)
        k(f"s_mul_i32 s56, s55, {ncb}\ns_sub_u32 s54, s54, s56")
        for tt in range(4):
            k(f"s_lshl_b32 s56, s54, 2\ns_add_u32 s56, s56, {tt}")
            sdiv(k, 57, 56, dv)
            k(f"s_mul_i32 {s(64+tt)}, s57, {dv}\ns_sub_u32 s56, s56, {s(64+tt)}\ns_mul_i32 s57, s57, {NS}\ns_add_u32 s57, s57, s55")
            k(f"s_mul_i32 s57, s57, {NT}\ns_add_u32 s57, s57, s56\ns_lshl_b32 s57, s57, 10\ns_add_u32 {s(64+tt)}, s57, {WS[base] + tadd*1024}")
        if wide:
            k(f"""s_mov_b32 s69, 1
            s_lshl_b32 s55, s55, 4
            s_lshl_b32 s54, s54, 8
            v_lshrrev_b32 v8, 4, v1
            v_and_b32 v9, 15, v1
            v_lshl_add_u32 v9, v9, 4, s54""")
            for i in range(4): k(f"v_add_u32 {v(10+i)}, s55, v8\nv_add_u32 {v(10+i)}, {4*i}, {v(10+i)}")
        else:
            k(f"""s_mov_b32 s69, 2
            s_lshl_b32 s55, s55, 5
            s_lshl_b32 s54, s54, 7
            v_lshrrev_b32 v8, 3, v1
            v_and_b32 v9, 7, v1
            v_lshl_add_u32 v9, v9, 4, s54""")
            for i in range(4): k(f"v_add_u32 {v(10+i)}, s55, v8\nv_add_u32 {v(10+i)}, {8*i}, {v(10+i)}")
            if name == "o":
                k("s_movk_i32 s56, 1639")
                for i in range(4):
                    r = 10 + i
                    k(f"""v_mul_u32_u24 v14, s56, {v(r)}
                    v_lshrrev_b32 v14, 16, v14
                    v_mul_u32_u24 v14, 40, v14
                    v_sub_u32 v14, {v(r)}, v14
                    v_mov_b32 v15, 0
                    v_cmp_le_u32 vcc, 16, v14
                    v_cndmask_b32_e64 v15, v15, 4, vcc
                    v_cmp_le_u32 vcc, 32, v14
                    v_cndmask_b32_e64 v15, v15, -16, vcc
                    v_cmp_le_u32 vcc, 36, v14
                    v_cndmask_b32_e64 v15, v15, 0, vcc
                    v_add_u32 {v(r)}, {v(r)}, v15""")
        k(f"s_movk_i32 s56, {stride}")
        for i in range(4): k(f"v_mad_u32_u24 {v(10+i)}, {v(10+i)}, s56, v9")
        k(f"s_branch {go}")
    k.label(go)
    for i in range(4):
        k(f"s_add_u32 m0, s53, {1024*i}\ns_nop 0\nbuffer_load_dwordx4 {v(10+i)}, {sr(RB,4)}, 0 offen lds")
    k.label(nojob)

def mini_finish(k, later):
    done, narrow, rd = k.lab("mfd"), k.lab("mfn"), k.lab("mfr")
    k(f"s_cmp_eq_u32 s69, 0\ns_cbranch_scc1 {done}")
    k(f"s_waitcnt vmcnt({later})")
    k("v_and_b32 v8, 15, v1\nv_lshrrev_b32 v8, 2, v8\nv_and_b32 v9, 3, v1")
    k(f"s_cmp_eq_u32 s69, 2\ns_cbranch_scc1 {narrow}")
    k("""v_lshrrev_b32 v16, 5, v1
    v_lshl_add_u32 v16, v16, 3, v8
    v_lshlrev_b32 v16, 8, v16
    v_bfe_u32 v17, v1, 4, 1
    v_lshlrev_b32 v17, 5, v17
    v_lshl_add_u32 v17, v9, 3, v17
    v_add3_u32 v16, v16, v17, s53""")
    for tt in range(4):
        k(f"ds_read_b64_tr_b16 {vr(20+4*tt,2)}, v16 offset:{64*tt}\nds_read_b64_tr_b16 {vr(22+4*tt,2)}, v16 offset:{64*tt+1024}")
    k(f"s_branch {rd}")
    k.label(narrow)
    k("""v_lshrrev_b32 v16, 4, v1
    v_lshl_add_u32 v16, v16, 3, v8
    v_lshlrev_b32 v16, 7, v16
    v_lshl_add_u32 v16, v9, 3, v16
    v_add_u32 v16, s53, v16""")
    for tt in range(4):
        k(f"ds_read_b64_tr_b16 {vr(20+4*tt,2)}, v16 offset:{32*tt}\nds_read_b64_tr_b16 {vr(22+4*tt,2)}, v16 offset:{32*tt+512}")
    k.label(rd)
    k("v_lshlrev_b32 v17, 4, v1")
    for tt in range(4):
        k(f"s_waitcnt lgkmcnt({6-2*tt})\nbuffer_store_dwordx4 {vr(20+4*tt,4)}, v17, {sr(WSR,4)}, {s(64+tt)} offen {HO}")
    k.label(done)

def sync01_consumer(k):
    nw, n1 = k.lab("s01w"), k.lab("s01w1")
    if NOB1:
        k(f"s_cmp_lg_u32 {s(sw)}, 0\ns_cbranch_scc1 {nw}")
        lds_wait_ready(k)
    else:
        k("s_waitcnt vmcnt(0)\ns_barrier")
        probe(k, "p0", 4)
        k(f"s_cmp_lg_u32 {s(sw)}, 1\ns_cbranch_scc1 {n1}\ns_cmp_ge_u32 s2, 80\ns_cbranch_scc1 {n1}")
        k(f"s_lshr_b32 s53, s2, 4\ns_add_u32 s52, s53, {C_M}")
        arrive(k, "s52", 16, G_M, 8, word="s53")
        k.label(n1)
        k(f"s_cmp_lg_u32 {s(sw)}, 0\ns_cbranch_scc1 {nw}")
        probe(k, "p0", 3)
        k(f"s_lshr_b32 s53, s2, 4\ns_add_u32 s52, s53, {C_X}\ns_add_u32 s53, s53, {G_X}")
        arrive(k, "s52", 16, "s53")
    if os.environ.get("SPARE", "0") == "1":
        nsp = k.lab("nsp0")
        k(f"s_cmp_lg_u32 {s(scb)}, 15\ns_cbranch_scc1 {nsp}")
        spare_prefetch(k)
        k(f"s_branch {nw}")
        k.label(nsp)
    k(f"s_add_u32 s52, {s(sXCD)}, {G_M}\ns_lshl_b32 s52, s52, 8\ns_add_u32 s54, {s(srb)}, {G_X}\ns_lshl_b32 s54, s54, 8")
    k("v_lshlrev_b32 v5, 2, v1\nv_add_u32 v5, s52, v5\nv_mov_b32 v7, s54\nv_cmp_gt_u32 vcc, 5, v1\nv_cndmask_b32 v5, v7, v5, vcc\nv_mov_b32 v6, 1")
    if not os.environ.get("NOPOLL01"): poll(k, 5, 6)
    k.label(nw)
    if MOD0: mod_rest0_atomic(k)
    k("s_barrier")

CL = 224
def coef_load(k):
    k(f"v_lshlrev_b32 v9, 4, v0\nv_and_b32 v15, 15, v1\nv_lshlrev_b32 v15, 4, v15\ns_lshl_b32 s55, {s(sw)}, 8\ns_add_u32 s55, s55, 4096\nv_add_u32 v15, s55, v15")
    for ks in range(4):
        k(f"s_mov_b32 s52, {WS['MODP'] + ks*5120}\nbuffer_load_dwordx4 {vr(CL+4*ks,4)}, v9, {sr(WSR,4)}, s52 offen {HL}\nbuffer_load_dwordx4 {vr(CL+16+4*ks,4)}, v15, {sr(WSR,4)}, s52 offen {HL}")
def coef_prep(k, later):
    k(f"s_waitcnt vmcnt({later})")
    k("v_cmp_le_u32 vcc, 160, v0\nv_mov_b32 v6, 0\nv_cndmask_b32_e64 v6, v6, 1.0, vcc")
    for b in (CL, CL + 16):
        for j in range(4):
            k(f"v_add_f32 {v(b+j)}, {v(b+j)}, {v(b+4+j)}\nv_add_f32 {v(b+8+j)}, {v(b+8+j)}, {v(b+12+j)}")
        for j in range(4):
            k(f"v_add_f32 {v(b+j)}, {v(b+j)}, {v(b+8+j)}")
    for j in range(4): k(f"v_add_f32 {v(CL+j)}, {v(CL+j)}, v6\nv_add_f32 {v(CL+16+j)}, 1.0, {v(CL+16+j)}")
    for j in range(4): k(f"v_mul_f32 {v(CL+j)}, s60, {v(CL+j)}\nv_mul_f32 {v(CL+16+j)}, s60, {v(CL+16+j)}")
    k(f"v_cvt_pk_f16_f32 {v(CL+4)}, {v(CL)}, {v(CL+1)}\nv_cvt_pk_f16_f32 {v(CL+5)}, {v(CL+2)}, {v(CL+3)}\nv_lshlrev_b32 v7, 3, v0\nv_add_u32 v7, {COEF}, v7\nds_write_b64 v7, {vr(CL+4,2)}")
    k(f"v_cvt_pk_f16_f32 {v(CL+20)}, {v(CL+16)}, {v(CL+17)}\nv_cvt_pk_f16_f32 {v(CL+21)}, {v(CL+18)}, {v(CL+19)}\nv_lshrrev_b32 v7, 1, v15\nv_add_u32 v7, {COEF}, v7\nds_write_b64 v7, {vr(CL+20,2)}")

XPOSE = os.environ.get("XPOSE", "0") == "1"
def xpose_addr(k, dst):
    k(f"""v_and_b32 v8, 15, v1
    v_lshrrev_b32 v8, 2, v8
    v_lshrrev_b32 v9, 5, v1
    v_lshl_add_u32 v9, v9, 3, v8
    v_lshlrev_b32 v9, 8, v9
    v_bfe_u32 v10, v1, 4, 1
    v_lshl_add_u32 v9, v10, 5, v9
    v_and_b32 v10, 3, v1
    v_lshl_add_u32 v9, v10, 3, v9""")
    for t in range(4): k(f"v_xor_b32 v10, {t}, v8\nv_lshl_add_u32 {v(dst+t)}, v10, 6, v9")
def xpose_steps(k, base, data, tmp, sfirst, stride, count, limit):
    def guard(j):
        if limit is None or j < count - 1: return None
        skip = k.lab("xps")
        k(f"s_add_u32 s48, {s(sfirst)}, {stride*j}\ns_cmp_ge_u32 s48, {limit}\ns_cbranch_scc1 {skip}")
        return skip
    for j in range(count):
        skip = guard(j)
        k(f"s_add_u32 s48, {s(sfirst)}, {stride*j}\ns_lshl_b32 s48, s48, 12")
        for t in range(4): k(f"v_add_u32 {v(tmp+t)}, s48, {v(base+t)}")
        for t in range(4):
            k(f"ds_read_b64_tr_b16 {vr(data[j]+4*t,2)}, {v(tmp+t)}\nds_read_b64_tr_b16 {vr(data[j]+4*t+2,2)}, {v(tmp+t)} offset:1024")
        if skip: k.label(skip)
    k("s_waitcnt lgkmcnt(0)")
    for j in range(count):
        skip = guard(j)
        k(f"s_add_u32 s48, {s(sfirst)}, {stride*j}\ns_lshl_b32 s48, s48, 12\nv_lshlrev_b32 {v(tmp+4)}, 4, v1\nv_add_u32 {v(tmp+4)}, s48, {v(tmp+4)}")
        for t in range(4): k(f"ds_write_b128 {v(tmp+4)}, {vr(data[j]+4*t,4)} offset:{1024*t}")
        if skip: k.label(skip)
    k("s_waitcnt lgkmcnt(0)")

ACC, TR, WB, CB, HF, HB, AW, OFF = 16, 80, 144, 176, 192, 200, 208, 220
NR, PRE, DEPTH = 16, int(os.environ.get('PRE1', 4)), int(os.environ.get('DEP1', 10))

def qkv_consumer(k, isv):
    k("v_and_b32 v3, 31, v1\nv_lshrrev_b32 v4, 5, v1\nv_lshlrev_b32 v5, 4, v1")
    k(f"s_lshl_b32 s53, {s(srb)}, 2\ns_add_u32 s53, s53, {s(sw)}")
    k(f"s_mul_i32 s54, s53, 40960\ns_add_u32 s54, s54, {WS['XN']}")
    vq = Q(k, "vmcnt"); L = Q(k, "lgkmcnt")
    coef_load(k)
    for j in range(7): vq.add(("coef", j))
    vq.add("coef")
    def tload(st):
        if st % 4 == 0: k(f"s_add_u32 s55, s54, {st*1024}")
        k(f"buffer_load_dwordx4 {vr(TR+4*(st%NR),4)}, v5, {sr(WSR,4)}, s55 offen offset:{1024*(st%4)} {HL}"); vq.add(("t", st))
    for st in range(PRE): tload(st)
    nxt = [PRE]
    if not XPOSE:
        for j in range(64): k(f"v_mov_b32 {v(ACC+j)}, 0")
    k("""v_and_b32 v8, 15, v1
    v_lshrrev_b32 v8, 2, v8
    v_lshl_add_u32 v9, v4, 3, v8
    v_lshlrev_b32 v9, 8, v9
    v_bfe_u32 v10, v1, 4, 1
    v_lshl_add_u32 v9, v10, 5, v9
    v_and_b32 v10, 3, v1
    v_lshl_add_u32 v9, v10, 3, v9""")
    for t in range(4):
        k(f"v_xor_b32 v10, {t}, v8\nv_lshl_add_u32 {v(AW+t)}, v10, 6, v9")
        k(f"v_add_u32 {v(AW+4+t)}, 0x10000, {v(AW+t)}\nv_add_u32 {v(AW+8+t)}, 0x20000, {v(AW+t)}")
    k(f"v_lshlrev_b32 v14, 4, v4\nv_add_u32 v14, {COEF}, v14")
    if isv:
        k(f"s_lshl_b32 s56, {s(scq)}, 7\nv_add_u32 v6, s56, v3\ns_movk_i32 s56, 3277\ns_mov_b32 s57, 81920\nv_mul_u32_u24 v7, 0x140, v4")
        for t in range(4):
            k(f"""v_add_u32 v9, {32*t}, v6
            v_mul_u32_u24 v10, s56, v9
            v_lshrrev_b32 v10, 16, v10
            v_mad_i32_i24 v9, v10, -16, v9
            v_mad_i32_i24 v9, v10, -4, v9
            v_lshl_add_u32 v9, v9, 4, v7
            v_mad_u32_u24 {v(OFF+t)}, v10, s57, v9""")
        k(f"s_lshl_b32 s58, s53, 1\ns_mul_i32 s58, s58, 640\ns_add_u32 s58, s58, {WS['V']}\ns_mov_b32 s60, 1.0")
    else:
        k(f"s_mul_i32 s58, s53, 40960\ns_lshl_b32 s56, {s(scq)}, 13\ns_add_u32 s58, s58, s56\ns_mov_b32 s56, {WS['Q']}\ns_mov_b32 s60, {hex(f32bits(QSCALE))}")
        k(f"s_cmp_lt_u32 {s(scb)}, 5\ns_cselect_b32 s56, s56, {WS['KK']}\ns_cselect_b32 s60, s60, 1.0\ns_add_u32 s58, s58, s56\ns_mov_b32 s61, 0")
    if XPOSE:
        xpose_steps(k, AW, [ACC, ACC + 16, ACC + 32, ACC + 48, WB], HF, sw, 8, 5, RING)
        for j in range(64): k(f"v_mov_b32 {v(ACC+j)}, 0")
        k("v_add_u32 v12, 0x10000, v5\nv_add_u32 v13, 0x20000, v5")
    coef_prep(k, vq.after("coef"))
    k("s_waitcnt lgkmcnt(0)\ns_barrier")
    k.stamp(3)
    def wread(st, ts=range(4)):
        for t in ts:
            if XPOSE:
                a_ = (st % RING) * 4096 + t * 1024
                k(f"ds_read_b128 {vr(WB+16*(st%2)+4*t,4)}, {v([5,12,13][a_>>16])} offset:{a_ & 0xffff}")
                L.add(("w", st, t, 1))
                continue
            for u in range(2):
                a_ = (st % RING) * 4096 + u * 1024
                k(f"ds_read_b64_tr_b16 {vr(WB+16*(st%2)+4*t+2*u,2)}, {v(AW+4*(a_>>16)+t)} offset:{a_ & 0xffff}")
                L.add(("w", st, t, u))
    def cread(st, which=(0, 1)):
        for x in which:
            k(f"ds_read_b128 {vr(CB+8*(st%2)+4*x,4)}, v14 offset:{(1280 if x == 0 else 0) + 32*st}"); L.add(("c", st, x))
    def mix(st, j0, j1):
        T = TR + 4 * (st % NR); C1 = CB + 8 * (st % 2); C0 = C1 + 4
        for j in range(j0, j1):
            o = j & 1
            k(f"v_fma_mix_f32 {v(HF+j)}, {v(T+j//2)}, {v(C1+j//2)}, {v(C0+j//2)} op_sel:[{o},{o},{o}] op_sel_hi:[1,1,1]")
    def cvt(st, ds=range(4)):
        for d in ds: k(f"v_cvt_pk_bf16_f32 {v(HB+4*(st%2)+d)}, {v(HF+2*d)}, {v(HF+2*d+1)}")
    def mfma(st, t):
        L.wait(("w", st, t, 1))
        w = vr(WB + 16 * (st % 2) + 4 * t, 4); h = vr(HB + 4 * (st % 2), 4); ac = vr(ACC + 16 * t, 16)
        k(f"v_mfma_f32_32x32x16_bf16 {ac}, {h}, {w}, {ac}" if isv else f"v_mfma_f32_32x32x16_bf16 {ac}, {w}, {h}, {ac}")
    cread(0); wread(0); cread(1)
    L.wait(("c", 0, 1)); vq.wait(("t", 0)); mix(0, 0, 8); cvt(0)
    for st in range(40):
        last = st == 39; more = st + 2 < 40
        if st in (1, 8, 16, 24, 32): probe(k, "p1", (1, 8, 16, 24, 32).index(st))
        mfma(st, 0)
        if st in (5, 34): k("s_barrier")
        if not last:
            wread(st + 1, [0])
            if more: cread(st + 2, [0])
            L.wait(("c", st + 1, 1)); vq.wait(("t", st + 1))
            mix(st + 1, 0, 3)
        mfma(st, 1)
        if not last:
            wread(st + 1, [1])
            if more: cread(st + 2, [1])
            mix(st + 1, 3, 6)
        mfma(st, 2)
        if not last:
            wread(st + 1, [2]); mix(st + 1, 6, 8); cvt(st + 1, [0, 1])
        mfma(st, 3)
        if not last:
            wread(st + 1, [3]); cvt(st + 1, [2, 3])
            n = 0
            while nxt[0] < 40 and nxt[0] <= st + 1 + DEPTH and nxt[0] - NR <= st + 1 and n < 2:
                tload(nxt[0]); nxt[0] += 1; n += 1
    k.stamp(4)
    if not isv:
        for t in range(4):
            r = ACC + 16 * t; d = TR + 8 * t
            for j in range(8): k(f"v_cvt_pk_bf16_f32 {v(d+j)}, {v(r+2*j)}, {v(r+2*j+1)}")
            for j in range(2):
                b = d + 4 * j
                k(f"v_permlane32_swap_b32 {v(b)}, {v(b+2)}\nv_permlane32_swap_b32 {v(b+1)}, {v(b+3)}")
                k(f"buffer_store_dwordx4 {vr(b,4)}, v5, {sr(WSR,4)}, s58 offen offset:{1024*j} {HO}")
            k("s_add_u32 s58, s58, 2048")
    else:
        for t in range(4):
            for g in range(2):
                r = ACC + 16 * t + 8 * g; d = TR + 4 * (2 * t + g)
                for j in range(4): k(f"v_cvt_pk_bf16_f32 {v(d+j)}, {v(r+2*j)}, {v(r+2*j+1)}")
                k(f"buffer_store_dwordx4 {vr(d,4)}, {v(OFF+t)}, {sr(WSR,4)}, s58 offen offset:{640*g} {HO}")

def spare_prefetch(k):
    k(f"v_lshlrev_b32 v146, 7, v1")
    dst = 64
    for ptr, nbytes in ((P_WG, 640 * 3072), (P_WU, 640 * 3072), (P_WO, 640 * 1280), (P_WMOD, 640 * 7680), (P_WD, 1536 * 1280)):
        srd(k, RB, ptr, nbytes)
        for j in range((nbytes // 8192 + 15) // 16):
            k(f"s_add_u32 s50, {s(srb)}, {16*j}\ns_lshl_b32 s50, s50, 13\nbuffer_load_dword {v(dst)}, v146, {sr(RB,4)}, s50 offen")
            dst += 1
    assert dst <= 256

def consumer01(k, after):
    mod_job(k)
    if MOD0: mod_rest0(k)
    k.stamp(1)
    sync01_consumer(k)
    k.stamp(2)
    idle, lv = k.lab("qidle"), k.lab("qv")
    k(f"s_cmp_eq_u32 {s(scb)}, 15\ns_cbranch_scc1 {idle}")
    k(f"s_cmp_ge_u32 {s(scb)}, 10\ns_cbranch_scc1 {lv}")
    qkv_consumer(k, False)
    k(f"s_branch {after}")
    k.label(lv)
    qkv_consumer(k, True)
    k(f"s_branch {after}")
    k.label(idle)
    k("s_barrier\ns_barrier\ns_barrier")
    k(f"s_branch {after}")

def xpose_tail(k):
    if not XPOSE: return
    skip = k.lab("nxt")
    k(f"s_cmp_eq_u32 {s(scb)}, 15\ns_cbranch_scc1 {skip}")
    xpose_addr(k, 40)
    k(f"s_sub_u32 s52, {s(sw)}, 4")
    xpose_steps(k, 40, [48, 64], 100, 52, 4, 2, 5)
    k.label(skip)

WEARLY = int(os.environ.get("WEARLY", "0"))
def early_w(k):
    skip = k.lab("new")
    k(f"s_cmp_eq_u32 {s(scb)}, 15\ns_cbranch_scc1 {skip}")
    wtile_setup(k)
    k(f"s_sub_u32 s59, {s(sw)}, 6")
    wtile_issue_rot(k, WEARLY, 2)
    k.label(skip)

def producer01(k, after):
    lnw, joined, notile, nt2 = k.lab("lnw"), k.lab("pj"), k.lab("nt"), k.lab("nt2")
    k(f"s_cmp_lt_u32 {s(sw)}, 6\ns_cbranch_scc1 {lnw}")
    w7 = k.lab("w7")
    k(f"s_cmp_eq_u32 {s(sw)}, 7\ns_cbranch_scc1 {w7}")
    if WEARLY:
        code_prefetch(k)
        early_w(k)
    else:
        line_prefetch(k, P_WQKV, 640 * 3840, 2, 150)
        code_prefetch(k)
        k("s_waitcnt vmcnt(0)")
    wait_ready(k)
    if NOB1:
        k(f"v_mov_b32 v2, {LRDY}\nv_mov_b32 v3, 1\nds_write_b32 v2, v3")
    k(f"s_branch {joined}")
    k.label(w7)
    if os.environ.get("TLBW", "1") == "1":
        k("v_lshlrev_b32 v146, 21, v1")
        k(f"buffer_load_dword v150, v146, {sr(WSR,4)}, 0 offen sc1")
        pages = [(P_WO, 640 * 1280), (P_WG, 640 * 3072), (P_WU, 640 * 3072), (P_WD, 1536 * 1280)]
        if os.environ.get("TLBO", "0") == "1": pages.append((P_OUT, 2048 * 1280))
        for i, (ptr, nbytes) in enumerate(pages):
            srd(k, RB, ptr, nbytes)
            k(f"buffer_load_dword {v(151+i)}, v146, {sr(RB,4)}, 0 offen")
    if WEARLY: early_w(k)
    if NOB1: k("s_waitcnt vmcnt(0)")
    B2 = os.environ.get("BATCH2", "0")
    if B2 in ("1", "2"):
        if B2 == "1":
            line_prefetch(k, P_WO, 640 * 1280, 1, 150)
            k("s_waitcnt vmcnt(0)")
        else:
            k("s_sleep 8")
            line_prefetch(k, P_WO, 640 * 1280, 1, 150)
        line_prefetch(k, P_WG, 640 * 3072, 1, 154)
        line_prefetch(k, P_WU, 640 * 3072, 1, 155)
        line_prefetch(k, P_WMOD, 640 * 7680, 3, 151)
        line_prefetch(k, P_WD, 1536 * 1280, 1, 156)
    k(f"s_branch {joined}")
    k.label(lnw)
    ln_job(k)
    probe(k, "p0", 2)
    k("s_waitcnt vmcnt(0)")
    probe(k, "p0", 3)
    if NOB1:
        lnd = k.lab("lnd")
        k(f"v_mov_b32 v2, {LLN}\nv_mov_b32 v3, 1\ns_mov_b64 exec, 1\nds_add_rtn_u32 v4, v2, v3\ns_waitcnt lgkmcnt(0)\ns_mov_b64 exec, -1\nv_readfirstlane_b32 s53, v4")
        k(f"s_cmp_lg_u32 s53, 1\ns_cbranch_scc1 {lnd}")
        lds_wait_ready(k)
        k(f"s_lshr_b32 s53, s2, 4\ns_add_u32 s52, s53, {C_X}\ns_add_u32 s53, s53, {G_X}")
        arrive(k, "s52", 16, "s53")
        k.label(lnd)
        k(f"s_branch {nt2}")
    k.label(joined)
    k.stamp(1)
    if NOB1:
        k(f"s_cmp_eq_u32 {s(scb)}, 15\ns_cbranch_scc1 {nt2}")
        wtile_setup(k)
        k(f"s_sub_u32 s59, {s(sw)}, 6")
        wtile_issue_rot(k, 70, 2)
    else:
        k("s_barrier")
        k(f"s_cmp_eq_u32 {s(scb)}, 15\ns_cbranch_scc1 {nt2}")
        wtile_setup(k)
        if WEARLY < 70:
            assert (140 - 2 * WEARLY) % 4 == 0
            k(f"s_sub_u32 s59, {s(sw)}, 4\ns_add_u32 s59, s59, {2*WEARLY}")
            wtile_issue_rot(k, (140 - 2 * WEARLY) // 4, 4)
    k.label(nt2)
    if SIDE == "p1":
        mini_issue(k, 0)
        k("s_waitcnt vmcnt(4)")
    else:
        k("s_waitcnt vmcnt(0)")
    probe(k, "p0", 4)
    k("s_barrier")
    k.stamp(2)
    if XPOSE:
        nx = k.lab("nxp")
        k(f"s_cmp_eq_u32 {s(scb)}, 15\ns_cbranch_scc1 {nx}")
        xpose_addr(k, 40)
        xpose_steps(k, 40, [48, 64, 80, 96], 112, sw, 8, 4, None)
        k.label(nx)
    k("s_barrier")
    k("s_barrier")
    k(f"s_cmp_eq_u32 {s(scb)}, 15\ns_cbranch_scc1 {notile}")
    wtile_setup(k)
    if XPOSE:
        k(f"s_sub_u32 s59, {s(sw)}, 4\ns_lshl_b32 s59, s59, 2\ns_add_u32 s59, s59, 140")
        wtile_issue(k, 0, 4, 1, wrap=True)
        n39 = k.lab("n39")
        k(f"s_cmp_lg_u32 {s(sw)}, 4\ns_cbranch_scc1 {n39}\ns_mov_b32 s59, 156")
        wtile_issue(k, 0, 4, 1, wrap=True)
        k.label(n39)
    else:
        k(f"s_sub_u32 s59, {s(sw)}, 4\ns_mul_i32 s59, s59, 5\ns_add_u32 s59, s59, 140")
        wtile_issue(k, 0, 5, 1, wrap=True)
    k.label(notile)
    if SIDE == "hyb":
        k("s_waitcnt vmcnt(0)")
        xpose_tail(k)
        mod_rest_load(k)
        k("s_barrier")
        k("s_waitcnt vmcnt(0)")
        mod_rest_finish(k)
    elif SIDE == "p1":
        k("s_waitcnt vmcnt(0)")
        xpose_tail(k)
        mini_finish(k, 0)
        mod_rest_load(k)
        mini_issue(k, 1)
        k("s_barrier")
        k("s_waitcnt vmcnt(0)")
        mini_finish(k, 0)
        mod_rest_finish(k)
    else:
        k("s_waitcnt vmcnt(0)")
        xpose_tail(k)
        k("s_barrier")
    k.stamp(4)
    k(f"s_branch {after}")
```

```python
from mcommon import *

XRES = os.environ.get("XRES", "1") == "1"
NTX = os.environ.get("NTX", "nt" if XRES else "")
NT = os.environ.get("NT0", "nt")
WCH = os.environ.get("WCH", "0") == "1" and SIDE == "hyb"
QSCALE = LOG2E * 20 ** -0.5
RING = 35
COEF = RING * 4096
STG = COEF + 2560
assert STG + 16384 <= 163840
srb, scb, scq = 15, 4, 5

def tile_ids(k):
    k(f"""s_and_b32 s48, {s(sIDX)}, 3
    s_lshr_b32 s49, {s(sXCD)}, 1
    s_lshl_b32 s49, s49, 2
    s_add_u32 {s(srb)}, s49, s48
    s_lshr_b32 s48, {s(sIDX)}, 2
    s_and_b32 s49, {s(sXCD)}, 1
    s_lshl_b32 s49, s49, 3
    s_add_u32 {s(scb)}, s49, s48""")
    sdiv(k, 48, scb, 5)
    k(f"s_mul_i32 s48, s48, 5\ns_sub_u32 {s(scq)}, {s(scb)}, s48")

def zero_init(k):
    skip = k.lab("noinit")
    k(f"s_cmp_lg_u32 s2, 255\ns_cbranch_scc1 {skip}")
    k("v_mov_b32 v4, 0\nv_mov_b32 v5, 0\nv_mov_b32 v6, 0\nv_mov_b32 v7, 0\nv_lshlrev_b32 v8, 4, v1")
    k(f"s_mul_i32 s48, {s(sw)}, 11264\ns_add_u32 s48, s48, {WS['ZERO']}")
    for i in range(11):
        k(f"buffer_store_dwordx4 v[4:7], v8, {sr(WSR,4)}, s48 offen {HO}\ns_add_u32 s48, s48, 1024")
    k("s_waitcnt vmcnt(0)\ns_barrier")
    k(f"s_cmp_lg_u32 {s(sw)}, 0\ns_cbranch_scc1 {skip}")
    srd(k, RB, P_DBG, 256)
    k("v_mov_b32 v4, 1\nv_mov_b32 v5, 0\ns_mov_b64 exec, 1")
    k(f"buffer_store_dword v4, v5, {sr(RB,4)}, 0 offen offset:4 {HO}")
    k("s_mov_b64 exec, -1")
    k.label(skip)

def wait_ready(k):
    srd(k, RB, P_DBG, 256)
    loop, done = k.lab("rdy"), k.lab("rdyd")
    k("v_mov_b32 v60, 0\ns_mov_b32 s50, 0")
    k.label(loop)
    k(f"buffer_load_dword v61, v60, {sr(RB,4)}, 0 offen offset:4 sc1\ns_waitcnt vmcnt(0)\nv_readfirstlane_b32 s51, v61")
    k(f"s_cmp_lg_u32 s51, 0\ns_cbranch_scc1 {done}\ns_add_u32 s50, s50, 1\ns_cmp_ge_u32 s50, {SPIN_LIMIT}\ns_cbranch_scc1 {done}\ns_sleep 6\ns_branch {loop}")
    k.label(done)

LCNT = 162304 + 320
MACC = 162304
assert MACC + 512 <= 163840

def mod_load(k, R0, scb_, sks, wv):
    srd(k, RA, P_WMOD, 640 * 7680); srd(k, RB, P_C, 1280)
    k("v_lshrrev_b32 v3, 3, v1\nv_and_b32 v4, 7, v1")
    k(f"s_mul_i32 s54, {s(sks)}, 160\ns_mul_i32 s55, {s(wv)}, 40\ns_add_u32 s54, s54, s55")
    k(f"v_add_u32 v5, s54, v3\ns_movk_i32 s55, 7680\nv_mul_u32_u24 v6, s55, v5\ns_lshl_b32 s56, {s(scb_)}, 7")
    k("v_lshlrev_b32 v7, 4, v4\nv_add3_u32 v6, v6, v7, s56\nv_lshlrev_b32 v8, 1, v5")
    for i in range(5):
        k(f"s_mov_b32 s57, {61440*i}\nbuffer_load_dwordx4 {vr(R0+4*i,4)}, v6, {sr(RA,4)}, s57 offen {NT}")
    for i in range(5):
        k(f"buffer_load_ushort {v(R0+20+i)}, v8, {sr(RB,4)}, 0 offen offset:{16*i}")

def mod_compute(k, R0, T, stmp=48):
    C = R0 + 20
    for j in range(8): k(f"v_mov_b32 {v(T+j)}, 0")
    k(f"s_mov_b32 {s(stmp)}, 0xbfb8aa3b")
    E = T + 8
    for i in range(5): k(f"v_lshlrev_b32 {v(C+i)}, 16, {v(C+i)}\nv_mul_f32 {v(E+i)}, {s(stmp)}, {v(C+i)}\nv_exp_f32 {v(E+i)}, {v(E+i)}")
    for i in range(5): k(f"v_add_f32 {v(E+i)}, 1.0, {v(E+i)}")
    for i in range(5): k(f"v_rcp_f32 {v(E+i)}, {v(E+i)}")
    for i in range(5): k(f"v_mul_f32 {v(C+i)}, {v(C+i)}, {v(E+i)}")
    for i in range(5):
        for d in range(4):
            r = R0 + 4 * i + d
            k(f"v_lshlrev_b32 {v(T+16)}, 16, {v(r)}\nv_and_b32 {v(T+17)}, 0xffff0000, {v(r)}\nv_fmac_f32 {v(T+2*d)}, {v(C+i)}, {v(T+16)}\nv_fmac_f32 {v(T+2*d+1)}, {v(C+i)}, {v(T+17)}")
    k(f"v_and_b32 {v(T+16)}, 8, v1\nv_cmp_ne_u32 vcc, 0, {v(T+16)}")
    for j in range(4):
        k(f"v_cndmask_b32 {v(T+8+j)}, {v(T+4+j)}, {v(T+j)}, vcc\nv_cndmask_b32 {v(T+12+j)}, {v(T+j)}, {v(T+4+j)}, vcc")
    for j in range(4):
        k(f"v_add_f32_dpp {v(T+12+j)}, {v(T+8+j)}, {v(T+12+j)} row_ror:8 row_mask:0xf bank_mask:0xf")
    a = T + 12
    k(f"v_permlane16_swap_b32 {v(a)}, {v(a+2)}\nv_permlane16_swap_b32 {v(a+1)}, {v(a+3)}\nv_add_f32 {v(a)}, {v(a)}, {v(a+2)}\nv_add_f32 {v(a+1)}, {v(a+1)}, {v(a+3)}")
    k(f"v_permlane32_swap_b32 {v(a)}, {v(a+1)}\nv_add_f32 {v(a)}, {v(a)}, {v(a+1)}")
    c, t = T + 16, T + 17
    k(f"""v_and_b32 {v(c)}, 7, v1
    v_lshlrev_b32 {v(c)}, 3, {v(c)}
    v_bfe_u32 {v(t)}, v1, 3, 1
    v_lshl_add_u32 {v(c)}, {v(t)}, 2, {v(c)}
    v_bfe_u32 {v(t)}, v1, 4, 1
    v_lshl_add_u32 {v(c)}, {v(t)}, 1, {v(c)}
    v_lshrrev_b32 {v(t)}, 5, v1
    v_add_u32 {v(c)}, {v(c)}, {v(t)}""")

def macc_init(k):
    skip = k.lab("nomacc")
    k(f"s_cmp_lg_u32 {s(sw)}, 0\ns_cbranch_scc1 {skip}")
    k(f"v_mov_b32 v2, 0\nv_lshlrev_b32 v3, 2, v1\nv_add_u32 v3, {MACC}, v3\nds_write_b32 v3, v2\nds_write_b32 v3, v2 offset:256\ns_waitcnt lgkmcnt(0)")
    k.label(skip)
    k("s_barrier")

NOB1 = os.environ.get("NOB1", "0") == "1"
LRDY, LLN = MACC + 328, MACC + 332
def lds_wait_ready(k):
    loop, done = k.lab("lrdy"), k.lab("lrdyd")
    k(f"v_mov_b32 v2, {LRDY}\ns_mov_b32 s50, 0")
    k.label(loop)
    k(f"ds_read_b32 v3, v2\ns_waitcnt lgkmcnt(0)\nv_readfirstlane_b32 s51, v3\ns_cmp_lg_u32 s51, 0\ns_cbranch_scc1 {done}")
    k(f"s_add_u32 s50, s50, 1\ns_cmp_ge_u32 s50, {SPIN_LIMIT*20}\ns_cbranch_scc1 {done}\ns_sleep 1\ns_branch {loop}")
    k.label(done)

def mod_job(k):
    skip = k.lab("nomod")
    k(f"s_cmp_ge_u32 s2, 80\ns_cbranch_scc1 {skip}")
    sdiv(k, 52, 2, 20)
    k("s_mul_i32 s53, s52, 20\ns_sub_u32 s53, s2, s53")
    mod_load(k, 16, 53, 52, sw)
    k("s_waitcnt vmcnt(0)")
    probe(k, "p0", 1)
    mod_compute(k, 16, 44)
    k(f"v_lshlrev_b32 v60, 2, v60\nv_add_u32 v60, {MACC}, v60\nds_add_f32 v60, v56\nv_mov_b32 v61, {MACC+256}\nv_mov_b32 v62, 1\ns_waitcnt lgkmcnt(0)")
    k("s_mov_b64 exec, 1\nds_add_rtn_u32 v63, v61, v62\ns_waitcnt lgkmcnt(0)\ns_mov_b64 exec, -1\nv_readfirstlane_b32 s57, v63")
    probe(k, "p0", 2)
    k(f"s_cmp_lg_u32 s57, 3\ns_cbranch_scc1 {skip}")
    k(f"v_lshlrev_b32 v60, 2, v1\nv_add_u32 v61, {MACC}, v60\nds_read_b32 v62, v61")
    k(f"s_mul_i32 s56, s52, 5120\ns_lshl_b32 s57, s53, 8\ns_add_u32 s56, s56, s57\ns_add_u32 s56, s56, {WS['MODP']}\ns_waitcnt lgkmcnt(0)")
    k(f"buffer_store_dword v62, v60, {sr(WSR,4)}, s56 offen {HO}")
    if NOB1:
        k("s_waitcnt vmcnt(0)")
        lds_wait_ready(k)
        k(f"s_lshr_b32 s53, s2, 4\ns_add_u32 s52, s53, {C_M}")
        arrive(k, "s52", 16, G_M, 8, word="s53")
    k.label(skip)

MOD0 = os.environ.get("MOD0", "0") == "1"
def mod_rest0(k):
    skip = k.lab("nom0")
    k(f"s_cmp_lt_u32 s2, 80\ns_cbranch_scc1 {skip}\ns_cmp_ge_u32 s2, 240\ns_cbranch_scc1 {skip}")
    k("s_sub_u32 s53, s2, 80")
    sdiv(k, 52, 53, 40)
    k(f"s_mul_i32 s54, s52, 40\ns_sub_u32 s53, s53, s54\ns_add_u32 s53, s53, 20")
    mod_load(k, 16, 53, 52, sw)
    k("s_waitcnt vmcnt(0)")
    mod_compute(k, 16, 44)
    k.label(skip)
def mod_rest0_atomic(k):
    skip = k.lab("nom1")
    k(f"s_cmp_lt_u32 s2, 80\ns_cbranch_scc1 {skip}\ns_cmp_ge_u32 s2, 240\ns_cbranch_scc1 {skip}")
    k("s_sub_u32 s49, s2, 80")
    sdiv(k, 50, 49, 40)
    k(f"s_mul_i32 s50, s50, 40\ns_sub_u32 s49, s49, s50\ns_add_u32 s49, s49, 20\ns_lshl_b32 s49, s49, 8\ns_add_u32 s49, s49, {WS['MOD']}")
    k(f"v_lshlrev_b32 v60, 2, v60\nbuffer_atomic_add_f32 v56, v60, {sr(WSR,4)}, s49 offen")
    k.label(skip)

MR, MT = 60, 28
def mod_rest_load(k):
    if os.environ.get("NOSIDE"): return
    skip = k.lab("nomr")
    k(f"s_cmp_lt_u32 s2, 80\ns_cbranch_scc1 {skip}\ns_cmp_ge_u32 s2, 240\ns_cbranch_scc1 {skip}")
    k("s_sub_u32 s53, s2, 80")
    sdiv(k, 52, 53, 40)
    k(f"s_mul_i32 s54, s52, 40\ns_sub_u32 s53, s53, s54\ns_add_u32 s53, s53, 20\ns_sub_u32 s68, {s(sw)}, 4")
    mod_load(k, MR, 53, 52, 68)
    k.label(skip)
def mod_rest_finish(k):
    if os.environ.get("NOSIDE"): return
    skip = k.lab("nomf")
    k(f"s_cmp_lt_u32 s2, 80\ns_cbranch_scc1 {skip}\ns_cmp_ge_u32 s2, 240\ns_cbranch_scc1 {skip}")
    mod_compute(k, MR, MT)
    k("s_sub_u32 s49, s2, 80")
    sdiv(k, 50, 49, 40)
    k(f"s_mul_i32 s50, s50, 40\ns_sub_u32 s49, s49, s50\ns_add_u32 s49, s49, 20\ns_lshl_b32 s49, s49, 8\ns_add_u32 s49, s49, {WS['MOD']}")
    k(f"v_lshlrev_b32 {v(MT+16)}, 2, {v(MT+16)}")
    k(f"buffer_atomic_add_f32 {v(MT+12)}, {v(MT+16)}, {sr(WSR,4)}, s49 offen")
    k.label(skip)

def red16(k, r):
    red8(k, r)
    k(f"v_add_f32_dpp {v(r)}, {v(r)}, {v(r)} row_mirror row_mask:0xf bank_mask:0xf")

def ln_job(k):
    L, Fq, N = 8, 48, 5
    srd(k, RA, P_X, 2048 * 1280)
    k("v_lshrrev_b32 v3, 4, v1\nv_and_b32 v4, 15, v1")
    k(f"s_lshl_b32 s52, s2, 3\ns_sub_u32 s53, {s(sw)}, 4\ns_lshl_b32 s53, s53, 2\ns_add_u32 s52, s52, s53")
    k("v_add_u32 v6, s52, v3\ns_movk_i32 s54, 1280\nv_mul_u32_u24 v6, s54, v6\nv_lshl_add_u32 v6, v4, 4, v6")
    for i in range(N): k(f"buffer_load_dwordx4 {vr(L+4*i,4)}, v6, {sr(RA,4)}, 0 offen offset:{256*i} {NTX}")
    k("v_mov_b32 v128, 0\nv_mov_b32 v129, 0\nv_mov_b32 v132, 0\nv_mov_b32 v133, 0")
    if STAMPS and PROBE == "p0":
        k("s_waitcnt vmcnt(0)")
        probe(k, "p0", 1)
    for i in range(N):
        k(f"s_waitcnt vmcnt({N-1-i})")
        for d in range(4):
            r = L + 4 * i + d; f = Fq + 8 * i + 2 * d
            k(f"v_lshlrev_b32 {v(f)}, 16, {v(r)}\nv_and_b32 {v(f+1)}, 0xffff0000, {v(r)}")
        for d in range(4):
            f = Fq + 8 * i + 2 * d
            k(f"v_pk_add_f32 v[128:129], v[128:129], {vr(f,2)}")
    k("v_add_f32 v128, v128, v129")
    red16(k, 128)
    k(f"v_mul_f32 v130, {hex(f32bits(-1.0/640))}, v128\nv_mov_b32 v131, v130")
    for j in range(0, 8 * N, 2): k(f"v_pk_add_f32 {vr(Fq+j,2)}, {vr(Fq+j,2)}, v[130:131]")
    for j in range(0, 8 * N, 2): k(f"v_pk_fma_f32 v[132:133], {vr(Fq+j,2)}, {vr(Fq+j,2)}, v[132:133]")
    k("v_add_f32 v132, v132, v133")
    red16(k, 132)
    k(f"v_mov_b32 v134, {hex(f32bits(1e-5))}\nv_mov_b32 v135, {hex(f32bits(1.0/640))}\nv_fmac_f32 v134, v132, v135\nv_mov_b32 v137, v134\nv_rsq_f32 v134, v134\ns_nop 0\nv_mov_b32 v135, v134")
    if XRES:
        k(f"v_mul_f32 v137, v137, v134\nv_sub_f32 v136, 0, v130\nv_add_u32 v138, s52, v3\nv_lshlrev_b32 v138, 3, v138\ns_mov_b32 s53, {WS['LNST']}")
        k("v_cmp_eq_u32 vcc, 0, v4\ns_and_saveexec_b64 s[54:55], vcc")
        k(f"buffer_store_dwordx2 v[136:137], v138, {sr(WSR,4)}, s53 offen {HO}\ns_mov_b64 exec, s[54:55]")
    k(f"s_lshr_b32 s53, s52, 5\ns_mul_i32 s53, s53, 40960\ns_and_b32 s52, s52, 31\ns_lshl_b32 s52, s52, 4\ns_add_u32 s52, s52, s53\ns_add_u32 s52, s52, {WS['XN']}")
    k("v_lshlrev_b32 v6, 9, v4\nv_lshl_add_u32 v6, v3, 4, v6")
    for i in range(N):
        for d in range(4):
            f = Fq + 8 * i + 2 * d
            k(f"v_pk_mul_f32 {vr(f,2)}, {vr(f,2)}, v[134:135]")
        for d in range(4):
            f = Fq + 8 * i + 2 * d
            k(f"v_cvt_pk_f16_f32 {v(L+4*i+d)}, {v(f)}, {v(f+1)}")
        k(f"buffer_store_dwordx4 {vr(L+4*i,4)}, v6, {sr(WSR,4)}, s52 offen {HO}\ns_add_u32 s52, s52, 8192")

def line_prefetch(k, ptr, nbytes, nper, dst, first=0):
    srd(k, RB, ptr, nbytes)
    k("v_lshlrev_b32 v146, 7, v1")
    for j in range(nper):
        k(f"s_add_u32 s50, s2, {first + 256*j}\ns_lshl_b32 s50, s50, 13\nbuffer_load_dword {v(dst+j)}, v146, {sr(RB,4)}, s50 offen")

def code_prefetch(k):
    here, skip = k.lab("pc"), k.lab("nopc")
    k(f"s_cmp_ge_u32 {s(sIDX)}, 8\ns_cbranch_scc1 {skip}")
    k("s_getpc_b64 s[48:49]")
    k.label(here)
    k(f"s_sub_u32 s48, s48, {here}-{k.name}\ns_subb_u32 s49, s49, 0")
    k(f"s_lshl_b32 s50, {s(sIDX)}, 13\nv_lshlrev_b32 v144, 7, v1\nv_add_u32 v144, s50, v144")
    k(f"s_mov_b32 s50, CODE_END-{k.name}-4\nv_min_u32 v144, s50, v144")
    k("global_load_dword v148, v144, s[48:49]")
    k.label(skip)

def wtile_setup(k):
    srd(k, RA, P_WQKV, 640 * 3840)
    k("""v_lshrrev_b32 v141, 4, v1
    v_bfe_u32 v142, v1, 2, 2
    """ + ("v_xor_b32 v142, v142, v141" if not os.environ.get("NOSWZ") else "s_nop 0") + """
    v_lshlrev_b32 v142, 6, v142
    v_and_b32 v143, 3, v1
    v_lshl_add_u32 v142, v143, 4, v142
    s_movk_i32 s52, 3840
    v_mad_u32_u24 v140, v141, s52, v142""")
    k(f"s_lshl_b32 s58, {s(scb)}, 8")

def wtile_issue(k, first, count, stride, wrap=False):
    loop = k.lab("wdma")
    k(f"s_mul_i32 s60, s59, 15360\ns_add_u32 s60, s60, s58\ns_lshl_b32 s61, s59, 10")
    if wrap: k(f"s_sub_u32 s61, s61, {RING*4096}")
    k(f"s_mov_b32 s62, {count}")
    k.label(loop)
    k(f"s_mov_b32 m0, s61\ns_add_u32 s61, s61, {stride*1024}\nbuffer_load_dwordx4 v140, {sr(RA,4)}, s60 offen lds")
    k(f"s_add_u32 s60, s60, {stride*15360}\ns_sub_u32 s62, s62, 1\ns_cmp_lg_u32 s62, 0\ns_cbranch_scc1 {loop}")

def wtile_issue_rot(k, count, stride):
    loop = k.lab("wrot")
    NP = 4 * RING
    k(f"s_mul_i32 s60, {s(srb)}, {0 if WCH else int(os.environ.get('ROTW', '9'))}\ns_add_u32 s59, s59, s60\ns_mov_b32 s62, {count}")
    k.label(loop)
    k(f"s_cmp_ge_u32 s59, {NP}\ns_cselect_b32 s60, {NP}, 0\ns_sub_u32 s59, s59, s60")
    k(f"s_lshl_b32 m0, s59, 10\ns_mul_i32 s60, s59, 15360\ns_add_u32 s60, s60, s58\nbuffer_load_dwordx4 v140, {sr(RA,4)}, s60 offen lds")
    k(f"s_waitcnt vmcnt({int(os.environ.get('WINFL', '40'))})")
    k(f"s_add_u32 s59, s59, {stride}\ns_sub_u32 s62, s62, 1\ns_cmp_lg_u32 s62, 0\ns_cbranch_scc1 {loop}")

N_G, N_U, N_O, N_D = 480, 480, 200, 480
sJ = 63
def mini_issue(k, rnd):
    if os.environ.get("NOSIDE"):
        k("s_mov_b32 s69, 0"); return
    p = 52
    nojob, go = k.lab("mjno"), k.lab("mjgo")
    k(f"s_sub_u32 s52, {s(sw)}, 4\ns_lshl_b32 {s(sJ)}, s2, 2\ns_add_u32 {s(sJ)}, {s(sJ)}, s52\ns_add_u32 {s(sJ)}, {s(sJ)}, {1024*rnd}")
    k(f"s_lshl_b32 s53, s52, 12\ns_add_u32 s53, s53, {STG}")
    k(f"s_mov_b32 s69, 0\ns_cmp_ge_u32 {s(sJ)}, {N_G+N_U+N_O+N_D}\ns_cbranch_scc1 {nojob}")
    labs = [k.lab("mj") for _ in range(4)]
    lim = 0
    for n, lab in zip((N_G, N_U, N_O), labs):
        lim += n
        k(f"s_cmp_lt_u32 {s(sJ)}, {lim}\ns_cbranch_scc1 {lab}")
    k(f"s_branch {labs[3]}")
    types = [("g", P_WG, 640 * 3072, 3072, 12, 0, True, 3, 40, 6, 0, "WGU"), ("u", P_WU, 640 * 3072, 3072, 12, N_G, True, 3, 40, 6, 3, "WGU"),
             ("o", P_WO, 640 * 1280, 1280, 10, N_G + N_U, False, 5, 20, 5, 0, "WO"), ("d", P_WD, 1536 * 1280, 1280, 10, N_G + N_U + N_O, False, 5, 48, 5, 0, "WD")]
    for (name, ptr, nbytes, stride, ncb, start, wide, dv, NS, NT, tadd, base), lab in zip(types, labs):
        k.label(lab)
        srd(k, RB, ptr, nbytes)
        k(f"s_sub_u32 s54, {s(sJ)}, {start}")
        sdiv(k, 55, 54, ncb)
        k(f"s_mul_i32 s56, s55, {ncb}\ns_sub_u32 s54, s54, s56")
        for tt in range(4):
            k(f"s_lshl_b32 s56, s54, 2\ns_add_u32 s56, s56, {tt}")
            sdiv(k, 57, 56, dv)
            k(f"s_mul_i32 {s(64+tt)}, s57, {dv}\ns_sub_u32 s56, s56, {s(64+tt)}\ns_mul_i32 s57, s57, {NS}\ns_add_u32 s57, s57, s55")
            k(f"s_mul_i32 s57, s57, {NT}\ns_add_u32 s57, s57, s56\ns_lshl_b32 s57, s57, 10\ns_add_u32 {s(64+tt)}, s57, {WS[base] + tadd*1024}")
        if wide:
            k(f"""s_mov_b32 s69, 1
            s_lshl_b32 s55, s55, 4
            s_lshl_b32 s54, s54, 8
            v_lshrrev_b32 v8, 4, v1
            v_and_b32 v9, 15, v1
            v_lshl_add_u32 v9, v9, 4, s54""")
            for i in range(4): k(f"v_add_u32 {v(10+i)}, s55, v8\nv_add_u32 {v(10+i)}, {4*i}, {v(10+i)}")
        else:
            k(f"""s_mov_b32 s69, 2
            s_lshl_b32 s55, s55, 5
            s_lshl_b32 s54, s54, 7
            v_lshrrev_b32 v8, 3, v1
            v_and_b32 v9, 7, v1
            v_lshl_add_u32 v9, v9, 4, s54""")
            for i in range(4): k(f"v_add_u32 {v(10+i)}, s55, v8\nv_add_u32 {v(10+i)}, {8*i}, {v(10+i)}")
            if name == "o":
                k("s_movk_i32 s56, 1639")
                for i in range(4):
                    r = 10 + i
                    k(f"""v_mul_u32_u24 v14, s56, {v(r)}
                    v_lshrrev_b32 v14, 16, v14
                    v_mul_u32_u24 v14, 40, v14
                    v_sub_u32 v14, {v(r)}, v14
                    v_mov_b32 v15, 0
                    v_cmp_le_u32 vcc, 16, v14
                    v_cndmask_b32_e64 v15, v15, 4, vcc
                    v_cmp_le_u32 vcc, 32, v14
                    v_cndmask_b32_e64 v15, v15, -16, vcc
                    v_cmp_le_u32 vcc, 36, v14
                    v_cndmask_b32_e64 v15, v15, 0, vcc
                    v_add_u32 {v(r)}, {v(r)}, v15""")
        k(f"s_movk_i32 s56, {stride}")
        for i in range(4): k(f"v_mad_u32_u24 {v(10+i)}, {v(10+i)}, s56, v9")
        k(f"s_branch {go}")
    k.label(go)
    for i in range(4):
        k(f"s_add_u32 m0, s53, {1024*i}\ns_nop 0\nbuffer_load_dwordx4 {v(10+i)}, {sr(RB,4)}, 0 offen lds")
    k.label(nojob)

def mini_finish(k, later):
    done, narrow, rd = k.lab("mfd"), k.lab("mfn"), k.lab("mfr")
    k(f"s_cmp_eq_u32 s69, 0\ns_cbranch_scc1 {done}")
    k(f"s_waitcnt vmcnt({later})")
    k("v_and_b32 v8, 15, v1\nv_lshrrev_b32 v8, 2, v8\nv_and_b32 v9, 3, v1")
    k(f"s_cmp_eq_u32 s69, 2\ns_cbranch_scc1 {narrow}")
    k("""v_lshrrev_b32 v16, 5, v1
    v_lshl_add_u32 v16, v16, 3, v8
    v_lshlrev_b32 v16, 8, v16
    v_bfe_u32 v17, v1, 4, 1
    v_lshlrev_b32 v17, 5, v17
    v_lshl_add_u32 v17, v9, 3, v17
    v_add3_u32 v16, v16, v17, s53""")
    for tt in range(4):
        k(f"ds_read_b64_tr_b16 {vr(20+4*tt,2)}, v16 offset:{64*tt}\nds_read_b64_tr_b16 {vr(22+4*tt,2)}, v16 offset:{64*tt+1024}")
    k(f"s_branch {rd}")
    k.label(narrow)
    k("""v_lshrrev_b32 v16, 4, v1
    v_lshl_add_u32 v16, v16, 3, v8
    v_lshlrev_b32 v16, 7, v16
    v_lshl_add_u32 v16, v9, 3, v16
    v_add_u32 v16, s53, v16""")
    for tt in range(4):
        k(f"ds_read_b64_tr_b16 {vr(20+4*tt,2)}, v16 offset:{32*tt}\nds_read_b64_tr_b16 {vr(22+4*tt,2)}, v16 offset:{32*tt+512}")
    k.label(rd)
    k("v_lshlrev_b32 v17, 4, v1")
    for tt in range(4):
        k(f"s_waitcnt lgkmcnt({6-2*tt})\nbuffer_store_dwordx4 {vr(20+4*tt,4)}, v17, {sr(WSR,4)}, {s(64+tt)} offen {HO}")
    k.label(done)

def sync01_consumer(k):
    nw, n1 = k.lab("s01w"), k.lab("s01w1")
    if NOB1:
        k(f"s_cmp_lg_u32 {s(sw)}, 0\ns_cbranch_scc1 {nw}")
        lds_wait_ready(k)
    else:
        k("s_waitcnt vmcnt(0)\ns_barrier")
        probe(k, "p0", 4)
        k(f"s_cmp_lg_u32 {s(sw)}, 1\ns_cbranch_scc1 {n1}\ns_cmp_ge_u32 s2, 80\ns_cbranch_scc1 {n1}")
        k(f"s_lshr_b32 s53, s2, 4\ns_add_u32 s52, s53, {C_M}")
        arrive(k, "s52", 16, G_M, 8, word="s53")
        k.label(n1)
        k(f"s_cmp_lg_u32 {s(sw)}, 0\ns_cbranch_scc1 {nw}")
        probe(k, "p0", 3)
        k(f"s_lshr_b32 s53, s2, 4\ns_add_u32 s52, s53, {C_X}\ns_add_u32 s53, s53, {G_X}")
        arrive(k, "s52", 16, "s53")
    if os.environ.get("SPARE", "0") == "1":
        nsp = k.lab("nsp0")
        k(f"s_cmp_lg_u32 {s(scb)}, 15\ns_cbranch_scc1 {nsp}")
        spare_prefetch(k)
        k(f"s_branch {nw}")
        k.label(nsp)
    k(f"s_add_u32 s52, {s(sXCD)}, {G_M}\ns_lshl_b32 s52, s52, 8\ns_add_u32 s54, {s(srb)}, {G_X}\ns_lshl_b32 s54, s54, 8")
    k("v_lshlrev_b32 v5, 2, v1\nv_add_u32 v5, s52, v5\nv_mov_b32 v7, s54\nv_cmp_gt_u32 vcc, 5, v1\nv_cndmask_b32 v5, v7, v5, vcc\nv_mov_b32 v6, 1")
    if not os.environ.get("NOPOLL01"): poll(k, 5, 6)
    k.label(nw)
    if MOD0: mod_rest0_atomic(k)
    k("s_barrier")

CL = 224
def coef_load(k):
    k(f"v_lshlrev_b32 v9, 4, v0\nv_and_b32 v15, 15, v1\nv_lshlrev_b32 v15, 4, v15\ns_lshl_b32 s55, {s(sw)}, 8\ns_add_u32 s55, s55, 4096\nv_add_u32 v15, s55, v15")
    for ks in range(4):
        k(f"s_mov_b32 s52, {WS['MODP'] + ks*5120}\nbuffer_load_dwordx4 {vr(CL+4*ks,4)}, v9, {sr(WSR,4)}, s52 offen {HL}\nbuffer_load_dwordx4 {vr(CL+16+4*ks,4)}, v15, {sr(WSR,4)}, s52 offen {HL}")
def coef_prep(k, later):
    k(f"s_waitcnt vmcnt({later})")
    k("v_cmp_le_u32 vcc, 160, v0\nv_mov_b32 v6, 0\nv_cndmask_b32_e64 v6, v6, 1.0, vcc")
    for b in (CL, CL + 16):
        for j in range(4):
            k(f"v_add_f32 {v(b+j)}, {v(b+j)}, {v(b+4+j)}\nv_add_f32 {v(b+8+j)}, {v(b+8+j)}, {v(b+12+j)}")
        for j in range(4):
            k(f"v_add_f32 {v(b+j)}, {v(b+j)}, {v(b+8+j)}")
    for j in range(4): k(f"v_add_f32 {v(CL+j)}, {v(CL+j)}, v6\nv_add_f32 {v(CL+16+j)}, 1.0, {v(CL+16+j)}")
    for j in range(4): k(f"v_mul_f32 {v(CL+j)}, s60, {v(CL+j)}\nv_mul_f32 {v(CL+16+j)}, s60, {v(CL+16+j)}")
    k(f"v_cvt_pk_f16_f32 {v(CL+4)}, {v(CL)}, {v(CL+1)}\nv_cvt_pk_f16_f32 {v(CL+5)}, {v(CL+2)}, {v(CL+3)}\nv_lshlrev_b32 v7, 3, v0\nv_add_u32 v7, {COEF}, v7\nds_write_b64 v7, {vr(CL+4,2)}")
    k(f"v_cvt_pk_f16_f32 {v(CL+20)}, {v(CL+16)}, {v(CL+17)}\nv_cvt_pk_f16_f32 {v(CL+21)}, {v(CL+18)}, {v(CL+19)}\nv_lshrrev_b32 v7, 1, v15\nv_add_u32 v7, {COEF}, v7\nds_write_b64 v7, {vr(CL+20,2)}")

XPOSE = os.environ.get("XPOSE", "0") == "1"
def xpose_addr(k, dst):
    k(f"""v_and_b32 v8, 15, v1
    v_lshrrev_b32 v8, 2, v8
    v_lshrrev_b32 v9, 5, v1
    v_lshl_add_u32 v9, v9, 3, v8
    v_lshlrev_b32 v9, 8, v9
    v_bfe_u32 v10, v1, 4, 1
    v_lshl_add_u32 v9, v10, 5, v9
    v_and_b32 v10, 3, v1
    v_lshl_add_u32 v9, v10, 3, v9""")
    for t in range(4): k(f"v_xor_b32 v10, {t}, v8\nv_lshl_add_u32 {v(dst+t)}, v10, 6, v9")
def xpose_steps(k, base, data, tmp, sfirst, stride, count, limit):
    def guard(j):
        if limit is None or j < count - 1: return None
        skip = k.lab("xps")
        k(f"s_add_u32 s48, {s(sfirst)}, {stride*j}\ns_cmp_ge_u32 s48, {limit}\ns_cbranch_scc1 {skip}")
        return skip
    for j in range(count):
        skip = guard(j)
        k(f"s_add_u32 s48, {s(sfirst)}, {stride*j}\ns_lshl_b32 s48, s48, 12")
        for t in range(4): k(f"v_add_u32 {v(tmp+t)}, s48, {v(base+t)}")
        for t in range(4):
            k(f"ds_read_b64_tr_b16 {vr(data[j]+4*t,2)}, {v(tmp+t)}\nds_read_b64_tr_b16 {vr(data[j]+4*t+2,2)}, {v(tmp+t)} offset:1024")
        if skip: k.label(skip)
    k("s_waitcnt lgkmcnt(0)")
    for j in range(count):
        skip = guard(j)
        k(f"s_add_u32 s48, {s(sfirst)}, {stride*j}\ns_lshl_b32 s48, s48, 12\nv_lshlrev_b32 {v(tmp+4)}, 4, v1\nv_add_u32 {v(tmp+4)}, s48, {v(tmp+4)}")
        for t in range(4): k(f"ds_write_b128 {v(tmp+4)}, {vr(data[j]+4*t,4)} offset:{1024*t}")
        if skip: k.label(skip)
    k("s_waitcnt lgkmcnt(0)")

ACC, TR, WB, CB, HF, HB, AW, OFF = 16, 80, 144, 176, 192, 200, 208, 220
NR, PRE, DEPTH = 16, int(os.environ.get('PRE1', 4)), int(os.environ.get('DEP1', 10))

def qkv_consumer(k, isv):
    k("v_and_b32 v3, 31, v1\nv_lshrrev_b32 v4, 5, v1\nv_lshlrev_b32 v5, 4, v1")
    k(f"s_lshl_b32 s53, {s(srb)}, 2\ns_add_u32 s53, s53, {s(sw)}")
    k(f"s_mul_i32 s54, s53, 40960\ns_add_u32 s54, s54, {WS['XN']}")
    vq = Q(k, "vmcnt"); L = Q(k, "lgkmcnt")
    coef_load(k)
    for j in range(7): vq.add(("coef", j))
    vq.add("coef")
    def tload(st):
        if st % 4 == 0: k(f"s_add_u32 s55, s54, {st*1024}")
        k(f"buffer_load_dwordx4 {vr(TR+4*(st%NR),4)}, v5, {sr(WSR,4)}, s55 offen offset:{1024*(st%4)} {HL}"); vq.add(("t", st))
    for st in range(PRE): tload(st)
    nxt = [PRE]
    if not XPOSE:
        for j in range(64): k(f"v_mov_b32 {v(ACC+j)}, 0")
    k("""v_and_b32 v8, 15, v1
    v_lshrrev_b32 v8, 2, v8
    v_lshl_add_u32 v9, v4, 3, v8
    v_lshlrev_b32 v9, 8, v9
    v_bfe_u32 v10, v1, 4, 1
    v_lshl_add_u32 v9, v10, 5, v9
    v_and_b32 v10, 3, v1
    v_lshl_add_u32 v9, v10, 3, v9""")
    for t in range(4):
        k(f"v_xor_b32 v10, {t}, v8\nv_lshl_add_u32 {v(AW+t)}, v10, 6, v9")
        k(f"v_add_u32 {v(AW+4+t)}, 0x10000, {v(AW+t)}\nv_add_u32 {v(AW+8+t)}, 0x20000, {v(AW+t)}")
    k(f"v_lshlrev_b32 v14, 4, v4\nv_add_u32 v14, {COEF}, v14")
    if isv:
        k(f"s_lshl_b32 s56, {s(scq)}, 7\nv_add_u32 v6, s56, v3\ns_movk_i32 s56, 3277\ns_mov_b32 s57, 81920\nv_mul_u32_u24 v7, 0x140, v4")
        for t in range(4):
            k(f"""v_add_u32 v9, {32*t}, v6
            v_mul_u32_u24 v10, s56, v9
            v_lshrrev_b32 v10, 16, v10
            v_mad_i32_i24 v9, v10, -16, v9
            v_mad_i32_i24 v9, v10, -4, v9
            v_lshl_add_u32 v9, v9, 4, v7
            v_mad_u32_u24 {v(OFF+t)}, v10, s57, v9""")
        k(f"s_lshl_b32 s58, s53, 1\ns_mul_i32 s58, s58, 640\ns_add_u32 s58, s58, {WS['V']}\ns_mov_b32 s60, 1.0")
    else:
        k(f"s_mul_i32 s58, s53, 40960\ns_lshl_b32 s56, {s(scq)}, 13\ns_add_u32 s58, s58, s56\ns_mov_b32 s56, {WS['Q']}\ns_mov_b32 s60, {hex(f32bits(QSCALE))}")
        k(f"s_cmp_lt_u32 {s(scb)}, 5\ns_cselect_b32 s56, s56, {WS['KK']}\ns_cselect_b32 s60, s60, 1.0\ns_add_u32 s58, s58, s56\ns_mov_b32 s61, 0")
    if XPOSE:
        xpose_steps(k, AW, [ACC, ACC + 16, ACC + 32, ACC + 48, WB], HF, sw, 8, 5, RING)
        for j in range(64): k(f"v_mov_b32 {v(ACC+j)}, 0")
        k("v_add_u32 v12, 0x10000, v5\nv_add_u32 v13, 0x20000, v5")
    coef_prep(k, vq.after("coef"))
    k("s_waitcnt lgkmcnt(0)\ns_barrier")
    k.stamp(3)
    def wread(st, ts=range(4)):
        for t in ts:
            if XPOSE:
                a_ = (st % RING) * 4096 + t * 1024
                k(f"ds_read_b128 {vr(WB+16*(st%2)+4*t,4)}, {v([5,12,13][a_>>16])} offset:{a_ & 0xffff}")
                L.add(("w", st, t, 1))
                continue
            for u in range(2):
                a_ = (st % RING) * 4096 + u * 1024
                k(f"ds_read_b64_tr_b16 {vr(WB+16*(st%2)+4*t+2*u,2)}, {v(AW+4*(a_>>16)+t)} offset:{a_ & 0xffff}")
                L.add(("w", st, t, u))
    def cread(st, which=(0, 1)):
        for x in which:
            k(f"ds_read_b128 {vr(CB+8*(st%2)+4*x,4)}, v14 offset:{(1280 if x == 0 else 0) + 32*st}"); L.add(("c", st, x))
    def mix(st, j0, j1):
        T = TR + 4 * (st % NR); C1 = CB + 8 * (st % 2); C0 = C1 + 4
        for j in range(j0, j1):
            o = j & 1
            k(f"v_fma_mix_f32 {v(HF+j)}, {v(T+j//2)}, {v(C1+j//2)}, {v(C0+j//2)} op_sel:[{o},{o},{o}] op_sel_hi:[1,1,1]")
    def cvt(st, ds=range(4)):
        for d in ds: k(f"v_cvt_pk_bf16_f32 {v(HB+4*(st%2)+d)}, {v(HF+2*d)}, {v(HF+2*d+1)}")
    def mfma(st, t):
        L.wait(("w", st, t, 1))
        w = vr(WB + 16 * (st % 2) + 4 * t, 4); h = vr(HB + 4 * (st % 2), 4); ac = vr(ACC + 16 * t, 16)
        k(f"v_mfma_f32_32x32x16_bf16 {ac}, {h}, {w}, {ac}" if isv else f"v_mfma_f32_32x32x16_bf16 {ac}, {w}, {h}, {ac}")
    cread(0); wread(0); cread(1)
    L.wait(("c", 0, 1)); vq.wait(("t", 0)); mix(0, 0, 8); cvt(0)
    for st in range(40):
        last = st == 39; more = st + 2 < 40
        if st in (1, 8, 16, 24, 32): probe(k, "p1", (1, 8, 16, 24, 32).index(st))
        mfma(st, 0)
        if st in ((5, 11, 23, 34) if WCH else (5, 34)): k("s_barrier")
        if not last:
            wread(st + 1, [0])
            if more: cread(st + 2, [0])
            L.wait(("c", st + 1, 1)); vq.wait(("t", st + 1))
            mix(st + 1, 0, 3)
        mfma(st, 1)
        if not last:
            wread(st + 1, [1])
            if more: cread(st + 2, [1])
            mix(st + 1, 3, 6)
        mfma(st, 2)
        if not last:
            wread(st + 1, [2]); mix(st + 1, 6, 8); cvt(st + 1, [0, 1])
        mfma(st, 3)
        if not last:
            wread(st + 1, [3]); cvt(st + 1, [2, 3])
            n = 0
            while nxt[0] < 40 and nxt[0] <= st + 1 + DEPTH and nxt[0] - NR <= st + 1 and n < 2:
                tload(nxt[0]); nxt[0] += 1; n += 1
    k.stamp(4)
    if not isv:
        for t in range(4):
            r = ACC + 16 * t; d = TR + 8 * t
            for j in range(8): k(f"v_cvt_pk_bf16_f32 {v(d+j)}, {v(r+2*j)}, {v(r+2*j+1)}")
            for j in range(2):
                b = d + 4 * j
                k(f"v_permlane32_swap_b32 {v(b)}, {v(b+2)}\nv_permlane32_swap_b32 {v(b+1)}, {v(b+3)}")
                k(f"buffer_store_dwordx4 {vr(b,4)}, v5, {sr(WSR,4)}, s58 offen offset:{1024*j} {HO}")
            k("s_add_u32 s58, s58, 2048")
    else:
        for t in range(4):
            for g in range(2):
                r = ACC + 16 * t + 8 * g; d = TR + 4 * (2 * t + g)
                for j in range(4): k(f"v_cvt_pk_bf16_f32 {v(d+j)}, {v(r+2*j)}, {v(r+2*j+1)}")
                k(f"buffer_store_dwordx4 {vr(d,4)}, {v(OFF+t)}, {sr(WSR,4)}, s58 offen offset:{640*g} {HO}")

def spare_prefetch(k):
    k(f"v_lshlrev_b32 v146, 7, v1")
    dst = 64
    for ptr, nbytes in ((P_WG, 640 * 3072), (P_WU, 640 * 3072), (P_WO, 640 * 1280), (P_WMOD, 640 * 7680), (P_WD, 1536 * 1280)):
        srd(k, RB, ptr, nbytes)
        for j in range((nbytes // 8192 + 15) // 16):
            k(f"s_add_u32 s50, {s(srb)}, {16*j}\ns_lshl_b32 s50, s50, 13\nbuffer_load_dword {v(dst)}, v146, {sr(RB,4)}, s50 offen")
            dst += 1
    assert dst <= 256

def consumer01(k, after):
    mod_job(k)
    if MOD0: mod_rest0(k)
    k.stamp(1)
    sync01_consumer(k)
    k.stamp(2)
    idle, lv = k.lab("qidle"), k.lab("qv")
    k(f"s_cmp_eq_u32 {s(scb)}, 15\ns_cbranch_scc1 {idle}")
    k(f"s_cmp_ge_u32 {s(scb)}, 10\ns_cbranch_scc1 {lv}")
    qkv_consumer(k, False)
    k(f"s_branch {after}")
    k.label(lv)
    qkv_consumer(k, True)
    k(f"s_branch {after}")
    k.label(idle)
    for _ in range(5 if WCH else 3): k("s_barrier")
    k(f"s_branch {after}")

def xpose_tail(k):
    if not XPOSE: return
    skip = k.lab("nxt")
    k(f"s_cmp_eq_u32 {s(scb)}, 15\ns_cbranch_scc1 {skip}")
    xpose_addr(k, 40)
    k(f"s_sub_u32 s52, {s(sw)}, 4")
    xpose_steps(k, 40, [48, 64], 100, 52, 4, 2, 5)
    k.label(skip)

WEARLY = int(os.environ.get("WEARLY", "0"))
def early_w(k):
    skip = k.lab("new")
    k(f"s_cmp_eq_u32 {s(scb)}, 15\ns_cbranch_scc1 {skip}")
    wtile_setup(k)
    k(f"s_sub_u32 s59, {s(sw)}, 6")
    wtile_issue_rot(k, WEARLY, 2)
    k.label(skip)

def producer01(k, after):
    lnw, joined, notile, nt2 = k.lab("lnw"), k.lab("pj"), k.lab("nt"), k.lab("nt2")
    k(f"s_cmp_lt_u32 {s(sw)}, 6\ns_cbranch_scc1 {lnw}")
    w7 = k.lab("w7")
    k(f"s_cmp_eq_u32 {s(sw)}, 7\ns_cbranch_scc1 {w7}")
    if WEARLY:
        code_prefetch(k)
        early_w(k)
    else:
        line_prefetch(k, P_WQKV, 640 * 3840, 2, 150)
        code_prefetch(k)
        k("s_waitcnt vmcnt(0)")
    wait_ready(k)
    if NOB1:
        k(f"v_mov_b32 v2, {LRDY}\nv_mov_b32 v3, 1\nds_write_b32 v2, v3")
    k(f"s_branch {joined}")
    k.label(w7)
    if os.environ.get("TLBW", "1") == "1":
        k("v_lshlrev_b32 v146, 21, v1")
        k(f"buffer_load_dword v150, v146, {sr(WSR,4)}, 0 offen sc1")
        pages = [(P_WO, 640 * 1280), (P_WG, 640 * 3072), (P_WU, 640 * 3072), (P_WD, 1536 * 1280)]
        if os.environ.get("TLBO", "0") == "1": pages.append((P_OUT, 2048 * 1280))
        for i, (ptr, nbytes) in enumerate(pages):
            srd(k, RB, ptr, nbytes)
            k(f"buffer_load_dword {v(151+i)}, v146, {sr(RB,4)}, 0 offen")
    if WEARLY: early_w(k)
    if NOB1: k("s_waitcnt vmcnt(0)")
    B2 = os.environ.get("BATCH2", "0")
    if B2 in ("1", "2"):
        if B2 == "1":
            line_prefetch(k, P_WO, 640 * 1280, 1, 150)
            k("s_waitcnt vmcnt(0)")
        else:
            k("s_sleep 8")
            line_prefetch(k, P_WO, 640 * 1280, 1, 150)
        line_prefetch(k, P_WG, 640 * 3072, 1, 154)
        line_prefetch(k, P_WU, 640 * 3072, 1, 155)
        line_prefetch(k, P_WMOD, 640 * 7680, 3, 151)
        line_prefetch(k, P_WD, 1536 * 1280, 1, 156)
    k(f"s_branch {joined}")
    k.label(lnw)
    ln_job(k)
    probe(k, "p0", 2)
    k("s_waitcnt vmcnt(0)")
    probe(k, "p0", 3)
    if NOB1:
        lnd = k.lab("lnd")
        k(f"v_mov_b32 v2, {LLN}\nv_mov_b32 v3, 1\ns_mov_b64 exec, 1\nds_add_rtn_u32 v4, v2, v3\ns_waitcnt lgkmcnt(0)\ns_mov_b64 exec, -1\nv_readfirstlane_b32 s53, v4")
        k(f"s_cmp_lg_u32 s53, 1\ns_cbranch_scc1 {lnd}")
        lds_wait_ready(k)
        k(f"s_lshr_b32 s53, s2, 4\ns_add_u32 s52, s53, {C_X}\ns_add_u32 s53, s53, {G_X}")
        arrive(k, "s52", 16, "s53")
        k.label(lnd)
        k(f"s_branch {nt2}")
    k.label(joined)
    k.stamp(1)
    if NOB1:
        k(f"s_cmp_eq_u32 {s(scb)}, 15\ns_cbranch_scc1 {nt2}")
        wtile_setup(k)
        k(f"s_sub_u32 s59, {s(sw)}, 6")
        wtile_issue_rot(k, 70, 2)
    else:
        k("s_barrier")
        k(f"s_cmp_eq_u32 {s(scb)}, 15\ns_cbranch_scc1 {nt2}")
        wtile_setup(k)
        if WEARLY < 70:
            assert (140 - 2 * WEARLY) % 4 == 0
            k(f"s_sub_u32 s59, {s(sw)}, 4\ns_add_u32 s59, s59, {2*WEARLY}")
            wtile_issue_rot(k, (140 - 2 * WEARLY) // 4, 4)
    k.label(nt2)
    if SIDE == "p1":
        mini_issue(k, 0)
        k("s_waitcnt vmcnt(4)")
    else:
        k("s_waitcnt vmcnt(%d)" % ((46 if NOB1 else 23) if WCH else 0))
    probe(k, "p0", 4)
    k("s_barrier")
    k.stamp(2)
    if XPOSE:
        nx = k.lab("nxp")
        k(f"s_cmp_eq_u32 {s(scb)}, 15\ns_cbranch_scc1 {nx}")
        xpose_addr(k, 40)
        xpose_steps(k, 40, [48, 64, 80, 96], 112, sw, 8, 4, None)
        k.label(nx)
    k("s_barrier")
    k("s_barrier")
    k(f"s_cmp_eq_u32 {s(scb)}, 15\ns_cbranch_scc1 {notile}")
    wtile_setup(k)
    if XPOSE:
        k(f"s_sub_u32 s59, {s(sw)}, 4\ns_lshl_b32 s59, s59, 2\ns_add_u32 s59, s59, 140")
        wtile_issue(k, 0, 4, 1, wrap=True)
        n39 = k.lab("n39")
        k(f"s_cmp_lg_u32 {s(sw)}, 4\ns_cbranch_scc1 {n39}\ns_mov_b32 s59, 156")
        wtile_issue(k, 0, 4, 1, wrap=True)
        k.label(n39)
    else:
        k(f"s_sub_u32 s59, {s(sw)}, 4\ns_mul_i32 s59, s59, 5\ns_add_u32 s59, s59, 140")
        wtile_issue(k, 0, 5, 1, wrap=True)
    k.label(notile)
    if SIDE == "hyb":
        if WCH:
            k("s_waitcnt vmcnt(%d)\ns_barrier" % (27 if NOB1 else 16))
            k("s_waitcnt vmcnt(5)\ns_barrier")
        k("s_waitcnt vmcnt(0)")
        xpose_tail(k)
        mod_rest_load(k)
        k("s_barrier")
        k("s_waitcnt vmcnt(0)")
        mod_rest_finish(k)
    elif SIDE == "p1":
        k("s_waitcnt vmcnt(0)")
        xpose_tail(k)
        mini_finish(k, 0)
        mod_rest_load(k)
        mini_issue(k, 1)
        k("s_barrier")
        k("s_waitcnt vmcnt(0)")
        mini_finish(k, 0)
        mod_rest_finish(k)
    else:
        k("s_waitcnt vmcnt(0)")
        xpose_tail(k)
        k("s_barrier")
    k.stamp(4)
    k(f"s_branch {after}")
```

```python
import sys, os
sys.path.insert(0, os.path.dirname(os.path.abspath(__file__)))
from mcommon import *
import p01, p2, p345, side

NAME = "adaLN_cond__mha_block__glu_gated_glu__prompt_kernel"
STOP = int(os.environ.get("STOP", "9"))
DIRECT = os.environ.get("DIRECT", "5")
EARLY = os.environ.get("EARLY", "")
LDS = 163840

def finish(k):
    k.stamp(23)
    k.stamp_flush(WSR, sw)
    k("s_endpgm")

def build():
    k = K(NAME, 256)
    k.name_short = "m"
    end = k.lab("end")
    k(f"s_cmp_ge_u32 s2, 256\ns_cbranch_scc1 {end}")
    if STAMPS:
        for i in range(24): k(f"s_mov_b32 s{70+i}, 0")
    k.stamp(0)
    k("s_load_dwordx16 s[16:31], s[0:1], 0\ns_load_dwordx8 s[32:39], s[0:1], 64")
    k(f"v_and_b32 v1, 63, v0\nv_lshrrev_b32 v2, 6, v0\nv_readfirstlane_b32 {s(sw)}, v2")
    k(f"s_and_b32 {s(sXCD)}, s2, 7\ns_lshr_b32 {s(sIDX)}, s2, 3")
    p01.tile_ids(k)
    k("s_waitcnt lgkmcnt(0)")
    probe(k, "p0", 0)
    srd(k, WSR, P_WS, (64 << 20) if STAMPS else WS["END"])
    p01.zero_init(k)
    p01.macc_init(k)
    prod01, p1done = k.lab("prod01"), k.lab("p1done")
    k(f"s_cmp_ge_u32 {s(sw)}, 4\ns_cbranch_scc1 {prod01}")
    p01.consumer01(k, p1done)
    k.label(prod01)
    p01.producer01(k, p1done)
    k.label(p1done)
    k.stamp(14)
    nw, pr = k.lab("s12w"), k.lab("s12pr")
    k(f"s_cmp_ge_u32 {s(sw)}, 4\ns_cbranch_scc1 {pr if SIDE == 'p1' else nw}")
    k("s_waitcnt vmcnt(0)")
    probe(k, "s12", 0)
    k(f"v_mov_b32 v2, {p01.LCNT}\nv_mov_b32 v3, 1")
    k("s_mov_b64 exec, 1\nds_add_rtn_u32 v4, v2, v3\ns_waitcnt lgkmcnt(0)\ns_mov_b64 exec, -1\nv_readfirstlane_b32 s53, v4")
    k(f"s_cmp_lg_u32 s53, 3\ns_cbranch_scc1 {nw}")
    p2.write_consts(k)
    k(f"s_cmp_eq_u32 {s(p01.scb)}, 15\ns_cbranch_scc1 {nw}")
    k(f"s_add_u32 s52, {s(p01.scb)}, {C_Q}\ns_add_u32 s53, {s(p01.scb)}, {G_Q}")
    arrive(k, "s52", 16, "s53")
    if SIDE == "p1":
        k(f"s_branch {nw}")
        k.label(pr)
        k("s_waitcnt vmcnt(0)")
        k(f"v_mov_b32 v2, {p01.LCNT + 4}\nv_mov_b32 v3, 1")
        k("s_mov_b64 exec, 1\nds_add_rtn_u32 v4, v2, v3\ns_waitcnt lgkmcnt(0)\ns_mov_b64 exec, -1\nv_readfirstlane_b32 s53, v4")
        k(f"s_cmp_lg_u32 s53, 3\ns_cbranch_scc1 {nw}")
        k(f"s_and_b32 s52, s2, 15\ns_add_u32 s52, s52, {C_D}")
        arrive(k, "s52", 16, G_D, 1, R_D, 16)
    k.label(nw)
    probe(k, "s12", 1)
    if STOP == 1: finish(k); k.label(end); k("s_endpgm"); k.label("CODE_END"); return k
    if SIDE != "p1": side.decode(k)
    p2.setup(k)
    probe(k, "s12", 2)
    nw = k.lab("s12p")
    k(f"s_cmp_lg_u32 {s(sw)}, 0\ns_cbranch_scc1 {nw}")
    p2.dep_counters(k)
    poll(k, 5, 6)
    probe(k, "s12", 3)
    k.label(nw)
    k("s_barrier")
    k.stamp(5)
    p2.attention(k)
    k.stamp(15)
    nd = k.lab("nogd")
    k(f"s_cmp_lg_u32 {s(sw)}, 0\ns_cbranch_scc1 {nd}")
    k(f"v_mov_b32 v7, {G_D*256}\nv_mov_b32 v6, 1")
    poll(k, 7, 6, 8)
    k.label(nd)
    k("s_waitcnt vmcnt(0)")
    probe(k, "s23", 0)
    k("s_barrier")
    probe(k, "s23", 1)
    w0, rdy = k.lab("s23w0"), k.lab("s23r")
    k(f"s_cmp_lg_u32 {s(sw)}, 0\ns_cbranch_scc1 {w0}")
    k(f"s_add_u32 s52, {s(p2.sqb)}, {C_O}\ns_add_u32 s53, {s(p2.sqb)}, {G_O}")
    if "3" in DIRECT: arrive_direct(k, "s52")
    else: arrive(k, "s52", 32, "s53")
    if STOP == 2:
        k.label(w0); finish(k); k.label(end); k("s_endpgm"); k.label("CODE_END"); return k
    p345.ids(k)
    k(f"s_lshr_b32 s52, {s(p345.srb)}, 2\ns_add_u32 s52, s52, {C_O if '3' in DIRECT else G_O}")
    poll_setup(k, [("s52", 1, 32 if "3" in DIRECT else 1)]); poll(k, 5, 6)
    k(f"s_branch {rdy}")
    k.label(w0)
    p345.ids(k)
    p345.wo_prefetch(k)
    nv = k.lab("nov3")
    k(f"s_cmp_lg_u32 {s(sw)}, 7\ns_cbranch_scc1 {nv}")
    p345.vec_load(k, [(2, False), (4, True)], p345.VEC3)
    k.label(nv)
    k("s_waitcnt vmcnt(0)")
    k.label(rdy)
    probe(k, "s23", 2)
    k("s_barrier")
    k.stamp(8)
    prod3 = k.lab("prod3")
    k(f"s_cmp_ge_u32 {s(sw)}, 4\ns_cbranch_scc1 {prod3}")
    p345.wo_consumer(k)
    k.stamp(16)
    k("s_waitcnt vmcnt(0)")
    probe(k, "s23", 3)
    k("s_barrier")
    probe(k, "s23", 4)
    nw, n1 = k.lab("s34w"), k.lab("s34w1")
    k(f"s_cmp_lg_u32 {s(sw)}, 1\ns_cbranch_scc1 {n1}")
    k(f"s_and_b32 s52, s2, 15\ns_add_u32 s52, s52, {C_U}")
    arrive(k, "s52", 16, G_U, 1, R_U, 16)
    k.label(n1)
    k(f"s_cmp_lg_u32 {s(sw)}, 0\ns_cbranch_scc1 {nw}")
    k(f"s_lshr_b32 s53, {s(p345.srb)}, 1\ns_add_u32 s52, s53, {C_Y}\ns_add_u32 s53, s53, {G_Y}")
    if "4" in DIRECT: arrive_direct(k, "s52")
    else: arrive(k, "s52", 16, "s53")
    if STOP > 3:
        k(f"s_add_u32 s52, {s(p345.grb)}, {C_Y if '4' in DIRECT else G_Y}")
        poll_setup(k, [("s52", 1, 16 if "4" in DIRECT else 1)]); poll(k, 5, 6)
    k.label(nw)
    if STOP == 3: finish(k)
    else:
        k("s_barrier")
        k.stamp(10)
        p345.gu_consumer(k)
        k.stamp(12)
        k("s_waitcnt vmcnt(0)\ns_barrier")
        nw = k.lab("s45w")
        k(f"s_cmp_lg_u32 {s(sw)}, 0\ns_cbranch_scc1 {nw}")
        k(f"s_add_u32 s52, {s(p345.grb)}, {C_H}\ns_add_u32 s53, {s(p345.grb)}, {G_H}")
        if "5" in DIRECT: arrive_direct(k, "s52")
        else: arrive(k, "s52", 16, "s53")
        if STOP > 4:
            k(f"s_lshr_b32 s52, {s(p345.srb)}, 1\ns_add_u32 s52, s52, {C_H if '5' in DIRECT else G_H}")
            poll_setup(k, [("s52", 1, 16 if "5" in DIRECT else 1)]); poll(k, 5, 6)
        k.label(nw)
        if STOP == 4: finish(k)
        else:
            k("s_barrier")
            k.stamp(13)
            p345.down_consumer(k)
            finish(k)
    k.label(prod3)
    P = p345.Prod(k); vq = P.vq
    if STOP > 3:
        P.gu_setup(); P.gu_issue(0); P.gu_issue(1)
    p345.ub_job(k)
    npre = int(os.environ.get("GPRE", "6"))
    if "3" in EARLY:
        k("s_barrier")
        P.gu_setup()
        if STOP > 3:
            for c in range(2, npre): P.gu_issue(c)
    k("s_barrier")
    if STOP == 3: finish(k)
    else:
        if "3" not in EARLY:
            P.gu_setup()
            for c in range(2, npre): P.gu_issue(c)
        vq.wait(("g", 0, 5))
        k("s_barrier")
        issued = npre
        for c in range(1, 10):
            while issued < 10 and issued <= c + p345.AH4 and issued - p345.GSLOT <= c - 3:
                P.gu_issue(issued); issued += 1
            vq.wait(("g", c, 5))
            k("s_barrier")
            if c == 5:
                nu = k.lab("noubd")
                k(f"s_cmp_lg_u32 {s(sw)}, 4\ns_cbranch_scc1 {nu}")
                k(f"v_mov_b32 v6, 1\nv_mov_b32 v7, {G_U*256}")
                poll(k, 7, 6, 8)
                k(f"s_mul_i32 s63, {s(p345.gfb)}, 1536\ns_add_u32 s63, s63, {WS['UB']}")
                k(f"s_mov_b32 m0, {p345.UBL}\ns_nop 0\nbuffer_load_dwordx4 v5, {sr(WSR,4)}, s63 offen {HL} lds")
                k(f"s_add_u32 s63, s63, 1024\ns_mov_b32 m0, {p345.UBL + 1024}\ns_nop 0\nbuffer_load_dwordx4 v5, {sr(WSR,4)}, s63 offen {HL} lds")
                k.label(nu)
        if STOP > 4:
            P.d_setup()
            nv = k.lab("nov5")
            k(f"s_cmp_lg_u32 {s(sw)}, 7\ns_cbranch_scc1 {nv}")
            p345.vec_load(k, [(5, False)], p345.VEC5)
            k("v_lshlrev_b32 v5, 4, v1")
            k.label(nv)
            for c in range(4): P.d_issue(c)
        first5 = 4
        if "4" in EARLY:
            k("s_barrier")
            if STOP > 4:
                for c in range(4, 6): P.d_issue(c)
            first5 = 6
        k("s_barrier")
        if STOP == 4: finish(k)
        else:
            late5 = "5" in DIRECT and os.environ.get("LATE5", "0") == "1"
            if not late5:
                for c in range(first5, 7): P.d_issue(c)
            vq.wait(("d", 0, 4))
            k("s_barrier")
            if late5:
                for c in range(first5, 7): P.d_issue(c)
            issued = 7
            for c in range(1, 12):
                while issued < 12 and issued - 7 <= c - 3:
                    P.d_issue(issued); issued += 1
                vq.wait(("d", c, 4))
                k("s_barrier")
            finish(k)
    k.label(end)
    k("s_endpgm")
    k.label("CODE_END")
    return k

NOTES = """;
"""

def generate():
    here = os.path.dirname(os.path.abspath(__file__))
    head = open(os.path.join(here, "header.txt")).read()
    k = build()
    t, n = k.text()
    return head + f"; @launch grid=(256,1,1) block=(512,1,1) lds={LDS}\n" + NOTES + '.amdgcn_target "amdgcn-amd-amdhsa--gfx950"\n.text\n' + t + '.section .rodata,"a"\n' + k.desc()

if __name__ == "__main__":
    txt = generate()
    open(sys.argv[1], "w").write(txt)
    print("wrote", sys.argv[1], len(txt), "bytes,", txt.count("\n"), "lines")
```
